```python
import torch

def _softmax(x, axis=-1):
    return torch.softmax(x, dim=axis)
def _gelu(x):
    return torch.nn.functional.gelu(x, approximate="tanh")
def _silu(x):
    return torch.nn.functional.silu(x)
def _sigmoid(x):
    return torch.sigmoid(x)
def _layernorm(x, axis=-1, eps=1e-5):
    m = x.mean(dim=axis, keepdim=True)
    v = x.var(dim=axis, keepdim=True, unbiased=False)
    return (x - m) / torch.sqrt(v + eps)
def _scatter_add(tgt, idx, src, axis=0):
    return tgt.clone().index_add_(axis, idx, src)
def _segment_sum(src, seg, n):
    out = torch.zeros((n,) + src.shape[1:], dtype=src.dtype)
    return out.index_add_(0, seg, src)
def _pad(x, pw):
    flat = tuple(v for pair in reversed(pw) for v in pair)
    return torch.nn.functional.pad(x, flat)

kernel_name = 'sequential_preLN__ssm_conv_s4__glu_gated_glu__prompt'

def setup_inputs():

    _w = (lambda a: (lambda t: t.to(torch.bfloat16) if t.is_floating_point() else t)(torch.as_tensor(a)))
    def _A_setup():
        B, L, D, N = 1, 2048, 448, 256
        A_re = -(lambda _x: torch.exp(torch.as_tensor(_x)))((lambda *s: torch.randn(*s, dtype=torch.bfloat16) * 3.2)(D, N))
        A_im = torch.pi * (lambda *s: torch.randn(*s, dtype=torch.bfloat16) * 0.05)(D, N)
        B_re = (lambda *s: torch.randn(*s, dtype=torch.bfloat16) * 0.05)(D, N)
        B_im = (lambda *s: torch.randn(*s, dtype=torch.bfloat16) * 0.05)(D, N)
        C_re = (lambda *s: torch.randn(*s, dtype=torch.bfloat16) * 0.05)(D, N)
        C_im = (lambda *s: torch.randn(*s, dtype=torch.bfloat16) * 0.05)(D, N)
        log_dt = (lambda *s: torch.randn(*s, dtype=torch.bfloat16) * 0.05)(D) * 0.5 - 4.0
        Dskip = (lambda *s: torch.randn(*s, dtype=torch.bfloat16) * 0.05)(D)
        return {
            "u": _w((lambda *s: torch.randn(*s, dtype=torch.bfloat16) * 0.05)(B, L, D)),
            "A_re": _w(A_re),
            "A_im": _w(A_im),
            "B_re": _w(B_re),
            "B_im": _w(B_im),
            "C_re": _w(C_re),
            "C_im": _w(C_im),
            "log_dt": _w(log_dt),
            "Dskip": _w(Dskip),
        }
    _A_in = _A_setup()

    def _B_setup():
        B, S, D, F = 1, 2048, 448, 1792
        return {
            "x": _w((lambda *s: torch.randn(*s, dtype=torch.bfloat16) * 0.05)(B, S, D)),
            "w_gate": _w((lambda *s: torch.randn(*s, dtype=torch.bfloat16) * 0.05)(D, F)),
            "w_up": _w((lambda *s: torch.randn(*s, dtype=torch.bfloat16) * 0.05)(D, F)),
            "w_down": _w((lambda *s: torch.randn(*s, dtype=torch.bfloat16) * 0.05)(F, D)),
        }
    _B_in = _B_setup()

    return {
        "A_u": _A_in["u"],
        "A_A_re": _A_in["A_re"],
        "A_A_im": _A_in["A_im"],
        "A_B_re": _A_in["B_re"],
        "A_B_im": _A_in["B_im"],
        "A_C_re": _A_in["C_re"],
        "A_C_im": _A_in["C_im"],
        "A_log_dt": _A_in["log_dt"],
        "A_Dskip": _A_in["Dskip"],
        "B_x": _B_in["x"],
        "B_w_gate": _B_in["w_gate"],
        "B_w_up": _B_in["w_up"],
        "B_w_down": _B_in["w_down"],
    }

def reference(A_u, A_A_re, A_A_im, A_B_re, A_B_im, A_C_re, A_C_im, A_log_dt, A_Dskip, B_x, B_w_gate, B_w_up, B_w_down):
    def _A_ref(u, A_re, A_im, B_re, B_im, C_re, C_im, log_dt, Dskip):
        Bsz, L, D = u.shape
        dt = torch.exp(log_dt)[:, None]
        A = A_re + 1j * A_im
        Bc = B_re + 1j * B_im
        Cc = C_re + 1j * C_im
        logdA = dt * A
        dB = dt * Bc
        l = (lambda x, dt: x.to(dt))(torch.arange(L), A_re.dtype)
        P = torch.exp(logdA[:, :, None] * l[None, None, :])
        K = torch.einsum("dn,dnl,dn->dl", Cc, P, dB).real
        L2 = 2 * L
        Kp = _pad(K, ((0, 0), (0, L)))
        up = (lambda x, *d: x.permute(*d))(u, 0, 2, 1)
        up = _pad(up, ((0, 0), (0, 0), (0, L)))
        Kf = (lambda x, axes=(-2,-1): torch.fft.rfft2(x.float(), dim=axes))(Kp[:, None, :], axes=(-2, -1))
        Uf = (lambda x, axes=(-2,-1): torch.fft.rfft2(x.float(), dim=axes))(up[:, :, None, :], axes=(-2, -1))
        Yf = Uf * Kf[None, :, :, :]
        y = (lambda x, s, axes=(-2,-1): torch.fft.irfft2(x, s=s, dim=axes).to(torch.bfloat16))(Yf, (1, L2), axes=(-2, -1))[:, :, 0, :L]
        y = (lambda x, *d: x.permute(*d))(y, 0, 2, 1) + u * Dskip[None, None, :]
        return y

    def _B_ref(x, w_gate, w_up, w_down):
        g = torch.einsum("bsd,df->bsf", x, w_gate)
        u = torch.einsum("bsd,df->bsf", x, w_up)
        h = _sigmoid(g) * u
        return torch.einsum("bsf,fd->bsd", h, w_down)

    x = A_u
    h = x + _A_ref(_layernorm(x, axis=-1), A_A_re, A_A_im, A_B_re, A_B_im, A_C_re, A_C_im, A_log_dt, A_Dskip)
    h2 = h + _B_ref(_layernorm(h, axis=-1), B_w_gate, B_w_up, B_w_down)
    return h2
```

```python
class Asm:
    def __init__(self):
        self.lines = []
    def __call__(self, s=''):
        for ln in s.split('\n'):
            self.lines.append(ln)
    def label(self, name): self.lines.append(name + ':')
    def text(self): return '\n'.join(self.lines) + '\n'
def v(i, n=1): return f'v{i}' if n == 1 else f'v[{i}:{i+n-1}]'
def a(i, n=1): return f'a{i}' if n == 1 else f'a[{i}:{i+n-1}]'
def s(i, n=1): return f's{i}' if n == 1 else f's[{i}:{i+n-1}]'
def kernel_begin(o, name):
    o(f'.globl {name}\n.p2align 8\n.type {name},@function\n{name}:')
def kernel_desc(name, vgpr, sgpr=102, accum=None):
    if accum is None: accum = min(256, (vgpr + 3) // 4 * 4)
    return f'''.p2align 6
.amdhsa_kernel {name}
  .amdhsa_next_free_vgpr {vgpr}
  .amdhsa_next_free_sgpr {sgpr}
  .amdhsa_accum_offset {accum}
  .amdhsa_group_segment_fixed_size 0
  .amdhsa_kernarg_size 128
  .amdhsa_user_sgpr_count 2
  .amdhsa_user_sgpr_kernarg_segment_ptr 1
  .amdhsa_system_sgpr_workgroup_id_x 1
  .amdhsa_float_denorm_mode_32 3
.end_amdhsa_kernel
'''
def srd(o, sreg, base_pair, nbytes, off=0):
    if off:
        o(f's_add_u32 s{sreg}, s{base_pair}, {off}')
        o(f's_addc_u32 s{sreg+1}, s{base_pair+1}, 0')
    else:
        o(f's_mov_b32 s{sreg}, s{base_pair}')
        o(f's_mov_b32 s{sreg+1}, s{base_pair+1}')
    o(f's_mov_b32 s{sreg+2}, {nbytes}')
    o(f's_mov_b32 s{sreg+3}, 0x00020000')
```

```python
from asmlib import *
from layout import *
from vm import VM
NAME = 'ssm_kernel'
PREFETCH = True
TAB = 16896
LDS_US = 8 * TAB
LDS_XS = LDS_US + 2 * 4608
LDS_EX = LDS_XS + 2 * 4096
LDS_BYTES = LDS_EX + 8192
KR_COPY = 4160; KR_CH = 2 * KR_COPY
LDS_CX = 17408
LDS_RP = LDS_CX + 16384
LOG2E = 0x3fb8aa3b; INV2PI = 0x3e22f983; INV448 = 0x3b124925; EPS = 0x3727c5ac
sX, sAre, sAim, sBre, sBim, sCre, sCim, sLdt = 8, 10, 12, 14, 16, 18, 20, 22
sDsk, sWd, sWg, sWu, sDbg, sWs = 24, 26, 28, 30, 32, 34
SRD_X, SRD_WS = 36, 40
SRD_P = [44, 48, 52, 56, 60, 64]
SRD_WG, SRD_WU, SRD_WD, SRD_DBG = 68, 72, 76, 80
sWave, sPair, sCh, sMh, sLdtV, sDskV = 3, 84, 85, 86, 87, 88
sT0, sT1, sT2, sT3, sT4, sT5 = 89, 90, 91, 92, 93, 94
sSp = 95
vLane, vTag, vE, vT0, vT1, vT2, vT3 = 0, 1, 2, 3, 4, 6, 7
vXR = 8
vS, vQ = 12, 13
def cmul(o, d, p, q):
    o(f'v_pk_mul_f32 v[{d}:{d+1}], v[{p}:{p+1}], v[{q}:{q+1}] op_sel_hi:[0,1]')
    o(f'v_pk_fma_f32 v[{d}:{d+1}], v[{p}:{p+1}], v[{q}:{q+1}], v[{d}:{d+1}] op_sel:[1,1,0] op_sel_hi:[1,0,1] neg_lo:[1,0,0]')
def cmul2(o, dA, pA, qA, dB, pB, qB):
    o(f'v_pk_mul_f32 v[{dA}:{dA+1}], v[{pA}:{pA+1}], v[{qA}:{qA+1}] op_sel_hi:[0,1]')
    o(f'v_pk_mul_f32 v[{dB}:{dB+1}], v[{pB}:{pB+1}], v[{qB}:{qB+1}] op_sel_hi:[0,1]')
    o(f'v_pk_fma_f32 v[{dA}:{dA+1}], v[{pA}:{pA+1}], v[{qA}:{qA+1}], v[{dA}:{dA+1}] op_sel:[1,1,0] op_sel_hi:[1,0,1] neg_lo:[1,0,0]')
    o(f'v_pk_fma_f32 v[{dB}:{dB+1}], v[{pB}:{pB+1}], v[{qB}:{qB+1}], v[{dB}:{dB+1}] op_sel:[1,1,0] op_sel_hi:[1,0,1] neg_lo:[1,0,0]')
def row_stats(o, vm):
    vm.wait('xrow')
    o(f's_mov_b32 s{sT0}, 0x9E3779B1')
    o(f'v_mul_lo_u32 v{vTag}, v{vE}, s{sT0}')
    o(f'v_add_u32 v{vTag}, 0x7F4A7C15, v{vTag}')
    o(f'v_mov_b32 v{vS}, 0\nv_mov_b32 v{vQ}, 0\nv_mov_b32 v{vT0}, 0x3f803f80')
    for j in range(4):
        o(f'v_dot2c_f32_bf16 v{vS}, v{vXR+j}, v{vT0}')
        o(f'v_dot2c_f32_bf16 v{vQ}, v{vXR+j}, v{vXR+j}')
    o('s_nop 2')
    for ctl in ['row_shr:1', 'row_shr:2', 'row_shr:4', 'row_shr:8']:
        o(f'v_add_f32_dpp v{vS}, v{vS}, v{vS} {ctl} row_mask:0xf bank_mask:0xf bound_ctrl:0')
        o(f'v_add_f32_dpp v{vQ}, v{vQ}, v{vQ} {ctl} row_mask:0xf bank_mask:0xf bound_ctrl:0')
        o('s_nop 0')
    for ctl, rm in [('row_bcast:15', '0xa'), ('row_bcast:31', '0xc')]:
        o(f'v_add_f32_dpp v{vS}, v{vS}, v{vS} {ctl} row_mask:{rm} bank_mask:0xf')
        o(f'v_add_f32_dpp v{vQ}, v{vQ}, v{vQ} {ctl} row_mask:{rm} bank_mask:0xf')
        o('s_nop 0')
    o(f'v_mul_f32 v{vS}, {hex(INV448)}, v{vS}')
    o(f'v_mul_f32 v{vQ}, {hex(INV448)}, v{vQ}')
    o(f'v_fma_f32 v{vQ}, -v{vS}, v{vS}, v{vQ}')
    o(f'v_max_f32 v{vQ}, 0, v{vQ}')
    o(f'v_cvt_pk_bf16_f32 v{vT0}, v{vQ}, v{vQ}')
    o(f'v_and_b32 v{vT0}, 0xffff0000, v{vT0}')
    o(f'v_add_f32 v{vT0}, {hex(EPS)}, v{vT0}')
    o(f'v_cvt_pk_bf16_f32 v{vT0}, v{vT0}, v{vT0}')
    o(f'v_and_b32 v{vT0}, 0xffff0000, v{vT0}')
    o(f'v_sqrt_f32 v{vT0}, v{vT0}')
    o('s_nop 0')
    o(f'v_cvt_pk_bf16_f32 v{vT2}, v{vS}, v{vT0}')
    o(f'v_mov_b32 v{vT3}, v{vTag}')
    o(f's_lshl_b32 s{sT0}, s2, 3')
    o(f's_add_u32 s{sT0}, s{sT0}, s{sWave}')
    o(f's_lshl_b32 s{sT0}, s{sT0}, 3')
    o(f's_add_u32 s{sT0}, s{sT0}, {WS_REC}')
    o(f'v_mov_b32 v{vT1}, 0')
    o('s_mov_b32 exec_lo, 0')
    o('s_mov_b32 exec_hi, 0x80000000')
    o(f'buffer_store_dwordx2 v[{vT2}:{vT2+1}], v{vT1}, s[{SRD_WS}:{SRD_WS+3}], s{sT0} offen sc1'); vm.issue('rec')
    o('s_mov_b64 exec, -1')
def seed(o, dst, ar2, ai2, t, tmp, conj=False):
    o(f'v_mul_f32 v{tmp}, {float(t)}, v{ar2}' if t in (1, 2, 4) else f'v_mul_f32 v{tmp}, {hex(f32(t))}, v{ar2}')
    o(f'v_mul_f32 v{tmp+1}, {float(t)}, v{ai2}' if t in (1, 2, 4) else f'v_mul_f32 v{tmp+1}, {hex(f32(t))}, v{ai2}')
    o(f'v_exp_f32 v{tmp}, v{tmp}')
    o(f'v_fract_f32 v{tmp+1}, v{tmp+1}')
    o('s_nop 0')
    o(f'v_cos_f32 v{dst}, v{tmp+1}')
    o(f'v_sin_f32 v{dst+1}, v{tmp+1}')
    o('s_nop 0')
    o(f'v_mul_f32 v{dst}, v{tmp}, v{dst}')
    if conj: o(f'v_mul_f32 v{dst+1}, -v{dst+1}, v{tmp}'.replace('v_mul_f32', 'v_mul_f32_e64'))
    else: o(f'v_mul_f32 v{dst+1}, v{tmp}, v{dst+1}')
import struct
def f32(x): return struct.unpack('<I', struct.pack('<f', float(x)))[0]
def compute_dt(o, vdt):
    o(f's_lshl_b32 s{sT0}, s{sLdtV}, 16')
    o(f's_and_b32 s{sT1}, s{sLdtV}, 0xffff0000')
    o(f's_cmp_eq_u32 s{sCh}, 0')
    o(f's_cselect_b32 s{sT0}, s{sT0}, s{sT1}')
    o(f'v_mov_b32 v{vdt}, s{sT0}')
    o(f'v_mul_f32 v{vdt}, {hex(LOG2E)}, v{vdt}')
    o(f'v_exp_f32 v{vdt}, v{vdt}')
    o('s_nop 0')
    o(f'v_cvt_pk_bf16_f32 v{vdt}, v{vdt}, v{vdt}')
    o(f'v_and_b32 v{vdt}, 0xffff0000, v{vdt}')
def unpack(o, dlo, dhi, src):
    o(f'v_lshlrev_b32 v{dlo}, 16, v{src}')
    o(f'v_and_b32 v{dhi}, 0xffff0000, v{src}')
class RowWriter:
    def __init__(self, o, vaddr, out0): self.o, self.va, self.out0, self.n = o, vaddr, out0, 0
    def write(self, rows, cA, cB):
        r = self.out0 + 2 * (self.n % 4); self.n += 1
        self.o(f'v_cvt_pk_bf16_f32 v{r}, v{cA}, v{cA+1}')
        self.o(f'v_cvt_pk_bf16_f32 v{r+1}, v{cB}, v{cB+1}')
        for m in rows: self.o(f'ds_write_b64 v{self.va}, v[{r}:{r+1}] offset:{m * 528}')
def stamp(o, on, idx):
    if on: o(f's_memtime s[{96 + 0}:{97}]'); o('s_waitcnt lgkmcnt(0)'); o(f'v_writelane_b32 v255, s96, {idx}')

def gen_ab(o, stamps=False):
    kernel_begin(o, NAME)
    o('s_cmp_ge_u32 s2, 256')
    o('s_cbranch_scc1 LA_end')
    o('s_load_dwordx16 s[8:23], s[0:1], 0')
    o(f's_load_dwordx2 s[{sDsk}:{sDsk+1}], s[0:1], 64')
    o(f's_load_dwordx4 s[{sWg}:{sWg+3}], s[0:1], 80')
    o(f's_load_dwordx2 s[{sWd}:{sWd+1}], s[0:1], 96')
    o(f's_load_dwordx4 s[{sDbg}:{sDbg+3}], s[0:1], 112')
    if stamps: o('v_mov_b32 v255, 0'); o('s_memtime s[98:99]')
    o(f'v_lshrrev_b32 v{vT0}, 6, v0')
    o('v_and_b32 v0, 63, v0')
    o(f'v_readfirstlane_b32 s{sWave}, v{vT0}')
    o(f's_and_b32 s{sT0}, s2, 7')
    o(f's_lshr_b32 s{sT1}, s2, 3')
    if PREFETCH: code_prefetch(o, NAME, 'code_end', sT1, sWave, 8, 240, 244, 96, 'ab')
    o(f's_mul_i32 s{sPair}, s{sT0}, 28')
    o(f's_add_u32 s{sPair}, s{sPair}, s{sT1}')
    o(f's_lshl_b32 s{sSp}, s{sT0}, 2')
    o(f's_add_u32 s{sSp}, s{sSp}, s{sT1}')
    o(f's_sub_u32 s{sSp}, s{sSp}, 28')
    o(f's_lshr_b32 s{sCh}, s{sWave}, 1')
    o(f's_and_b32 s{sCh}, s{sCh}, 1')
    o(f's_and_b32 s{sMh}, s{sWave}, 1')
    for j in range(4): o(f'v_mov_b32 v{vXR+j}, 0')
    o('v_mov_b32 v250, 0\nv_mov_b32 v251, 0')
    o(f'v_lshlrev_b32 v{vT1}, 4, v0')
    o('s_waitcnt lgkmcnt(0)')
    srd(o, SRD_X, sX, 1835008)
    srd(o, SRD_WS, sWs, WS_H + H_BYTES)
    vm = VM(o)
    o(f'buffer_load_dword v{vE}, off, s[{SRD_WS}:{SRD_WS+3}], 0 sc1'); vm.issue('E')
    o(f's_lshl_b32 s{sT2}, s2, 3')
    o(f's_add_u32 s{sT2}, s{sT2}, s{sWave}')
    o(f's_mul_i32 s{sT2}, s{sT2}, 896')
    o('s_mov_b32 exec_hi, 0x00ffffff')
    o(f'buffer_load_dwordx4 v[{vXR}:{vXR+3}], v{vT1}, s[{SRD_X}:{SRD_X+3}], s{sT2} offen'); vm.issue('xrow')
    o('s_mov_b32 exec_hi, -1')
    o(f's_cmp_ge_u32 s{sT1}, 28')
    o('s_cbranch_scc1 LA_spare')
    o(f's_lshl_b32 s{sT2}, s{sPair}, 2')
    o(f's_load_dword s{sLdtV}, s[{sLdt}:{sLdt+1}], s{sT2}')
    o(f's_load_dword s{sDskV}, s[{sDsk}:{sDsk+1}], s{sT2}')
    for i, p in enumerate([sAre, sAim, sBre, sBim, sCre, sCim]): srd(o, SRD_P[i], p, 229376)
    o(f's_lshl_b32 s{sT2}, s{sPair}, 1')
    o(f's_add_u32 s{sT2}, s{sT2}, s{sCh}')
    o(f's_lshl_b32 s{sT3}, s{sT2}, 9')
    o(f's_lshl_b32 s{sT4}, s{sMh}, 8')
    o(f's_add_u32 s{sT3}, s{sT3}, s{sT4}')
    o(f'v_lshlrev_b32 v{vT2}, 2, v0')
    o(f's_cmp_ge_u32 s{sWave}, 4')
    o('s_cbranch_scc1 LA_nwave')
    gen_mwave(o, vm.q[:], stamps)
    o.label('LA_nwave')
    gen_nwave(o, vm.q[:], stamps)
    o.label('LA_spare')
    gen_spare(o, vm.q[:], stamps)
    o.label('LA_end')
    o('s_endpgm')

def finish(o, stamps):
    if stamps:
        o('s_waitcnt vmcnt(0) lgkmcnt(0)')
        stamp(o, True, 15)
        o('v_writelane_b32 v255, s98, 14')
        srd(o, 44, sWs, 0x40000, 0x1820000)
        o(f's_lshl_b32 s{sT0}, s2, 3\ns_add_u32 s{sT0}, s{sT0}, s{sWave}\ns_lshl_b32 s{sT0}, s{sT0}, 6')
        o(f'v_lshlrev_b32 v254, 2, v0')
        o('s_mov_b64 exec, 0xffff')
        o(f'buffer_store_dword v255, v254, s[44:47], s{sT0} offen')
    o('s_endpgm')

def gen_mwave(o, q0, stamps):
    vm = VM(o); vm.q = q0
    P = 16
    for i in range(6):
        o(f'buffer_load_dword v{P+i}, v{vT2}, s[{SRD_P[i]}:{SRD_P[i]+3}], s{sT3} offen'); vm.issue('par')
    row_stats(o, vm)
    stamp(o, stamps, 0)
    vm.wait('par')
    o('s_waitcnt lgkmcnt(0)')
    stamp(o, stamps, 1)
    vdt = 22
    compute_dt(o, vdt)
    U = 24
    for i in range(6): unpack(o, U + 2*i, U + 2*i + 1, P + i)
    for i in range(4): o(f'v_mul_f32 v{U+i}, v{vdt}, v{U+i}')
    for i in range(4, 8): o(f'v_mul_f32 v{U+i}, v{vdt}, v{U+i}')
    o(f'v_mul_f32 v{U}, {hex(LOG2E)}, v{U}\nv_mul_f32 v{U+1}, {hex(LOG2E)}, v{U+1}')
    o(f'v_mul_f32 v{U+2}, {hex(INV2PI)}, v{U+2}\nv_mul_f32 v{U+3}, {hex(INV2PI)}, v{U+3}')
    X0 = 36; X2 = 40; X4 = 44; X6 = 48; X8 = 52; E1 = 56; CUR = 60; CU2 = 64
    Pw = {k: 68 + 4 * (k - 1) for k in range(1, 8)}
    TMP = 96; OUT = 100
    for mu in range(2):
        bre, bim, cre, cim = U + 4 + mu, U + 6 + mu, U + 8 + mu, U + 10 + mu
        w = X0 + 2 * mu
        o(f'v_mul_f32 v{w}, v{cre}, v{bre}')
        o(f'v_mul_f32 v{w+1}, v{cre}, v{bim}')
        o(f'v_fma_f32 v{w}, -v{cim}, v{bim}, v{w}')
        o(f'v_fma_f32 v{w+1}, v{cim}, v{bre}, v{w+1}')
    for mu in range(2):
        seed(o, E1 + 2*mu, U + mu, U + 2 + mu, 1, TMP + 2*mu)
        seed(o, Pw[1] + 2*mu, U + mu, U + 2 + mu, 256, TMP + 2*mu)
    vTab = 108
    o(f's_lshl_b32 s{sT0}, s{sCh}, 1\ns_add_u32 s{sT0}, s{sT0}, s{sMh}\ns_mul_i32 s{sT0}, s{sT0}, {TAB}')
    o(f'v_lshlrev_b32 v{vTab}, 3, v0\nv_add_u32 v{vTab}, s{sT0}, v{vTab}')
    rw = RowWriter(o, vTab, OUT)
    def c2(d, p, q): cmul2(o, d, p, q, d + 2, p + 2, q + 2)
    rw.write([0], X0, X0 + 2)
    keep = {0: X0, 2: X2, 4: X4, 6: X6, 8: X8}
    prev = X0
    for t in range(1, 9):
        d = keep.get(t, CUR)
        c2(d, prev, E1)
        rows = [t] if t < 8 else [12]
        if t == 4: rows = [4, 8]
        rw.write(rows, d, d + 2)
        prev = d
    c2(Pw[2], Pw[1], Pw[1]); c2(Pw[3], Pw[2], Pw[1]); c2(Pw[4], Pw[2], Pw[2])
    c2(Pw[5], Pw[4], Pw[1]); c2(Pw[6], Pw[4], Pw[2]); c2(Pw[7], Pw[4], Pw[3])
    alt = [CUR, CU2]; n = 0
    def prod(rows, xs, pk):
        nonlocal n
        d = alt[n % 2]; n += 1
        c2(d, keep[xs], Pw[pk]); rw.write(rows, d, d + 2)
    prod([9], 0, 1); prod([10], 2, 1); prod([11, 13], 4, 1); prod([14], 6, 1); prod([15], 8, 1)
    prod([16], 0, 2); prod([17], 4, 2); prod([18], 8, 2)
    prod([20], 0, 3); prod([21], 4, 3); prod([22], 8, 3)
    prod([19], 0, 4); prod([24], 8, 4)
    prod([25], 0, 5); prod([26], 8, 5)
    prod([23], 0, 6); prod([28], 8, 6)
    prod([29], 0, 7); prod([30], 8, 7)
    vA, vB = 109, 110
    o(f'v_and_b32 v{vT0}, 31, v0\nv_mul_u32_u24 v{vT0}, 528, v{vT0}')
    o(f'v_lshrrev_b32 v{vT1}, 5, v0\nv_lshlrev_b32 v{vT1}, 4, v{vT1}')
    o(f'v_add3_u32 v{vA}, v{vT0}, v{vT1}, s{sT0}')
    o(f'v_add_u32 v{vB}, {4 * TAB}, v{vA}')
    o('s_waitcnt lgkmcnt(0)')
    stamp(o, stamps, 2)
    o('s_barrier')
    FR = 112; KD = 16
    def rd(kk):
        b = FR + 8 * (kk % 4)
        o(f'ds_read_b128 v[{b}:{b+3}], v{vA} offset:{kk * 32}')
        o(f'ds_read_b128 v[{b+4}:{b+7}], v{vB} offset:{kk * 32}')
    for kk in range(3): rd(kk)
    for kk in range(16):
        if kk + 3 < 16: rd(kk + 3)
        o(f's_waitcnt lgkmcnt({2 * min(3, 15 - kk)})')
        b = FR + 8 * (kk % 4)
        c = '0' if kk == 0 else f'v[{KD}:{KD+15}]'
        o(f'v_mfma_f32_32x32x16_bf16 v[{KD}:{KD+15}], v[{b}:{b+3}], v[{b+4}:{b+7}], {c}')
    vEx = 111
    o(f's_lshl_b32 s{sT1}, s{sWave}, 11')
    o(f'v_lshlrev_b32 v{vEx}, 4, v0')
    o(f'v_add_u32 v{vEx}, s{sT1}, v{vEx}')
    o(f'v_add_u32 v{vEx}, {LDS_EX}, v{vEx}')
    o('s_nop 7\ns_nop 3')
    o(f's_cmp_eq_u32 s{sMh}, 0')
    o('s_cbranch_scc0 LM_send1')
    o(f'ds_write_b128 v{vEx}, v[{KD+8}:{KD+11}]\nds_write_b128 v{vEx}, v[{KD+12}:{KD+15}] offset:1024')
    o('s_branch LM_sent')
    o.label('LM_send1')
    o(f'ds_write_b128 v{vEx}, v[{KD}:{KD+3}]\nds_write_b128 v{vEx}, v[{KD+4}:{KD+7}] offset:1024')
    o.label('LM_sent')
    o(f'v_xor_b32 v{vEx}, 2048, v{vEx}')
    o('s_waitcnt lgkmcnt(0)')
    stamp(o, stamps, 3)
    o('s_barrier')
    R = 32
    o(f'ds_read_b128 v[{R}:{R+3}], v{vEx}\nds_read_b128 v[{R+4}:{R+7}], v{vEx} offset:1024')
    vK = 40; vJ = 41; vH = 42; O = 44
    o(f'v_and_b32 v{vJ}, 31, v0\nv_lshrrev_b32 v{vH}, 5, v0')
    o(f's_mul_i32 s{sT1}, s{sCh}, {KR_CH}')
    o(f's_cmp_eq_u32 s{sMh}, 0')
    o('s_cbranch_scc0 LM_exp1')
    o(f'v_lshlrev_b32 v{vK}, 4, v{vJ}\nv_lshlrev_b32 v{vT0}, 3, v{vH}\nv_add_u32 v{vK}, v{vK}, v{vT0}')
    o(f'v_sub_u32 v{vK}, 4088, v{vK}\nv_add_u32 v{vK}, s{sT1}, v{vK}')
    o('s_waitcnt lgkmcnt(0)')
    for j in range(8): o(f'v_add_f32 v{KD+j}, v{KD+j}, v{R+j}')
    a0, a1, a2, a3, a4, sa, sb, sc = [KD + j for j in range(8)]
    cv = lambda d, lo, hi: o(f'v_cvt_pk_bf16_f32 v{d}, v{lo}, v{hi}')
    cv(O, a3, a2); cv(O+1, a1, a0); cv(O+2, a4, a3); cv(O+3, a2, a1)
    o(f'ds_write_b64 v{vK}, v[{O}:{O+1}] offset:{KR_COPY}')
    o(f'ds_write_b64 v{vK}, v[{O+2}:{O+3}]')
    cv(O+4, sc, sb); cv(O+5, sa, sa); cv(O+6, sc, sc); cv(O+7, sb, sa)
    o(f'v_subrev_u32 v{vK}, 512, v{vK}')
    o(f'ds_write_b64 v{vK}, v[{O+4}:{O+5}] offset:{KR_COPY}')
    o(f'ds_write_b64 v{vK}, v[{O+6}:{O+7}]')
    o(f'v_mov_b32 v{O+8}, 0')
    cv(O+9, a0, O+8)
    o(f'v_cmp_eq_u32 vcc, 0, v0')
    o(f'v_lshlrev_b32 v{vT0}, 2, v0')
    o(f'v_add_u32 v{vT0}, s{sT1}, v{vT0}')
    o(f'v_cndmask_b32 v{O+9}, v{O+8}, v{O+9}, vcc')
    o('s_mov_b64 exec, 0xff')
    o(f'ds_write_b32 v{vT0}, v{O+9} offset:4096')
    o(f'ds_write_b32 v{vT0}, v{O+8} offset:{4096 + KR_COPY}')
    o('s_mov_b64 exec, -1')
    o('s_branch LM_expd')
    o.label('LM_exp1')
    o(f'v_lshlrev_b32 v{vK}, 4, v{vJ}\nv_lshlrev_b32 v{vT0}, 9, v{vH}\nv_add_u32 v{vK}, v{vK}, v{vT0}')
    o(f'v_sub_u32 v{vK}, {4080 - 1024}, v{vK}\nv_add_u32 v{vK}, s{sT1}, v{vK}')
    vK3 = 43
    o(f'v_lshlrev_b32 v{vK3}, 4, v{vJ}\nv_lshlrev_b32 v{vT0}, 10, v{vH}\nv_add_u32 v{vK3}, v{vK3}, v{vT0}')
    o(f'v_sub_u32 v{vK3}, {4080 - 2048 - 512}, v{vK3}\nv_add_u32 v{vK3}, s{sT1}, v{vK3}')
    o(f'v_and_b32 v{vT0}, 1, v{vJ}')
    o(f'v_cmp_eq_u32 vcc, 0, v{vT0}')
    o('s_waitcnt lgkmcnt(0)')
    for j in range(8): o(f'v_add_f32 v{KD+8+j}, v{KD+8+j}, v{R+j}')
    T0, T1, T2 = KD + 8, KD + 9, KD + 10
    cv(O, T2, T2); cv(O+1, T1, T1); cv(O+2, T1, T0); cv(O+3, T0, T0)
    o(f'ds_write_b128 v{vK}, v[{O}:{O+3}] offset:{KR_COPY}')
    cv(O+4, T2, T2); cv(O+5, T2, T1); cv(O+6, T1, T1); cv(O+7, T0, T0)
    o(f'ds_write_b128 v{vK}, v[{O+4}:{O+7}]')
    for ii in range(2):
        t0, t1 = KD + 11 + 2*ii, KD + 12 + 2*ii
        sel = O + 16
        q = O + 8 * (ii + 1) if ii == 0 else O
        o(f'v_cndmask_b32 v{sel}, v{t1}, v{t0}, vcc')
        off = 512 if ii == 0 else 0
        cv(q, t1, t1); cv(q+1, t1, sel); cv(q+2, t0, t0); cv(q+3, t0, t0)
        o(f'ds_write_b128 v{vK3}, v[{q}:{q+3}] offset:{KR_COPY + off}')
        cv(q+4, t1, t1); cv(q+5, t1, t1); cv(q+6, sel, t0); cv(q+7, t0, t0)
        o(f'ds_write_b128 v{vK3}, v[{q+4}:{q+7}] offset:{off}')
    o.label('LM_expd')
    AF = 64; ACC = 32; BB = 192; vKA = [208, 209, 210, 211]; vBa = 212
    vR, vHh = 213, 214
    o(f'v_and_b32 v{vR}, 15, v0\nv_lshrrev_b32 v{vHh}, 4, v0')
    o(f'v_and_b32 v{vT0}, 1, v{vR}')
    o(f'v_add_u32 v{vT1}, v{vR}, v{vT0}')
    o(f'v_mul_u32_u24 v{vT0}, {KR_COPY}, v{vT0}')
    o(f'v_lshlrev_b32 v{vT1}, 1, v{vT1}')
    o(f'v_sub_u32 v{vT0}, v{vT0}, v{vT1}')
    o(f'v_lshlrev_b32 v{vT1}, 4, v{vHh}')
    o(f'v_add_u32 v{vT0}, v{vT0}, v{vT1}')
    o(f's_mul_i32 s{sT1}, s{sCh}, {KR_CH}')
    o(f's_lshl_b32 s{sT2}, s{sMh}, 6')
    o(f's_sub_u32 s{sT1}, s{sT1}, s{sT2}')
    o(f's_add_u32 s{sT1}, s{sT1}, {2 * 2032}')
    for g in range(4):
        o(f's_sub_u32 s{sT3}, s{sT1}, {128 * (8 * g + 7)}')
        o(f'v_add_u32 v{vKA[g]}, s{sT3}, v{vT0}')
    o(f'v_lshlrev_b32 v{vT0}, 5, v{vR}\nv_lshlrev_b32 v{vT1}, 4, v{vHh}\nv_add_u32 v{vT0}, v{vT0}, v{vT1}')
    o(f's_mul_i32 s{sT1}, s{sCh}, 4608')
    o(f's_sub_u32 s{sT1}, s{sT1}, s{sT2}')
    o(f's_add_u32 s{sT1}, s{sT1}, {LDS_US + 480 + 64 * 56 - 128 * 31}')
    o(f'v_add_u32 v{vBa}, s{sT1}, v{vT0}')
    o('s_waitcnt lgkmcnt(0)')
    stamp(o, stamps, 4)
    o('s_barrier')
    def rdA(sg):
        d = AF + 4 * sg; g = sg // 8; off = 32 * (7 - (sg - 8 * g))
        o(f'ds_read2_b32 v[{d}:{d+1}], v{vKA[g]} offset0:{off} offset1:{off+1}')
        o(f'ds_read2_b32 v[{d+2}:{d+3}], v{vKA[g]} offset0:{off+2} offset1:{off+3}')
    def rdB(t):
        d = BB + 4 * (t % 4)
        o(f'ds_read_b128 v[{d}:{d+3}], v{vBa} offset:{128 * (31 - t)}')
    LA = 3
    for t in range(LA): rdA(t); rdB(t)
    started = set()
    for t in range(32):
        if t + LA < 32: rdA(t + LA); rdB(t + LA)
        o(f's_waitcnt lgkmcnt({3 * min(LA, 31 - t)})')
        cmin = max(0, -(-(28 - t) // 4))
        for c in range(7, cmin - 1, -1):
            sg = 4 * c - 28 + t
            ac = ACC + 4 * c
            cc = f'v[{ac}:{ac+3}]' if c in started else '0'
            started.add(c)
            o(f'v_mfma_f32_16x16x32_bf16 v[{ac}:{ac+3}], v[{AF+4*sg}:{AF+4*sg+3}], v[{BB+4*(t%4)}:{BB+4*(t%4)+3}], {cc}')
    stamp(o, stamps, 5)
    vCx = 215
    o(f's_lshl_b32 s{sT1}, s{sWave}, 12')
    o(f's_add_u32 s{sT1}, s{sT1}, {LDS_CX}')
    o(f'v_lshlrev_b32 v{vCx}, 4, v0\nv_add_u32 v{vCx}, s{sT1}, v{vCx}')
    o('s_nop 7')
    o(f's_cmp_eq_u32 s{sMh}, 0')
    o('s_cbranch_scc0 LM_cx1')
    for j in range(4): o(f'ds_write_b128 v{vCx}, v[{ACC+16+4*j}:{ACC+16+4*j+3}] offset:{1024*j}')
    o('s_branch LM_cx2')
    o.label('LM_cx1')
    for j in range(4): o(f'ds_write_b128 v{vCx}, v[{ACC+4*j}:{ACC+4*j+3}] offset:{1024*j}')
    for j in range(16): o(f'v_mov_b32 v{ACC+j}, v{ACC+16+j}')
    o.label('LM_cx2')
    o(f's_xor_b32 s{sT1}, s{sWave}, 1\ns_lshl_b32 s{sT1}, s{sT1}, 12\ns_add_u32 s{sT1}, s{sT1}, {LDS_CX}')
    o(f'v_lshlrev_b32 v{vCx}, 4, v0\nv_add_u32 v{vCx}, s{sT1}, v{vCx}')
    vU, vXs, vO = 216, 217, 218
    o(f'v_lshlrev_b32 v{vT0}, 5, v{vR}\nv_lshlrev_b32 v{vT1}, 3, v{vHh}\nv_add_u32 v{vT0}, v{vT0}, v{vT1}')
    o(f's_lshl_b32 s{sT2}, s{sMh}, 11')
    o(f's_mul_i32 s{sT1}, s{sCh}, 4608\ns_add_u32 s{sT1}, s{sT1}, s{sT2}\ns_add_u32 s{sT1}, s{sT1}, {LDS_US + 512}')
    o(f'v_add_u32 v{vU}, s{sT1}, v{vT0}')
    o(f's_lshl_b32 s{sT1}, s{sCh}, 12\ns_add_u32 s{sT1}, s{sT1}, s{sT2}\ns_add_u32 s{sT1}, s{sT1}, {LDS_XS}')
    o(f'v_add_u32 v{vXs}, s{sT1}, v{vT0}')
    o(f's_lshl_b32 s{sT1}, s{sPair}, 1\ns_add_u32 s{sT1}, s{sT1}, s{sCh}\ns_lshl_b32 s{sT1}, s{sT1}, 12')
    o(f's_add_u32 s{sT1}, s{sT1}, s{sT2}\ns_add_u32 s{sT4}, s{sT1}, {WS_HT}')
    o(f's_lshl_b32 s{sT1}, s{sDskV}, 16\ns_and_b32 s{sT2}, s{sDskV}, 0xffff0000')
    o(f's_cmp_eq_u32 s{sCh}, 0\ns_cselect_b32 s{sT5}, s{sT1}, s{sT2}')
    UB = 64; XB = 72; PB = 80
    for j in range(4):
        o(f'ds_read_b64 v[{UB+2*j}:{UB+2*j+1}], v{vU} offset:{512*j}')
        o(f'ds_read_b64 v[{XB+2*j}:{XB+2*j+1}], v{vXs} offset:{512*j}')
    o('s_waitcnt lgkmcnt(0)')
    o('s_barrier')
    for j in range(4): o(f'ds_read_b128 v[{PB+4*j}:{PB+4*j+3}], v{vCx} offset:{1024*j}')
    W = 96
    for j in range(4):
        o(f's_waitcnt lgkmcnt({3-j})')
        unpack(o, W, W+1, UB+2*j); unpack(o, W+2, W+3, UB+2*j+1)
        unpack(o, W+4, W+5, XB+2*j); unpack(o, W+6, W+7, XB+2*j+1)
        for e in range(4): o(f'v_add_f32 v{ACC+4*j+e}, v{ACC+4*j+e}, v{PB+4*j+e}')
        for e in range(4): o(f'v_fma_f32 v{ACC+4*j+e}, v{W+e}, s{sT5}, v{ACC+4*j+e}')
        for e in range(4): o(f'v_add_f32 v{ACC+4*j+e}, v{ACC+4*j+e}, v{W+4+e}')
        d = W + 8 + 2 * j
        cv(d, ACC+4*j, ACC+4*j+1); cv(d+1, ACC+4*j+2, ACC+4*j+3)
        o(f'buffer_store_dwordx2 v[{d}:{d+1}], v{vT0}, s[{SRD_WS}:{SRD_WS+3}], s{sT4} offen offset:{512*j}')
    stamp(o, stamps, 6)
    finish(o, stamps)

def gen_nwave(o, q0, stamps):
    vm = VM(o); vm.q = q0
    P = 16
    for i in range(2):
        o(f'buffer_load_dword v{P+i}, v{vT2}, s[{SRD_P[i]}:{SRD_P[i]+3}], s{sT3} offen'); vm.issue('par')
    row_stats(o, vm)
    stamp(o, stamps, 0)
    vm.wait('par')
    o('s_waitcnt lgkmcnt(0)')
    stamp(o, stamps, 1)
    G = 128; vG0, vG1, vTp = 24, 25, 26
    o(f's_sub_u32 s{sT0}, s{sWave}, 4\ns_lshl_b32 s{sT0}, s{sT0}, 6')
    o(f'v_add_u32 v{vTp}, s{sT0}, v0')
    o(f'v_mul_u32_u24 v{vG0}, 7168, v{vTp}')
    o(f's_lshl_b32 s{sT1}, s{sPair}, 2')
    o(f'v_add_u32 v{vG0}, s{sT1}, v{vG0}')
    o(f'v_add_u32 v{vG1}, 4480, v{vG0}')
    for k in range(8):
        va, off = (vG0, 896 * k) if k < 5 else (vG1, 896 * (k - 5))
        o(f'buffer_load_dword v{G+k}, v{va}, s[{SRD_X}:{SRD_X+3}], 0 offen offset:{off}'); vm.issue('gat')
    vdt = 22
    compute_dt(o, vdt)
    U = 28
    for i in range(2): unpack(o, U + 2*i, U + 2*i + 1, P + i)
    for i in range(4): o(f'v_mul_f32 v{U+i}, v{vdt}, v{U+i}')
    o(f'v_mul_f32 v{U}, {hex(LOG2E)}, v{U}\nv_mul_f32 v{U+1}, {hex(LOG2E)}, v{U+1}')
    o(f'v_mul_f32 v{U+2}, {hex(INV2PI)}, v{U+2}\nv_mul_f32 v{U+3}, {hex(INV2PI)}, v{U+3}')
    E8 = 36; YA = 40; YB = 44; TMP = 48; OUT = 52; vTab = 60
    for mu in range(2): seed(o, E8 + 2*mu, U + mu, U + 2 + mu, 8, TMP + 2*mu, conj=True)
    o(f's_lshl_b32 s{sT0}, s{sCh}, 1\ns_add_u32 s{sT0}, s{sT0}, s{sMh}\ns_add_u32 s{sT0}, s{sT0}, 4\ns_mul_i32 s{sT0}, s{sT0}, {TAB}')
    o(f'v_lshlrev_b32 v{vTab}, 3, v0\nv_add_u32 v{vTab}, s{sT0}, v{vTab}')
    o(f'v_mov_b32 v{YA}, 0x3f80\nv_mov_b32 v{YA+1}, 0x3f80')
    o(f'ds_write_b64 v{vTab}, v[{YA}:{YA+1}]')
    rw = RowWriter(o, vTab, OUT)
    rw.write([1], E8, E8 + 2)
    prev = E8
    for j in range(2, 32):
        d = YA if j % 2 == 0 else YB
        cmul2(o, d, prev, E8, d + 2, prev + 2, E8 + 2)
        rw.write([j], d, d + 2)
        prev = d
    o(f'v_lshrrev_b32 v{vT0}, 5, v0\nv_mul_u32_u24 v{vT0}, 4608, v{vT0}')
    o(f'v_and_b32 v{vT1}, 31, v0\nv_lshlrev_b32 v{vT1}, 4, v{vT1}\nv_add_u32 v{vT0}, v{vT0}, v{vT1}')
    o(f'v_add_u32 v{vT0}, {LDS_US}, v{vT0}')
    for j in range(4): o(f'v_mov_b32 v{OUT+j}, 0')
    o(f'ds_write_b128 v{vT0}, v[{OUT}:{OUT+3}]')
    o('s_waitcnt lgkmcnt(0)')
    stamp(o, stamps, 2)
    o('s_barrier')
    RC = 64; vRa = 27
    o(f'v_lshlrev_b32 v{vRa}, 6, v{vTp}')
    o(f's_mov_b32 s{sT1}, 0')
    o.label('LN_poll')
    o(f's_mov_b32 s{sT3}, {WS_REC}')
    for j in range(4):
        o(f'buffer_load_dwordx4 v[{RC+4*j}:{RC+4*j+3}], v{vRa}, s[{SRD_WS}:{SRD_WS+3}], s{sT3} offen offset:{16*j} sc1')
    o('s_waitcnt vmcnt(0)')
    for k in range(8): o(f'v_xor_b32 v{RC+16+k}, v{RC+2*k+1}, v{vTag}')
    o(f'v_or3_b32 v{RC+16}, v{RC+16}, v{RC+17}, v{RC+18}')
    o(f'v_or3_b32 v{RC+19}, v{RC+19}, v{RC+20}, v{RC+21}')
    o(f'v_or3_b32 v{RC+16}, v{RC+16}, v{RC+22}, v{RC+23}')
    o(f'v_or_b32 v{RC+16}, v{RC+16}, v{RC+19}')
    o(f'v_cmp_ne_u32 vcc, 0, v{RC+16}')
    o('s_cbranch_vccz LN_got')
    o(f's_add_u32 s{sT1}, s{sT1}, 1')
    o(f's_cmp_lt_u32 s{sT1}, 0x40000')
    o('s_cbranch_scc0 LN_got')
    o('s_sleep 1')
    o('s_branch LN_poll')
    o.label('LN_got')
    vm.q = []
    stamp(o, stamps, 3)
    Uo = 96
    for k in range(8):
        rec = RC + 2 * k
        m_, s_, x0, x1 = 112, 113, 114, 115
        o(f'v_and_b32 v{s_}, 0xffff0000, v{rec}')
        o(f'v_lshlrev_b32 v{m_}, 16, v{rec}')
        o(f'v_rcp_f32 v{s_}, v{s_}')
        unpack(o, x0, x1, G + k)
        o(f'v_sub_f32 v{x0}, v{x0}, v{m_}\nv_sub_f32 v{x1}, v{x1}, v{m_}')
        o(f'v_mul_f32 v{Uo+k}, v{x0}, v{s_}\nv_mul_f32 v{Uo+8+k}, v{x1}, v{s_}')
    Pk = 116
    for ch in range(2):
        for j in range(4): o(f'v_cvt_pk_bf16_f32 v{Pk+4*ch+j}, v{Uo+8*ch+2*j}, v{Uo+8*ch+2*j+1}')
    o(f's_mov_b32 s{sT1}, 0x05040100\ns_mov_b32 s{sT2}, 0x07060302')
    Xp = 136
    for j in range(4):
        o(f'v_perm_b32 v{Xp+j}, v{G+2*j+1}, v{G+2*j}, s{sT1}')
        o(f'v_perm_b32 v{Xp+4+j}, v{G+2*j+1}, v{G+2*j}, s{sT2}')
    o(f'v_lshlrev_b32 v{vT0}, 4, v{vTp}')
    o(f'v_add_u32 v{vT1}, {LDS_US + 512}, v{vT0}')
    o(f'v_add_u32 v{vT0}, {LDS_XS}, v{vT0}')
    o(f'ds_write_b128 v{vT1}, v[{Pk}:{Pk+3}]\nds_write_b128 v{vT1}, v[{Pk+4}:{Pk+7}] offset:4608')
    o(f'ds_write_b128 v{vT0}, v[{Xp}:{Xp+3}]\nds_write_b128 v{vT0}, v[{Xp+4}:{Xp+7}] offset:4096')
    o('s_waitcnt lgkmcnt(0)')
    stamp(o, stamps, 4)
    o('s_barrier')
    o(f's_cmp_eq_u32 s{sWave}, 7')
    o('s_cbranch_scc0 LN_noat')
    epoch_atomic(o)
    o.label('LN_noat')
    o(f's_lshl_b32 s{sT0}, s{sPair}, 2\ns_add_u32 s{sT0}, s{sT0}, s{sWave}\ns_sub_u32 s{sT0}, s{sT0}, 4')
    o(f's_cmp_ge_u32 s{sT0}, 784')
    o('s_cbranch_scc1 LN_norep')
    srd(o, SRD_WG, sWg, 1605632); srd(o, SRD_WU, sWu, 1605632); srd(o, SRD_WD, sWd, 1605632)
    sSb, sKk, sKt, sDb, sL = 44, 45, 46, 47, 48
    o(f's_mul_i32 s{sSb}, s{sT0}, 2341\ns_lshr_b32 s{sSb}, s{sSb}, 16')
    o(f's_mul_i32 s{sKk}, s{sSb}, 28\ns_sub_u32 s{sKk}, s{sT0}, s{sKk}')
    o(f's_mul_i32 s{sKt}, s{sT0}, 9363\ns_lshr_b32 s{sKt}, s{sKt}, 16')
    o(f's_mul_i32 s{sDb}, s{sKt}, 7\ns_sub_u32 s{sDb}, s{sT0}, s{sDb}')
    o(f's_sub_u32 s{sL}, s{sWave}, 4\ns_mul_i32 s{sL}, s{sL}, 6144\ns_add_u32 s{sL}, s{sL}, {LDS_RP}')
    vGu, vDn = 16, 17
    o(f'v_lshrrev_b32 v{vT0}, 3, v0\nv_and_b32 v{vT1}, 7, v0\nv_lshlrev_b32 v{vT1}, 4, v{vT1}')
    o(f'v_mul_u32_u24 v{vGu}, 3584, v{vT0}\nv_add_u32 v{vGu}, v{vGu}, v{vT1}')
    o(f'v_mul_u32_u24 v{vDn}, 896, v{vT0}\nv_add_u32 v{vDn}, v{vDn}, v{vT1}')
    o(f's_mul_i32 s{sT1}, s{sKk}, {16 * 3584}\ns_lshl_b32 s{sT2}, s{sSb}, 7\ns_add_u32 s{sT1}, s{sT1}, s{sT2}')
    o(f's_add_u32 s{sT2}, s{sT1}, {8 * 3584}')
    for mat, sr in enumerate([SRD_WG, SRD_WU]):
        for i in range(2):
            o(f's_add_u32 s{sT3}, s{sL}, {mat * 2048 + i * 1024}\ns_mov_b32 m0, s{sT3}\ns_nop 0')
            o(f'buffer_load_dwordx4 v{vGu}, s[{sr}:{sr+3}], s{sT1 if i == 0 else sT2} offen lds'); vm.issue('rp')
    o(f's_mul_i32 s{sT1}, s{sKt}, {16 * 896}\ns_lshl_b32 s{sT2}, s{sDb}, 7\ns_add_u32 s{sT1}, s{sT1}, s{sT2}')
    o(f's_add_u32 s{sT2}, s{sT1}, {8 * 896}')
    for i in range(2):
        o(f's_add_u32 s{sT3}, s{sL}, {4096 + i * 1024}\ns_mov_b32 m0, s{sT3}\ns_nop 0')
        o(f'buffer_load_dwordx4 v{vDn}, s[{SRD_WD}:{SRD_WD+3}], s{sT1 if i == 0 else sT2} offen lds'); vm.issue('rp')
    o.label('LN_norep')
    stamp(o, stamps, 5)
    o('s_barrier')
    o(f's_cmp_ge_u32 s{sT0}, 784')
    o('s_cbranch_scc1 LN_norep2')
    g_, rho, c_ = 20, 21, 22
    o(f'v_lshrrev_b32 v{g_}, 4, v0\nv_bfe_u32 v{rho}, v0, 2, 2\nv_and_b32 v{c_}, 3, v0')
    vA1, vA2 = 18, 19
    o(f'v_and_b32 v{vT0}, 1, v{g_}\nv_lshlrev_b32 v{vT0}, 11, v{vT0}')
    o(f'v_lshrrev_b32 v{vT1}, 1, v{g_}\nv_lshlrev_b32 v{vT1}, 10, v{vT1}\nv_add_u32 v{vT0}, v{vT0}, v{vT1}')
    o(f'v_lshlrev_b32 v{vT1}, 7, v{rho}\nv_add_u32 v{vT0}, v{vT0}, v{vT1}')
    o(f'v_lshlrev_b32 v{vT1}, 3, v{c_}\nv_add3_u32 v{vA1}, v{vT0}, v{vT1}, s{sL}')
    o(f'v_lshrrev_b32 v{vT0}, 1, v{g_}\nv_lshlrev_b32 v{vT0}, 9, v{vT0}')
    o(f'v_lshlrev_b32 v{vT1}, 7, v{rho}\nv_add_u32 v{vT0}, v{vT0}, v{vT1}')
    o(f'v_and_b32 v{vT1}, 1, v{g_}\nv_lshlrev_b32 v{vT1}, 5, v{vT1}\nv_add_u32 v{vT0}, v{vT0}, v{vT1}')
    o(f'v_lshlrev_b32 v{vT1}, 3, v{c_}\nv_add3_u32 v{vA2}, v{vT0}, v{vT1}, s{sL}')
    o(f'v_lshlrev_b32 v{vT0}, 4, v0')
    o('s_waitcnt vmcnt(0)')
    F = 32
    for tt in range(4):
        o(f'ds_read_b64_tr_b16 v[{F+4*tt}:{F+4*tt+1}], v{vA1} offset:{tt*32}')
        o(f'ds_read_b64_tr_b16 v[{F+4*tt+2}:{F+4*tt+3}], v{vA1} offset:{tt*32 + 512}')
    for mt in range(2):
        o(f'ds_read_b64_tr_b16 v[{F+16+4*mt}:{F+16+4*mt+1}], v{vA2} offset:{4096 + mt*64}')
        o(f'ds_read_b64_tr_b16 v[{F+16+4*mt+2}:{F+16+4*mt+3}], v{vA2} offset:{4096 + mt*64 + 1024}')
    o(f's_mul_i32 s{sT1}, s{sSb}, {4 * 29}\ns_add_u32 s{sT1}, s{sT1}, s{sKk}\ns_lshl_b32 s{sT1}, s{sT1}, 10\ns_add_u32 s{sT1}, s{sT1}, {WS_WP}')
    o('s_waitcnt lgkmcnt(0)')
    for tt in range(4):
        o(f'buffer_store_dwordx4 v[{F+4*tt}:{F+4*tt+3}], v{vT0}, s[{SRD_WS}:{SRD_WS+3}], s{sT1} offen')
        if tt < 3: o(f's_add_u32 s{sT1}, s{sT1}, {29 * 1024}')
    o(f's_mul_i32 s{sT1}, s{sDb}, 224\ns_add_u32 s{sT1}, s{sT1}, s{sKt}\ns_lshl_b32 s{sT1}, s{sT1}, 10\ns_add_u32 s{sT1}, s{sT1}, {WS_WD}')
    o(f'buffer_store_dwordx4 v[{F+16}:{F+19}], v{vT0}, s[{SRD_WS}:{SRD_WS+3}], s{sT1} offen')
    o(f's_add_u32 s{sT1}, s{sT1}, {112 * 1024}')
    o(f'buffer_store_dwordx4 v[{F+20}:{F+23}], v{vT0}, s[{SRD_WS}:{SRD_WS+3}], s{sT1} offen')
    o.label('LN_norep2')
    o(f's_cmp_eq_u32 s{sWave}, 7')
    o('s_cbranch_scc0 LN_noe')
    epoch_finish(o, 'N')
    o.label('LN_noe')
    stamp(o, stamps, 6)
    o('s_barrier')
    finish(o, stamps)

vAt, vAt2 = 250, 251
def epoch_atomic(o):
    srd(o, SRD_DBG, sDbg, 256)
    o(f'v_mov_b32 v{vAt}, 1\nv_mov_b32 v{vAt2}, 0')
    o('s_mov_b64 exec, 1')
    o(f'buffer_atomic_add v{vAt}, v{vAt2}, s[{SRD_DBG}:{SRD_DBG+3}], 0 offen sc0 sc1')
    o('s_mov_b64 exec, -1')
def epoch_finish(o, pfx):
    o('s_waitcnt vmcnt(0)')
    o(f'v_readfirstlane_b32 s{sT1}, v{vAt}')
    o('s_nop 3')
    o(f's_cmp_eq_u32 s{sT1}, 255')
    o(f's_cbranch_scc0 L{pfx}_noupd')
    o('s_mov_b64 exec, 1')
    o(f'buffer_store_dword v{vTag}, v{vAt2}, s[{SRD_WS}:{SRD_WS+3}], 0 offen sc1')
    o('s_mov_b64 exec, -1')
    o.label(f'L{pfx}_noupd')

def gen_spare(o, q0, stamps):
    vm = VM(o); vm.q = q0
    row_stats(o, vm)
    stamp(o, stamps, 0)
    o(f's_cmp_eq_u32 s{sWave}, 7')
    o('s_cbranch_scc0 LS_noat')
    epoch_atomic(o)
    o.label('LS_noat')
    sMat, sFs = 44, 45
    o(f's_lshr_b32 s{sMat}, s{sSp}, 4\ns_and_b32 s{sFs}, s{sSp}, 15')
    o(f's_cmp_eq_u32 s{sMat}, 0')
    o(f's_cselect_b32 s48, s{sWg}, s{sWu}\ns_cselect_b32 s49, s{sWg+1}, s{sWu+1}')
    o('s_mov_b32 s50, 1605632\ns_mov_b32 s51, 0x00020000')
    vTid, vG, vC, vOf = 16, 17, 18, 19
    o(f's_lshl_b32 s{sT0}, s{sWave}, 6\nv_add_u32 v{vTid}, s{sT0}, v0')
    o(f'v_mul_u32_u24 v{vG}, 4682, v{vTid}\nv_lshrrev_b32 v{vG}, 16, v{vG}')
    o(f'v_mul_u32_u24 v{vC}, 14, v{vG}\nv_sub_u32 v{vC}, v{vTid}, v{vC}')
    o(f'v_mul_u32_u24 v{vOf}, 3584, v{vG}\nv_lshlrev_b32 v{vT0}, 4, v{vC}\nv_add_u32 v{vOf}, v{vOf}, v{vT0}')
    o(f's_mul_i32 s{sT1}, s{sFs}, 224')
    L = 32
    o(f's_cmp_ge_u32 s{sWave}, 7')
    o('s_cbranch_scc1 LS_skip')
    for i in range(14):
        o(f'buffer_load_dwordx4 v[{L+4*i}:{L+4*i+3}], v{vOf}, s[48:51], s{sT1} offen')
        if i < 13: o(f's_add_u32 s{sT1}, s{sT1}, {32 * 3584}')
    A = 96
    for j in range(8): o(f'v_mov_b32 v{A+j}, 0')
    for i in range(14):
        o(f's_waitcnt vmcnt({13 - i})')
        for r in range(4):
            unpack(o, 104, 105, L + 4*i + r)
            o(f'v_add_f32 v{A+2*r}, v{A+2*r}, v104\nv_add_f32 v{A+2*r+1}, v{A+2*r+1}, v105')
    o(f'v_mul_u32_u24 v{vT0}, 448, v{vG}\nv_lshlrev_b32 v{vT1}, 5, v{vC}\nv_add_u32 v{vT0}, v{vT0}, v{vT1}')
    o(f'ds_write_b128 v{vT0}, v[{A}:{A+3}]\nds_write_b128 v{vT0}, v[{A+4}:{A+7}] offset:16')
    o.label('LS_skip')
    o('s_waitcnt lgkmcnt(0)')
    o('s_barrier')
    o(f's_cmp_ge_u32 s{sWave}, 2')
    o('s_cbranch_scc1 LS_done')
    o(f'v_lshlrev_b32 v{vT0}, 2, v{vTid}')
    for g in range(32): o(f'ds_read_b32 v{L+g}, v{vT0} offset:{448*g}')
    o('s_waitcnt lgkmcnt(0)')
    for g in range(1, 32): o(f'v_add_f32 v{L}, v{L}, v{L+g}')
    o(f'v_cvt_pk_bf16_f32 v{L+1}, v{L}, v{L}\nv_and_b32 v{L+1}, 0xffff0000, v{L+1}\nv_sub_f32 v{L+1}, v{L}, v{L+1}')
    Z = 68
    o(f'v_cvt_pk_bf16_f32 v{Z}, v{L}, v{L+1}')
    for j in range(1, 8): o(f'v_mov_b32 v{Z+j}, 0')
    o(f'v_lshrrev_b32 v{vT0}, 4, v{vTid}\ns_mul_i32 s{sT1}, s{sFs}, 7\nv_add_u32 v{vT0}, s{sT1}, v{vT0}')
    o(f'v_mul_u32_u24 v{vT0}, 29, v{vT0}\nv_add_u32 v{vT0}, 28, v{vT0}\nv_lshlrev_b32 v{vT0}, 10, v{vT0}')
    o(f'v_and_b32 v{vT1}, 15, v{vTid}\ns_lshl_b32 s{sT1}, s{sMat}, 4\nv_add_u32 v{vT1}, s{sT1}, v{vT1}\nv_lshlrev_b32 v{vT1}, 4, v{vT1}')
    o(f'v_add_u32 v{vT0}, v{vT0}, v{vT1}')
    o(f's_mov_b32 s{sT1}, {WS_WP}')
    o(f'v_cmp_gt_u32 vcc, 112, v{vTid}')
    o(f's_and_saveexec_b64 s[52:53], vcc')
    o('s_cbranch_execz LS_rest')
    o(f'buffer_store_dwordx4 v[{Z}:{Z+3}], v{vT0}, s[{SRD_WS}:{SRD_WS+3}], s{sT1} offen')
    o(f'buffer_store_dwordx4 v[{Z+4}:{Z+7}], v{vT0}, s[{SRD_WS}:{SRD_WS+3}], s{sT1} offen offset:512')
    o.label('LS_rest')
    o('s_mov_b64 exec, s[52:53]')
    o.label('LS_done')
    o(f's_cmp_eq_u32 s{sWave}, 7')
    o('s_cbranch_scc0 LS_noe')
    epoch_finish(o, 'S')
    o.label('LS_noe')
    finish(o, stamps)
def desc_ab(): return kernel_desc(NAME, 256, 100, accum=256)
def launch_ab(): return f'; @launch kernel={NAME} grid=(256,1,1) block=(512,1,1) lds={LDS_BYTES}'
```

```python
from asmlib import *
from layout import *
from vm import VM
NAME = 'ffn1_kernel'
PREFETCH = True
LDS_S4 = 4 * 28672
LDS_CORR = LDS_S4 + 28672
LDS_BYTES = LDS_CORR + 7 * 1024
ACC = [16, 32]
WB = 48; NWB = 6
HF = 72
T = 184
PK = 192
vS, vQ, vC1, vSB, vT0, vT1 = 196, 197, 198, 199, 200, 201
BC = 204
vLane16, vLB0, vLB1, vLB2, vTR, vHoff, vHst, vHN = 1, 2, 3, 4, 5, 6, 7, 8
def w_lds_addr(t, kk):
    if kk == 28: return LDS_CORR + t * 1024
    if t in (0, 5): return LDS_S4 + kk * 1024
    tt = 1 if t == 6 else t
    return (kk // 7) * 28672 + (7 * (tt - 1) + kk % 7) * 1024
def w_read(o, dst, t, kk):
    a_ = w_lds_addr(t, kk)
    base = [vLB0, vLB1, vLB2][a_ >> 16]
    o(f'ds_read_b128 v[{dst}:{dst+3}], v{base} offset:{a_ & 0xffff}')
def epilogue_ops(acc):
    ops = []
    for j in range(8): ops.append((4, f'v_mul_f32 v{T+j}, v{acc+j}, v{vC1}'))
    for j in range(8): ops.append((8, f'v_exp_f32 v{T+j}, v{T+j}'))
    for j in range(8): ops.append((4, f'v_fma_f32 v{T+j}, v{T+j}, v{vSB}, v{vSB}'))
    for j in range(8): ops.append((8, f'v_rcp_f32 v{T+j}, v{T+j}'))
    for j in range(8): ops.append((4, f'v_mul_f32 v{T+j}, v{acc+8+j}, v{T+j}'))
    for j in range(4): ops.append((4, f'v_cvt_pk_bf16_f32 v{PK+j}, v{T+2*j}, v{T+2*j+1}'))
    return ops
def gen_c(o, stamps=False):
    vm = VM(o)
    kernel_begin(o, NAME)
    o('s_cmp_ge_u32 s2, 256')
    o('s_cbranch_scc1 LC_end')
    o(f's_load_dwordx2 s[4:5], s[0:1], {KA["ws"]}')
    if stamps: o('s_memtime s[60:61]')
    o('v_lshrrev_b32 v9, 6, v0')
    o('v_and_b32 v0, 63, v0')
    o('v_readfirstlane_b32 s24, v9')
    o('s_and_b32 s25, s2, 7')
    o('s_lshr_b32 s26, s2, 3')
    if PREFETCH: code_prefetch(o, NAME, 'code_end', 26, 24, 4, 240, 244, 44, 'c')
    o('s_lshr_b32 s27, s25, 1')
    o('s_lshl_b32 s27, s27, 2')
    o('s_and_b32 s28, s26, 3')
    o('s_add_u32 s27, s27, s28')
    o('s_and_b32 s28, s25, 1')
    o('s_lshl_b32 s28, s28, 3')
    o('s_lshr_b32 s29, s26, 2')
    o('s_add_u32 s28, s28, s29')
    o('s_lshl_b32 s29, s27, 2')
    o('s_add_u32 s29, s29, s24')
    o(f'v_lshlrev_b32 v{vLane16}, 4, v0')
    o(f'v_mov_b32 v{vLB0}, v{vLane16}')
    o(f'v_add_u32 v{vLB1}, 0x10000, v{vLane16}')
    o(f'v_add_u32 v{vLB2}, 0x20000, v{vLane16}')
    o('v_lshrrev_b32 v9, 2, v0')
    o('v_lshlrev_b32 v9, 12, v9')
    o('v_and_b32 v10, 3, v0')
    o('v_lshlrev_b32 v10, 4, v10')
    o(f'v_add_u32 v{vHoff}, v9, v10')
    o('v_lshrrev_b32 v9, 5, v0')
    o('v_lshlrev_b32 v9, 9, v9')
    o('v_bfe_u32 v10, v0, 2, 2')
    o('v_lshlrev_b32 v10, 6, v10')
    o('v_add_u32 v9, v9, v10')
    o('v_bfe_u32 v10, v0, 4, 1')
    o('v_lshlrev_b32 v10, 5, v10')
    o('v_add_u32 v9, v9, v10')
    o('v_and_b32 v10, 3, v0')
    o('v_lshlrev_b32 v10, 3, v10')
    o('v_add_u32 v9, v9, v10')
    o('s_mul_i32 s30, s24, 28672')
    o(f'v_add_u32 v{vTR}, s30, v9')
    o('s_mul_i32 s31, s29, 112')
    o('s_mul_i32 s33, s28, 7')
    o('s_add_u32 s31, s31, s33')
    o('s_lshl_b32 s31, s31, 10')
    o('s_mul_i32 s32, s33, 29696')
    o('v_and_b32 v9, 31, v0')
    o('s_lshl_b32 s34, s29, 5')
    o('v_add_u32 v9, s34, v9')
    o('v_mul_u32_u24 v9, 896, v9')
    o('v_lshrrev_b32 v10, 5, v0')
    o('v_lshlrev_b32 v10, 4, v10')
    o(f'v_add_u32 v{vHN}, v9, v10')
    o(f'v_mov_b32 v{vS}, 0')
    o(f'v_mov_b32 v{vQ}, 0')
    o(f'v_mov_b32 v{vT0}, 0x3f803f80')
    o('s_lshl_b32 s35, s34, 1')
    o('s_waitcnt lgkmcnt(0)')
    srd(o, 8, 4, HT_BYTES, WS_HT)
    srd(o, 12, 4, WP_BYTES, WS_WP)
    srd(o, 16, 4, H_BYTES, WS_H)
    srd(o, 20, 4, HN_BYTES, WS_HN)
    def w_dma_group(t, tag):
        o(f's_mul_i32 s36, s24, 7168')
        o(f's_add_u32 s37, s36, s32')
        o(f's_add_u32 s37, s37, {t * 29696}')
        if t in (0, 5): o(f's_add_u32 s38, s36, {LDS_S4}')
        else:
            tt = 1 if t == 6 else t
            o(f's_add_u32 s38, s30, {7 * (tt - 1) * 1024}')
        ops = []
        for j in range(7):
            if j in (0, 4):
                if j == 4:
                    ops.append('s_add_u32 s37, s37, 4096'); ops.append('s_add_u32 s38, s38, 4096')
                ops.append('s_mov_b32 m0, s38')
                ops.append('s_nop 0')
            ops.append(('dma', f'buffer_load_dwordx4 v{vLane16}, s[12:15], s37 offen offset:{(j % 4) * 1024} lds'))
        for op in ops:
            if isinstance(op, tuple): o(op[1]); vm.issue(tag)
            else: o(op)
    w_dma_group(0, 'w0')
    for which in range(2):
        if which == 0: o('s_mov_b32 s39, s24')
        else:
            o('s_add_u32 s39, s24, 4'); o('s_min_u32 s39, s39, 6')
        o('s_mul_i32 s37, s39, 29696')
        o('s_add_u32 s37, s37, s32')
        o(f's_add_u32 s37, s37, {28 * 1024}')
        o('s_lshl_b32 s38, s39, 10')
        o(f's_add_u32 s38, s38, {LDS_CORR}')
        o('s_mov_b32 m0, s38')
        o('s_nop 0')
        o(f'buffer_load_dwordx4 v{vLane16}, s[12:15], s37 offen lds'); vm.issue('w0')
    o('s_mov_b32 s38, s30')
    o('s_mov_b32 s37, s35')
    for kk in range(28):
        o('s_mov_b32 m0, s38')
        o('s_add_u32 s38, s38, 1024')
        o(f'buffer_load_dwordx4 v{vHoff}, s[8:11], s37 offen lds'); vm.issue(f'h{kk}')
        if kk < 27: o('s_add_u32 s37, s37, 0x10000')
    vm.wait('w0')
    o('s_barrier')
    if stamps: o('s_memtime s[62:63]')
    def proc(k):
        hb = HF + 4 * k; wb = WB + 4 * (k % NWB)
        c = '0' if k == 0 else f'v[{ACC[0]}:{ACC[0]+15}]'
        o(f'v_mfma_f32_32x32x16_bf16 v[{ACC[0]}:{ACC[0]+15}], v[{wb}:{wb+3}], v[{hb}:{hb+3}], {c}')
        for j in range(4):
            o(f'v_dot2c_f32_bf16 v{vS}, v{hb+j}, v{vT0}')
            o(f'v_dot2c_f32_bf16 v{vQ}, v{hb+j}, v{hb+j}')
    for k in range(28):
        vm.wait(f'h{k}')
        hb = HF + 4 * k
        o(f'ds_read_b64_tr_b16 v[{hb}:{hb+1}], v{vTR} offset:{k * 1024}')
        o(f'ds_read_b64_tr_b16 v[{hb+2}:{hb+3}], v{vTR} offset:{k * 1024 + 256}')
        w_read(o, WB + 4 * (k % NWB), 0, k)
        if k >= 1:
            o('s_waitcnt lgkmcnt(3)')
            proc(k - 1)
            if (k - 1) % 7 == 6: w_dma_group((k - 1) // 7 + 1, f'w{(k - 1) // 7 + 1}')
    cb0 = WB + 4 * (28 % NWB)
    w_read(o, cb0, 0, 28)
    o('s_waitcnt lgkmcnt(1)')
    proc(27)
    w_dma_group(4, 'w4')
    if stamps: o('s_memtime s[64:65]')
    o(f'v_mov_b32 v{vT0}, v{vS}')
    o(f'v_mov_b32 v{vT1}, v{vQ}')
    o('s_nop 1')
    o(f'v_permlane32_swap_b32 v{vS}, v{vT0}')
    o(f'v_permlane32_swap_b32 v{vQ}, v{vT1}')
    o('s_nop 1')
    o(f'v_add_f32 v{vS}, v{vS}, v{vT0}')
    o(f'v_add_f32 v{vQ}, v{vQ}, v{vT1}')
    o(f's_mov_b32 s40, {hex(0x3b124925)}')
    o(f'v_mul_f32 v{vS}, s40, v{vS}')
    o(f'v_mul_f32 v{vQ}, s40, v{vQ}')
    o(f'v_fma_f32 v{vQ}, -v{vS}, v{vS}, v{vQ}')
    o(f'v_max_f32 v{vQ}, 0, v{vQ}')
    o(f'v_cvt_pk_bf16_f32 v{vT0}, v{vS}, v{vQ}')
    o(f'v_and_b32 v{vT1}, 0xffff0000, v{vT0}')
    o(f'v_add_f32 v{vT1}, {hex(0x3727c5ac)}, v{vT1}')
    o(f'v_cvt_pk_bf16_f32 v{vT1}, v{vT1}, v{vT1}')
    o(f'v_and_b32 v{vT1}, 0xffff0000, v{vT1}')
    o(f'v_sqrt_f32 v{vT1}, v{vT1}')
    o('s_nop 0')
    o(f'v_cvt_pk_bf16_f32 v{vT1}, v{vT1}, v{vT1}')
    o(f'v_and_b32 v{vSB}, 0xffff0000, v{vT1}')
    o(f'v_rcp_f32 v{vC1}, v{vSB}')
    o(f'v_and_b32 v{vT0}, 0xffff, v{vT0}')
    o(f'v_xor_b32 v{vT0}, 0x8000, v{vT0}')
    o(f'v_mul_f32 v{vC1}, {hex(0xbfb8aa3b)}, v{vC1}')
    o(f'v_lshl_or_b32 v{BC}, v{vT0}, 16, v{vT0}')
    o(f'v_mov_b32 v{BC+1}, 0')
    o(f'v_mov_b32 v{BC+2}, 0')
    o(f'v_mov_b32 v{BC+3}, 0')
    o('s_min_u32 s41, s28, 13')
    def tree(lo, hi, path):
        if hi - lo == 1:
            for q in range(2):
                kk = 2 * lo + q; hb = HF + 4 * kk
                o(f'buffer_store_dwordx4 v[{hb}:{hb+3}], v{vHN}, s[20:23], 0 offen offset:{kk * 32}')
            o('s_branch LC_hn_done')
            return
        mid = (lo + hi) // 2
        o(f's_cmp_ge_u32 s41, {mid}')
        o(f's_cbranch_scc1 LC_hn_{path}1')
        tree(lo, mid, path + '0')
        o.label(f'LC_hn_{path}1')
        tree(mid, hi, path + '1')
    tree(0, 14, 'p')
    o.label('LC_hn_done')
    vm.issue('hn'); vm.issue('hn')
    o('s_waitcnt lgkmcnt(0)')
    o(f'v_mfma_f32_32x32x16_bf16 v[{ACC[0]}:{ACC[0]+15}], v[{cb0}:{cb0+3}], v[{BC}:{BC+3}], v[{ACC[0]}:{ACC[0]+15}]')
    vm.wait('w1')
    o('s_barrier')
    if stamps: o('s_memtime s[66:67]')
    PF = 4
    bi = 29 % NWB
    seq = [(t, kk) for t in range(1, 7) for kk in range(29)]
    bufof = {}
    for i, (t, kk) in enumerate(seq): bufof[(t, kk)] = WB + 4 * ((bi + i) % NWB)
    for i in range(PF):
        t, kk = seq[i]; w_read(o, bufof[(t, kk)], t, kk)
    fill = []
    for i, (t, kk) in enumerate(seq):
        acc = ACC[t & 1]
        if kk == 0:
            assert not fill, fill
            pacc = ACC[(t - 1) & 1]
            fill = epilogue_ops(pacc)
            fill.append((4, ('store', t - 1)))
        if kk == 14 and t + 1 <= 6:
            vm.wait(f'w{t+1}')
            o('s_barrier')
            if t + 4 <= 6: w_dma_group(t + 4, f'w{t+4}')
        nxt = i + PF
        rd = nxt < len(seq)
        if rd:
            t2, k2 = seq[nxt]; w_read(o, bufof[(t2, k2)], t2, k2)
        if i % 2 == 0:
            last_issued = min(nxt, len(seq) - 1)
            allow = max(0, last_issued - (i + 1))
            o(f's_waitcnt lgkmcnt({allow})')
        wb = bufof[(t, kk)]
        bop = f'v[{HF+4*kk}:{HF+4*kk+3}]' if kk < 28 else f'v[{BC}:{BC+3}]'
        c = '0' if kk == 0 else f'v[{acc}:{acc+15}]'
        o(f'v_mfma_f32_32x32x16_bf16 v[{acc}:{acc+15}], v[{wb}:{wb+3}], {bop}, {c}')
        if kk >= 4:
            budget = 12 if i % 2 else 8
            remaining_slots = 28 - kk
            while fill and (budget > 0 or len(fill) > 2 * remaining_slots):
                cst, op = fill.pop(0)
                if isinstance(op, tuple):
                    o(f's_add_u32 s42, s31, {op[1] * 1024}')
                    o(f'buffer_store_dwordx4 v[{PK}:{PK+3}], v{vLane16}, s[16:19], s42 offen'); vm.issue('hs')
                else: o(op)
                budget -= cst
    assert not fill
    if stamps: o('s_memtime s[68:69]')
    o('s_nop 7'); o('s_nop 7')
    for cst, op in epilogue_ops(ACC[6 & 1]):
        o(op)
        if 'exp' in op or 'rcp' in op: pass
    o(f's_add_u32 s42, s31, {6 * 1024}')
    o(f'buffer_store_dwordx4 v[{PK}:{PK+3}], v{vLane16}, s[16:19], s42 offen')
    if stamps:
        o('s_waitcnt vmcnt(0)')
        o('s_memtime s[70:71]')
        o('s_waitcnt lgkmcnt(0)')
        o('s_sub_u32 s70, s70, s60\ns_sub_u32 s68, s68, s60\ns_sub_u32 s66, s66, s60\ns_sub_u32 s64, s64, s60\ns_sub_u32 s62, s62, s60')
        o('v_mov_b32 v16, s62\nv_mov_b32 v17, s64\nv_mov_b32 v18, s66\nv_mov_b32 v19, s68\nv_mov_b32 v20, s70\nv_mov_b32 v21, 0\nv_mov_b32 v22, 0\nv_mov_b32 v23, 0')
        srd(o, 8, 4, 0x10000, 0x1800000)
        o('s_lshl_b32 s43, s2, 2\ns_add_u32 s43, s43, s24\ns_lshl_b32 s43, s43, 5')
        o('v_mov_b32 v24, s43')
        o('s_mov_b64 exec, 1')
        o('buffer_store_dwordx4 v[16:19], v24, s[8:11], 0 offen')
        o('buffer_store_dwordx4 v[20:23], v24, s[8:11], 0 offen offset:16')
    o.label('LC_end')
    o('s_endpgm')
def desc_c(): return kernel_desc(NAME, 248, 80)
def launch_c(): return f'; @launch kernel={NAME} grid=(256,1,1) block=(256,1,1) lds={LDS_BYTES}'
```

```python
from asmlib import *
from layout import *
from vm import VM
NAME = 'ffn2_kernel'
LDS_BYTES = 65536
ACC = 16
FB = 80
DEPTH = 8
RES = 208
vLane16, vRes, vOut, vL = 1, 2, 3, 4
def gen_d(o, stamps=False):
    vm = VM(o)
    kernel_begin(o, NAME)
    o('s_cmp_ge_u32 s2, 224')
    o('s_cbranch_scc1 LD_end')
    o(f's_load_dwordx2 s[4:5], s[0:1], {KA["ws"]}')
    o(f's_load_dwordx2 s[6:7], s[0:1], {KA["out"]}')
    if stamps: o('s_memtime s[60:61]')
    o('v_lshrrev_b32 v9, 6, v0')
    o('v_and_b32 v0, 63, v0')
    o('v_readfirstlane_b32 s24, v9')
    o('s_and_b32 s25, s2, 7')
    o('s_lshr_b32 s26, s2, 3')
    o('s_and_b32 s27, s26, 3')
    o('s_lshl_b32 s25, s25, 2')
    o('s_add_u32 s27, s27, s25')
    o('s_lshr_b32 s28, s26, 2')
    o(f'v_lshlrev_b32 v{vLane16}, 4, v0')
    o('s_mul_i32 s29, s24, 28')
    o('s_mul_i32 s30, s28, 224')
    o('s_add_u32 s30, s30, s29')
    o('s_lshl_b32 s30, s30, 10')
    o(f's_add_u32 s31, s30, {112 * 1024}')
    o('s_mul_i32 s32, s27, 224')
    o('s_add_u32 s32, s32, s29')
    o('s_lshl_b32 s32, s32, 10')
    o(f's_add_u32 s33, s32, {112 * 1024}')
    o('s_and_b32 s34, s24, 1')
    o('s_lshl_b32 s34, s34, 5')
    o('s_lshl_b32 s35, s27, 6')
    o('s_add_u32 s34, s34, s35')
    o('v_and_b32 v9, 31, v0')
    o('v_add_u32 v9, s34, v9')
    o('v_mul_u32_u24 v9, 896, v9')
    o('s_lshr_b32 s35, s24, 1')
    o('s_lshl_b32 s35, s35, 5')
    o('s_lshl_b32 s36, s28, 6')
    o('s_add_u32 s35, s35, s36')
    o('s_lshl_b32 s35, s35, 1')
    o('v_lshrrev_b32 v10, 5, v0')
    o('v_lshlrev_b32 v10, 3, v10')
    o('v_add_u32 v9, v9, v10')
    o(f'v_add_u32 v{vRes}, s35, v9')
    o('s_waitcnt lgkmcnt(0)')
    srd(o, 8, 4, WD_BYTES, WS_WD)
    srd(o, 12, 4, H_BYTES, WS_H)
    srd(o, 16, 4, HN_BYTES, WS_HN)
    srd(o, 20, 6, 1835008)
    def loads(k):
        b = FB + 16 * (k % DEPTH)
        off = (k % 4) * 1024
        if k % 4 == 0 and k > 0:
            for r in (30, 31, 32, 33): o(f's_add_u32 s{r}, s{r}, 4096')
        o(f'buffer_load_dwordx4 v[{b}:{b+3}], v{vLane16}, s[8:11], s30 offen offset:{off}'); vm.issue(f'k{k}')
        o(f'buffer_load_dwordx4 v[{b+8}:{b+11}], v{vLane16}, s[12:15], s32 offen offset:{off}'); vm.issue(f'k{k}')
        o(f'buffer_load_dwordx4 v[{b+4}:{b+7}], v{vLane16}, s[8:11], s31 offen offset:{off}'); vm.issue(f'k{k}')
        o(f'buffer_load_dwordx4 v[{b+12}:{b+15}], v{vLane16}, s[12:15], s33 offen offset:{off}'); vm.issue(f'k{k}')
    for k in range(DEPTH): loads(k)
    for q in range(4):
        o(f'buffer_load_dwordx2 v[{RES+2*q}:{RES+2*q+1}], v{vRes}, s[16:19], 0 offen offset:{q * 16}'); vm.issue('res')
    if stamps: o('s_memtime s[62:63]')
    for k in range(28):
        vm.wait(f'k{k}')
        b = FB + 16 * (k % DEPTH)
        for mt in range(2):
            for nt in range(2):
                ac = ACC + 16 * (mt * 2 + nt)
                c = '0' if k == 0 else f'v[{ac}:{ac+15}]'
                o(f'v_mfma_f32_32x32x16_bf16 v[{ac}:{ac+15}], v[{b+4*mt}:{b+4*mt+3}], v[{b+8+4*nt}:{b+8+4*nt+3}], {c}')
        if k + DEPTH < 28:
            loads(k + DEPTH)
    if stamps: o('s_memtime s[64:65]')
    o('s_lshl_b32 s37, s24, 12')
    o(f'v_add_u32 v{vL}, s37, v{vLane16}')
    o('s_nop 7'); o('s_nop 4')
    for q in range(4):
        for g in range(4):
            ac = ACC + 16 * q + 4 * g
            o(f'ds_write_b128 v{vL}, v[{ac}:{ac+3}] offset:{q * 16384 + g * 1024}')
    o('s_lshl_b32 s37, s24, 14')
    o(f'v_add_u32 v{vL}, s37, v{vLane16}')
    o('s_waitcnt lgkmcnt(0)')
    o('s_barrier')
    if stamps: o('s_memtime s[66:67]')
    R = FB
    for src in range(4):
        for g in range(4):
            d = R + 16 * src + 4 * g
            o(f'ds_read_b128 v[{d}:{d+3}], v{vL} offset:{src * 4096 + g * 1024}')
    vm.wait('res')
    o('s_waitcnt lgkmcnt(8)')
    for j in range(16): o(f'v_add_f32 v{R+j}, v{R+j}, v{R+16+j}')
    o('s_waitcnt lgkmcnt(0)')
    for j in range(16): o(f'v_add_f32 v{R+32+j}, v{R+32+j}, v{R+48+j}')
    for j in range(16): o(f'v_add_f32 v{R+j}, v{R+j}, v{R+32+j}')
    for q in range(4):
        r0, r1 = RES + 2 * q, RES + 2 * q + 1
        o(f'v_lshlrev_b32 v{R+16}, 16, v{r0}')
        o(f'v_and_b32 v{R+17}, 0xffff0000, v{r0}')
        o(f'v_lshlrev_b32 v{R+18}, 16, v{r1}')
        o(f'v_and_b32 v{R+19}, 0xffff0000, v{r1}')
        for j in range(4): o(f'v_add_f32 v{R+4*q+j}, v{R+4*q+j}, v{R+16+j}')
        o(f'v_cvt_pk_bf16_f32 v{R+20+2*q}, v{R+4*q}, v{R+4*q+1}')
        o(f'v_cvt_pk_bf16_f32 v{R+21+2*q}, v{R+4*q+2}, v{R+4*q+3}')
        o(f'buffer_store_dwordx2 v[{R+20+2*q}:{R+21+2*q}], v{vRes}, s[20:23], 0 offen offset:{q * 16}')
    if stamps:
        o('s_waitcnt vmcnt(0)')
        o('s_memtime s[68:69]')
        o('s_waitcnt lgkmcnt(0)')
        o('s_sub_u32 s68, s68, s60\ns_sub_u32 s66, s66, s60\ns_sub_u32 s64, s64, s60\ns_sub_u32 s62, s62, s60')
        o('v_mov_b32 v16, s62\nv_mov_b32 v17, s64\nv_mov_b32 v18, s66\nv_mov_b32 v19, s68')
        srd(o, 8, 4, 0x10000, 0x1810000)
        o('s_lshl_b32 s43, s2, 2\ns_add_u32 s43, s43, s24\ns_lshl_b32 s43, s43, 5')
        o('v_mov_b32 v24, s43')
        o('s_mov_b64 exec, 1')
        o('buffer_store_dwordx4 v[16:19], v24, s[8:11], 0 offen')
    o.label('LD_end')
    o('s_endpgm')
def desc_d(): return kernel_desc(NAME, 216, 80)
def launch_d(): return f'; @launch kernel={NAME} grid=(224,1,1) block=(256,1,1) lds={LDS_BYTES}'
```

```python
WS_E    = 0x0
WS_REC  = 0x1000
WS_HT   = 0x10000
WS_HN   = 0x200000
WS_WP   = 0x400000
WS_WD   = 0x800000
WS_H    = 0xA00000
HT_BYTES = 448 * 2048 * 2
HN_BYTES = 2048 * 448 * 2
WP_BYTES = 112 * 29 * 1024
WD_BYTES = 14 * 112 * 1024
H_BYTES  = 64 * 112 * 1024
KA = dict(x=0, A_re=8, A_im=16, B_re=24, B_im=32, C_re=40, C_im=48, log_dt=56, Dskip=64, bx=72, w_gate=80, w_up=88, w_down=96, out=104, dbg=112, ws=120)
```

```python
class VM:
    def __init__(self, o): self.o = o; self.q = []
    def issue(self, tag): self.q.append(tag)
    def wait(self, tag):
        if tag not in self.q: return
        idx = max(i for i, t in enumerate(self.q) if t == tag)
        n = len(self.q) - 1 - idx
        assert n <= 63, n
        self.o(f's_waitcnt vmcnt({n})')
        self.q = self.q[idx + 1:]
    def pending(self, tag): return tag in self.q
    def wait_all(self):
        self.o('s_waitcnt vmcnt(0)'); self.q = []
```

```python
import sys
from asmlib import *
import kc, kd
def make(parts, stamps=False):
    o = Asm()
    mods = {}
    if 'ab' in parts:
        import kab
        o(kab.launch_ab())
    if 'c' in parts: o(kc.launch_c())
    if 'd' in parts: o(kd.launch_d())
    if 'f' in parts: o(kc.launch_f())
    o('.amdgcn_target "amdgcn-amd-amdhsa--gfx950"\n.text')
    if 'ab' in parts: kab.gen_ab(o, stamps)
    if 'c' in parts: kc.gen_c(o, stamps)
    if 'd' in parts: kd.gen_d(o, stamps)
    if 'f' in parts: kc.gen_c(o, stamps, merged=True)
    o('code_end:')
    o('s_endpgm')
    o('.section .rodata,"a"')
    if 'ab' in parts: o(kab.desc_ab())
    if 'c' in parts: o(kc.desc_c())
    if 'd' in parts: o(kd.desc_d())
    if 'f' in parts: o(kc.desc_f())
    return o.text()
if __name__ == '__main__':
    parts = sys.argv[1].split(','); out = sys.argv[2]
    open(out, 'w').write(make(parts, stamps='stamps' in sys.argv))
```

```python
import sys, build
from asmlib import *
base = build.make(['ab', 'c', 'd'])
null_launch = '; @launch kernel=nul_kernel grid=(256,1,1) block=(64,1,1) lds=0'
null_code = '''.globl nul_kernel
.p2align 8
.type nul_kernel,@function
nul_kernel:
s_endpgm
'''
def variant(pre, post):
    lines = base.split('\n')
    n = sum(1 for l in lines if l.startswith('; @launch'))
    head = lines[:n]; rest = lines[n:]
    head = [null_launch] * pre + head + [null_launch] * post
    txt = '\n'.join(head + rest)
    txt = txt.replace('.section .rodata,"a"', null_code + '.section .rodata,"a"\n' + kernel_desc('nul_kernel', 8, 16))
    return txt
for nm, (a, b) in {'v_post1': (0, 1), 'v_post3': (0, 3), 'v_pre1': (1, 0), 'v_pre3': (3, 0)}.items():
    open(f'exp/{nm}.s', 'w').write(variant(a, b))
open('v_base.s', 'w').write(base)
```

```python
import build, re
from layout import *
txt = build.make(['ab', 'c', 'd'])
def stamp_code(slot, tag):
    return f'''s_cmp_eq_u32 s2, 0
s_cbranch_scc0 LDG_{tag}
s_load_dwordx2 s[96:97], s[0:1], 120
s_memrealtime s[98:99]
s_memtime s[100:101]
s_waitcnt lgkmcnt(0)
s_add_u32 s96, s96, {0x1830000 + slot * 8}
s_addc_u32 s97, s97, 0
v_mov_b32 v200, s98
v_mov_b32 v201, s100
v_mov_b32 v202, 0
global_store_dwordx2 v202, v[200:201], s[96:97]
LDG_{tag}:
'''
for name, slot in (('ssm_kernel', 0), ('ffn1_kernel', 2), ('ffn2_kernel', 4)):
    txt = txt.replace(f'{name}:\n', f'{name}:\n' + stamp_code(slot, name + '_s'), 1)
txt = txt.replace('LC_end:\n', stamp_code(3, 'c_e') + 'LC_end:\n', 1)
fin = stamp_code(5, 'd_e') + f'''s_cmp_eq_u32 s2, 0
s_cbranch_scc0 LD_end
s_waitcnt vmcnt(0)
s_load_dwordx2 s[96:97], s[0:1], 120
s_load_dwordx2 s[98:99], s[0:1], 112
s_waitcnt lgkmcnt(0)
s_add_u32 s96, s96, {0x1830000}
s_addc_u32 s97, s97, 0
v_lshlrev_b32 v202, 2, v0
s_mov_b64 exec, 0xffff
global_load_dword v203, v202, s[96:97] sc1
s_waitcnt vmcnt(0)
global_store_dword v202, v203, s[98:99]
'''
txt = txt.replace('LD_end:\n', fin + 'LD_end:\n', 1)
i = txt.index('LA_nwave:')
j = txt.rindex('s_endpgm', 0, i)
txt = txt[:j] + stamp_code(1, 'ab_e') + txt[j:]
txt = txt.replace('.amdhsa_next_free_sgpr 80', '.amdhsa_next_free_sgpr 102').replace('.amdhsa_next_free_sgpr 100', '.amdhsa_next_free_sgpr 102')
open('diag.s', 'w').write(txt)
```

```python
class Asm:
    def __init__(self):
        self.lines = []
    def __call__(self, s=''):
        for ln in s.split('\n'):
            self.lines.append(ln)
    def label(self, name): self.lines.append(name + ':')
    def text(self): return '\n'.join(self.lines) + '\n'
def v(i, n=1): return f'v{i}' if n == 1 else f'v[{i}:{i+n-1}]'
def a(i, n=1): return f'a{i}' if n == 1 else f'a[{i}:{i+n-1}]'
def s(i, n=1): return f's{i}' if n == 1 else f's[{i}:{i+n-1}]'
def kernel_begin(o, name):
    o(f'.globl {name}\n.p2align 8\n.type {name},@function\n{name}:')
def kernel_desc(name, vgpr, sgpr=102, accum=None):
    if accum is None: accum = min(256, (vgpr + 3) // 4 * 4)
    return f'''.p2align 6
.amdhsa_kernel {name}
  .amdhsa_next_free_vgpr {vgpr}
  .amdhsa_next_free_sgpr {sgpr}
  .amdhsa_accum_offset {accum}
  .amdhsa_group_segment_fixed_size 0
  .amdhsa_kernarg_size 128
  .amdhsa_user_sgpr_count 2
  .amdhsa_user_sgpr_kernarg_segment_ptr 1
  .amdhsa_system_sgpr_workgroup_id_x 1
  .amdhsa_float_denorm_mode_32 3
.end_amdhsa_kernel
'''
def srd(o, sreg, base_pair, nbytes, off=0):
    if off:
        o(f's_add_u32 s{sreg}, s{base_pair}, {off}')
        o(f's_addc_u32 s{sreg+1}, s{base_pair+1}, 0')
    else:
        o(f's_mov_b32 s{sreg}, s{base_pair}')
        o(f's_mov_b32 s{sreg+1}, s{base_pair+1}')
    o(f's_mov_b32 s{sreg+2}, {nbytes}')
    o(f's_mov_b32 s{sreg+3}, 0x00020000')

def code_prefetch(o, start, end, sidx, swave, nwaves, vaddr, vdst, stmp, tag):
    o(f's_getpc_b64 s[{stmp}:{stmp+1}]')
    o(f'LPF_{tag}:')
    o(f's_sub_u32 s{stmp}, s{stmp}, LPF_{tag} - {start}')
    o(f's_subb_u32 s{stmp+1}, s{stmp+1}, 0')
    o(f's_mul_i32 s{stmp+2}, s{sidx}, {nwaves}')
    o(f's_add_u32 s{stmp+2}, s{stmp+2}, s{swave}')
    o(f's_lshl_b32 s{stmp+2}, s{stmp+2}, 10')
    o(f's_cmp_ge_u32 s{stmp+2}, {end} - {start}')
    o(f's_cbranch_scc1 LPFX_{tag}')
    o(f'v_lshlrev_b32 v{vaddr}, 4, v0')
    o(f'v_add_u32 v{vaddr}, s{stmp+2}, v{vaddr}')
    o(f'v_min_u32 v{vaddr}, {end} - {start} - 16, v{vaddr}')
    o(f'global_load_dwordx4 v[{vdst}:{vdst+3}], v{vaddr}, s[{stmp}:{stmp+1}]')
    o(f'LPFX_{tag}:')
```

```python
from asmlib import *
from layout import *
from vm import VM
NAME = 'ffn2_kernel'
PREFETCH = True
LDS_BYTES = 98304
ACC = 16
FB = 80
DEPTH = 8
RES = 208
vLane16, vRes, vOut, vL = 1, 2, 3, 4
def gen_d(o, stamps=False):
    vm = VM(o)
    kernel_begin(o, NAME)
    o('s_cmp_ge_u32 s2, 224')
    o('s_cbranch_scc1 LD_end')
    o(f's_load_dwordx2 s[4:5], s[0:1], {KA["ws"]}')
    o(f's_load_dwordx2 s[6:7], s[0:1], {KA["out"]}')
    if stamps: o('s_memtime s[60:61]')
    o('v_lshrrev_b32 v9, 6, v0')
    o('v_and_b32 v0, 63, v0')
    o('v_readfirstlane_b32 s24, v9')
    o('s_and_b32 s25, s2, 7')
    o('s_lshr_b32 s26, s2, 3')
    if PREFETCH: code_prefetch(o, NAME, 'code_end', 26, 24, 4, 240, 244, 44, 'd')
    o('s_and_b32 s27, s26, 3')
    o('s_lshl_b32 s25, s25, 2')
    o('s_add_u32 s27, s27, s25')
    o('s_lshr_b32 s28, s26, 2')
    o(f'v_lshlrev_b32 v{vLane16}, 4, v0')
    o('s_mul_i32 s29, s24, 28')
    o('s_mul_i32 s30, s28, 224')
    o('s_add_u32 s30, s30, s29')
    o('s_lshl_b32 s30, s30, 10')
    o(f's_add_u32 s31, s30, {112 * 1024}')
    o('s_mul_i32 s32, s27, 224')
    o('s_add_u32 s32, s32, s29')
    o('s_lshl_b32 s32, s32, 10')
    o(f's_add_u32 s33, s32, {112 * 1024}')
    o('s_and_b32 s34, s24, 1')
    o('s_lshl_b32 s34, s34, 5')
    o('s_lshl_b32 s35, s27, 6')
    o('s_add_u32 s34, s34, s35')
    o('v_and_b32 v9, 31, v0')
    o('v_add_u32 v9, s34, v9')
    o('v_mul_u32_u24 v9, 896, v9')
    o('s_lshr_b32 s35, s24, 1')
    o('s_lshl_b32 s35, s35, 5')
    o('s_lshl_b32 s36, s28, 6')
    o('s_add_u32 s35, s35, s36')
    o('s_lshl_b32 s35, s35, 1')
    o('v_lshrrev_b32 v10, 5, v0')
    o('v_lshlrev_b32 v10, 3, v10')
    o('v_add_u32 v9, v9, v10')
    o(f'v_add_u32 v{vRes}, s35, v9')
    o('s_waitcnt lgkmcnt(0)')
    srd(o, 8, 4, WD_BYTES, WS_WD)
    srd(o, 12, 4, H_BYTES, WS_H)
    srd(o, 16, 4, HN_BYTES, WS_HN)
    srd(o, 20, 6, 1835008)
    def loads(k):
        b = FB + 16 * (k % DEPTH)
        off = (k % 4) * 1024
        if k % 4 == 0 and k > 0:
            for r in (30, 31, 32, 33): o(f's_add_u32 s{r}, s{r}, 4096')
        o(f'buffer_load_dwordx4 v[{b}:{b+3}], v{vLane16}, s[8:11], s30 offen offset:{off}'); vm.issue(f'k{k}')
        o(f'buffer_load_dwordx4 v[{b+8}:{b+11}], v{vLane16}, s[12:15], s32 offen offset:{off}'); vm.issue(f'k{k}')
        o(f'buffer_load_dwordx4 v[{b+4}:{b+7}], v{vLane16}, s[8:11], s31 offen offset:{off}'); vm.issue(f'k{k}')
        o(f'buffer_load_dwordx4 v[{b+12}:{b+15}], v{vLane16}, s[12:15], s33 offen offset:{off}'); vm.issue(f'k{k}')
    for k in range(DEPTH): loads(k)
    for q in range(4):
        o(f'buffer_load_dwordx2 v[{RES+2*q}:{RES+2*q+1}], v{vRes}, s[16:19], 0 offen offset:{q * 16}'); vm.issue('res')
    if stamps: o('s_memtime s[62:63]')
    for k in range(28):
        vm.wait(f'k{k}')
        b = FB + 16 * (k % DEPTH)
        for mt in range(2):
            for nt in range(2):
                ac = ACC + 16 * (mt * 2 + nt)
                c = '0' if k == 0 else f'v[{ac}:{ac+15}]'
                o(f'v_mfma_f32_32x32x16_bf16 v[{ac}:{ac+15}], v[{b+4*mt}:{b+4*mt+3}], v[{b+8+4*nt}:{b+8+4*nt+3}], {c}')
        if k + DEPTH < 28:
            loads(k + DEPTH)
    if stamps: o('s_memtime s[64:65]')
    o('s_lshl_b32 s37, s24, 12')
    o(f'v_add_u32 v{vL}, s37, v{vLane16}')
    o('s_nop 7'); o('s_nop 4')
    for q in range(4):
        for g in range(4):
            ac = ACC + 16 * q + 4 * g
            o(f'ds_write_b128 v{vL}, v[{ac}:{ac+3}] offset:{q * 16384 + g * 1024}')
    o('s_lshl_b32 s37, s24, 14')
    o(f'v_add_u32 v{vL}, s37, v{vLane16}')
    o('s_waitcnt lgkmcnt(0)')
    o('s_barrier')
    if stamps: o('s_memtime s[66:67]')
    R = FB
    for src in range(4):
        for g in range(4):
            d = R + 16 * src + 4 * g
            o(f'ds_read_b128 v[{d}:{d+3}], v{vL} offset:{src * 4096 + g * 1024}')
    vm.wait('res')
    o('s_waitcnt lgkmcnt(8)')
    for j in range(16): o(f'v_add_f32 v{R+j}, v{R+j}, v{R+16+j}')
    o('s_waitcnt lgkmcnt(0)')
    for j in range(16): o(f'v_add_f32 v{R+32+j}, v{R+32+j}, v{R+48+j}')
    for j in range(16): o(f'v_add_f32 v{R+j}, v{R+j}, v{R+32+j}')
    for q in range(4):
        r0, r1 = RES + 2 * q, RES + 2 * q + 1
        o(f'v_lshlrev_b32 v{R+16}, 16, v{r0}')
        o(f'v_and_b32 v{R+17}, 0xffff0000, v{r0}')
        o(f'v_lshlrev_b32 v{R+18}, 16, v{r1}')
        o(f'v_and_b32 v{R+19}, 0xffff0000, v{r1}')
        for j in range(4): o(f'v_add_f32 v{R+4*q+j}, v{R+4*q+j}, v{R+16+j}')
        o(f'v_cvt_pk_bf16_f32 v{R+20+2*q}, v{R+4*q}, v{R+4*q+1}')
        o(f'v_cvt_pk_bf16_f32 v{R+21+2*q}, v{R+4*q+2}, v{R+4*q+3}')
        o(f'buffer_store_dwordx2 v[{R+20+2*q}:{R+21+2*q}], v{vRes}, s[20:23], 0 offen offset:{q * 16}')
    if stamps:
        o('s_waitcnt vmcnt(0)')
        o('s_memtime s[68:69]')
        o('s_waitcnt lgkmcnt(0)')
        o('s_sub_u32 s68, s68, s60\ns_sub_u32 s66, s66, s60\ns_sub_u32 s64, s64, s60\ns_sub_u32 s62, s62, s60')
        o('v_mov_b32 v16, s62\nv_mov_b32 v17, s64\nv_mov_b32 v18, s66\nv_mov_b32 v19, s68')
        srd(o, 8, 4, 0x10000, 0x1810000)
        o('s_lshl_b32 s43, s2, 2\ns_add_u32 s43, s43, s24\ns_lshl_b32 s43, s43, 5')
        o('v_mov_b32 v24, s43')
        o('s_mov_b64 exec, 1')
        o('buffer_store_dwordx4 v[16:19], v24, s[8:11], 0 offen')
    o.label('LD_end')
    o('s_endpgm')
def desc_d(): return kernel_desc(NAME, 248, 80)
def launch_d(): return f'; @launch kernel={NAME} grid=(224,1,1) block=(256,1,1) lds={LDS_BYTES}'
```

```python
from asmlib import *
from layout import *
from vm import VM
NAME = 'ssm_kernel'
PREFETCH = False
TAB = 16896
LDS_US = 8 * TAB
LDS_XS = LDS_US + 2 * 4608
LDS_EX = LDS_XS + 2 * 4096
LDS_BYTES = LDS_EX + 8192
KR_COPY = 4160; KR_CH = 2 * KR_COPY
LDS_CX = 17408
LDS_RP = LDS_CX + 16384
LOG2E = 0x3fb8aa3b; INV2PI = 0x3e22f983; INV448 = 0x3b124925; EPS = 0x3727c5ac
sX, sAre, sAim, sBre, sBim, sCre, sCim, sLdt = 8, 10, 12, 14, 16, 18, 20, 22
sDsk, sWd, sWg, sWu, sDbg, sWs = 24, 26, 28, 30, 32, 34
SRD_X, SRD_WS = 36, 40
SRD_P = [44, 48, 52, 56, 60, 64]
SRD_WG, SRD_WU, SRD_WD, SRD_DBG = 68, 72, 76, 80
sWave, sPair, sCh, sMh, sLdtV, sDskV = 3, 84, 85, 86, 87, 88
sT0, sT1, sT2, sT3, sT4, sT5 = 89, 90, 91, 92, 93, 94
sSp = 95
vLane, vTag, vE, vT0, vT1, vT2, vT3 = 0, 1, 2, 3, 4, 6, 7
vXR = 8
vS, vQ = 12, 13
def cmul(o, d, p, q):
    o(f'v_pk_mul_f32 v[{d}:{d+1}], v[{p}:{p+1}], v[{q}:{q+1}] op_sel_hi:[0,1]')
    o(f'v_pk_fma_f32 v[{d}:{d+1}], v[{p}:{p+1}], v[{q}:{q+1}], v[{d}:{d+1}] op_sel:[1,1,0] op_sel_hi:[1,0,1] neg_lo:[1,0,0]')
def cmul2(o, dA, pA, qA, dB, pB, qB):
    o(f'v_pk_mul_f32 v[{dA}:{dA+1}], v[{pA}:{pA+1}], v[{qA}:{qA+1}] op_sel_hi:[0,1]')
    o(f'v_pk_mul_f32 v[{dB}:{dB+1}], v[{pB}:{pB+1}], v[{qB}:{qB+1}] op_sel_hi:[0,1]')
    o(f'v_pk_fma_f32 v[{dA}:{dA+1}], v[{pA}:{pA+1}], v[{qA}:{qA+1}], v[{dA}:{dA+1}] op_sel:[1,1,0] op_sel_hi:[1,0,1] neg_lo:[1,0,0]')
    o(f'v_pk_fma_f32 v[{dB}:{dB+1}], v[{pB}:{pB+1}], v[{qB}:{qB+1}], v[{dB}:{dB+1}] op_sel:[1,1,0] op_sel_hi:[1,0,1] neg_lo:[1,0,0]')
def row_stats(o, vm):
    vm.wait('xrow')
    o(f's_mov_b32 s{sT0}, 0x9E3779B1')
    o(f'v_mul_lo_u32 v{vTag}, v{vE}, s{sT0}')
    o(f'v_add_u32 v{vTag}, 0x7F4A7C15, v{vTag}')
    o(f'v_mov_b32 v{vS}, 0\nv_mov_b32 v{vQ}, 0\nv_mov_b32 v{vT0}, 0x3f803f80')
    for j in range(4):
        o(f'v_dot2c_f32_bf16 v{vS}, v{vXR+j}, v{vT0}')
        o(f'v_dot2c_f32_bf16 v{vQ}, v{vXR+j}, v{vXR+j}')
    o('s_nop 2')
    for ctl in ['row_shr:1', 'row_shr:2', 'row_shr:4', 'row_shr:8']:
        o(f'v_add_f32_dpp v{vS}, v{vS}, v{vS} {ctl} row_mask:0xf bank_mask:0xf bound_ctrl:0')
        o(f'v_add_f32_dpp v{vQ}, v{vQ}, v{vQ} {ctl} row_mask:0xf bank_mask:0xf bound_ctrl:0')
        o('s_nop 0')
    for ctl, rm in [('row_bcast:15', '0xa'), ('row_bcast:31', '0xc')]:
        o(f'v_add_f32_dpp v{vS}, v{vS}, v{vS} {ctl} row_mask:{rm} bank_mask:0xf')
        o(f'v_add_f32_dpp v{vQ}, v{vQ}, v{vQ} {ctl} row_mask:{rm} bank_mask:0xf')
        o('s_nop 0')
    o(f'v_mul_f32 v{vS}, {hex(INV448)}, v{vS}')
    o(f'v_mul_f32 v{vQ}, {hex(INV448)}, v{vQ}')
    o(f'v_fma_f32 v{vQ}, -v{vS}, v{vS}, v{vQ}')
    o(f'v_max_f32 v{vQ}, 0, v{vQ}')
    o(f'v_cvt_pk_bf16_f32 v{vT0}, v{vQ}, v{vQ}')
    o(f'v_and_b32 v{vT0}, 0xffff0000, v{vT0}')
    o(f'v_add_f32 v{vT0}, {hex(EPS)}, v{vT0}')
    o(f'v_cvt_pk_bf16_f32 v{vT0}, v{vT0}, v{vT0}')
    o(f'v_and_b32 v{vT0}, 0xffff0000, v{vT0}')
    o(f'v_sqrt_f32 v{vT0}, v{vT0}')
    o('s_nop 0')
    o(f'v_cvt_pk_bf16_f32 v{vT2}, v{vS}, v{vT0}')
    o(f'v_mov_b32 v{vT3}, v{vTag}')
    o(f's_lshl_b32 s{sT0}, s2, 3')
    o(f's_add_u32 s{sT0}, s{sT0}, s{sWave}')
    o(f's_lshl_b32 s{sT0}, s{sT0}, 3')
    o(f's_add_u32 s{sT0}, s{sT0}, {WS_REC}')
    o(f'v_mov_b32 v{vT1}, 0')
    o('s_mov_b32 exec_lo, 0')
    o('s_mov_b32 exec_hi, 0x80000000')
    o(f'buffer_store_dwordx2 v[{vT2}:{vT2+1}], v{vT1}, s[{SRD_WS}:{SRD_WS+3}], s{sT0} offen sc1'); vm.issue('rec')
    o('s_mov_b64 exec, -1')
def seed(o, dst, ar2, ai2, t, tmp, conj=False):
    o(f'v_mul_f32 v{tmp}, {float(t)}, v{ar2}' if t in (1, 2, 4) else f'v_mul_f32 v{tmp}, {hex(f32(t))}, v{ar2}')
    o(f'v_mul_f32 v{tmp+1}, {float(t)}, v{ai2}' if t in (1, 2, 4) else f'v_mul_f32 v{tmp+1}, {hex(f32(t))}, v{ai2}')
    o(f'v_exp_f32 v{tmp}, v{tmp}')
    o(f'v_fract_f32 v{tmp+1}, v{tmp+1}')
    o('s_nop 0')
    o(f'v_cos_f32 v{dst}, v{tmp+1}')
    o(f'v_sin_f32 v{dst+1}, v{tmp+1}')
    o('s_nop 0')
    o(f'v_mul_f32 v{dst}, v{tmp}, v{dst}')
    if conj: o(f'v_mul_f32 v{dst+1}, -v{dst+1}, v{tmp}'.replace('v_mul_f32', 'v_mul_f32_e64'))
    else: o(f'v_mul_f32 v{dst+1}, v{tmp}, v{dst+1}')
import struct
def f32(x): return struct.unpack('<I', struct.pack('<f', float(x)))[0]
def compute_dt(o, vdt):
    o(f's_lshl_b32 s{sT0}, s{sLdtV}, 16')
    o(f's_and_b32 s{sT1}, s{sLdtV}, 0xffff0000')
    o(f's_cmp_eq_u32 s{sCh}, 0')
    o(f's_cselect_b32 s{sT0}, s{sT0}, s{sT1}')
    o(f'v_mov_b32 v{vdt}, s{sT0}')
    o(f'v_mul_f32 v{vdt}, {hex(LOG2E)}, v{vdt}')
    o(f'v_exp_f32 v{vdt}, v{vdt}')
    o('s_nop 0')
    o(f'v_cvt_pk_bf16_f32 v{vdt}, v{vdt}, v{vdt}')
    o(f'v_and_b32 v{vdt}, 0xffff0000, v{vdt}')
def unpack(o, dlo, dhi, src):
    o(f'v_lshlrev_b32 v{dlo}, 16, v{src}')
    o(f'v_and_b32 v{dhi}, 0xffff0000, v{src}')
class RowWriter:
    def __init__(self, o, vaddr, out0): self.o, self.va, self.out0, self.n = o, vaddr, out0, 0
    def write(self, rows, cA, cB):
        r = self.out0 + 2 * (self.n % 4); self.n += 1
        self.o(f'v_cvt_pk_bf16_f32 v{r}, v{cA}, v{cA+1}')
        self.o(f'v_cvt_pk_bf16_f32 v{r+1}, v{cB}, v{cB+1}')
        for m in rows: self.o(f'ds_write_b64 v{self.va}, v[{r}:{r+1}] offset:{m * 528}')
def stamp(o, on, idx):
    if on: o(f's_memtime s[{96 + 0}:{97}]'); o('s_waitcnt lgkmcnt(0)'); o(f'v_writelane_b32 v255, s96, {idx}')

def gen_ab(o, stamps=False):
    kernel_begin(o, NAME)
    o('s_cmp_ge_u32 s2, 256')
    o('s_cbranch_scc1 LA_end')
    o('s_load_dwordx16 s[8:23], s[0:1], 0')
    o(f's_load_dwordx2 s[{sDsk}:{sDsk+1}], s[0:1], 64')
    o(f's_load_dwordx4 s[{sWg}:{sWg+3}], s[0:1], 80')
    o(f's_load_dwordx2 s[{sWd}:{sWd+1}], s[0:1], 96')
    o(f's_load_dwordx4 s[{sDbg}:{sDbg+3}], s[0:1], 112')
    if stamps: o('v_mov_b32 v255, 0'); o('s_memtime s[98:99]')
    o(f'v_lshrrev_b32 v{vT0}, 6, v0')
    o('v_and_b32 v0, 63, v0')
    o(f'v_readfirstlane_b32 s{sWave}, v{vT0}')
    o(f's_and_b32 s{sT0}, s2, 7')
    o(f's_lshr_b32 s{sT1}, s2, 3')
    if PREFETCH: code_prefetch(o, NAME, 'code_end', sT1, sWave, 8, 240, 244, 96, 'ab')
    o(f's_mul_i32 s{sPair}, s{sT0}, 28')
    o(f's_add_u32 s{sPair}, s{sPair}, s{sT1}')
    o(f's_lshl_b32 s{sSp}, s{sT0}, 2')
    o(f's_add_u32 s{sSp}, s{sSp}, s{sT1}')
    o(f's_sub_u32 s{sSp}, s{sSp}, 28')
    o(f's_lshr_b32 s{sCh}, s{sWave}, 1')
    o(f's_and_b32 s{sCh}, s{sCh}, 1')
    o(f's_and_b32 s{sMh}, s{sWave}, 1')
    for j in range(4): o(f'v_mov_b32 v{vXR+j}, 0')
    o('v_mov_b32 v250, 0\nv_mov_b32 v251, 0')
    o(f'v_lshlrev_b32 v{vT1}, 4, v0')
    o('s_waitcnt lgkmcnt(0)')
    srd(o, SRD_X, sX, 1835008)
    srd(o, SRD_WS, sWs, WS_H + H_BYTES)
    vm = VM(o)
    o(f'buffer_load_dword v{vE}, off, s[{SRD_WS}:{SRD_WS+3}], 0 sc1'); vm.issue('E')
    o(f's_lshl_b32 s{sT2}, s2, 3')
    o(f's_add_u32 s{sT2}, s{sT2}, s{sWave}')
    o(f's_mul_i32 s{sT2}, s{sT2}, 896')
    o('s_mov_b32 exec_hi, 0x00ffffff')
    o(f'buffer_load_dwordx4 v[{vXR}:{vXR+3}], v{vT1}, s[{SRD_X}:{SRD_X+3}], s{sT2} offen'); vm.issue('xrow')
    o('s_mov_b32 exec_hi, -1')
    o(f's_cmp_ge_u32 s{sT1}, 28')
    o('s_cbranch_scc1 LA_spare')
    o(f's_lshl_b32 s{sT2}, s{sPair}, 2')
    o(f's_load_dword s{sLdtV}, s[{sLdt}:{sLdt+1}], s{sT2}')
    o(f's_load_dword s{sDskV}, s[{sDsk}:{sDsk+1}], s{sT2}')
    for i, p in enumerate([sAre, sAim, sBre, sBim, sCre, sCim]): srd(o, SRD_P[i], p, 229376)
    o(f's_lshl_b32 s{sT2}, s{sPair}, 1')
    o(f's_add_u32 s{sT2}, s{sT2}, s{sCh}')
    o(f's_lshl_b32 s{sT3}, s{sT2}, 9')
    o(f's_lshl_b32 s{sT4}, s{sMh}, 8')
    o(f's_add_u32 s{sT3}, s{sT3}, s{sT4}')
    o(f'v_lshlrev_b32 v{vT2}, 2, v0')
    o(f's_cmp_ge_u32 s{sWave}, 4')
    o('s_cbranch_scc1 LA_nwave')
    gen_mwave(o, vm.q[:], stamps)
    o.label('LA_nwave')
    gen_nwave(o, vm.q[:], stamps)
    o.label('LA_spare')
    gen_spare(o, vm.q[:], stamps)
    o.label('LA_end')
    o('s_endpgm')

def finish(o, stamps):
    if stamps:
        o('s_waitcnt vmcnt(0) lgkmcnt(0)')
        stamp(o, True, 15)
        o('v_writelane_b32 v255, s98, 14')
        srd(o, 44, sWs, 0x40000, 0x1820000)
        o(f's_lshl_b32 s{sT0}, s2, 3\ns_add_u32 s{sT0}, s{sT0}, s{sWave}\ns_lshl_b32 s{sT0}, s{sT0}, 6')
        o(f'v_lshlrev_b32 v254, 2, v0')
        o('s_mov_b64 exec, 0xffff')
        o(f'buffer_store_dword v255, v254, s[44:47], s{sT0} offen')
    o('s_endpgm')

def gen_mwave(o, q0, stamps):
    vm = VM(o); vm.q = q0
    P = 16
    for i in range(6):
        o(f'buffer_load_dword v{P+i}, v{vT2}, s[{SRD_P[i]}:{SRD_P[i]+3}], s{sT3} offen'); vm.issue('par')
    row_stats(o, vm)
    stamp(o, stamps, 0)
    vm.wait('par')
    o('s_waitcnt lgkmcnt(0)')
    stamp(o, stamps, 1)
    vdt = 22
    compute_dt(o, vdt)
    U = 24
    for i in range(6): unpack(o, U + 2*i, U + 2*i + 1, P + i)
    for i in range(4): o(f'v_mul_f32 v{U+i}, v{vdt}, v{U+i}')
    for i in range(4, 8): o(f'v_mul_f32 v{U+i}, v{vdt}, v{U+i}')
    o(f'v_mul_f32 v{U}, {hex(LOG2E)}, v{U}\nv_mul_f32 v{U+1}, {hex(LOG2E)}, v{U+1}')
    o(f'v_mul_f32 v{U+2}, {hex(INV2PI)}, v{U+2}\nv_mul_f32 v{U+3}, {hex(INV2PI)}, v{U+3}')
    X0 = 36; X2 = 40; X4 = 44; X6 = 48; X8 = 52; E1 = 56; CUR = 60; CU2 = 64
    Pw = {k: 68 + 4 * (k - 1) for k in range(1, 8)}
    TMP = 96; OUT = 100
    for mu in range(2):
        bre, bim, cre, cim = U + 4 + mu, U + 6 + mu, U + 8 + mu, U + 10 + mu
        w = X0 + 2 * mu
        o(f'v_mul_f32 v{w}, v{cre}, v{bre}')
        o(f'v_mul_f32 v{w+1}, v{cre}, v{bim}')
        o(f'v_fma_f32 v{w}, -v{cim}, v{bim}, v{w}')
        o(f'v_fma_f32 v{w+1}, v{cim}, v{bre}, v{w+1}')
    for mu in range(2):
        seed(o, E1 + 2*mu, U + mu, U + 2 + mu, 1, TMP + 2*mu)
        seed(o, Pw[1] + 2*mu, U + mu, U + 2 + mu, 256, TMP + 2*mu)
    vTab = 108
    o(f's_lshl_b32 s{sT0}, s{sCh}, 1\ns_add_u32 s{sT0}, s{sT0}, s{sMh}\ns_mul_i32 s{sT0}, s{sT0}, {TAB}')
    o(f'v_lshlrev_b32 v{vTab}, 3, v0\nv_add_u32 v{vTab}, s{sT0}, v{vTab}')
    rw = RowWriter(o, vTab, OUT)
    def c2(d, p, q): cmul2(o, d, p, q, d + 2, p + 2, q + 2)
    rw.write([0], X0, X0 + 2)
    keep = {0: X0, 2: X2, 4: X4, 6: X6, 8: X8}
    prev = X0
    for t in range(1, 9):
        d = keep.get(t, CUR)
        c2(d, prev, E1)
        rows = [t] if t < 8 else [12]
        if t == 4: rows = [4, 8]
        rw.write(rows, d, d + 2)
        prev = d
    c2(Pw[2], Pw[1], Pw[1]); c2(Pw[3], Pw[2], Pw[1]); c2(Pw[4], Pw[2], Pw[2])
    c2(Pw[5], Pw[4], Pw[1]); c2(Pw[6], Pw[4], Pw[2]); c2(Pw[7], Pw[4], Pw[3])
    alt = [CUR, CU2]; n = 0
    def prod(rows, xs, pk):
        nonlocal n
        d = alt[n % 2]; n += 1
        c2(d, keep[xs], Pw[pk]); rw.write(rows, d, d + 2)
    prod([9], 0, 1); prod([10], 2, 1); prod([11, 13], 4, 1); prod([14], 6, 1); prod([15], 8, 1)
    prod([16], 0, 2); prod([17], 4, 2); prod([18], 8, 2)
    prod([20], 0, 3); prod([21], 4, 3); prod([22], 8, 3)
    prod([19], 0, 4); prod([24], 8, 4)
    prod([25], 0, 5); prod([26], 8, 5)
    prod([23], 0, 6); prod([28], 8, 6)
    prod([29], 0, 7); prod([30], 8, 7)
    vA, vB = 109, 110
    o(f'v_and_b32 v{vT0}, 31, v0\nv_mul_u32_u24 v{vT0}, 528, v{vT0}')
    o(f'v_lshrrev_b32 v{vT1}, 5, v0\nv_lshlrev_b32 v{vT1}, 4, v{vT1}')
    o(f'v_add3_u32 v{vA}, v{vT0}, v{vT1}, s{sT0}')
    o(f'v_add_u32 v{vB}, {4 * TAB}, v{vA}')
    o('s_waitcnt lgkmcnt(0)')
    stamp(o, stamps, 2)
    o('s_barrier')
    FR = 112; KD = 16
    def rd(kk):
        b = FR + 8 * (kk % 4)
        o(f'ds_read_b128 v[{b}:{b+3}], v{vA} offset:{kk * 32}')
        o(f'ds_read_b128 v[{b+4}:{b+7}], v{vB} offset:{kk * 32}')
    for kk in range(3): rd(kk)
    for kk in range(16):
        if kk + 3 < 16: rd(kk + 3)
        o(f's_waitcnt lgkmcnt({2 * min(3, 15 - kk)})')
        b = FR + 8 * (kk % 4)
        c = '0' if kk == 0 else f'v[{KD}:{KD+15}]'
        o(f'v_mfma_f32_32x32x16_bf16 v[{KD}:{KD+15}], v[{b}:{b+3}], v[{b+4}:{b+7}], {c}')
    vEx = 111
    o(f's_lshl_b32 s{sT1}, s{sWave}, 11')
    o(f'v_lshlrev_b32 v{vEx}, 4, v0')
    o(f'v_add_u32 v{vEx}, s{sT1}, v{vEx}')
    o(f'v_add_u32 v{vEx}, {LDS_EX}, v{vEx}')
    o('s_nop 7\ns_nop 3')
    o(f's_cmp_eq_u32 s{sMh}, 0')
    o('s_cbranch_scc0 LM_send1')
    o(f'ds_write_b128 v{vEx}, v[{KD+8}:{KD+11}]\nds_write_b128 v{vEx}, v[{KD+12}:{KD+15}] offset:1024')
    o('s_branch LM_sent')
    o.label('LM_send1')
    o(f'ds_write_b128 v{vEx}, v[{KD}:{KD+3}]\nds_write_b128 v{vEx}, v[{KD+4}:{KD+7}] offset:1024')
    o.label('LM_sent')
    o(f'v_xor_b32 v{vEx}, 2048, v{vEx}')
    o('s_waitcnt lgkmcnt(0)')
    stamp(o, stamps, 3)
    o('s_barrier')
    R = 32
    o(f'ds_read_b128 v[{R}:{R+3}], v{vEx}\nds_read_b128 v[{R+4}:{R+7}], v{vEx} offset:1024')
    vK = 40; vJ = 41; vH = 42; O = 44
    o(f'v_and_b32 v{vJ}, 31, v0\nv_lshrrev_b32 v{vH}, 5, v0')
    o(f's_mul_i32 s{sT1}, s{sCh}, {KR_CH}')
    o(f's_cmp_eq_u32 s{sMh}, 0')
    o('s_cbranch_scc0 LM_exp1')
    o(f'v_lshlrev_b32 v{vK}, 4, v{vJ}\nv_lshlrev_b32 v{vT0}, 3, v{vH}\nv_add_u32 v{vK}, v{vK}, v{vT0}')
    o(f'v_sub_u32 v{vK}, 4088, v{vK}\nv_add_u32 v{vK}, s{sT1}, v{vK}')
    o('s_waitcnt lgkmcnt(0)')
    for j in range(8): o(f'v_add_f32 v{KD+j}, v{KD+j}, v{R+j}')
    a0, a1, a2, a3, a4, sa, sb, sc = [KD + j for j in range(8)]
    cv = lambda d, lo, hi: o(f'v_cvt_pk_bf16_f32 v{d}, v{lo}, v{hi}')
    cv(O, a3, a2); cv(O+1, a1, a0); cv(O+2, a4, a3); cv(O+3, a2, a1)
    o(f'ds_write_b64 v{vK}, v[{O}:{O+1}] offset:{KR_COPY}')
    o(f'ds_write_b64 v{vK}, v[{O+2}:{O+3}]')
    cv(O+4, sc, sb); cv(O+5, sa, sa); cv(O+6, sc, sc); cv(O+7, sb, sa)
    o(f'v_subrev_u32 v{vK}, 512, v{vK}')
    o(f'ds_write_b64 v{vK}, v[{O+4}:{O+5}] offset:{KR_COPY}')
    o(f'ds_write_b64 v{vK}, v[{O+6}:{O+7}]')
    o(f'v_mov_b32 v{O+8}, 0')
    cv(O+9, a0, O+8)
    o(f'v_cmp_eq_u32 vcc, 0, v0')
    o(f'v_lshlrev_b32 v{vT0}, 2, v0')
    o(f'v_add_u32 v{vT0}, s{sT1}, v{vT0}')
    o(f'v_cndmask_b32 v{O+9}, v{O+8}, v{O+9}, vcc')
    o('s_mov_b64 exec, 0xff')
    o(f'ds_write_b32 v{vT0}, v{O+9} offset:4096')
    o(f'ds_write_b32 v{vT0}, v{O+8} offset:{4096 + KR_COPY}')
    o('s_mov_b64 exec, -1')
    o('s_branch LM_expd')
    o.label('LM_exp1')
    o(f'v_lshlrev_b32 v{vK}, 4, v{vJ}\nv_lshlrev_b32 v{vT0}, 9, v{vH}\nv_add_u32 v{vK}, v{vK}, v{vT0}')
    o(f'v_sub_u32 v{vK}, {4080 - 1024}, v{vK}\nv_add_u32 v{vK}, s{sT1}, v{vK}')
    vK3 = 43
    o(f'v_lshlrev_b32 v{vK3}, 4, v{vJ}\nv_lshlrev_b32 v{vT0}, 10, v{vH}\nv_add_u32 v{vK3}, v{vK3}, v{vT0}')
    o(f'v_sub_u32 v{vK3}, {4080 - 2048 - 512}, v{vK3}\nv_add_u32 v{vK3}, s{sT1}, v{vK3}')
    o(f'v_and_b32 v{vT0}, 1, v{vJ}')
    o(f'v_cmp_eq_u32 vcc, 0, v{vT0}')
    o('s_waitcnt lgkmcnt(0)')
    for j in range(8): o(f'v_add_f32 v{KD+8+j}, v{KD+8+j}, v{R+j}')
    T0, T1, T2 = KD + 8, KD + 9, KD + 10
    cv(O, T2, T2); cv(O+1, T1, T1); cv(O+2, T1, T0); cv(O+3, T0, T0)
    o(f'ds_write_b128 v{vK}, v[{O}:{O+3}] offset:{KR_COPY}')
    cv(O+4, T2, T2); cv(O+5, T2, T1); cv(O+6, T1, T1); cv(O+7, T0, T0)
    o(f'ds_write_b128 v{vK}, v[{O+4}:{O+7}]')
    for ii in range(2):
        t0, t1 = KD + 11 + 2*ii, KD + 12 + 2*ii
        sel = O + 16
        q = O + 8 * (ii + 1) if ii == 0 else O
        o(f'v_cndmask_b32 v{sel}, v{t1}, v{t0}, vcc')
        off = 512 if ii == 0 else 0
        cv(q, t1, t1); cv(q+1, t1, sel); cv(q+2, t0, t0); cv(q+3, t0, t0)
        o(f'ds_write_b128 v{vK3}, v[{q}:{q+3}] offset:{KR_COPY + off}')
        cv(q+4, t1, t1); cv(q+5, t1, t1); cv(q+6, sel, t0); cv(q+7, t0, t0)
        o(f'ds_write_b128 v{vK3}, v[{q+4}:{q+7}] offset:{off}')
    o.label('LM_expd')
    AF = 64; ACC = 32; BB = 192; vKA = [208, 209, 210, 211]; vBa = 212
    vR, vHh = 213, 214
    o(f'v_and_b32 v{vR}, 15, v0\nv_lshrrev_b32 v{vHh}, 4, v0')
    o(f'v_and_b32 v{vT0}, 1, v{vR}')
    o(f'v_add_u32 v{vT1}, v{vR}, v{vT0}')
    o(f'v_mul_u32_u24 v{vT0}, {KR_COPY}, v{vT0}')
    o(f'v_lshlrev_b32 v{vT1}, 1, v{vT1}')
    o(f'v_sub_u32 v{vT0}, v{vT0}, v{vT1}')
    o(f'v_lshlrev_b32 v{vT1}, 4, v{vHh}')
    o(f'v_add_u32 v{vT0}, v{vT0}, v{vT1}')
    o(f's_mul_i32 s{sT1}, s{sCh}, {KR_CH}')
    o(f's_lshl_b32 s{sT2}, s{sMh}, 6')
    o(f's_sub_u32 s{sT1}, s{sT1}, s{sT2}')
    o(f's_add_u32 s{sT1}, s{sT1}, {2 * 2032}')
    for g in range(4):
        o(f's_sub_u32 s{sT3}, s{sT1}, {128 * (8 * g + 7)}')
        o(f'v_add_u32 v{vKA[g]}, s{sT3}, v{vT0}')
    o(f'v_lshlrev_b32 v{vT0}, 5, v{vR}\nv_lshlrev_b32 v{vT1}, 4, v{vHh}\nv_add_u32 v{vT0}, v{vT0}, v{vT1}')
    o(f's_mul_i32 s{sT1}, s{sCh}, 4608')
    o(f's_sub_u32 s{sT1}, s{sT1}, s{sT2}')
    o(f's_add_u32 s{sT1}, s{sT1}, {LDS_US + 480 + 64 * 56 - 128 * 31}')
    o(f'v_add_u32 v{vBa}, s{sT1}, v{vT0}')
    o('s_waitcnt lgkmcnt(0)')
    stamp(o, stamps, 4)
    o('s_barrier')
    def rdA(sg):
        d = AF + 4 * sg; g = sg // 8; off = 32 * (7 - (sg - 8 * g))
        o(f'ds_read2_b32 v[{d}:{d+1}], v{vKA[g]} offset0:{off} offset1:{off+1}')
        o(f'ds_read2_b32 v[{d+2}:{d+3}], v{vKA[g]} offset0:{off+2} offset1:{off+3}')
    def rdB(t):
        d = BB + 4 * (t % 4)
        o(f'ds_read_b128 v[{d}:{d+3}], v{vBa} offset:{128 * (31 - t)}')
    LA = 3
    for t in range(LA): rdA(t); rdB(t)
    started = set()
    for t in range(32):
        if t + LA < 32: rdA(t + LA); rdB(t + LA)
        o(f's_waitcnt lgkmcnt({3 * min(LA, 31 - t)})')
        cmin = max(0, -(-(28 - t) // 4))
        for c in range(7, cmin - 1, -1):
            sg = 4 * c - 28 + t
            ac = ACC + 4 * c
            cc = f'v[{ac}:{ac+3}]' if c in started else '0'
            started.add(c)
            o(f'v_mfma_f32_16x16x32_bf16 v[{ac}:{ac+3}], v[{AF+4*sg}:{AF+4*sg+3}], v[{BB+4*(t%4)}:{BB+4*(t%4)+3}], {cc}')
    stamp(o, stamps, 5)
    vCx = 215
    o(f's_lshl_b32 s{sT1}, s{sWave}, 12')
    o(f's_add_u32 s{sT1}, s{sT1}, {LDS_CX}')
    o(f'v_lshlrev_b32 v{vCx}, 4, v0\nv_add_u32 v{vCx}, s{sT1}, v{vCx}')
    o('s_nop 7')
    o(f's_cmp_eq_u32 s{sMh}, 0')
    o('s_cbranch_scc0 LM_cx1')
    for j in range(4): o(f'ds_write_b128 v{vCx}, v[{ACC+16+4*j}:{ACC+16+4*j+3}] offset:{1024*j}')
    o('s_branch LM_cx2')
    o.label('LM_cx1')
    for j in range(4): o(f'ds_write_b128 v{vCx}, v[{ACC+4*j}:{ACC+4*j+3}] offset:{1024*j}')
    for j in range(16): o(f'v_mov_b32 v{ACC+j}, v{ACC+16+j}')
    o.label('LM_cx2')
    o(f's_xor_b32 s{sT1}, s{sWave}, 1\ns_lshl_b32 s{sT1}, s{sT1}, 12\ns_add_u32 s{sT1}, s{sT1}, {LDS_CX}')
    o(f'v_lshlrev_b32 v{vCx}, 4, v0\nv_add_u32 v{vCx}, s{sT1}, v{vCx}')
    vU, vXs, vO = 216, 217, 218
    o(f'v_lshlrev_b32 v{vT0}, 5, v{vR}\nv_lshlrev_b32 v{vT1}, 3, v{vHh}\nv_add_u32 v{vT0}, v{vT0}, v{vT1}')
    o(f's_lshl_b32 s{sT2}, s{sMh}, 11')
    o(f's_mul_i32 s{sT1}, s{sCh}, 4608\ns_add_u32 s{sT1}, s{sT1}, s{sT2}\ns_add_u32 s{sT1}, s{sT1}, {LDS_US + 512}')
    o(f'v_add_u32 v{vU}, s{sT1}, v{vT0}')
    o(f's_lshl_b32 s{sT1}, s{sCh}, 12\ns_add_u32 s{sT1}, s{sT1}, s{sT2}\ns_add_u32 s{sT1}, s{sT1}, {LDS_XS}')
    o(f'v_add_u32 v{vXs}, s{sT1}, v{vT0}')
    o(f's_lshl_b32 s{sT1}, s{sPair}, 1\ns_add_u32 s{sT1}, s{sT1}, s{sCh}\ns_lshl_b32 s{sT1}, s{sT1}, 6')
    o(f's_mul_i32 s{sT2}, s{sMh}, {32 * 28672}')
    o(f's_add_u32 s{sT1}, s{sT1}, s{sT2}\ns_add_u32 s{sT4}, s{sT1}, {WS_HT}')
    vHo = 219
    o(f'v_lshrrev_b32 v{vHo}, 1, v{vR}\nv_mul_u32_u24 v{vHo}, 28672, v{vHo}')
    o(f'v_and_b32 v{vT1}, 1, v{vR}\nv_lshlrev_b32 v{vT1}, 5, v{vT1}\nv_add_u32 v{vHo}, v{vHo}, v{vT1}')
    o(f'v_lshlrev_b32 v{vT1}, 3, v{vHh}\nv_add_u32 v{vHo}, v{vHo}, v{vT1}')
    o(f's_lshl_b32 s{sT1}, s{sDskV}, 16\ns_and_b32 s{sT2}, s{sDskV}, 0xffff0000')
    o(f's_cmp_eq_u32 s{sCh}, 0\ns_cselect_b32 s{sT5}, s{sT1}, s{sT2}')
    UB = 64; XB = 72; PB = 80
    for j in range(4):
        o(f'ds_read_b64 v[{UB+2*j}:{UB+2*j+1}], v{vU} offset:{512*j}')
        o(f'ds_read_b64 v[{XB+2*j}:{XB+2*j+1}], v{vXs} offset:{512*j}')
    o('s_waitcnt lgkmcnt(0)')
    o('s_barrier')
    for j in range(4): o(f'ds_read_b128 v[{PB+4*j}:{PB+4*j+3}], v{vCx} offset:{1024*j}')
    W = 96
    for j in range(4):
        o(f's_waitcnt lgkmcnt({3-j})')
        unpack(o, W, W+1, UB+2*j); unpack(o, W+2, W+3, UB+2*j+1)
        unpack(o, W+4, W+5, XB+2*j); unpack(o, W+6, W+7, XB+2*j+1)
        for e in range(4): o(f'v_add_f32 v{ACC+4*j+e}, v{ACC+4*j+e}, v{PB+4*j+e}')
        for e in range(4): o(f'v_fma_f32 v{ACC+4*j+e}, v{W+e}, s{sT5}, v{ACC+4*j+e}')
        for e in range(4): o(f'v_add_f32 v{ACC+4*j+e}, v{ACC+4*j+e}, v{W+4+e}')
        d = W + 8 + 2 * j
        cv(d, ACC+4*j, ACC+4*j+1); cv(d+1, ACC+4*j+2, ACC+4*j+3)
        o(f'buffer_store_dwordx2 v[{d}:{d+1}], v{vHo}, s[{SRD_WS}:{SRD_WS+3}], s{sT4} offen')
        if j < 3: o(f's_add_u32 s{sT4}, s{sT4}, {8 * 28672}')
    stamp(o, stamps, 6)
    finish(o, stamps)

def gen_nwave(o, q0, stamps):
    vm = VM(o); vm.q = q0
    P = 16
    for i in range(2):
        o(f'buffer_load_dword v{P+i}, v{vT2}, s[{SRD_P[i]}:{SRD_P[i]+3}], s{sT3} offen'); vm.issue('par')
    row_stats(o, vm)
    stamp(o, stamps, 0)
    vm.wait('par')
    o('s_waitcnt lgkmcnt(0)')
    stamp(o, stamps, 1)
    G = 128; vG0, vG1, vTp = 24, 25, 26
    o(f's_sub_u32 s{sT0}, s{sWave}, 4\ns_lshl_b32 s{sT0}, s{sT0}, 6')
    o(f'v_add_u32 v{vTp}, s{sT0}, v0')
    o(f'v_mul_u32_u24 v{vG0}, 7168, v{vTp}')
    o(f's_lshl_b32 s{sT1}, s{sPair}, 2')
    o(f'v_add_u32 v{vG0}, s{sT1}, v{vG0}')
    o(f'v_add_u32 v{vG1}, 4480, v{vG0}')
    for k in range(8):
        va, off = (vG0, 896 * k) if k < 5 else (vG1, 896 * (k - 5))
        o(f'buffer_load_dword v{G+k}, v{va}, s[{SRD_X}:{SRD_X+3}], 0 offen offset:{off}'); vm.issue('gat')
    vdt = 22
    compute_dt(o, vdt)
    U = 28
    for i in range(2): unpack(o, U + 2*i, U + 2*i + 1, P + i)
    for i in range(4): o(f'v_mul_f32 v{U+i}, v{vdt}, v{U+i}')
    o(f'v_mul_f32 v{U}, {hex(LOG2E)}, v{U}\nv_mul_f32 v{U+1}, {hex(LOG2E)}, v{U+1}')
    o(f'v_mul_f32 v{U+2}, {hex(INV2PI)}, v{U+2}\nv_mul_f32 v{U+3}, {hex(INV2PI)}, v{U+3}')
    E8 = 36; YA = 40; YB = 44; TMP = 48; OUT = 52; vTab = 60
    for mu in range(2): seed(o, E8 + 2*mu, U + mu, U + 2 + mu, 8, TMP + 2*mu, conj=True)
    o(f's_lshl_b32 s{sT0}, s{sCh}, 1\ns_add_u32 s{sT0}, s{sT0}, s{sMh}\ns_add_u32 s{sT0}, s{sT0}, 4\ns_mul_i32 s{sT0}, s{sT0}, {TAB}')
    o(f'v_lshlrev_b32 v{vTab}, 3, v0\nv_add_u32 v{vTab}, s{sT0}, v{vTab}')
    o(f'v_mov_b32 v{YA}, 0x3f80\nv_mov_b32 v{YA+1}, 0x3f80')
    o(f'ds_write_b64 v{vTab}, v[{YA}:{YA+1}]')
    rw = RowWriter(o, vTab, OUT)
    rw.write([1], E8, E8 + 2)
    prev = E8
    for j in range(2, 32):
        d = YA if j % 2 == 0 else YB
        cmul2(o, d, prev, E8, d + 2, prev + 2, E8 + 2)
        rw.write([j], d, d + 2)
        prev = d
    o(f'v_lshrrev_b32 v{vT0}, 5, v0\nv_mul_u32_u24 v{vT0}, 4608, v{vT0}')
    o(f'v_and_b32 v{vT1}, 31, v0\nv_lshlrev_b32 v{vT1}, 4, v{vT1}\nv_add_u32 v{vT0}, v{vT0}, v{vT1}')
    o(f'v_add_u32 v{vT0}, {LDS_US}, v{vT0}')
    for j in range(4): o(f'v_mov_b32 v{OUT+j}, 0')
    o(f'ds_write_b128 v{vT0}, v[{OUT}:{OUT+3}]')
    o('s_waitcnt lgkmcnt(0)')
    stamp(o, stamps, 2)
    o('s_barrier')
    RC = 64; vRa = 27
    o(f'v_lshlrev_b32 v{vRa}, 6, v{vTp}')
    o(f's_mov_b32 s{sT1}, 0')
    o.label('LN_poll')
    o(f's_mov_b32 s{sT3}, {WS_REC}')
    for j in range(4):
        o(f'buffer_load_dwordx4 v[{RC+4*j}:{RC+4*j+3}], v{vRa}, s[{SRD_WS}:{SRD_WS+3}], s{sT3} offen offset:{16*j} sc1')
    o('s_waitcnt vmcnt(0)')
    for k in range(8): o(f'v_xor_b32 v{RC+16+k}, v{RC+2*k+1}, v{vTag}')
    o(f'v_or3_b32 v{RC+16}, v{RC+16}, v{RC+17}, v{RC+18}')
    o(f'v_or3_b32 v{RC+19}, v{RC+19}, v{RC+20}, v{RC+21}')
    o(f'v_or3_b32 v{RC+16}, v{RC+16}, v{RC+22}, v{RC+23}')
    o(f'v_or_b32 v{RC+16}, v{RC+16}, v{RC+19}')
    o(f'v_cmp_ne_u32 vcc, 0, v{RC+16}')
    o('s_cbranch_vccz LN_got')
    o(f's_add_u32 s{sT1}, s{sT1}, 1')
    o(f's_cmp_lt_u32 s{sT1}, 0x40000')
    o('s_cbranch_scc0 LN_got')
    o('s_sleep 1')
    o('s_branch LN_poll')
    o.label('LN_got')
    vm.q = []
    stamp(o, stamps, 3)
    Uo = 96
    for k in range(8):
        rec = RC + 2 * k
        m_, s_, x0, x1 = 112, 113, 114, 115
        o(f'v_and_b32 v{s_}, 0xffff0000, v{rec}')
        o(f'v_lshlrev_b32 v{m_}, 16, v{rec}')
        o(f'v_rcp_f32 v{s_}, v{s_}')
        unpack(o, x0, x1, G + k)
        o(f'v_sub_f32 v{x0}, v{x0}, v{m_}\nv_sub_f32 v{x1}, v{x1}, v{m_}')
        o(f'v_mul_f32 v{Uo+k}, v{x0}, v{s_}\nv_mul_f32 v{Uo+8+k}, v{x1}, v{s_}')
    Pk = 116
    for ch in range(2):
        for j in range(4): o(f'v_cvt_pk_bf16_f32 v{Pk+4*ch+j}, v{Uo+8*ch+2*j}, v{Uo+8*ch+2*j+1}')
    o(f's_mov_b32 s{sT1}, 0x05040100\ns_mov_b32 s{sT2}, 0x07060302')
    Xp = 136
    for j in range(4):
        o(f'v_perm_b32 v{Xp+j}, v{G+2*j+1}, v{G+2*j}, s{sT1}')
        o(f'v_perm_b32 v{Xp+4+j}, v{G+2*j+1}, v{G+2*j}, s{sT2}')
    o(f'v_lshlrev_b32 v{vT0}, 4, v{vTp}')
    o(f'v_add_u32 v{vT1}, {LDS_US + 512}, v{vT0}')
    o(f'v_add_u32 v{vT0}, {LDS_XS}, v{vT0}')
    o(f'ds_write_b128 v{vT1}, v[{Pk}:{Pk+3}]\nds_write_b128 v{vT1}, v[{Pk+4}:{Pk+7}] offset:4608')
    o(f'ds_write_b128 v{vT0}, v[{Xp}:{Xp+3}]\nds_write_b128 v{vT0}, v[{Xp+4}:{Xp+7}] offset:4096')
    o('s_waitcnt lgkmcnt(0)')
    stamp(o, stamps, 4)
    o('s_barrier')
    o(f's_cmp_eq_u32 s{sWave}, 7')
    o('s_cbranch_scc0 LN_noat')
    epoch_atomic(o)
    o.label('LN_noat')
    o(f's_lshl_b32 s{sT0}, s{sPair}, 2\ns_add_u32 s{sT0}, s{sT0}, s{sWave}\ns_sub_u32 s{sT0}, s{sT0}, 4')
    o(f's_cmp_ge_u32 s{sT0}, 784')
    o('s_cbranch_scc1 LN_norep')
    srd(o, SRD_WG, sWg, 1605632); srd(o, SRD_WU, sWu, 1605632); srd(o, SRD_WD, sWd, 1605632)
    sSb, sKk, sKt, sDb, sL = 44, 45, 46, 47, 48
    o(f's_mul_i32 s{sSb}, s{sT0}, 2341\ns_lshr_b32 s{sSb}, s{sSb}, 16')
    o(f's_mul_i32 s{sKk}, s{sSb}, 28\ns_sub_u32 s{sKk}, s{sT0}, s{sKk}')
    o(f's_mul_i32 s{sKt}, s{sT0}, 9363\ns_lshr_b32 s{sKt}, s{sKt}, 16')
    o(f's_mul_i32 s{sDb}, s{sKt}, 7\ns_sub_u32 s{sDb}, s{sT0}, s{sDb}')
    o(f's_sub_u32 s{sL}, s{sWave}, 4\ns_mul_i32 s{sL}, s{sL}, 6144\ns_add_u32 s{sL}, s{sL}, {LDS_RP}')
    vGu, vDn = 16, 17
    o(f'v_lshrrev_b32 v{vT0}, 3, v0\nv_and_b32 v{vT1}, 7, v0\nv_lshlrev_b32 v{vT1}, 4, v{vT1}')
    o(f'v_mul_u32_u24 v{vGu}, 3584, v{vT0}\nv_add_u32 v{vGu}, v{vGu}, v{vT1}')
    o(f'v_mul_u32_u24 v{vDn}, 896, v{vT0}\nv_add_u32 v{vDn}, v{vDn}, v{vT1}')
    o(f's_mul_i32 s{sT1}, s{sKk}, {16 * 3584}\ns_lshl_b32 s{sT2}, s{sSb}, 7\ns_add_u32 s{sT1}, s{sT1}, s{sT2}')
    o(f's_add_u32 s{sT2}, s{sT1}, {8 * 3584}')
    for mat, sr in enumerate([SRD_WG, SRD_WU]):
        for i in range(2):
            o(f's_add_u32 s{sT3}, s{sL}, {mat * 2048 + i * 1024}\ns_mov_b32 m0, s{sT3}\ns_nop 0')
            o(f'buffer_load_dwordx4 v{vGu}, s[{sr}:{sr+3}], s{sT1 if i == 0 else sT2} offen lds'); vm.issue('rp')
    o(f's_mul_i32 s{sT1}, s{sKt}, {16 * 896}\ns_lshl_b32 s{sT2}, s{sDb}, 7\ns_add_u32 s{sT1}, s{sT1}, s{sT2}')
    o(f's_add_u32 s{sT2}, s{sT1}, {8 * 896}')
    for i in range(2):
        o(f's_add_u32 s{sT3}, s{sL}, {4096 + i * 1024}\ns_mov_b32 m0, s{sT3}\ns_nop 0')
        o(f'buffer_load_dwordx4 v{vDn}, s[{SRD_WD}:{SRD_WD+3}], s{sT1 if i == 0 else sT2} offen lds'); vm.issue('rp')
    o.label('LN_norep')
    stamp(o, stamps, 5)
    o('s_barrier')
    o(f's_cmp_ge_u32 s{sT0}, 784')
    o('s_cbranch_scc1 LN_norep2')
    g_, rho, c_ = 20, 21, 22
    o(f'v_lshrrev_b32 v{g_}, 4, v0\nv_bfe_u32 v{rho}, v0, 2, 2\nv_and_b32 v{c_}, 3, v0')
    vA1, vA2 = 18, 19
    o(f'v_and_b32 v{vT0}, 1, v{g_}\nv_lshlrev_b32 v{vT0}, 11, v{vT0}')
    o(f'v_lshrrev_b32 v{vT1}, 1, v{g_}\nv_lshlrev_b32 v{vT1}, 10, v{vT1}\nv_add_u32 v{vT0}, v{vT0}, v{vT1}')
    o(f'v_lshlrev_b32 v{vT1}, 7, v{rho}\nv_add_u32 v{vT0}, v{vT0}, v{vT1}')
    o(f'v_lshlrev_b32 v{vT1}, 3, v{c_}\nv_add3_u32 v{vA1}, v{vT0}, v{vT1}, s{sL}')
    o(f'v_lshrrev_b32 v{vT0}, 1, v{g_}\nv_lshlrev_b32 v{vT0}, 9, v{vT0}')
    o(f'v_lshlrev_b32 v{vT1}, 7, v{rho}\nv_add_u32 v{vT0}, v{vT0}, v{vT1}')
    o(f'v_and_b32 v{vT1}, 1, v{g_}\nv_lshlrev_b32 v{vT1}, 5, v{vT1}\nv_add_u32 v{vT0}, v{vT0}, v{vT1}')
    o(f'v_lshlrev_b32 v{vT1}, 3, v{c_}\nv_add3_u32 v{vA2}, v{vT0}, v{vT1}, s{sL}')
    o(f'v_lshlrev_b32 v{vT0}, 4, v0')
    o('s_waitcnt vmcnt(0)')
    F = 32
    for tt in range(4):
        o(f'ds_read_b64_tr_b16 v[{F+4*tt}:{F+4*tt+1}], v{vA1} offset:{tt*32}')
        o(f'ds_read_b64_tr_b16 v[{F+4*tt+2}:{F+4*tt+3}], v{vA1} offset:{tt*32 + 512}')
    for mt in range(2):
        o(f'ds_read_b64_tr_b16 v[{F+16+4*mt}:{F+16+4*mt+1}], v{vA2} offset:{4096 + mt*64}')
        o(f'ds_read_b64_tr_b16 v[{F+16+4*mt+2}:{F+16+4*mt+3}], v{vA2} offset:{4096 + mt*64 + 1024}')
    o(f's_mul_i32 s{sT1}, s{sSb}, {4 * 29}\ns_add_u32 s{sT1}, s{sT1}, s{sKk}\ns_lshl_b32 s{sT1}, s{sT1}, 10\ns_add_u32 s{sT1}, s{sT1}, {WS_WP}')
    o('s_waitcnt lgkmcnt(0)')
    for tt in range(4):
        o(f'buffer_store_dwordx4 v[{F+4*tt}:{F+4*tt+3}], v{vT0}, s[{SRD_WS}:{SRD_WS+3}], s{sT1} offen')
        if tt < 3: o(f's_add_u32 s{sT1}, s{sT1}, {29 * 1024}')
    o(f's_mul_i32 s{sT1}, s{sDb}, 224\ns_add_u32 s{sT1}, s{sT1}, s{sKt}\ns_lshl_b32 s{sT1}, s{sT1}, 10\ns_add_u32 s{sT1}, s{sT1}, {WS_WD}')
    o(f'buffer_store_dwordx4 v[{F+16}:{F+19}], v{vT0}, s[{SRD_WS}:{SRD_WS+3}], s{sT1} offen')
    o(f's_add_u32 s{sT1}, s{sT1}, {112 * 1024}')
    o(f'buffer_store_dwordx4 v[{F+20}:{F+23}], v{vT0}, s[{SRD_WS}:{SRD_WS+3}], s{sT1} offen')
    o.label('LN_norep2')
    o(f's_cmp_eq_u32 s{sWave}, 7')
    o('s_cbranch_scc0 LN_noe')
    epoch_finish(o, 'N')
    o.label('LN_noe')
    stamp(o, stamps, 6)
    o('s_barrier')
    finish(o, stamps)

vAt, vAt2 = 250, 251
def epoch_atomic(o):
    srd(o, SRD_DBG, sDbg, 256)
    o(f'v_mov_b32 v{vAt}, 1\nv_mov_b32 v{vAt2}, 0')
    o('s_mov_b64 exec, 1')
    o(f'buffer_atomic_add v{vAt}, v{vAt2}, s[{SRD_DBG}:{SRD_DBG+3}], 0 offen sc0 sc1')
    o('s_mov_b64 exec, -1')
def epoch_finish(o, pfx):
    o('s_waitcnt vmcnt(0)')
    o(f'v_readfirstlane_b32 s{sT1}, v{vAt}')
    o('s_nop 3')
    o(f's_cmp_eq_u32 s{sT1}, 255')
    o(f's_cbranch_scc0 L{pfx}_noupd')
    o('s_mov_b64 exec, 1')
    o(f'buffer_store_dword v{vTag}, v{vAt2}, s[{SRD_WS}:{SRD_WS+3}], 0 offen sc1')
    o('s_mov_b64 exec, -1')
    o.label(f'L{pfx}_noupd')

def gen_spare(o, q0, stamps):
    vm = VM(o); vm.q = q0
    row_stats(o, vm)
    stamp(o, stamps, 0)
    o(f's_cmp_eq_u32 s{sWave}, 7')
    o('s_cbranch_scc0 LS_noat')
    epoch_atomic(o)
    o.label('LS_noat')
    sMat, sFs = 44, 45
    o(f's_lshr_b32 s{sMat}, s{sSp}, 4\ns_and_b32 s{sFs}, s{sSp}, 15')
    o(f's_cmp_eq_u32 s{sMat}, 0')
    o(f's_cselect_b32 s48, s{sWg}, s{sWu}\ns_cselect_b32 s49, s{sWg+1}, s{sWu+1}')
    o('s_mov_b32 s50, 1605632\ns_mov_b32 s51, 0x00020000')
    vTid, vG, vC, vOf = 16, 17, 18, 19
    o(f's_lshl_b32 s{sT0}, s{sWave}, 6\nv_add_u32 v{vTid}, s{sT0}, v0')
    o(f'v_mul_u32_u24 v{vG}, 4682, v{vTid}\nv_lshrrev_b32 v{vG}, 16, v{vG}')
    o(f'v_mul_u32_u24 v{vC}, 14, v{vG}\nv_sub_u32 v{vC}, v{vTid}, v{vC}')
    o(f'v_mul_u32_u24 v{vOf}, 3584, v{vG}\nv_lshlrev_b32 v{vT0}, 4, v{vC}\nv_add_u32 v{vOf}, v{vOf}, v{vT0}')
    o(f's_mul_i32 s{sT1}, s{sFs}, 224')
    L = 32
    o(f's_cmp_ge_u32 s{sWave}, 7')
    o('s_cbranch_scc1 LS_skip')
    for i in range(14):
        o(f'buffer_load_dwordx4 v[{L+4*i}:{L+4*i+3}], v{vOf}, s[48:51], s{sT1} offen')
        if i < 13: o(f's_add_u32 s{sT1}, s{sT1}, {32 * 3584}')
    A = 96
    for j in range(8): o(f'v_mov_b32 v{A+j}, 0')
    for i in range(14):
        o(f's_waitcnt vmcnt({13 - i})')
        for r in range(4):
            unpack(o, 104, 105, L + 4*i + r)
            o(f'v_add_f32 v{A+2*r}, v{A+2*r}, v104\nv_add_f32 v{A+2*r+1}, v{A+2*r+1}, v105')
    o(f'v_mul_u32_u24 v{vT0}, 448, v{vG}\nv_lshlrev_b32 v{vT1}, 5, v{vC}\nv_add_u32 v{vT0}, v{vT0}, v{vT1}')
    o(f'ds_write_b128 v{vT0}, v[{A}:{A+3}]\nds_write_b128 v{vT0}, v[{A+4}:{A+7}] offset:16')
    o.label('LS_skip')
    o('s_waitcnt lgkmcnt(0)')
    o('s_barrier')
    o(f's_cmp_ge_u32 s{sWave}, 2')
    o('s_cbranch_scc1 LS_done')
    o(f'v_lshlrev_b32 v{vT0}, 2, v{vTid}')
    for g in range(32): o(f'ds_read_b32 v{L+g}, v{vT0} offset:{448*g}')
    o('s_waitcnt lgkmcnt(0)')
    for g in range(1, 32): o(f'v_add_f32 v{L}, v{L}, v{L+g}')
    o(f'v_cvt_pk_bf16_f32 v{L+1}, v{L}, v{L}\nv_and_b32 v{L+1}, 0xffff0000, v{L+1}\nv_sub_f32 v{L+1}, v{L}, v{L+1}')
    Z = 68
    o(f'v_cvt_pk_bf16_f32 v{Z}, v{L}, v{L+1}')
    for j in range(1, 8): o(f'v_mov_b32 v{Z+j}, 0')
    o(f'v_lshrrev_b32 v{vT0}, 4, v{vTid}\ns_mul_i32 s{sT1}, s{sFs}, 7\nv_add_u32 v{vT0}, s{sT1}, v{vT0}')
    o(f'v_mul_u32_u24 v{vT0}, 29, v{vT0}\nv_add_u32 v{vT0}, 28, v{vT0}\nv_lshlrev_b32 v{vT0}, 10, v{vT0}')
    o(f'v_and_b32 v{vT1}, 15, v{vTid}\ns_lshl_b32 s{sT1}, s{sMat}, 4\nv_add_u32 v{vT1}, s{sT1}, v{vT1}\nv_lshlrev_b32 v{vT1}, 4, v{vT1}')
    o(f'v_add_u32 v{vT0}, v{vT0}, v{vT1}')
    o(f's_mov_b32 s{sT1}, {WS_WP}')
    o(f'v_cmp_gt_u32 vcc, 112, v{vTid}')
    o(f's_and_saveexec_b64 s[52:53], vcc')
    o('s_cbranch_execz LS_rest')
    o(f'buffer_store_dwordx4 v[{Z}:{Z+3}], v{vT0}, s[{SRD_WS}:{SRD_WS+3}], s{sT1} offen')
    o(f'buffer_store_dwordx4 v[{Z+4}:{Z+7}], v{vT0}, s[{SRD_WS}:{SRD_WS+3}], s{sT1} offen offset:512')
    o.label('LS_rest')
    o('s_mov_b64 exec, s[52:53]')
    o.label('LS_done')
    o(f's_cmp_eq_u32 s{sWave}, 7')
    o('s_cbranch_scc0 LS_noe')
    epoch_finish(o, 'S')
    o.label('LS_noe')
    finish(o, stamps)
def desc_ab(): return kernel_desc(NAME, 256, 100, accum=256)
def launch_ab(): return f'; @launch kernel={NAME} grid=(256,1,1) block=(512,1,1) lds={LDS_BYTES}'
```

```python
from asmlib import *
from layout import *
from vm import VM
NAME = 'ffn1_kernel'
PREFETCH = False
USE_PK = False
PF_WD = True
X_NOEPI = False; X_NOBAR = False; X_NODMA = False; X_NOREAD = False; X_NOSTAT = False
LDS_S4 = 4 * 28672
LDS_CORR = LDS_S4 + 28672
LDS_BYTES = LDS_CORR + 7 * 1024
ACC = [16, 32]
WB = 48; NWB = 8
HF = 80
T = 192
PK = 200
vS, vQ, vC1, vSB, vT0, vT1 = 204, 205, 206, 208, 210, 211
BC = 212
SA = 216
SD = 220
vLane16, vLB0, vLB1, vLB2, vTR, vHoff, vHN = 1, 2, 3, 4, 5, 6, 8
def w_lds_addr(t, kk):
    if kk == 28: return LDS_CORR + t * 1024
    if t in (0, 5): return LDS_S4 + kk * 1024
    tt = 1 if t == 6 else t
    return (kk // 7) * 28672 + (7 * (tt - 1) + kk % 7) * 1024
def w_read(o, dst, t, kk):
    a_ = w_lds_addr(t, kk)
    base = [vLB0, vLB1, vLB2][a_ >> 16]
    o(f'ds_read_b128 v[{dst}:{dst+3}], v{base} offset:{a_ & 0xffff}')
def epilogue_ops(acc):
    ops = []
    if USE_PK:
        for j in range(0, 8, 2): ops.append((4, f'v_pk_mul_f32 v[{T+j}:{T+j+1}], v[{acc+j}:{acc+j+1}], v[{vC1}:{vC1+1}] op_sel_hi:[1,0]'))
    else:
        for j in range(8): ops.append((4, f'v_mul_f32 v{T+j}, v{acc+j}, v{vC1}'))
    for j in range(8): ops.append((8, f'v_exp_f32 v{T+j}, v{T+j}'))
    if USE_PK:
        for j in range(0, 8, 2): ops.append((4, f'v_pk_fma_f32 v[{T+j}:{T+j+1}], v[{T+j}:{T+j+1}], v[{vSB}:{vSB+1}], v[{vSB}:{vSB+1}] op_sel_hi:[1,0,0]'))
    else:
        for j in range(8): ops.append((4, f'v_fma_f32 v{T+j}, v{T+j}, v{vSB}, v{vSB}'))
    for j in range(8): ops.append((8, f'v_rcp_f32 v{T+j}, v{T+j}'))
    if USE_PK:
        for j in range(0, 8, 2): ops.append((4, f'v_pk_mul_f32 v[{T+j}:{T+j+1}], v[{acc+8+j}:{acc+8+j+1}], v[{T+j}:{T+j+1}]'))
    else:
        for j in range(8): ops.append((4, f'v_mul_f32 v{T+j}, v{acc+8+j}, v{T+j}'))
    for j in range(4): ops.append((4, f'v_cvt_pk_bf16_f32 v{PK+j}, v{T+2*j}, v{T+2*j+1}'))
    return ops
def epilogue_gaps(acc):
    mul = [f'v_mul_f32 v{T+j}, v{acc+j}, v{vC1}' for j in range(8)]
    ex = [f'v_exp_f32 v{T+j}, v{T+j}' for j in range(8)]
    fma = [f'v_fma_f32 v{T+j}, v{T+j}, v{vSB}, v{vSB}' for j in range(8)]
    rcp = [f'v_rcp_f32 v{T+j}, v{T+j}' for j in range(8)]
    mu = [f'v_mul_f32 v{T+j}, v{acc+8+j}, v{T+j}' for j in range(8)]
    cv = [f'v_cvt_pk_bf16_f32 v{PK+j}, v{T+2*j}, v{T+2*j+1}' for j in range(4)]
    g = [[mul[0], mul[1], mul[2]]]
    for j in range(5): g.append([ex[j], mul[3+j]])
    for j in range(5, 8): g.append([ex[j], fma[j-5]])
    for j in range(5): g.append([rcp[j], fma[3+j]])
    for j in range(5, 8): g.append([rcp[j], mu[j-5]])
    g += [[mu[3], mu[4], mu[5]], [mu[6], mu[7], cv[0]], [cv[1], cv[2], cv[3]]]
    return g
def take_fill(fill, budget, force):
    out = []
    while fill and (fill[0][0] <= budget or force > 0):
        c, op = fill.pop(0); out.append(op); budget -= c; force -= 1
    return out
def gen_c(o, stamps=False):
    vm = VM(o)
    kernel_begin(o, NAME)
    o('s_cmp_ge_u32 s2, 256')
    o('s_cbranch_scc1 LC_end')
    o(f's_load_dwordx2 s[4:5], s[0:1], {KA["ws"]}')
    if stamps: o('s_memtime s[74:75]')
    o('v_lshrrev_b32 v9, 6, v0')
    o('v_and_b32 v0, 63, v0')
    o('v_readfirstlane_b32 s24, v9')
    o('s_and_b32 s25, s2, 7')
    o('s_lshr_b32 s26, s2, 3')
    if PREFETCH: code_prefetch(o, NAME, 'code_end', 26, 24, 4, 240, 244, 44, 'c')
    o('s_lshr_b32 s27, s25, 1')
    o('s_lshl_b32 s27, s27, 2')
    o('s_and_b32 s28, s26, 3')
    o('s_add_u32 s27, s27, s28')
    o('s_and_b32 s28, s25, 1')
    o('s_lshl_b32 s28, s28, 3')
    o('s_lshr_b32 s29, s26, 2')
    o('s_add_u32 s28, s28, s29')
    o('s_lshl_b32 s29, s27, 2')
    o('s_add_u32 s29, s29, s24')
    o(f'v_lshlrev_b32 v{vLane16}, 4, v0')
    o('s_mul_i32 s30, s24, 28672')
    o('s_mul_i32 s33, s28, 7')
    o('s_mul_i32 s32, s33, 29696')
    o('s_lshl_b32 s34, s29, 5')
    o('s_mul_i32 s35, s29, 28672')
    o('s_mul_i32 s36, s24, 7168')
    o('s_add_u32 s46, s36, s32')
    o('s_waitcnt lgkmcnt(0)')
    srd(o, 12, 4, WP_BYTES, WS_WP)
    srd(o, 8, 4, HT_BYTES, WS_HT)
    def w_dma_ops(t, tag):
        ops = [f's_add_u32 s37, s46, {t * 29696}']
        if t in (0, 5): ops.append(f's_add_u32 s38, s36, {LDS_S4}')
        else:
            tt = 1 if t == 6 else t
            ops.append(f's_add_u32 s38, s30, {7 * (tt - 1) * 1024}')
        groups = []
        cur = ops
        for j in range(7):
            if j == 0: cur += ['s_mov_b32 m0, s38', 's_nop 0']
            if j == 4: cur += ['s_add_u32 s38, s38, 4096', 's_mov_b32 m0, s38', 's_add_u32 s37, s37, 4096']
            cur.append(('dma', f'buffer_load_dwordx4 v{vLane16}, s[12:15], s37 offen offset:{(j % 4) * 1024} lds', tag))
            groups.append(cur); cur = []
        return groups
    def emit_group(g):
        for op in g:
            if isinstance(op, tuple): o(op[1]); vm.issue(op[2])
            else: o(op)
    for g in w_dma_ops(0, 'w0'): emit_group(g)
    for which in range(2):
        if which == 0: o('s_mov_b32 s39, s24')
        else:
            o('s_add_u32 s39, s24, 4'); o('s_min_u32 s39, s39, 6')
        o('s_mul_i32 s37, s39, 29696')
        o('s_add_u32 s37, s37, s32')
        o(f's_add_u32 s37, s37, {28 * 1024}')
        o('s_lshl_b32 s38, s39, 10')
        o(f's_add_u32 s38, s38, {LDS_CORR}')
        o('s_mov_b32 m0, s38')
        o('s_nop 0')
        o(f'buffer_load_dwordx4 v{vLane16}, s[12:15], s37 offen lds'); vm.issue('w0')
    o('s_mov_b32 s47, s30')
    o('s_mov_b32 s48, s35')
    def h_dma(kk):
        if kk % 4 == 0:
            o('s_mov_b32 m0, s47')
            o('s_add_u32 s47, s47, 4096')
            if kk: o('s_add_u32 s48, s48, 4096')
            else: o('s_nop 0')
        o(f'buffer_load_dwordx4 v{vLane16}, s[8:11], s48 offen offset:{(kk % 4) * 1024} lds'); vm.issue(f'h{kk}')
    AH = 10; AH0 = 4
    for kk in range(AH0): h_dma(kk)
    srd(o, 16, 4, H_BYTES, WS_H)
    srd(o, 20, 4, HN_BYTES, WS_HN)
    o(f'v_mov_b32 v{vLB0}, v{vLane16}')
    o(f'v_add_u32 v{vLB1}, 0x10000, v{vLane16}')
    o(f'v_add_u32 v{vLB2}, 0x20000, v{vLane16}')
    o('v_lshrrev_b32 v9, 5, v0')
    o('v_lshlrev_b32 v9, 9, v9')
    o('v_bfe_u32 v10, v0, 2, 2')
    o('v_lshlrev_b32 v10, 6, v10')
    o('v_add_u32 v9, v9, v10')
    o('v_bfe_u32 v10, v0, 4, 1')
    o('v_lshlrev_b32 v10, 5, v10')
    o('v_add_u32 v9, v9, v10')
    o('v_and_b32 v10, 3, v0')
    o('v_lshlrev_b32 v10, 3, v10')
    o('v_add_u32 v9, v9, v10')
    o(f'v_add_u32 v{vTR}, s30, v9')
    o('s_mul_i32 s31, s29, 112')
    o('s_add_u32 s31, s31, s33')
    o('s_lshl_b32 s31, s31, 10')
    o('v_and_b32 v9, 31, v0')
    o('v_add_u32 v9, s34, v9')
    o('v_mul_u32_u24 v9, 896, v9')
    o('v_lshrrev_b32 v10, 5, v0')
    o('v_lshlrev_b32 v10, 4, v10')
    o(f'v_add_u32 v{vHN}, v9, v10')
    o('s_mov_b32 s50, 0x00020001\ns_mov_b32 s51, 0x00020001')
    o(f'v_mov_b32 v{SA}, 0\nv_mov_b32 v9, 0x3f803f80')
    o(f'v_cndmask_b32 v{SA}, v{SA}, v9, s[50:51]')
    for j in range(1, 4): o(f'v_mov_b32 v{SA+j}, v{SA}')
    vm.wait('w0')
    o('s_barrier')
    if stamps: o('s_memtime s[62:63]')
    later = []
    for t in (1, 2): later += w_dma_ops(t, f'w{t}')
    def reads(k):
        vm.wait(f'h{k}')
        hb = HF + 4 * k
        o(f'ds_read_b64_tr_b16 v[{hb}:{hb+1}], v{vTR} offset:{k * 1024}')
        o(f'ds_read_b64_tr_b16 v[{hb+2}:{hb+3}], v{vTR} offset:{k * 1024 + 256}')
    QA = ACC[1]
    cb0 = WB + 4 * (28 % NWB)
    nissued = AH0
    reads(0); w_read(o, WB, 0, 0)
    h_dma(nissued); nissued += 1
    reads(1); w_read(o, WB + 4, 0, 1)
    h_dma(nissued); nissued += 1
    for k in range(28):
        hb = HF + 4 * k; wb = WB + 4 * (k % NWB)
        z = lambda r, n: '0' if k == 0 else f'v[{r}:{r+n-1}]'
        o(f's_waitcnt lgkmcnt({3 if k < 27 else 0})')
        o(f'v_mfma_f32_32x32x16_bf16 v[{ACC[0]}:{ACC[0]+15}], v[{wb}:{wb+3}], v[{hb}:{hb+3}], {z(ACC[0], 16)}')
        if k + 2 < 28: reads(k + 2)
        if not X_NOSTAT: o(f'v_mfma_f32_32x32x16_bf16 v[{QA}:{QA+15}], v[{hb}:{hb+3}], v[{hb}:{hb+3}], {z(QA, 16)}')
        if k + 2 < 28: w_read(o, WB + 4 * ((k + 2) % NWB), 0, k + 2)
        elif k == 26: w_read(o, cb0, 0, 28)
        ndma = 0
        while nissued < 28 and (nissued <= k + AH) and ndma < 2:
            h_dma(nissued); nissued += 1; ndma += 1
        if not X_NOSTAT: o(f'v_mfma_f32_16x16x32_bf16 v[{SD}:{SD+3}], v[{SA}:{SA+3}], v[{hb}:{hb+3}], {z(SD, 4)}')
        if nissued >= 28 and ndma == 0 and later:
            emit_group(later.pop(0))
    if stamps: o('s_memtime s[64:65]')
    while later: emit_group(later.pop(0))
    o('s_min_u32 s41, s28, 13')
    def tree(lo, hi, path):
        if hi - lo == 1:
            for q in range(2):
                kk = 2 * lo + q; hb = HF + 4 * kk
                o(f'buffer_store_dwordx4 v[{hb}:{hb+3}], v{vHN}, s[20:23], 0 offen offset:{kk * 32}')
            o('s_branch LC_hn_done')
            return
        mid = (lo + hi) // 2
        o(f's_cmp_ge_u32 s41, {mid}')
        o(f's_cbranch_scc1 LC_hn_{path}1')
        tree(lo, mid, path + '0')
        o.label(f'LC_hn_{path}1')
        tree(mid, hi, path + '1')
    tree(0, 14, 'p')
    o.label('LC_hn_done')
    vm.issue('hn'); vm.issue('hn')
    masks = [0xAAAAAAAA, 0xCCCCCCCC, 0xFF00FF00, 0xFFFF0000, 0xF0F0F0F0]
    for r, m in zip([52, 54, 56, 58, 72], masks): o(f's_mov_b32 s{r}, {hex(m)}\ns_mov_b32 s{r+1}, {hex(m)}')
    o('s_nop 3')
    for j in range(8): o(f'v_cndmask_b32 v{T+j}, v{QA+2*j}, v{QA+2*j+1}, s[52:53]')
    for j in range(4): o(f'v_cndmask_b32 v{T+j}, v{T+2*j}, v{T+2*j+1}, s[54:55]')
    for j in range(2): o(f'v_cndmask_b32 v{T+j}, v{T+2*j}, v{T+2*j+1}, s[56:57]')
    o(f'v_cndmask_b32 v{vQ}, v{T}, v{T+1}, s[58:59]')
    o(f'v_mov_b32 v{vT0}, v{vQ}')
    o(f'v_mov_b32 v{vT1}, v{SD}')
    o(f'v_mov_b32 v{vS}, v{SD+1}')
    o('s_nop 0')
    o(f'v_permlane32_swap_b32 v{vQ}, v{vT0}')
    o(f'v_permlane16_swap_b32 v{vT1}, v{vS}')
    o('s_nop 1')
    o(f'v_cndmask_b32 v{vQ}, v{vQ}, v{vT0}, s[72:73]')
    o(f'v_mov_b32 v{vS}, v{vT1}')
    o('s_nop 1')
    o(f'v_permlane32_swap_b32 v{vS}, v{vT1}')
    o('s_nop 1')
    o(f's_mov_b32 s40, {hex(0x3b124925)}')
    o(f'v_mul_f32 v{vS}, s40, v{vS}')
    o(f'v_mul_f32 v{vQ}, s40, v{vQ}')
    o(f'v_fma_f32 v{vQ}, -v{vS}, v{vS}, v{vQ}')
    o(f'v_max_f32 v{vQ}, 0, v{vQ}')
    o(f'v_cvt_pk_bf16_f32 v{vT0}, v{vS}, v{vQ}')
    o(f'v_and_b32 v{vT1}, 0xffff0000, v{vT0}')
    o(f'v_add_f32 v{vT1}, {hex(0x3727c5ac)}, v{vT1}')
    o(f'v_cvt_pk_bf16_f32 v{vT1}, v{vT1}, v{vT1}')
    o(f'v_and_b32 v{vT1}, 0xffff0000, v{vT1}')
    o(f'v_sqrt_f32 v{vT1}, v{vT1}')
    o('s_nop 0')
    o(f'v_cvt_pk_bf16_f32 v{vT1}, v{vT1}, v{vT1}')
    o(f'v_and_b32 v{vSB}, 0xffff0000, v{vT1}')
    o(f'v_rcp_f32 v{vC1}, v{vSB}')
    o(f'v_and_b32 v{vT0}, 0xffff, v{vT0}')
    o(f'v_xor_b32 v{vT0}, 0x8000, v{vT0}')
    o(f'v_mul_f32 v{vC1}, {hex(0xbfb8aa3b)}, v{vC1}')
    o(f'v_lshl_or_b32 v{BC}, v{vT0}, 16, v{vT0}')
    o(f'v_mov_b32 v{BC+1}, 0')
    o(f'v_mov_b32 v{BC+2}, 0')
    o(f'v_mov_b32 v{BC+3}, 0')
    o('s_waitcnt lgkmcnt(0)')
    o(f'v_mfma_f32_32x32x16_bf16 v[{ACC[0]}:{ACC[0]+15}], v[{cb0}:{cb0+3}], v[{BC}:{BC+3}], v[{ACC[0]}:{ACC[0]+15}]')
    vm.wait('w1')
    o('s_barrier')
    if stamps: o('s_memtime s[66:67]')
    PF = 7; WE = 4
    bi = 29 % NWB
    seq = [(t, kk) for t in range(1, 7) for kk in range(29)]
    bufof = {}
    for i, (t, kk) in enumerate(seq): bufof[(t, kk)] = WB + 4 * ((bi + i) % NWB)
    for i in range(PF):
        t, kk = seq[i]; w_read(o, bufof[(t, kk)], t, kk)
    fill = []; dmaq = []
    waited_upto = -1
    for i, (t, kk) in enumerate(seq):
        acc = ACC[t & 1]
        if kk == 0:
            assert not fill, fill
            fill = epilogue_gaps(ACC[(t - 1) & 1]) + [('store', t - 1)]
        if kk == 0 and t + 2 <= 6: dmaq += w_dma_ops(t + 2, f'w{t+2}')
        if PF_WD and t == 5 and kk == 1:
            srd(o, 76, 4, WD_BYTES, WS_WD)
            o('s_lshl_b32 s43, s26, 2\ns_add_u32 s43, s43, s24\ns_mul_i32 s43, s43, 12544')
            o('v_lshlrev_b32 v240, 7, v0')
            o('buffer_load_dword v244, v240, s[76:79], s43 offen'); vm.issue('pf')
            o('s_add_u32 s43, s43, 8192')
            o('s_mov_b32 exec_hi, 3')
            o('buffer_load_dword v245, v240, s[76:79], s43 offen'); vm.issue('pf')
            o('s_mov_b32 exec_hi, -1')
        if kk == 29 - PF - 1 and t + 1 <= 6:
            if not X_NOBAR:
                vm.wait(f'w{t+1}')
                o('s_barrier')
        nxt = i + PF
        if nxt < len(seq) and not X_NOREAD:
            t2, k2 = seq[nxt]; w_read(o, bufof[(t2, k2)], t2, k2)
        if i > waited_upto and not X_NOREAD:
            last_issued = min(nxt, len(seq) - 1)
            upto = min(i + WE - 1, len(seq) - 1)
            o(f's_waitcnt lgkmcnt({last_issued - upto})')
            waited_upto = upto
        wb = bufof[(t, kk)]
        bop = f'v[{HF+4*kk}:{HF+4*kk+3}]' if kk < 28 else f'v[{BC}:{BC+3}]'
        c = '0' if kk == 0 else f'v[{acc}:{acc+15}]'
        o(f'v_mfma_f32_32x32x16_bf16 v[{acc}:{acc+15}], v[{wb}:{wb+3}], {bop}, {c}')
        if dmaq:
            g = dmaq.pop(0)
            if not X_NODMA: emit_group(g)
        elif 4 <= kk and fill:
            g = fill.pop(0)
            if isinstance(g, tuple):
                o(f's_add_u32 s42, s31, {g[1] * 1024}')
                o(f'buffer_store_dwordx4 v[{PK}:{PK+3}], v{vLane16}, s[16:19], s42 offen'); vm.issue('hs')
            elif not X_NOEPI:
                for op in g: o(op)
    assert not fill and not dmaq, (fill, dmaq)
    if stamps: o('s_memtime s[68:69]')
    o('s_nop 7'); o('s_nop 7')
    for cst, op in epilogue_ops(ACC[6 & 1]): o(op)
    o(f's_add_u32 s42, s31, {6 * 1024}')
    o(f'buffer_store_dwordx4 v[{PK}:{PK+3}], v{vLane16}, s[16:19], s42 offen')
    if stamps:
        o('s_waitcnt vmcnt(0)')
        o('s_memtime s[70:71]')
        o('s_waitcnt lgkmcnt(0)')
        o('s_sub_u32 s70, s70, s74\ns_sub_u32 s68, s68, s74\ns_sub_u32 s66, s66, s74\ns_sub_u32 s64, s64, s74\ns_sub_u32 s62, s62, s74')
        o('v_mov_b32 v16, s62\nv_mov_b32 v17, s64\nv_mov_b32 v18, s66\nv_mov_b32 v19, s68\nv_mov_b32 v20, s70\nv_mov_b32 v21, 0\nv_mov_b32 v22, 0\nv_mov_b32 v23, 0')
        srd(o, 8, 4, 0x10000, 0x1800000)
        o('s_lshl_b32 s43, s2, 2\ns_add_u32 s43, s43, s24\ns_lshl_b32 s43, s43, 5')
        o('v_mov_b32 v24, s43')
        o('s_mov_b64 exec, 1')
        o('buffer_store_dwordx4 v[16:19], v24, s[8:11], 0 offen')
        o('buffer_store_dwordx4 v[20:23], v24, s[8:11], 0 offen offset:16')
    o.label('LC_end')
    o('s_endpgm')
def desc_c(): return kernel_desc(NAME, 248, 84)
def launch_c(): return f'; @launch kernel={NAME} grid=(256,1,1) block=(256,1,1) lds={LDS_BYTES}'
```

```python
from asmlib import *
from layout import *
from vm import VM
NAME = 'ffn2_kernel'
PREFETCH = False
LDS_BYTES = 98304
ACC = 16
FB = 80
DEPTH = 8
ROT = 1
ST = ''
RES = 208
vLane16, vRes, vOut, vL = 1, 2, 3, 4
def gen_d(o, stamps=False):
    vm = VM(o)
    kernel_begin(o, NAME)
    o('s_cmp_ge_u32 s2, 224')
    o('s_cbranch_scc1 LD_end')
    o(f's_load_dwordx2 s[4:5], s[0:1], {KA["ws"]}')
    o(f's_load_dwordx2 s[6:7], s[0:1], {KA["out"]}')
    if stamps: o('s_memtime s[60:61]')
    o('v_lshrrev_b32 v9, 6, v0')
    o('v_and_b32 v0, 63, v0')
    o('v_readfirstlane_b32 s24, v9')
    o('s_and_b32 s25, s2, 7')
    o('s_lshr_b32 s26, s2, 3')
    if PREFETCH: code_prefetch(o, NAME, 'code_end', 26, 24, 4, 240, 244, 44, 'd')
    o('s_and_b32 s27, s26, 3')
    o('s_lshl_b32 s25, s25, 2')
    o('s_add_u32 s27, s27, s25')
    o('s_lshr_b32 s28, s26, 2')
    o(f'v_lshlrev_b32 v{vLane16}, 4, v0')
    o('s_mul_i32 s29, s24, 28')
    o('s_mul_i32 s30, s28, 224')
    o('s_add_u32 s30, s30, s29')
    o('s_lshl_b32 s30, s30, 10')
    o(f's_add_u32 s31, s30, {112 * 1024}')
    o('s_mul_i32 s32, s27, 224')
    o('s_add_u32 s32, s32, s29')
    o('s_lshl_b32 s32, s32, 10')
    o(f's_add_u32 s33, s32, {112 * 1024}')
    o('s_and_b32 s34, s24, 1')
    o('s_lshl_b32 s34, s34, 5')
    o('s_lshl_b32 s35, s27, 6')
    o('s_add_u32 s34, s34, s35')
    o('v_and_b32 v9, 31, v0')
    o('v_add_u32 v9, s34, v9')
    o('v_mul_u32_u24 v9, 896, v9')
    o('s_lshr_b32 s35, s24, 1')
    o('s_lshl_b32 s35, s35, 5')
    o('s_lshl_b32 s36, s28, 6')
    o('s_add_u32 s35, s35, s36')
    o('s_lshl_b32 s35, s35, 1')
    o('v_lshrrev_b32 v10, 5, v0')
    o('v_lshlrev_b32 v10, 3, v10')
    o('v_add_u32 v9, v9, v10')
    o(f'v_add_u32 v{vRes}, s35, v9')
    o('s_waitcnt lgkmcnt(0)')
    srd(o, 8, 4, WD_BYTES, WS_WD)
    srd(o, 12, 4, H_BYTES, WS_H)
    srd(o, 16, 4, HN_BYTES, WS_HN)
    srd(o, 20, 6, 1835008)
    vA0, vA1, vB0, vB1 = 5, 6, 7, 8
    if ROT:
        for vr, sr in ((vA0, 30), (vA1, 31), (vB0, 32), (vB1, 33)): o(f'v_add_u32 v{vr}, s{sr}, v{vLane16}')
        o(f's_mul_i32 s38, s28, {ROT * 1024}')
    def loads(k):
        b = FB + 16 * (k % DEPTH)
        if ROT:
            o(f'buffer_load_dwordx4 v[{b}:{b+3}], v{vA0}, s[8:11], s38 offen'); vm.issue(f'k{k}')
            o(f'buffer_load_dwordx4 v[{b+8}:{b+11}], v{vB0}, s[12:15], s38 offen'); vm.issue(f'k{k}')
            o(f'buffer_load_dwordx4 v[{b+4}:{b+7}], v{vA1}, s[8:11], s38 offen'); vm.issue(f'k{k}')
            o(f'buffer_load_dwordx4 v[{b+12}:{b+15}], v{vB1}, s[12:15], s38 offen'); vm.issue(f'k{k}')
            o('s_add_u32 s38, s38, 1024\ns_cmp_eq_u32 s38, 28672\ns_cselect_b32 s38, 0, s38')
            return
        off = (k % 4) * 1024
        if k % 4 == 0 and k > 0:
            for r in (30, 31, 32, 33): o(f's_add_u32 s{r}, s{r}, 4096')
        o(f'buffer_load_dwordx4 v[{b}:{b+3}], v{vLane16}, s[8:11], s30 offen offset:{off}'); vm.issue(f'k{k}')
        o(f'buffer_load_dwordx4 v[{b+8}:{b+11}], v{vLane16}, s[12:15], s32 offen offset:{off}'); vm.issue(f'k{k}')
        o(f'buffer_load_dwordx4 v[{b+4}:{b+7}], v{vLane16}, s[8:11], s31 offen offset:{off}'); vm.issue(f'k{k}')
        o(f'buffer_load_dwordx4 v[{b+12}:{b+15}], v{vLane16}, s[12:15], s33 offen offset:{off}'); vm.issue(f'k{k}')
    for k in range(DEPTH): loads(k)
    for q in range(4):
        o(f'buffer_load_dwordx2 v[{RES+2*q}:{RES+2*q+1}], v{vRes}, s[16:19], 0 offen offset:{q * 16}'); vm.issue('res')
    if stamps: o('s_memtime s[62:63]')
    for k in range(28):
        vm.wait(f'k{k}')
        b = FB + 16 * (k % DEPTH)
        for mt in range(2):
            for nt in range(2):
                ac = ACC + 16 * (mt * 2 + nt)
                c = '0' if k == 0 else f'v[{ac}:{ac+15}]'
                o(f'v_mfma_f32_32x32x16_bf16 v[{ac}:{ac+15}], v[{b+4*mt}:{b+4*mt+3}], v[{b+8+4*nt}:{b+8+4*nt+3}], {c}')
        if k + DEPTH < 28:
            loads(k + DEPTH)
    if stamps: o('s_memtime s[64:65]')
    o(f'v_add_u32 v{vL}, 0, v{vLane16}')
    o('s_nop 7'); o('s_nop 3')
    R = FB
    def send(v):
        for q in range(4):
            if q == v: continue
            si = (v - q - 1) % 4
            for g in range(4):
                ac = ACC + 16 * q + 4 * g
                o(f'ds_write_b128 v{vL}, v[{ac}:{ac+3}] offset:{(q * 3 + si) * 4096 + g * 1024}')
        if v:
            for j in range(0, 16, 2): o(f'v_pk_mul_f32 v[{ACC+j}:{ACC+j+1}], v[{ACC+16*v+j}:{ACC+16*v+j+1}], 1.0 op_sel_hi:[1,0]')
    o('s_cmp_lt_u32 s24, 2\ns_cbranch_scc0 LD_w23')
    o('s_cmp_eq_u32 s24, 0\ns_cbranch_scc0 LD_w1')
    send(0); o('s_branch LD_sent')
    o.label('LD_w1'); send(1); o('s_branch LD_sent')
    o.label('LD_w23')
    o('s_cmp_eq_u32 s24, 2\ns_cbranch_scc0 LD_w3')
    send(2); o('s_branch LD_sent')
    o.label('LD_w3'); send(3)
    o.label('LD_sent')
    o('s_mul_i32 s37, s24, 12288')
    o(f'v_add_u32 v{vL}, s37, v{vLane16}')
    o('s_waitcnt lgkmcnt(0)')
    o('s_barrier')
    if stamps: o('s_memtime s[66:67]')
    for src in range(3):
        for g in range(4):
            d = R + 16 * src + 4 * g
            o(f'ds_read_b128 v[{d}:{d+3}], v{vL} offset:{src * 4096 + g * 1024}')
    vm.wait('res')
    U = R + 48
    for q in range(4):
        r0, r1 = RES + 2 * q, RES + 2 * q + 1
        o(f'v_lshlrev_b32 v{U+4*q}, 16, v{r0}')
        o(f'v_and_b32 v{U+4*q+1}, 0xffff0000, v{r0}')
        o(f'v_lshlrev_b32 v{U+4*q+2}, 16, v{r1}')
        o(f'v_and_b32 v{U+4*q+3}, 0xffff0000, v{r1}')
    for j in range(0, 16, 2): o(f'v_pk_add_f32 v[{ACC+j}:{ACC+j+1}], v[{ACC+j}:{ACC+j+1}], v[{U+j}:{U+j+1}]')
    for src in range(3):
        o(f's_waitcnt lgkmcnt({8 - 4 * src})')
        for j in range(0, 16, 2): o(f'v_pk_add_f32 v[{ACC+j}:{ACC+j+1}], v[{ACC+j}:{ACC+j+1}], v[{R+16*src+j}:{R+16*src+j+1}]')
    for q in range(4):
        o(f'v_cvt_pk_bf16_f32 v{R+2*q}, v{ACC+4*q}, v{ACC+4*q+1}')
        o(f'v_cvt_pk_bf16_f32 v{R+2*q+1}, v{ACC+4*q+2}, v{ACC+4*q+3}')
        o(f'buffer_store_dwordx2 v[{R+2*q}:{R+2*q+1}], v{vRes}, s[20:23], 0 offen offset:{q * 16} {ST}')
    if stamps:
        o('s_waitcnt vmcnt(0)')
        o('s_memtime s[68:69]')
        o('s_waitcnt lgkmcnt(0)')
        o('s_sub_u32 s68, s68, s60\ns_sub_u32 s66, s66, s60\ns_sub_u32 s64, s64, s60\ns_sub_u32 s62, s62, s60')
        o('v_mov_b32 v16, s62\nv_mov_b32 v17, s64\nv_mov_b32 v18, s66\nv_mov_b32 v19, s68')
        srd(o, 8, 4, 0x10000, 0x1810000)
        o('s_lshl_b32 s43, s2, 2\ns_add_u32 s43, s43, s24\ns_lshl_b32 s43, s43, 5')
        o('v_mov_b32 v24, s43')
        o('s_mov_b64 exec, 1')
        o('buffer_store_dwordx4 v[16:19], v24, s[8:11], 0 offen')
    o.label('LD_end')
    o('s_endpgm')
def desc_d(): return kernel_desc(NAME, 248, 80)
def launch_d(): return f'; @launch kernel={NAME} grid=(224,1,1) block=(256,1,1) lds={LDS_BYTES}'
```

```python
from asmlib import *
from layout import *
from vm import VM
NAME = 'ssm_kernel'
PREFETCH = False
SPARE_WAIT = False
POL0 = 'sc1'
REC_AT = 27
ST = ''
TAB = 16896
LDS_US = 8 * TAB
LDS_XS = LDS_US + 2 * 4608
LDS_EX = LDS_XS + 2 * 4096
LDS_BYTES = LDS_EX + 8192
KR_COPY = 4160; KR_CH = 2 * KR_COPY
LDS_CX = 17408
LDS_RP = LDS_CX + 16384
LOG2E = 0x3fb8aa3b; INV2PI = 0x3e22f983; INV448 = 0x3b124925; EPS = 0x3727c5ac
sX, sAre, sAim, sBre, sBim, sCre, sCim, sLdt = 8, 10, 12, 14, 16, 18, 20, 22
sDsk, sWd, sWg, sWu, sDbg, sWs = 24, 26, 28, 30, 32, 34
SRD_X, SRD_WS = 36, 40
SRD_P = [44, 48, 52, 56, 60, 64]
SRD_WG, SRD_WU, SRD_WD, SRD_DBG = 68, 72, 76, 80
sWave, sPair, sCh, sMh, sLdtV, sDskV = 3, 84, 85, 86, 87, 88
sT0, sT1, sT2, sT3, sT4, sT5 = 89, 90, 91, 92, 93, 94
sSp = 95
vLane, vTag, vE, vT0, vT1, vT2, vT3 = 0, 1, 2, 3, 4, 6, 7
vXR = 8
vS, vQ = 12, 13
def cmul(o, d, p, q):
    o(f'v_pk_mul_f32 v[{d}:{d+1}], v[{p}:{p+1}], v[{q}:{q+1}] op_sel_hi:[0,1]')
    o(f'v_pk_fma_f32 v[{d}:{d+1}], v[{p}:{p+1}], v[{q}:{q+1}], v[{d}:{d+1}] op_sel:[1,1,0] op_sel_hi:[1,0,1] neg_lo:[1,0,0]')
def cmul2(o, dA, pA, qA, dB, pB, qB):
    o(f'v_pk_mul_f32 v[{dA}:{dA+1}], v[{pA}:{pA+1}], v[{qA}:{qA+1}] op_sel_hi:[0,1]')
    o(f'v_pk_mul_f32 v[{dB}:{dB+1}], v[{pB}:{pB+1}], v[{qB}:{qB+1}] op_sel_hi:[0,1]')
    o(f'v_pk_fma_f32 v[{dA}:{dA+1}], v[{pA}:{pA+1}], v[{qA}:{qA+1}], v[{dA}:{dA+1}] op_sel:[1,1,0] op_sel_hi:[1,0,1] neg_lo:[1,0,0]')
    o(f'v_pk_fma_f32 v[{dB}:{dB+1}], v[{pB}:{pB+1}], v[{qB}:{qB+1}], v[{dB}:{dB+1}] op_sel:[1,1,0] op_sel_hi:[1,0,1] neg_lo:[1,0,0]')
vXB = 168
vTL = 172
IMG_A = LDS_US
IMG_B = LDS_XS
def e_load(o, vm):
    o(f'buffer_load_dword v{vE}, off, s[{SRD_WS}:{SRD_WS+3}], 0 sc1'); vm.issue('E')
def make_tag(o):
    o(f's_mov_b32 s{sT0}, 0x9E3779B1')
    o(f'v_mul_lo_u32 v{vTag}, v{vE}, s{sT0}')
    o(f'v_add_u32 v{vTag}, 0x7F4A7C15, v{vTag}')
def row_loads(o, vm):
    for j in range(4): o(f'v_mov_b32 v{vXR+j}, 0\nv_mov_b32 v{vXB+j}, 0')
    o(f's_lshl_b32 s{sT2}, s2, 3\ns_lshl_b32 s{sT4}, s{sWave}, 1\ns_add_u32 s{sT2}, s{sT2}, s{sT4}')
    o(f's_mul_i32 s{sT2}, s{sT2}, 896')
    o(f'v_lshlrev_b32 v{vT1}, 4, v0')
    o('s_mov_b32 exec_hi, 0x00ffffff')
    o(f'buffer_load_dwordx4 v[{vXR}:{vXR+3}], v{vT1}, s[{SRD_X}:{SRD_X+3}], s{sT2} offen'); vm.issue('xrow')
    o(f'buffer_load_dwordx4 v[{vXB}:{vXB+3}], v{vT1}, s[{SRD_X}:{SRD_X+3}], s{sT2} offen offset:896'); vm.issue('xrow')
    o('s_mov_b32 exec_hi, -1')
def row_stats(o, vm):
    SA, QA, SB, QB = 12, 13, 180, 181
    vm.wait('xrow')
    make_tag(o)
    for r in (SA, QA, SB, QB): o(f'v_mov_b32 v{r}, 0')
    o(f'v_mov_b32 v{vT1}, 0x3f803f80')
    for j in range(4):
        o(f'v_dot2c_f32_bf16 v{SA}, v{vXR+j}, v{vT1}')
        o(f'v_dot2c_f32_bf16 v{QA}, v{vXR+j}, v{vXR+j}')
        o(f'v_dot2c_f32_bf16 v{SB}, v{vXB+j}, v{vT1}')
        o(f'v_dot2c_f32_bf16 v{QB}, v{vXB+j}, v{vXB+j}')
    o('s_nop 2')
    for ctl in ['row_shr:1', 'row_shr:2', 'row_shr:4', 'row_shr:8']:
        for r in (SA, QA, SB, QB): o(f'v_add_f32_dpp v{r}, v{r}, v{r} {ctl} row_mask:0xf bank_mask:0xf bound_ctrl:0')
    for ctl, rm in [('row_bcast:15', '0xa'), ('row_bcast:31', '0xc')]:
        for r in (SA, QA, SB, QB): o(f'v_add_f32_dpp v{r}, v{r}, v{r} {ctl} row_mask:{rm} bank_mask:0xf')
    RR = 192
    for S_, Q_, dst in ((SA, QA, RR), (SB, QB, RR + 2)):
        o(f'v_mul_f32 v{S_}, {hex(INV448)}, v{S_}\nv_mul_f32 v{Q_}, {hex(INV448)}, v{Q_}')
    for S_, Q_, dst in ((SA, QA, RR), (SB, QB, RR + 2)):
        o(f'v_fma_f32 v{Q_}, -v{S_}, v{S_}, v{Q_}\nv_max_f32 v{Q_}, 0, v{Q_}')
    for op in ('v_cvt_pk_bf16_f32 v{q}, v{q}, v{q}', 'v_and_b32 v{q}, 0xffff0000, v{q}', 'v_add_f32 v{q}, ' + hex(EPS) + ', v{q}',
               'v_cvt_pk_bf16_f32 v{q}, v{q}, v{q}', 'v_and_b32 v{q}, 0xffff0000, v{q}', 'v_sqrt_f32 v{q}, v{q}'):
        for Q_ in (QA, QB): o(op.format(q=Q_))
    o(f'v_mov_b32 v{RR+1}, v{vTag}\nv_mov_b32 v{RR+3}, v{vTag}')
    o(f'v_cvt_pk_bf16_f32 v{RR}, v{SA}, v{QA}\nv_cvt_pk_bf16_f32 v{RR+2}, v{SB}, v{QB}')
    o(f's_lshl_b32 s{sT0}, s2, 3\ns_lshl_b32 s{sT1}, s{sWave}, 1\ns_add_u32 s{sT0}, s{sT0}, s{sT1}')
    o(f's_lshl_b32 s{sT0}, s{sT0}, 3\ns_add_u32 s{sT0}, s{sT0}, {WS_REC}')
    o('s_mov_b32 exec_lo, 0\ns_mov_b32 exec_hi, 0x80000000')
    o(f'buffer_store_dwordx4 v[{RR}:{RR+3}], v251, s[{SRD_WS}:{SRD_WS+3}], s{sT0} offen sc1'); vm.issue('rec')
    o('s_mov_b64 exec, -1')
def tile_loads(o, vm):
    o(f's_mul_i32 s{sT2}, s{sPair}, 9363\ns_lshr_b32 s{sT2}, s{sT2}, 16')
    o(f's_mul_i32 s{sT4}, s{sT2}, 7\ns_sub_u32 s{sT4}, s{sPair}, s{sT4}')
    o(f's_mul_i32 s{sT2}, s{sT2}, {64 * 896}\ns_lshl_b32 s{sT4}, s{sT4}, 7\ns_add_u32 s{sT2}, s{sT2}, s{sT4}')
    o(f's_sub_u32 s{sT4}, s{sWave}, 4\ns_lshl_b32 s{sT4}, s{sT4}, 3')
    o(f'v_lshrrev_b32 v{vT0}, 3, v0\nv_add_u32 v{vT0}, s{sT4}, v{vT0}\nv_mul_u32_u24 v{vT0}, 896, v{vT0}')
    o(f'v_and_b32 v{vT1}, 7, v0\nv_lshlrev_b32 v{vT1}, 4, v{vT1}\nv_add_u32 v{vT0}, v{vT0}, v{vT1}')
    o(f'buffer_load_dwordx4 v[{vTL}:{vTL+3}], v{vT0}, s[{SRD_X}:{SRD_X+3}], s{sT2} offen'); vm.issue('tile')
    o(f's_add_u32 s{sT2}, s{sT2}, {32 * 896}')
    o(f'buffer_load_dwordx4 v[{vTL+4}:{vTL+7}], v{vT0}, s[{SRD_X}:{SRD_X+3}], s{sT2} offen'); vm.issue('tile')
def tile_image(o, vm):
    vm.wait('tile')
    o(f's_sub_u32 s{sT4}, s{sWave}, 4\ns_lshl_b32 s{sT4}, s{sT4}, 3')
    o(f'v_lshrrev_b32 v{vT0}, 3, v0\nv_add_u32 v{vT0}, s{sT4}, v{vT0}\nv_mul_u32_u24 v{vT0}, 144, v{vT0}')
    o(f'v_and_b32 v{vT1}, 7, v0\nv_lshlrev_b32 v{vT1}, 4, v{vT1}\nv_add_u32 v{vT0}, v{vT0}, v{vT1}')
    o(f'v_add_u32 v{vT0}, {IMG_A}, v{vT0}')
    o(f'ds_write_b128 v{vT0}, v[{vTL}:{vTL+3}]')
    o(f'ds_write_b128 v{vT0}, v[{vTL+4}:{vTL+7}] offset:{32 * 144}')
    make_tag(o)
def tile_transpose(o, vm, woff=4):
    o(f'v_lshrrev_b32 v{vT0}, 4, v0\nv_lshlrev_b32 v{vT0}, 2, v{vT0}\nv_bfe_u32 v{vT1}, v0, 2, 2\nv_add_u32 v{vT0}, v{vT0}, v{vT1}')
    o(f'v_mul_u32_u24 v{vT0}, 144, v{vT0}')
    o(f'v_and_b32 v{vT1}, 3, v0\nv_lshlrev_b32 v{vT1}, 3, v{vT1}\nv_add_u32 v{vT0}, v{vT0}, v{vT1}')
    o(f's_sub_u32 s{sT4}, s{sWave}, {woff}\ns_lshl_b32 s{sT0}, s{sT4}, 5\ns_add_u32 s{sT0}, s{sT0}, {IMG_A}')
    o(f'v_add_u32 v{vT0}, s{sT0}, v{vT0}')
    for i in range(4): o(f'ds_read_b64_tr_b16 v[{vTL+2*i}:{vTL+2*i+1}], v{vT0} offset:{16 * 144 * i}')
    o(f'v_and_b32 v{vT1}, 15, v0\nv_mul_u32_u24 v{vT1}, 144, v{vT1}')
    o(f'v_lshrrev_b32 v{vT2}, 4, v0\nv_lshlrev_b32 v{vT2}, 3, v{vT2}\nv_add_u32 v{vT1}, v{vT1}, v{vT2}')
    o(f's_mul_i32 s{sT0}, s{sT4}, {16 * 144}\ns_add_u32 s{sT0}, s{sT0}, {IMG_B}')
    o(f'v_add_u32 v{vT1}, s{sT0}, v{vT1}')
    o(f'v_lshrrev_b32 v{vT2}, 3, v0\nv_mul_u32_u24 v{vT2}, 144, v{vT2}')
    o(f'v_and_b32 v{vT3}, 7, v0\nv_lshlrev_b32 v{vT3}, 4, v{vT3}\nv_add_u32 v{vT2}, v{vT2}, v{vT3}')
    o(f'v_add_u32 v{vT2}, s{sT0}, v{vT2}')
    for i in range(4):
        o(f's_waitcnt lgkmcnt({3 - i})' if i == 0 else f's_waitcnt lgkmcnt(3)')
        o(f'ds_write_b64 v{vT1}, v[{vTL+2*i}:{vTL+2*i+1}] offset:{32 * i}')
    o(f's_mul_i32 s{sT0}, s{sPair}, 9363\ns_lshr_b32 s{sT0}, s{sT0}, 16')
    o(f's_mul_i32 s{sT1}, s{sT0}, 7\ns_sub_u32 s{sT1}, s{sPair}, s{sT1}')
    o(f's_lshl_b32 s{sT1}, s{sT1}, 5\ns_add_u32 s{sT0}, s{sT0}, s{sT1}\ns_lshl_b32 s{sT0}, s{sT0}, 13')
    o(f's_lshl_b32 s{sT1}, s{sT4}, 11\ns_add_u32 s{sT0}, s{sT0}, s{sT1}')
    o(f's_add_u32 s{sT1}, s{sT0}, {WS_T2}\ns_add_u32 s{sT0}, s{sT0}, {WS_T}')
    o(f'v_lshlrev_b32 v{vT0}, 4, v0')
    o('s_waitcnt lgkmcnt(0)')
    o(f'ds_read_b128 v[{vTL}:{vTL+3}], v{vT2}')
    o(f'ds_read_b128 v[{vTL+4}:{vTL+7}], v{vT2} offset:{8 * 144}')
    X2 = 184
    for h in range(2):
        o(f's_waitcnt lgkmcnt({1 - h})')
        o(f'buffer_store_dwordx4 v[{vTL+4*h}:{vTL+4*h+3}], v{vT0}, s[{SRD_WS}:{SRD_WS+3}], s{sT0} offen offset:{1024*h} sc1'); vm.issue('ts')
        for j in range(4): o(f'v_xor_b32 v{X2+4*h+j}, v{vTL+4*h+j}, v{vTag}')
        o(f'buffer_store_dwordx4 v[{X2+4*h}:{X2+4*h+3}], v{vT0}, s[{SRD_WS}:{SRD_WS+3}], s{sT1} offen offset:{1024*h} sc1'); vm.issue('ts')
def seed(o, dst, ar2, ai2, t, tmp, conj=False):
    o(f'v_mul_f32 v{tmp}, {float(t)}, v{ar2}' if t in (1, 2, 4) else f'v_mul_f32 v{tmp}, {hex(f32(t))}, v{ar2}')
    o(f'v_mul_f32 v{tmp+1}, {float(t)}, v{ai2}' if t in (1, 2, 4) else f'v_mul_f32 v{tmp+1}, {hex(f32(t))}, v{ai2}')
    o(f'v_exp_f32 v{tmp}, v{tmp}')
    o(f'v_fract_f32 v{tmp+1}, v{tmp+1}')
    o('s_nop 0')
    o(f'v_cos_f32 v{dst}, v{tmp+1}')
    o(f'v_sin_f32 v{dst+1}, v{tmp+1}')
    o('s_nop 0')
    o(f'v_mul_f32 v{dst}, v{tmp}, v{dst}')
    if conj: o(f'v_mul_f32 v{dst+1}, -v{dst+1}, v{tmp}'.replace('v_mul_f32', 'v_mul_f32_e64'))
    else: o(f'v_mul_f32 v{dst+1}, v{tmp}, v{dst+1}')
import struct
def f32(x): return struct.unpack('<I', struct.pack('<f', float(x)))[0]
def compute_dt(o, vdt):
    o(f's_lshl_b32 s{sT0}, s{sLdtV}, 16')
    o(f's_and_b32 s{sT1}, s{sLdtV}, 0xffff0000')
    o(f's_cmp_eq_u32 s{sCh}, 0')
    o(f's_cselect_b32 s{sT0}, s{sT0}, s{sT1}')
    o(f'v_mov_b32 v{vdt}, s{sT0}')
    o(f'v_mul_f32 v{vdt}, {hex(LOG2E)}, v{vdt}')
    o(f'v_exp_f32 v{vdt}, v{vdt}')
    o('s_nop 0')
    o(f'v_cvt_pk_bf16_f32 v{vdt}, v{vdt}, v{vdt}')
    o(f'v_and_b32 v{vdt}, 0xffff0000, v{vdt}')
def unpack(o, dlo, dhi, src):
    o(f'v_lshlrev_b32 v{dlo}, 16, v{src}')
    o(f'v_and_b32 v{dhi}, 0xffff0000, v{src}')
class RowWriter:
    def __init__(self, o, vaddr, out0): self.o, self.va, self.out0, self.n = o, vaddr, out0, 0
    def write(self, rows, cA, cB):
        r = self.out0 + 2 * (self.n % 4); self.n += 1
        self.o(f'v_cvt_pk_bf16_f32 v{r}, v{cA}, v{cA+1}')
        self.o(f'v_cvt_pk_bf16_f32 v{r+1}, v{cB}, v{cB+1}')
        for m in rows: self.o(f'ds_write_b64 v{self.va}, v[{r}:{r+1}] offset:{m * 528}')
def stamp(o, on, idx):
    if on: o(f's_memtime s[{96 + 0}:{97}]'); o('s_waitcnt lgkmcnt(0)'); o(f'v_writelane_b32 v255, s96, {idx}')

def gen_ab(o, stamps=False):
    kernel_begin(o, NAME)
    o('s_cmp_ge_u32 s2, 256')
    o('s_cbranch_scc1 LA_end')
    o('s_load_dwordx16 s[8:23], s[0:1], 0')
    o(f's_load_dwordx2 s[{sDsk}:{sDsk+1}], s[0:1], 64')
    o(f's_load_dwordx4 s[{sWg}:{sWg+3}], s[0:1], 80')
    o(f's_load_dwordx2 s[{sWd}:{sWd+1}], s[0:1], 96')
    o(f's_load_dwordx4 s[{sDbg}:{sDbg+3}], s[0:1], 112')
    if stamps: o('v_mov_b32 v255, 0'); o('s_memtime s[98:99]')
    o(f'v_lshrrev_b32 v{vT0}, 6, v0')
    o('v_and_b32 v0, 63, v0')
    o(f'v_readfirstlane_b32 s{sWave}, v{vT0}')
    o(f's_and_b32 s{sT0}, s2, 7')
    o(f's_lshr_b32 s{sT1}, s2, 3')
    if PREFETCH: code_prefetch(o, NAME, 'code_end', sT1, sWave, 8, 240, 244, 96, 'ab')
    o(f's_mul_i32 s{sPair}, s{sT0}, 28')
    o(f's_add_u32 s{sPair}, s{sPair}, s{sT1}')
    o(f's_lshl_b32 s{sSp}, s{sT0}, 2')
    o(f's_add_u32 s{sSp}, s{sSp}, s{sT1}')
    o(f's_sub_u32 s{sSp}, s{sSp}, 28')
    o(f's_lshr_b32 s{sCh}, s{sWave}, 1')
    o(f's_and_b32 s{sCh}, s{sCh}, 1')
    o(f's_and_b32 s{sMh}, s{sWave}, 1')
    o('v_mov_b32 v250, 0\nv_mov_b32 v251, 0')
    o('s_waitcnt lgkmcnt(0)')
    srd(o, SRD_X, sX, 1835008)
    srd(o, SRD_WS, sWs, WS_END)
    vm = VM(o)
    o(f's_cmp_ge_u32 s{sT1}, 28')
    o('s_cbranch_scc1 LA_spare')
    o(f's_lshl_b32 s{sT2}, s{sPair}, 2')
    o(f's_load_dword s{sLdtV}, s[{sLdt}:{sLdt+1}], s{sT2}')
    o(f's_load_dword s{sDskV}, s[{sDsk}:{sDsk+1}], s{sT2}')
    for i, p in enumerate([sAre, sAim, sBre, sBim, sCre, sCim]): srd(o, SRD_P[i], p, 229376)
    o(f's_lshl_b32 s{sT2}, s{sPair}, 1')
    o(f's_add_u32 s{sT2}, s{sT2}, s{sCh}')
    o(f's_lshl_b32 s{sT3}, s{sT2}, 9')
    o(f's_lshl_b32 s{sT4}, s{sMh}, 8')
    o(f's_add_u32 s{sT3}, s{sT3}, s{sT4}')
    o(f'v_lshlrev_b32 v{vT2}, 2, v0')
    o(f's_cmp_ge_u32 s{sWave}, 4')
    o('s_cbranch_scc1 LA_nwave')
    gen_mwave(o, vm.q[:], stamps)
    o.label('LA_nwave')
    gen_nwave(o, vm.q[:], stamps)
    o.label('LA_spare')
    gen_spare(o, vm.q[:], stamps)
    o.label('LA_end')
    o('s_endpgm')

def finish(o, stamps):
    if stamps:
        o('s_waitcnt vmcnt(0) lgkmcnt(0)')
        stamp(o, True, 15)
        o('v_writelane_b32 v255, s98, 14')
        srd(o, 44, sWs, 0x40000, 0x1820000)
        o(f's_lshl_b32 s{sT0}, s2, 3\ns_add_u32 s{sT0}, s{sT0}, s{sWave}\ns_lshl_b32 s{sT0}, s{sT0}, 6')
        o(f'v_lshlrev_b32 v254, 2, v0')
        o('s_mov_b64 exec, 0xffff')
        o(f'buffer_store_dword v255, v254, s[44:47], s{sT0} offen')
    o('s_endpgm')

def gen_mwave(o, q0, stamps):
    vm = VM(o); vm.q = q0
    P = 16
    e_load(o, vm)
    o(f'v_mov_b32 v22, v{vT2}')
    row_loads(o, vm)
    for i in range(6):
        o(f'buffer_load_dword v{P+i}, v22, s[{SRD_P[i]}:{SRD_P[i]+3}], s{sT3} offen'); vm.issue('par')
    row_stats(o, vm)
    vm.wait('par')
    o('s_waitcnt lgkmcnt(0)')
    stamp(o, stamps, 0)
    vdt = 22
    compute_dt(o, vdt)
    U = 24
    for i in range(6): unpack(o, U + 2*i, U + 2*i + 1, P + i)
    for i in range(4): o(f'v_mul_f32 v{U+i}, v{vdt}, v{U+i}')
    for i in range(4, 8): o(f'v_mul_f32 v{U+i}, v{vdt}, v{U+i}')
    o(f'v_mul_f32 v{U}, {hex(LOG2E)}, v{U}\nv_mul_f32 v{U+1}, {hex(LOG2E)}, v{U+1}')
    o(f'v_mul_f32 v{U+2}, {hex(INV2PI)}, v{U+2}\nv_mul_f32 v{U+3}, {hex(INV2PI)}, v{U+3}')
    X0 = 36; X2 = 40; X4 = 44; X6 = 48; X8 = 52; E1 = 56; CUR = 60; CU2 = 64
    Pw = {k: 68 + 4 * (k - 1) for k in range(1, 8)}
    TMP = 96; OUT = 100
    for mu in range(2):
        bre, bim, cre, cim = U + 4 + mu, U + 6 + mu, U + 8 + mu, U + 10 + mu
        w = X0 + 2 * mu
        o(f'v_mul_f32 v{w}, v{cre}, v{bre}')
        o(f'v_mul_f32 v{w+1}, v{cre}, v{bim}')
        o(f'v_fma_f32 v{w}, -v{cim}, v{bim}, v{w}')
        o(f'v_fma_f32 v{w+1}, v{cim}, v{bre}, v{w+1}')
    for mu in range(2):
        seed(o, E1 + 2*mu, U + mu, U + 2 + mu, 1, TMP + 2*mu)
        seed(o, Pw[1] + 2*mu, U + mu, U + 2 + mu, 256, TMP + 2*mu)
    o('s_barrier')
    tile_transpose(o, vm, 0)
    stamp(o, stamps, 1)
    vTab = 108
    o(f's_lshl_b32 s{sT0}, s{sCh}, 1\ns_add_u32 s{sT0}, s{sT0}, s{sMh}\ns_mul_i32 s{sT0}, s{sT0}, {TAB}')
    o(f'v_lshlrev_b32 v{vTab}, 3, v0\nv_add_u32 v{vTab}, s{sT0}, v{vTab}')
    rw = RowWriter(o, vTab, OUT)
    def c2(d, p, q): cmul2(o, d, p, q, d + 2, p + 2, q + 2)
    rw.write([0], X0, X0 + 2)
    keep = {0: X0, 2: X2, 4: X4, 6: X6, 8: X8}
    prev = X0
    for t in range(1, 9):
        d = keep.get(t, CUR)
        c2(d, prev, E1)
        rows = [t] if t < 8 else [12]
        if t == 4: rows = [4, 8]
        rw.write(rows, d, d + 2)
        prev = d
    c2(Pw[2], Pw[1], Pw[1]); c2(Pw[3], Pw[2], Pw[1]); c2(Pw[4], Pw[2], Pw[2])
    c2(Pw[5], Pw[4], Pw[1]); c2(Pw[6], Pw[4], Pw[2]); c2(Pw[7], Pw[4], Pw[3])
    alt = [CUR, CU2]; n = 0
    def prod(rows, xs, pk):
        nonlocal n
        d = alt[n % 2]; n += 1
        c2(d, keep[xs], Pw[pk]); rw.write(rows, d, d + 2)
    prod([9], 0, 1); prod([10], 2, 1); prod([11, 13], 4, 1); prod([14], 6, 1); prod([15], 8, 1)
    prod([16], 0, 2); prod([17], 4, 2); prod([18], 8, 2)
    prod([20], 0, 3); prod([21], 4, 3); prod([22], 8, 3)
    prod([19], 0, 4); prod([24], 8, 4)
    prod([25], 0, 5); prod([26], 8, 5)
    prod([23], 0, 6); prod([28], 8, 6)
    prod([29], 0, 7); prod([30], 8, 7)
    vA, vB = 109, 110
    o(f'v_and_b32 v{vT0}, 31, v0\nv_mul_u32_u24 v{vT0}, 528, v{vT0}')
    o(f'v_lshrrev_b32 v{vT1}, 5, v0\nv_lshlrev_b32 v{vT1}, 4, v{vT1}')
    o(f'v_add3_u32 v{vA}, v{vT0}, v{vT1}, s{sT0}')
    o(f'v_add_u32 v{vB}, {4 * TAB}, v{vA}')
    o('s_waitcnt lgkmcnt(0)')
    stamp(o, stamps, 2)
    o('s_barrier')
    FR = 112; KD = 16
    def rd(kk):
        b = FR + 8 * (kk % 4)
        o(f'ds_read_b128 v[{b}:{b+3}], v{vA} offset:{kk * 32}')
        o(f'ds_read_b128 v[{b+4}:{b+7}], v{vB} offset:{kk * 32}')
    for kk in range(3): rd(kk)
    for kk in range(16):
        if kk + 3 < 16: rd(kk + 3)
        o(f's_waitcnt lgkmcnt({2 * min(3, 15 - kk)})')
        b = FR + 8 * (kk % 4)
        c = '0' if kk == 0 else f'v[{KD}:{KD+15}]'
        o(f'v_mfma_f32_32x32x16_bf16 v[{KD}:{KD+15}], v[{b}:{b+3}], v[{b+4}:{b+7}], {c}')
    vEx = 111
    o(f's_add_u32 s{sT1}, s{sWave}, 4\ns_mul_i32 s{sT1}, s{sT1}, {TAB}')
    o(f'v_lshlrev_b32 v{vEx}, 4, v0\nv_add_u32 v{vEx}, s{sT1}, v{vEx}')
    o(f's_xor_b32 s{sT2}, s{sWave}, 1\ns_add_u32 s{sT2}, s{sT2}, 4\ns_mul_i32 s{sT2}, s{sT2}, {TAB}')
    o(f'v_lshlrev_b32 v106, 4, v0\nv_add_u32 v106, s{sT2}, v106')
    o('s_nop 7\ns_nop 3')
    o(f's_cmp_eq_u32 s{sMh}, 0')
    o('s_cbranch_scc0 LM_send1')
    o(f'ds_write_b128 v{vEx}, v[{KD+8}:{KD+11}]\nds_write_b128 v{vEx}, v[{KD+12}:{KD+15}] offset:1024')
    o('s_branch LM_sent')
    o.label('LM_send1')
    o(f'ds_write_b128 v{vEx}, v[{KD}:{KD+3}]\nds_write_b128 v{vEx}, v[{KD+4}:{KD+7}] offset:1024')
    o.label('LM_sent')
    o(f'v_mov_b32 v{vEx}, v106')
    o('s_waitcnt lgkmcnt(0)')
    stamp(o, stamps, 3)
    o('s_barrier')
    R = 32
    o(f'ds_read_b128 v[{R}:{R+3}], v{vEx}\nds_read_b128 v[{R+4}:{R+7}], v{vEx} offset:1024')
    vK = 40; vJ = 41; vH = 42; O = 44
    o(f'v_and_b32 v{vJ}, 31, v0\nv_lshrrev_b32 v{vH}, 5, v0')
    o(f's_mul_i32 s{sT1}, s{sCh}, {KR_CH}')
    o(f's_cmp_eq_u32 s{sMh}, 0')
    o('s_cbranch_scc0 LM_exp1')
    o(f'v_lshlrev_b32 v{vK}, 4, v{vJ}\nv_lshlrev_b32 v{vT0}, 3, v{vH}\nv_add_u32 v{vK}, v{vK}, v{vT0}')
    o(f'v_sub_u32 v{vK}, 4088, v{vK}\nv_add_u32 v{vK}, s{sT1}, v{vK}')
    o('s_waitcnt lgkmcnt(0)')
    for j in range(8): o(f'v_add_f32 v{KD+j}, v{KD+j}, v{R+j}')
    a0, a1, a2, a3, a4, sa, sb, sc = [KD + j for j in range(8)]
    cv = lambda d, lo, hi: o(f'v_cvt_pk_bf16_f32 v{d}, v{lo}, v{hi}')
    cv(O, a3, a2); cv(O+1, a1, a0); cv(O+2, a4, a3); cv(O+3, a2, a1)
    o(f'ds_write_b64 v{vK}, v[{O}:{O+1}] offset:{KR_COPY}')
    o(f'ds_write_b64 v{vK}, v[{O+2}:{O+3}]')
    cv(O+4, sc, sb); cv(O+5, sa, sa); cv(O+6, sc, sc); cv(O+7, sb, sa)
    o(f'v_subrev_u32 v{vK}, 512, v{vK}')
    o(f'ds_write_b64 v{vK}, v[{O+4}:{O+5}] offset:{KR_COPY}')
    o(f'ds_write_b64 v{vK}, v[{O+6}:{O+7}]')
    o(f'v_mov_b32 v{O+8}, 0')
    cv(O+9, a0, O+8)
    o(f'v_cmp_eq_u32 vcc, 0, v0')
    o(f'v_lshlrev_b32 v{vT0}, 2, v0')
    o(f'v_add_u32 v{vT0}, s{sT1}, v{vT0}')
    o(f'v_cndmask_b32 v{O+9}, v{O+8}, v{O+9}, vcc')
    o('s_mov_b64 exec, 0xff')
    o(f'ds_write_b32 v{vT0}, v{O+9} offset:4096')
    o(f'ds_write_b32 v{vT0}, v{O+8} offset:{4096 + KR_COPY}')
    o('s_mov_b64 exec, -1')
    o('s_branch LM_expd')
    o.label('LM_exp1')
    o(f'v_lshlrev_b32 v{vK}, 4, v{vJ}\nv_lshlrev_b32 v{vT0}, 9, v{vH}\nv_add_u32 v{vK}, v{vK}, v{vT0}')
    o(f'v_sub_u32 v{vK}, {4080 - 1024}, v{vK}\nv_add_u32 v{vK}, s{sT1}, v{vK}')
    vK3 = 43
    o(f'v_lshlrev_b32 v{vK3}, 4, v{vJ}\nv_lshlrev_b32 v{vT0}, 10, v{vH}\nv_add_u32 v{vK3}, v{vK3}, v{vT0}')
    o(f'v_sub_u32 v{vK3}, {4080 - 2048 - 512}, v{vK3}\nv_add_u32 v{vK3}, s{sT1}, v{vK3}')
    o(f'v_and_b32 v{vT0}, 1, v{vJ}')
    o(f'v_cmp_eq_u32 vcc, 0, v{vT0}')
    o('s_waitcnt lgkmcnt(0)')
    for j in range(8): o(f'v_add_f32 v{KD+8+j}, v{KD+8+j}, v{R+j}')
    T0, T1, T2 = KD + 8, KD + 9, KD + 10
    cv(O, T2, T2); cv(O+1, T1, T1); cv(O+2, T1, T0); cv(O+3, T0, T0)
    o(f'ds_write_b128 v{vK}, v[{O}:{O+3}] offset:{KR_COPY}')
    cv(O+4, T2, T2); cv(O+5, T2, T1); cv(O+6, T1, T1); cv(O+7, T0, T0)
    o(f'ds_write_b128 v{vK}, v[{O+4}:{O+7}]')
    for ii in range(2):
        t0, t1 = KD + 11 + 2*ii, KD + 12 + 2*ii
        sel = O + 16
        q = O + 8 * (ii + 1) if ii == 0 else O
        o(f'v_cndmask_b32 v{sel}, v{t1}, v{t0}, vcc')
        off = 512 if ii == 0 else 0
        cv(q, t1, t1); cv(q+1, t1, sel); cv(q+2, t0, t0); cv(q+3, t0, t0)
        o(f'ds_write_b128 v{vK3}, v[{q}:{q+3}] offset:{KR_COPY + off}')
        cv(q+4, t1, t1); cv(q+5, t1, t1); cv(q+6, sel, t0); cv(q+7, t0, t0)
        o(f'ds_write_b128 v{vK3}, v[{q+4}:{q+7}] offset:{off}')
    o.label('LM_expd')
    AF = 64; ACC = 32; BB = 192; vKA = [208, 209, 210, 211]; vBa = 212
    vR, vHh = 213, 214
    o(f'v_and_b32 v{vR}, 15, v0\nv_lshrrev_b32 v{vHh}, 4, v0')
    o(f'v_and_b32 v{vT0}, 1, v{vR}')
    o(f'v_add_u32 v{vT1}, v{vR}, v{vT0}')
    o(f'v_mul_u32_u24 v{vT0}, {KR_COPY}, v{vT0}')
    o(f'v_lshlrev_b32 v{vT1}, 1, v{vT1}')
    o(f'v_sub_u32 v{vT0}, v{vT0}, v{vT1}')
    o(f'v_lshlrev_b32 v{vT1}, 4, v{vHh}')
    o(f'v_add_u32 v{vT0}, v{vT0}, v{vT1}')
    o(f's_mul_i32 s{sT1}, s{sCh}, {KR_CH}')
    o(f's_lshl_b32 s{sT2}, s{sMh}, 6')
    o(f's_sub_u32 s{sT1}, s{sT1}, s{sT2}')
    o(f's_add_u32 s{sT1}, s{sT1}, {2 * 2032}')
    for g in range(4):
        o(f's_sub_u32 s{sT3}, s{sT1}, {128 * (8 * g + 7)}')
        o(f'v_add_u32 v{vKA[g]}, s{sT3}, v{vT0}')
    o(f'v_lshlrev_b32 v{vT0}, 5, v{vR}\nv_lshlrev_b32 v{vT1}, 4, v{vHh}\nv_add_u32 v{vT0}, v{vT0}, v{vT1}')
    o(f's_mul_i32 s{sT1}, s{sCh}, 4608')
    o(f's_sub_u32 s{sT1}, s{sT1}, s{sT2}')
    o(f's_add_u32 s{sT1}, s{sT1}, {LDS_US + 480 + 64 * 56 - 128 * 31}')
    o(f'v_add_u32 v{vBa}, s{sT1}, v{vT0}')
    vCx = 215
    o(f's_lshl_b32 s{sT1}, s{sWave}, 12')
    o(f's_add_u32 s{sT1}, s{sT1}, {LDS_CX}')
    o(f'v_lshlrev_b32 v{vCx}, 4, v0\nv_add_u32 v{vCx}, s{sT1}, v{vCx}')
    vCp = 220
    o(f's_xor_b32 s{sT1}, s{sWave}, 1\ns_lshl_b32 s{sT1}, s{sT1}, 12\ns_add_u32 s{sT1}, s{sT1}, {LDS_CX}')
    o(f'v_lshlrev_b32 v{vCp}, 4, v0\nv_add_u32 v{vCp}, s{sT1}, v{vCp}')
    vU, vXs, vO = 216, 217, 218
    o(f'v_lshlrev_b32 v{vT0}, 5, v{vR}\nv_lshlrev_b32 v{vT1}, 3, v{vHh}\nv_add_u32 v{vT0}, v{vT0}, v{vT1}')
    o(f's_lshl_b32 s{sT2}, s{sMh}, 11')
    o(f's_mul_i32 s{sT1}, s{sCh}, 4608\ns_add_u32 s{sT1}, s{sT1}, s{sT2}\ns_add_u32 s{sT1}, s{sT1}, {LDS_US + 512}')
    o(f'v_add_u32 v{vU}, s{sT1}, v{vT0}')
    o(f's_lshl_b32 s{sT1}, s{sCh}, 12\ns_add_u32 s{sT1}, s{sT1}, s{sT2}\ns_add_u32 s{sT1}, s{sT1}, {LDS_XS}')
    o(f'v_add_u32 v{vXs}, s{sT1}, v{vT0}')
    o(f's_lshl_b32 s{sT1}, s{sPair}, 1\ns_add_u32 s{sT1}, s{sT1}, s{sCh}\ns_lshl_b32 s{sT1}, s{sT1}, 6')
    o(f's_mul_i32 s{sT2}, s{sMh}, {32 * 28672}')
    o(f's_add_u32 s{sT1}, s{sT1}, s{sT2}\ns_add_u32 s{sT4}, s{sT1}, {WS_HT}')
    vHo = 219
    o(f'v_lshrrev_b32 v{vHo}, 1, v{vR}\nv_mul_u32_u24 v{vHo}, 28672, v{vHo}')
    o(f'v_and_b32 v{vT1}, 1, v{vR}\nv_lshlrev_b32 v{vT1}, 5, v{vT1}\nv_add_u32 v{vHo}, v{vHo}, v{vT1}')
    o(f'v_lshlrev_b32 v{vT1}, 3, v{vHh}\nv_add_u32 v{vHo}, v{vHo}, v{vT1}')
    o(f's_lshl_b32 s{sT1}, s{sDskV}, 16\ns_and_b32 s{sT2}, s{sDskV}, 0xffff0000')
    o(f's_cmp_eq_u32 s{sCh}, 0\ns_cselect_b32 s{sT5}, s{sT1}, s{sT2}')
    o('s_waitcnt lgkmcnt(0)')
    stamp(o, stamps, 4)
    o('s_barrier')
    def rdA(sg):
        d = AF + 4 * sg; g = sg // 8; off = 32 * (7 - (sg - 8 * g))
        o(f'ds_read2_b32 v[{d}:{d+1}], v{vKA[g]} offset0:{off} offset1:{off+1}')
        o(f'ds_read2_b32 v[{d+2}:{d+3}], v{vKA[g]} offset0:{off+2} offset1:{off+3}')
    def rdB(t):
        d = BB + 4 * (t % 4)
        o(f'ds_read_b128 v[{d}:{d+3}], v{vBa} offset:{128 * (31 - t)}')
    LA = 3
    def rdA_ops(sg):
        d = AF + 4 * sg; g = sg // 8; off = 32 * (7 - (sg - 8 * g))
        return [f'ds_read2_b32 v[{d}:{d+1}], v{vKA[g]} offset0:{off} offset1:{off+1}',
                f'ds_read2_b32 v[{d+2}:{d+3}], v{vKA[g]} offset0:{off+2} offset1:{off+3}']
    def rdB_op(t):
        d = BB + 4 * (t % 4)
        return f'ds_read_b128 v[{d}:{d+3}], v{vBa} offset:{128 * (31 - t)}'
    for t in range(LA):
        for op in rdA_ops(t): o(op)
        o(rdB_op(t))
    started = set()
    for t in range(32):
        o(f's_waitcnt lgkmcnt({3 * min(LA - 1, 31 - t)})')
        pend = (rdA_ops(t + LA) + [rdB_op(t + LA)]) if t + LA < 32 else []
        cmin = max(0, -(-(28 - t) // 4))
        for c in range(7, cmin - 1, -1):
            sg = 4 * c - 28 + t
            ac = ACC + 4 * c
            cc = f'v[{ac}:{ac+3}]' if c in started else '0'
            started.add(c)
            o(f'v_mfma_f32_16x16x32_bf16 v[{ac}:{ac+3}], v[{AF+4*sg}:{AF+4*sg+3}], v[{BB+4*(t%4)}:{BB+4*(t%4)+3}], {cc}')
            if pend: o(pend.pop(0))
        for op in pend: o(op)
    stamp(o, stamps, 5)
    o('s_nop 7')
    o(f's_cmp_eq_u32 s{sMh}, 0')
    o('s_cbranch_scc0 LM_cx1')
    for j in range(4): o(f'ds_write_b128 v{vCx}, v[{ACC+16+4*j}:{ACC+16+4*j+3}] offset:{1024*j}')
    o('s_branch LM_cx2')
    o.label('LM_cx1')
    for j in range(4): o(f'ds_write_b128 v{vCx}, v[{ACC+4*j}:{ACC+4*j+3}] offset:{1024*j}')
    for j in range(16): o(f'v_mov_b32 v{ACC+j}, v{ACC+16+j}')
    o.label('LM_cx2')
    UB = 64; XB = 72; PB = 80
    for j in range(4): o(f'ds_read_b64 v[{UB+2*j}:{UB+2*j+1}], v{vU} offset:{512*j}')
    o('s_waitcnt lgkmcnt(0)')
    o('s_barrier')
    for j in range(4): o(f'ds_read_b64 v[{XB+2*j}:{XB+2*j+1}], v{vXs} offset:{512*j}')
    for j in range(4): o(f'ds_read_b128 v[{PB+4*j}:{PB+4*j+3}], v{vCp} offset:{1024*j}')
    W = 96
    for j in range(4):
        o(f's_waitcnt lgkmcnt({3-j})')
        unpack(o, W, W+1, UB+2*j); unpack(o, W+2, W+3, UB+2*j+1)
        unpack(o, W+4, W+5, XB+2*j); unpack(o, W+6, W+7, XB+2*j+1)
        for e in range(4): o(f'v_add_f32 v{ACC+4*j+e}, v{ACC+4*j+e}, v{PB+4*j+e}')
        for e in range(4): o(f'v_fma_f32 v{ACC+4*j+e}, v{W+e}, s{sT5}, v{ACC+4*j+e}')
        for e in range(4): o(f'v_add_f32 v{ACC+4*j+e}, v{ACC+4*j+e}, v{W+4+e}')
        d = W + 8 + 2 * j
        cv(d, ACC+4*j, ACC+4*j+1); cv(d+1, ACC+4*j+2, ACC+4*j+3)
        o(f'buffer_store_dwordx2 v[{d}:{d+1}], v{vHo}, s[{SRD_WS}:{SRD_WS+3}], s{sT4} offen {ST}')
        if j < 3: o(f's_add_u32 s{sT4}, s{sT4}, {8 * 28672}')
    stamp(o, stamps, 6)
    finish(o, stamps)

def gen_nwave(o, q0, stamps):
    vm = VM(o); vm.q = q0
    P = 16
    o(f'v_mov_b32 v20, v{vT2}')
    e_load(o, vm)
    tile_loads(o, vm)
    for i in range(2):
        o(f'buffer_load_dword v{P+i}, v20, s[{SRD_P[i]}:{SRD_P[i]+3}], s{sT3} offen'); vm.issue('par')
    sNw, sSb, sKk, sKt, sDb, sL = 52, 53, 54, 55, 56, 57
    o(f's_lshl_b32 s{sNw}, s{sPair}, 2\ns_add_u32 s{sNw}, s{sNw}, s{sWave}\ns_sub_u32 s{sNw}, s{sNw}, 4')
    o(f's_min_u32 s{sT0}, s{sNw}, 783')
    o(f's_mul_i32 s{sSb}, s{sT0}, 2341\ns_lshr_b32 s{sSb}, s{sSb}, 16')
    o(f's_mul_i32 s{sKk}, s{sSb}, 28\ns_sub_u32 s{sKk}, s{sT0}, s{sKk}')
    o(f's_mul_i32 s{sKt}, s{sT0}, 9363\ns_lshr_b32 s{sKt}, s{sKt}, 16')
    o(f's_mul_i32 s{sDb}, s{sKt}, 7\ns_sub_u32 s{sDb}, s{sT0}, s{sDb}')
    o(f's_sub_u32 s{sL}, s{sWave}, 4\ns_mul_i32 s{sL}, s{sL}, 6144\ns_add_u32 s{sL}, s{sL}, {LDS_RP}')
    srd(o, SRD_WG, sWg, 1605632); srd(o, SRD_WU, sWu, 1605632); srd(o, SRD_WD, sWd, 1605632)
    tile_image(o, vm)
    vm.wait('par')
    o('s_waitcnt lgkmcnt(0)')
    G = 128; vG0, vTp = 24, 26
    o(f's_sub_u32 s{sT0}, s{sWave}, 4\ns_lshl_b32 s{sT0}, s{sT0}, 6')
    o(f'v_add_u32 v{vTp}, s{sT0}, v0')
    o(f'v_lshrrev_b32 v{vG0}, 4, v{vTp}\nv_lshlrev_b32 v{vG0}, 13, v{vG0}')
    o(f'v_and_b32 v{vT0}, 15, v{vTp}\nv_lshlrev_b32 v{vT0}, 4, v{vT0}\nv_add_u32 v{vG0}, v{vG0}, v{vT0}')
    o(f's_lshr_b32 s{sT1}, s{sPair}, 5\ns_lshl_b32 s{sT1}, s{sT1}, 18')
    o(f's_and_b32 s{sT2}, s{sPair}, 31\ns_lshl_b32 s{sT2}, s{sT2}, 8\ns_add_u32 s{sT1}, s{sT1}, s{sT2}')
    o(f'v_add_u32 v{vG0}, s{sT1}, v{vG0}')
    o(f'v_add_u32 v25, {16 * 8192}, v{vG0}')
    vdt = 22
    compute_dt(o, vdt)
    U = 28
    for i in range(2): unpack(o, U + 2*i, U + 2*i + 1, P + i)
    for i in range(4): o(f'v_mul_f32 v{U+i}, v{vdt}, v{U+i}')
    o(f'v_mul_f32 v{U}, {hex(LOG2E)}, v{U}\nv_mul_f32 v{U+1}, {hex(LOG2E)}, v{U+1}')
    o(f'v_mul_f32 v{U+2}, {hex(INV2PI)}, v{U+2}\nv_mul_f32 v{U+3}, {hex(INV2PI)}, v{U+3}')
    E8 = 36; YA = 40; YB = 44; TMP = 48; OUT = 52; vTab = 60
    for mu in range(2): seed(o, E8 + 2*mu, U + mu, U + 2 + mu, 8, TMP + 2*mu, conj=True)
    stamp(o, stamps, 0)
    o('s_barrier')
    stamp(o, stamps, 1)
    o(f's_lshl_b32 s{sT0}, s{sCh}, 1\ns_add_u32 s{sT0}, s{sT0}, s{sMh}\ns_add_u32 s{sT0}, s{sT0}, 4\ns_mul_i32 s{sT0}, s{sT0}, {TAB}')
    o(f'v_lshlrev_b32 v{vTab}, 3, v0\nv_add_u32 v{vTab}, s{sT0}, v{vTab}')
    o(f'v_mov_b32 v{YA}, 0x3f80\nv_mov_b32 v{YA+1}, 0x3f80')
    o(f'ds_write_b64 v{vTab}, v[{YA}:{YA+1}]')
    rw = RowWriter(o, vTab, OUT)
    rw.write([1], E8, E8 + 2)
    E16 = 200; YC = 204; YD = 208
    RC = 64; vRa = 27
    o(f'v_lshlrev_b32 v{vRa}, 4, v{vTp}')
    o(f's_mov_b32 s{sT3}, {WS_REC}')
    o(f's_mov_b32 s{sT4}, {WS_T}\ns_mov_b32 s{sT5}, {WS_T2}')
    def rec_loads(pol):
        for j in range(4):
            if j: o(f's_add_u32 s{sT3}, s{sT3}, 4096')
            o(f'buffer_load_dwordx4 v[{RC+4*j}:{RC+4*j+3}], v{vRa}, s[{SRD_WS}:{SRD_WS+3}], s{sT3} offen {pol}')
        o(f's_mov_b32 s{sT3}, {WS_REC}')
        o(f'buffer_load_dwordx4 v[{G}:{G+3}], v{vG0}, s[{SRD_WS}:{SRD_WS+3}], s{sT4} offen {pol}')
        o(f'buffer_load_dwordx4 v[{G+4}:{G+7}], v25, s[{SRD_WS}:{SRD_WS+3}], s{sT4} offen {pol}')
        o(f'buffer_load_dwordx4 v[{G+8}:{G+11}], v{vG0}, s[{SRD_WS}:{SRD_WS+3}], s{sT5} offen {pol}')
        o(f'buffer_load_dwordx4 v[{G+12}:{G+15}], v25, s[{SRD_WS}:{SRD_WS+3}], s{sT5} offen {pol}')
    cmul2(o, E16, E8, E8, E16 + 2, E8 + 2, E8 + 2)
    rw.write([2], E16, E16 + 2)
    ev, od = [E16, YA, YB], [E8, YC, YD]
    pe, po = E16, E8
    step = 0
    for j in range(3, 32, 2):
        do = YC if step % 2 == 0 else YD
        de = YA if step % 2 == 0 else YB
        step += 1
        last = (j + 1 > 31)
        prods = [(do, po), (do + 2, po + 2)] + ([] if last else [(de, pe), (de + 2, pe + 2)])
        for d, p in prods:
            q = E16 + (2 if (d - (do if d in (do, do + 2) else de)) else 0)
            o(f'v_pk_mul_f32 v[{d}:{d+1}], v[{p}:{p+1}], v[{q}:{q+1}] op_sel_hi:[0,1]')
        for d, p in prods:
            q = E16 + (2 if (d - (do if d in (do, do + 2) else de)) else 0)
            o(f'v_pk_fma_f32 v[{d}:{d+1}], v[{p}:{p+1}], v[{q}:{q+1}], v[{d}:{d+1}] op_sel:[1,1,0] op_sel_hi:[1,0,1] neg_lo:[1,0,0]')
        rw.write([j], do, do + 2)
        if not last: rw.write([j + 1], de, de + 2)
        po = do; pe = de
        if j == REC_AT: rec_loads(POL0)
    o('s_waitcnt lgkmcnt(0)')
    stamp(o, stamps, 2)
    o('s_barrier')
    o(f'v_lshrrev_b32 v{vT0}, 5, v0\nv_mul_u32_u24 v{vT0}, 4608, v{vT0}')
    o(f'v_and_b32 v{vT1}, 31, v0\nv_lshlrev_b32 v{vT1}, 4, v{vT1}\nv_add_u32 v{vT0}, v{vT0}, v{vT1}')
    o(f'v_add_u32 v{vT0}, {LDS_US}, v{vT0}')
    for j in range(4): o(f'v_mov_b32 v{OUT+j}, 0')
    o(f'ds_write_b128 v{vT0}, v[{OUT}:{OUT+3}]')
    o(f's_mov_b32 s{sT1}, 0')
    o.label('LN_chk')
    o('s_waitcnt vmcnt(0)')
    C0 = RC + 16
    for k in range(8): o(f'v_xor_b32 v{C0+k}, v{RC+2*k+1}, v{vTag}')
    for k in range(8): o(f'v_xor_b32 v{C0+8+k}, v{G+k}, v{G+8+k}')
    for k in range(8): o(f'v_xor_b32 v{C0+8+k}, v{C0+8+k}, v{vTag}')
    for k in range(0, 15, 3): o(f'v_or3_b32 v{C0+k}, v{C0+k}, v{C0+k+1}, v{C0+k+2}')
    o(f'v_or3_b32 v{C0}, v{C0}, v{C0+3}, v{C0+6}')
    o(f'v_or3_b32 v{C0+9}, v{C0+9}, v{C0+12}, v{C0+15}')
    o(f'v_or_b32 v{C0}, v{C0}, v{C0+9}')
    o(f'v_cmp_ne_u32 vcc, 0, v{C0}')
    o('s_cbranch_vccz LN_got')
    o(f's_add_u32 s{sT1}, s{sT1}, 1')
    o(f's_cmp_lt_u32 s{sT1}, 0x40000')
    o('s_cbranch_scc0 LN_got')
    rec_loads('sc1')
    o('s_branch LN_chk')
    o.label('LN_got')
    vm.q = []
    stamp(o, stamps, 3)
    o(f'v_lshlrev_b32 v{vT0}, 4, v{vTp}\nv_add_u32 v{vT0}, {LDS_XS}, v{vT0}')
    for j in range(4):
        a_ = RC + 4 * j
        o(f'v_and_b32 v{a_+1}, 0xffff0000, v{a_}\nv_and_b32 v{a_+3}, 0xffff0000, v{a_+2}')
        o(f'v_lshlrev_b32 v{a_}, 16, v{a_}\nv_lshlrev_b32 v{a_+2}, 16, v{a_+2}')
        o(f'v_rcp_f32 v{a_+1}, v{a_+1}\nv_rcp_f32 v{a_+3}, v{a_+3}')
    for j in range(4):
        a_ = RC + 4 * j
        o(f'v_mul_f32_e64 v{a_}, -v{a_}, v{a_+1}\nv_mul_f32_e64 v{a_+2}, -v{a_+2}, v{a_+3}')
        o(f'ds_write_b128 v{vT0}, v[{a_}:{a_+3}] offset:{4096*j}')
    XF = 96
    for i in range(2):
        for j in range(4): unpack(o, XF + 8*i + 2*j, XF + 8*i + 2*j + 1, G + 4*i + j)
    RP = 144
    vGu, vDn = 20, 21
    o(f'v_lshrrev_b32 v{vT0}, 3, v0\nv_and_b32 v{vT1}, 7, v0\nv_lshlrev_b32 v{vT1}, 4, v{vT1}')
    o(f'v_mul_u32_u24 v{vGu}, 3584, v{vT0}\nv_add_u32 v{vGu}, v{vGu}, v{vT1}')
    o(f'v_mul_u32_u24 v{vDn}, 896, v{vT0}\nv_add_u32 v{vDn}, v{vDn}, v{vT1}')
    o(f's_mul_i32 s{sT1}, s{sKk}, {16 * 3584}\ns_lshl_b32 s{sT2}, s{sSb}, 7\ns_add_u32 s{sT1}, s{sT1}, s{sT2}')
    o(f's_add_u32 s{sT2}, s{sT1}, {8 * 3584}')
    for mat, sr in enumerate([SRD_WG, SRD_WU]):
        for i in range(2):
            d = RP + 8 * mat + 4 * i
            o(f'buffer_load_dwordx4 v[{d}:{d+3}], v{vGu}, s[{sr}:{sr+3}], s{sT1 if i == 0 else sT2} offen'); vm.issue('rp')
    o(f's_mul_i32 s{sT1}, s{sKt}, {16 * 896}\ns_lshl_b32 s{sT2}, s{sDb}, 7\ns_add_u32 s{sT1}, s{sT1}, s{sT2}')
    o(f's_add_u32 s{sT2}, s{sT1}, {8 * 896}')
    for i in range(2):
        d = RP + 16 + 4 * i
        o(f'buffer_load_dwordx4 v[{d}:{d+3}], v{vDn}, s[{SRD_WD}:{SRD_WD+3}], s{sT1 if i == 0 else sT2} offen'); vm.issue('rp')
    o('s_waitcnt lgkmcnt(0)')
    o('s_barrier')
    vL0, vCh = 22, 23
    o(f'v_lshrrev_b32 v{vL0}, 4, v{vTp}\nv_lshlrev_b32 v{vL0}, 6, v{vL0}')
    o(f'v_and_b32 v{vT0}, 7, v{vTp}\nv_lshlrev_b32 v{vT0}, 3, v{vT0}\nv_add_u32 v{vL0}, v{vL0}, v{vT0}')
    o(f'v_bfe_u32 v{vCh}, v{vTp}, 3, 1')
    o(f'v_lshlrev_b32 v{vT0}, 3, v{vL0}\nv_add_u32 v{vT0}, {LDS_XS}, v{vT0}')
    TB = 64
    for i in range(2):
        for q in range(4): o(f'ds_read_b128 v[{TB+16*i+4*q}:{TB+16*i+4*q+3}], v{vT0} offset:{8192*i+16*q}')
    o(f'v_mul_u32_u24 v{vT1}, 4608, v{vCh}\nv_lshlrev_b32 v{vT3}, 1, v{vL0}\nv_add_u32 v{vT1}, v{vT1}, v{vT3}')
    o(f'v_add_u32 v{vT1}, {LDS_US + 512}, v{vT1}')
    Pk = 120
    for i in range(2):
        o(f's_waitcnt lgkmcnt({4 - 4*i})' if i == 0 else 's_waitcnt lgkmcnt(1)')
        for k in range(8): o(f'v_fma_f32 v{XF+8*i+k}, v{XF+8*i+k}, v{TB+16*i+2*k+1}, v{TB+16*i+2*k}')
        for j in range(4): o(f'v_cvt_pk_bf16_f32 v{Pk+4*i+j}, v{XF+8*i+2*j}, v{XF+8*i+2*j+1}')
        o(f'ds_write_b128 v{vT1}, v[{Pk+4*i}:{Pk+4*i+3}] offset:{2048*i}')
    o('s_waitcnt lgkmcnt(0)')
    stamp(o, stamps, 4)
    o('s_barrier')
    o(f'v_lshlrev_b32 v{vT1}, 12, v{vCh}\nv_lshlrev_b32 v{vT3}, 1, v{vL0}\nv_add_u32 v{vT1}, v{vT1}, v{vT3}')
    o(f'v_add_u32 v{vT1}, {LDS_XS}, v{vT1}')
    for i in range(2): o(f'ds_write_b128 v{vT1}, v[{G+4*i}:{G+4*i+3}] offset:{2048*i}')
    o(f's_cmp_eq_u32 s{sWave}, 7')
    o('s_cbranch_scc0 LN_noat')
    epoch_atomic(o)
    o.label('LN_noat')
    o(f's_cmp_ge_u32 s{sNw}, 784')
    o('s_cbranch_scc1 LN_norep2')
    o(f'v_lshlrev_b32 v{vT0}, 4, v0\nv_add_u32 v{vT1}, s{sL}, v{vT0}')
    o('s_waitcnt vmcnt(0)')
    for j in range(6): o(f'ds_write_b128 v{vT1}, v[{RP+4*j}:{RP+4*j+3}] offset:{1024*j}')
    g_, rho, c_ = 20, 21, 22
    o(f'v_lshrrev_b32 v{g_}, 4, v0\nv_bfe_u32 v{rho}, v0, 2, 2\nv_and_b32 v{c_}, 3, v0')
    vA1, vA2 = 18, 19
    o(f'v_and_b32 v{vT3}, 1, v{g_}\nv_lshlrev_b32 v{vT3}, 11, v{vT3}')
    o(f'v_lshrrev_b32 v{vT1}, 1, v{g_}\nv_lshlrev_b32 v{vT1}, 10, v{vT1}\nv_add_u32 v{vT3}, v{vT3}, v{vT1}')
    o(f'v_lshlrev_b32 v{vT1}, 7, v{rho}\nv_add_u32 v{vT3}, v{vT3}, v{vT1}')
    o(f'v_lshlrev_b32 v{vT1}, 3, v{c_}\nv_add3_u32 v{vA1}, v{vT3}, v{vT1}, s{sL}')
    o(f'v_lshrrev_b32 v{vT3}, 1, v{g_}\nv_lshlrev_b32 v{vT3}, 9, v{vT3}')
    o(f'v_lshlrev_b32 v{vT1}, 7, v{rho}\nv_add_u32 v{vT3}, v{vT3}, v{vT1}')
    o(f'v_and_b32 v{vT1}, 1, v{g_}\nv_lshlrev_b32 v{vT1}, 5, v{vT1}\nv_add_u32 v{vT3}, v{vT3}, v{vT1}')
    o(f'v_lshlrev_b32 v{vT1}, 3, v{c_}\nv_add3_u32 v{vA2}, v{vT3}, v{vT1}, s{sL}')
    o('s_waitcnt lgkmcnt(0)')
    F = 32
    for tt in range(4):
        o(f'ds_read_b64_tr_b16 v[{F+4*tt}:{F+4*tt+1}], v{vA1} offset:{tt*32}')
        o(f'ds_read_b64_tr_b16 v[{F+4*tt+2}:{F+4*tt+3}], v{vA1} offset:{tt*32 + 512}')
    for mt in range(2):
        o(f'ds_read_b64_tr_b16 v[{F+16+4*mt}:{F+16+4*mt+1}], v{vA2} offset:{4096 + mt*64}')
        o(f'ds_read_b64_tr_b16 v[{F+16+4*mt+2}:{F+16+4*mt+3}], v{vA2} offset:{4096 + mt*64 + 1024}')
    o(f's_mul_i32 s{sT1}, s{sSb}, {4 * 29}\ns_add_u32 s{sT1}, s{sT1}, s{sKk}\ns_lshl_b32 s{sT1}, s{sT1}, 10\ns_add_u32 s{sT1}, s{sT1}, {WS_WP}')
    o('s_waitcnt lgkmcnt(0)')
    for tt in range(4):
        o(f'buffer_store_dwordx4 v[{F+4*tt}:{F+4*tt+3}], v{vT0}, s[{SRD_WS}:{SRD_WS+3}], s{sT1} offen {ST}')
        if tt < 3: o(f's_add_u32 s{sT1}, s{sT1}, {29 * 1024}')
    o(f's_mul_i32 s{sT1}, s{sDb}, 224\ns_add_u32 s{sT1}, s{sT1}, s{sKt}\ns_lshl_b32 s{sT1}, s{sT1}, 10\ns_add_u32 s{sT1}, s{sT1}, {WS_WD}')
    o(f'buffer_store_dwordx4 v[{F+16}:{F+19}], v{vT0}, s[{SRD_WS}:{SRD_WS+3}], s{sT1} offen {ST}')
    o(f's_add_u32 s{sT1}, s{sT1}, {112 * 1024}')
    o(f'buffer_store_dwordx4 v[{F+20}:{F+23}], v{vT0}, s[{SRD_WS}:{SRD_WS+3}], s{sT1} offen {ST}')
    o.label('LN_norep2')
    o('s_waitcnt lgkmcnt(0)')
    stamp(o, stamps, 5)
    o('s_barrier')
    o(f's_cmp_eq_u32 s{sWave}, 7')
    o('s_cbranch_scc0 LN_noe')
    epoch_finish(o, 'N')
    o.label('LN_noe')
    stamp(o, stamps, 6)
    finish(o, stamps)

vAt, vAt2 = 250, 251
def epoch_atomic(o):
    srd(o, SRD_DBG, sDbg, 256)
    o(f'v_mov_b32 v{vAt}, 1\nv_mov_b32 v{vAt2}, 0')
    o('s_mov_b64 exec, 1')
    o(f'buffer_atomic_add v{vAt}, v{vAt2}, s[{SRD_DBG}:{SRD_DBG+3}], 0 offen sc0 sc1')
    o('s_mov_b64 exec, -1')
def epoch_finish(o, pfx):
    o('s_waitcnt vmcnt(0)')
    o(f'v_readfirstlane_b32 s{sT1}, v{vAt}')
    o('s_nop 3')
    o(f's_cmp_eq_u32 s{sT1}, 255')
    o(f's_cbranch_scc0 L{pfx}_noupd')
    o('s_mov_b64 exec, 1')
    o(f'buffer_store_dword v{vTag}, v{vAt2}, s[{SRD_WS}:{SRD_WS+3}], 0 offen sc1')
    o('s_mov_b64 exec, -1')
    o.label(f'L{pfx}_noupd')

def gen_spare(o, q0, stamps):
    vm = VM(o); vm.q = q0
    e_load(o, vm)
    o(f's_cmp_ge_u32 s{sWave}, 4')
    o('s_cbranch_scc1 LS_prodd')
    row_loads(o, vm)
    row_stats(o, vm)
    o.label('LS_prodd')
    o('s_waitcnt vmcnt(0)')
    make_tag(o)
    stamp(o, stamps, 0)
    o(f's_cmp_eq_u32 s{sWave}, 7')
    o('s_cbranch_scc0 LS_noat')
    epoch_atomic(o)
    o.label('LS_noat')
    if SPARE_WAIT:
        o(f's_and_b32 s{sT0}, s{sWave}, 3\ns_lshl_b32 s{sT0}, s{sT0}, 6\nv_add_u32 v20, s{sT0}, v0\nv_lshlrev_b32 v20, 6, v20')
        o(f's_mov_b32 s{sT3}, {WS_REC}\ns_mov_b32 s{sT1}, 0')
        o.label('LS_poll')
        for j in range(4): o(f'buffer_load_dwordx4 v[{64+4*j}:{67+4*j}], v20, s[{SRD_WS}:{SRD_WS+3}], s{sT3} offen offset:{16*j} sc1')
        o('s_waitcnt vmcnt(0)')
        for k in range(8): o(f'v_xor_b32 v{80+k}, v{65+2*k}, v{vTag}')
        o('v_or3_b32 v80, v80, v81, v82\nv_or3_b32 v83, v83, v84, v85\nv_or3_b32 v80, v80, v86, v87\nv_or_b32 v80, v80, v83')
        o('v_cmp_ne_u32 vcc, 0, v80')
        o('s_cbranch_vccz LS_go')
        o(f's_add_u32 s{sT1}, s{sT1}, 1\ns_cmp_lt_u32 s{sT1}, 0x40000\ns_cbranch_scc1 LS_poll')
        o.label('LS_go')
    sMat, sFs = 44, 45
    o(f's_lshr_b32 s{sMat}, s{sSp}, 4\ns_and_b32 s{sFs}, s{sSp}, 15')
    o(f's_cmp_eq_u32 s{sMat}, 0')
    o(f's_cselect_b32 s48, s{sWg}, s{sWu}\ns_cselect_b32 s49, s{sWg+1}, s{sWu+1}')
    o('s_mov_b32 s50, 1605632\ns_mov_b32 s51, 0x00020000')
    vTid, vG, vC, vOf = 16, 17, 18, 19
    o(f's_lshl_b32 s{sT0}, s{sWave}, 6\nv_add_u32 v{vTid}, s{sT0}, v0')
    o(f'v_mul_u32_u24 v{vG}, 4682, v{vTid}\nv_lshrrev_b32 v{vG}, 16, v{vG}')
    o(f'v_mul_u32_u24 v{vC}, 14, v{vG}\nv_sub_u32 v{vC}, v{vTid}, v{vC}')
    o(f'v_mul_u32_u24 v{vOf}, 3584, v{vG}\nv_lshlrev_b32 v{vT0}, 4, v{vC}\nv_add_u32 v{vOf}, v{vOf}, v{vT0}')
    o(f's_mul_i32 s{sT1}, s{sFs}, 224')
    L = 32
    o(f's_cmp_ge_u32 s{sWave}, 7')
    o('s_cbranch_scc1 LS_skip')
    for i in range(14):
        o(f'buffer_load_dwordx4 v[{L+4*i}:{L+4*i+3}], v{vOf}, s[48:51], s{sT1} offen')
        if i < 13: o(f's_add_u32 s{sT1}, s{sT1}, {32 * 3584}')
    A = 96
    for j in range(8): o(f'v_mov_b32 v{A+j}, 0')
    for i in range(14):
        o(f's_waitcnt vmcnt({13 - i})')
        for r in range(4):
            unpack(o, 104, 105, L + 4*i + r)
            o(f'v_add_f32 v{A+2*r}, v{A+2*r}, v104\nv_add_f32 v{A+2*r+1}, v{A+2*r+1}, v105')
    o(f'v_mul_u32_u24 v{vT0}, 448, v{vG}\nv_lshlrev_b32 v{vT1}, 5, v{vC}\nv_add_u32 v{vT0}, v{vT0}, v{vT1}')
    o(f'ds_write_b128 v{vT0}, v[{A}:{A+3}]\nds_write_b128 v{vT0}, v[{A+4}:{A+7}] offset:16')
    o.label('LS_skip')
    o('s_waitcnt lgkmcnt(0)')
    o('s_barrier')
    o(f's_cmp_ge_u32 s{sWave}, 2')
    o('s_cbranch_scc1 LS_done')
    o(f'v_lshlrev_b32 v{vT0}, 2, v{vTid}')
    for g in range(32): o(f'ds_read_b32 v{L+g}, v{vT0} offset:{448*g}')
    o('s_waitcnt lgkmcnt(0)')
    for g in range(1, 32): o(f'v_add_f32 v{L}, v{L}, v{L+g}')
    o(f'v_cvt_pk_bf16_f32 v{L+1}, v{L}, v{L}\nv_and_b32 v{L+1}, 0xffff0000, v{L+1}\nv_sub_f32 v{L+1}, v{L}, v{L+1}')
    Z = 68
    o(f'v_cvt_pk_bf16_f32 v{Z}, v{L}, v{L+1}')
    for j in range(1, 8): o(f'v_mov_b32 v{Z+j}, 0')
    o(f'v_lshrrev_b32 v{vT0}, 4, v{vTid}\ns_mul_i32 s{sT1}, s{sFs}, 7\nv_add_u32 v{vT0}, s{sT1}, v{vT0}')
    o(f'v_mul_u32_u24 v{vT0}, 29, v{vT0}\nv_add_u32 v{vT0}, 28, v{vT0}\nv_lshlrev_b32 v{vT0}, 10, v{vT0}')
    o(f'v_and_b32 v{vT1}, 15, v{vTid}\ns_lshl_b32 s{sT1}, s{sMat}, 4\nv_add_u32 v{vT1}, s{sT1}, v{vT1}\nv_lshlrev_b32 v{vT1}, 4, v{vT1}')
    o(f'v_add_u32 v{vT0}, v{vT0}, v{vT1}')
    o(f's_mov_b32 s{sT1}, {WS_WP}')
    o(f'v_cmp_gt_u32 vcc, 112, v{vTid}')
    o(f's_and_saveexec_b64 s[52:53], vcc')
    o('s_cbranch_execz LS_rest')
    o(f'buffer_store_dwordx4 v[{Z}:{Z+3}], v{vT0}, s[{SRD_WS}:{SRD_WS+3}], s{sT1} offen {ST}')
    o(f'buffer_store_dwordx4 v[{Z+4}:{Z+7}], v{vT0}, s[{SRD_WS}:{SRD_WS+3}], s{sT1} offen offset:512')
    o.label('LS_rest')
    o('s_mov_b64 exec, s[52:53]')
    o.label('LS_done')
    o(f's_cmp_eq_u32 s{sWave}, 7')
    o('s_cbranch_scc0 LS_noe')
    epoch_finish(o, 'S')
    o.label('LS_noe')
    finish(o, stamps)
def desc_ab(): return kernel_desc(NAME, 256, 100, accum=256)
def launch_ab(): return f'; @launch kernel={NAME} grid=(256,1,1) block=(512,1,1) lds={LDS_BYTES}'
```

```python
from asmlib import *
from layout import *
from vm import VM
NAME = 'ffn1_kernel'
PREFETCH = False
USE_PK = False
ST = ''
PF_WD = True
X_NOEPI = False; X_NOBAR = False; X_NODMA = False; X_NOREAD = False; X_NOSTAT = False
LDS_S4 = 4 * 28672
LDS_CORR = LDS_S4 + 28672
LDS_BYTES = LDS_CORR + 7 * 1024
ACC = [16, 32]
WB = 48; NWB = 8
HF = 80
T = 192
PK = 200
vS, vQ, vC1, vSB, vT0, vT1 = 204, 205, 206, 208, 210, 211
BC = 212
SA = 216
SD = 220
vLane16, vLB0, vLB1, vLB2, vTR, vHoff, vHN = 1, 2, 3, 4, 5, 6, 8
def w_lds_addr(t, kk):
    if kk == 28: return LDS_CORR + t * 1024
    if t in (0, 5): return LDS_S4 + kk * 1024
    tt = 1 if t == 6 else t
    return (kk // 7) * 28672 + (7 * (tt - 1) + kk % 7) * 1024
def w_read(o, dst, t, kk):
    a_ = w_lds_addr(t, kk)
    base = [vLB0, vLB1, vLB2][a_ >> 16]
    o(f'ds_read_b128 v[{dst}:{dst+3}], v{base} offset:{a_ & 0xffff}')
def epilogue_ops(acc):
    ops = []
    if USE_PK:
        for j in range(0, 8, 2): ops.append((4, f'v_pk_mul_f32 v[{T+j}:{T+j+1}], v[{acc+j}:{acc+j+1}], v[{vC1}:{vC1+1}] op_sel_hi:[1,0]'))
    else:
        for j in range(8): ops.append((4, f'v_mul_f32 v{T+j}, v{acc+j}, v{vC1}'))
    for j in range(8): ops.append((8, f'v_exp_f32 v{T+j}, v{T+j}'))
    if USE_PK:
        for j in range(0, 8, 2): ops.append((4, f'v_pk_fma_f32 v[{T+j}:{T+j+1}], v[{T+j}:{T+j+1}], v[{vSB}:{vSB+1}], v[{vSB}:{vSB+1}] op_sel_hi:[1,0,0]'))
    else:
        for j in range(8): ops.append((4, f'v_fma_f32 v{T+j}, v{T+j}, v{vSB}, v{vSB}'))
    for j in range(8): ops.append((8, f'v_rcp_f32 v{T+j}, v{T+j}'))
    if USE_PK:
        for j in range(0, 8, 2): ops.append((4, f'v_pk_mul_f32 v[{T+j}:{T+j+1}], v[{acc+8+j}:{acc+8+j+1}], v[{T+j}:{T+j+1}]'))
    else:
        for j in range(8): ops.append((4, f'v_mul_f32 v{T+j}, v{acc+8+j}, v{T+j}'))
    for j in range(4): ops.append((4, f'v_cvt_pk_bf16_f32 v{PK+j}, v{T+2*j}, v{T+2*j+1}'))
    return ops
def epilogue_gaps(acc):
    mul = [f'v_mul_f32 v{T+j}, v{acc+j}, v{vC1}' for j in range(8)]
    ex = [f'v_exp_f32 v{T+j}, v{T+j}' for j in range(8)]
    fma = [f'v_fma_f32 v{T+j}, v{T+j}, v{vSB}, v{vSB}' for j in range(8)]
    rcp = [f'v_rcp_f32 v{T+j}, v{T+j}' for j in range(8)]
    mu = [f'v_mul_f32 v{T+j}, v{acc+8+j}, v{T+j}' for j in range(8)]
    cv = [f'v_cvt_pk_bf16_f32 v{PK+j}, v{T+2*j}, v{T+2*j+1}' for j in range(4)]
    g = [[mul[0], mul[1], mul[2]]]
    for j in range(5): g.append([ex[j], mul[3+j]])
    for j in range(5, 8): g.append([ex[j], fma[j-5]])
    for j in range(5): g.append([rcp[j], fma[3+j]])
    for j in range(5, 8): g.append([rcp[j], mu[j-5]])
    g += [[mu[3], mu[4], mu[5]], [mu[6], mu[7], cv[0]], [cv[1], cv[2], cv[3]]]
    return g
def take_fill(fill, budget, force):
    out = []
    while fill and (fill[0][0] <= budget or force > 0):
        c, op = fill.pop(0); out.append(op); budget -= c; force -= 1
    return out
def gen_c(o, stamps=False):
    vm = VM(o)
    kernel_begin(o, NAME)
    o('s_cmp_ge_u32 s2, 256')
    o('s_cbranch_scc1 LC_end')
    o(f's_load_dwordx2 s[4:5], s[0:1], {KA["ws"]}')
    if stamps: o('s_memtime s[74:75]')
    o('v_lshrrev_b32 v9, 6, v0')
    o('v_and_b32 v0, 63, v0')
    o('v_readfirstlane_b32 s24, v9')
    o('s_and_b32 s25, s2, 7')
    o('s_lshr_b32 s26, s2, 3')
    if PREFETCH: code_prefetch(o, NAME, 'code_end', 26, 24, 4, 240, 244, 44, 'c')
    o('s_lshr_b32 s27, s25, 1')
    o('s_lshl_b32 s27, s27, 2')
    o('s_and_b32 s28, s26, 3')
    o('s_add_u32 s27, s27, s28')
    o('s_and_b32 s28, s25, 1')
    o('s_lshl_b32 s28, s28, 3')
    o('s_lshr_b32 s29, s26, 2')
    o('s_add_u32 s28, s28, s29')
    o('s_lshl_b32 s29, s27, 2')
    o('s_add_u32 s29, s29, s24')
    o(f'v_lshlrev_b32 v{vLane16}, 4, v0')
    o('s_mul_i32 s30, s24, 28672')
    o('s_mul_i32 s33, s28, 7')
    o('s_mul_i32 s32, s33, 29696')
    o('s_lshl_b32 s34, s29, 5')
    o('s_mul_i32 s35, s29, 28672')
    o('s_mul_i32 s36, s24, 7168')
    o('s_add_u32 s46, s36, s32')
    o('s_waitcnt lgkmcnt(0)')
    srd(o, 12, 4, WP_BYTES, WS_WP)
    srd(o, 8, 4, HT_BYTES, WS_HT)
    def w_dma_ops(t, tag):
        ops = [f's_add_u32 s37, s46, {t * 29696}']
        if t in (0, 5): ops.append(f's_add_u32 s38, s36, {LDS_S4}')
        else:
            tt = 1 if t == 6 else t
            ops.append(f's_add_u32 s38, s30, {7 * (tt - 1) * 1024}')
        groups = []
        cur = ops
        for j in range(7):
            if j == 0: cur += ['s_mov_b32 m0, s38', 's_nop 0']
            if j == 4: cur += ['s_add_u32 s38, s38, 4096', 's_mov_b32 m0, s38', 's_add_u32 s37, s37, 4096']
            cur.append(('dma', f'buffer_load_dwordx4 v{vLane16}, s[12:15], s37 offen offset:{(j % 4) * 1024} lds', tag))
            groups.append(cur); cur = []
        return groups
    def emit_group(g):
        for op in g:
            if isinstance(op, tuple): o(op[1]); vm.issue(op[2])
            else: o(op)
    for g in w_dma_ops(0, 'w0'): emit_group(g)
    for which in range(2):
        if which == 0: o('s_mov_b32 s39, s24')
        else:
            o('s_add_u32 s39, s24, 4'); o('s_min_u32 s39, s39, 6')
        o('s_mul_i32 s37, s39, 29696')
        o('s_add_u32 s37, s37, s32')
        o(f's_add_u32 s37, s37, {28 * 1024}')
        o('s_lshl_b32 s38, s39, 10')
        o(f's_add_u32 s38, s38, {LDS_CORR}')
        o('s_mov_b32 m0, s38')
        o('s_nop 0')
        o(f'buffer_load_dwordx4 v{vLane16}, s[12:15], s37 offen lds'); vm.issue('w0')
    o('s_mov_b32 s47, s30')
    o('s_mov_b32 s48, s35')
    def h_dma(kk):
        if kk % 4 == 0:
            o('s_mov_b32 m0, s47')
            o('s_add_u32 s47, s47, 4096')
            if kk: o('s_add_u32 s48, s48, 4096')
            else: o('s_nop 0')
        o(f'buffer_load_dwordx4 v{vLane16}, s[8:11], s48 offen offset:{(kk % 4) * 1024} lds'); vm.issue(f'h{kk}')
    AH = 10; AH0 = 4
    for kk in range(AH0): h_dma(kk)
    srd(o, 16, 4, H_BYTES, WS_H)
    srd(o, 20, 4, HN_BYTES, WS_HN)
    o(f'v_mov_b32 v{vLB0}, v{vLane16}')
    o(f'v_add_u32 v{vLB1}, 0x10000, v{vLane16}')
    o(f'v_add_u32 v{vLB2}, 0x20000, v{vLane16}')
    o('v_lshrrev_b32 v9, 5, v0')
    o('v_lshlrev_b32 v9, 9, v9')
    o('v_bfe_u32 v10, v0, 2, 2')
    o('v_lshlrev_b32 v10, 6, v10')
    o('v_add_u32 v9, v9, v10')
    o('v_bfe_u32 v10, v0, 4, 1')
    o('v_lshlrev_b32 v10, 5, v10')
    o('v_add_u32 v9, v9, v10')
    o('v_and_b32 v10, 3, v0')
    o('v_lshlrev_b32 v10, 3, v10')
    o('v_add_u32 v9, v9, v10')
    o(f'v_add_u32 v{vTR}, s30, v9')
    o('s_mul_i32 s31, s29, 112')
    o('s_add_u32 s31, s31, s33')
    o('s_lshl_b32 s31, s31, 10')
    o('v_and_b32 v9, 31, v0')
    o('v_add_u32 v9, s34, v9')
    o('v_mul_u32_u24 v9, 896, v9')
    o('v_lshrrev_b32 v10, 5, v0')
    o('v_lshlrev_b32 v10, 4, v10')
    o(f'v_add_u32 v{vHN}, v9, v10')
    o('s_mov_b32 s50, 0x00020001\ns_mov_b32 s51, 0x00020001')
    o(f'v_mov_b32 v{SA}, 0\nv_mov_b32 v9, 0x3f803f80')
    o(f'v_cndmask_b32 v{SA}, v{SA}, v9, s[50:51]')
    for j in range(1, 4): o(f'v_mov_b32 v{SA+j}, v{SA}')
    vm.wait('w0')
    o('s_barrier')
    if stamps: o('s_memtime s[62:63]')
    later = []
    for t in (1, 2): later += w_dma_ops(t, f'w{t}')
    def reads(k):
        vm.wait(f'h{k}')
        hb = HF + 4 * k
        o(f'ds_read_b64_tr_b16 v[{hb}:{hb+1}], v{vTR} offset:{k * 1024}')
        o(f'ds_read_b64_tr_b16 v[{hb+2}:{hb+3}], v{vTR} offset:{k * 1024 + 256}')
    QA = ACC[1]
    cb0 = WB + 4 * (28 % NWB)
    nissued = AH0
    reads(0); w_read(o, WB, 0, 0)
    h_dma(nissued); nissued += 1
    reads(1); w_read(o, WB + 4, 0, 1)
    h_dma(nissued); nissued += 1
    for k in range(28):
        hb = HF + 4 * k; wb = WB + 4 * (k % NWB)
        z = lambda r, n: '0' if k == 0 else f'v[{r}:{r+n-1}]'
        o(f's_waitcnt lgkmcnt({3 if k < 27 else 0})')
        o(f'v_mfma_f32_32x32x16_bf16 v[{ACC[0]}:{ACC[0]+15}], v[{wb}:{wb+3}], v[{hb}:{hb+3}], {z(ACC[0], 16)}')
        if k + 2 < 28: reads(k + 2)
        if not X_NOSTAT: o(f'v_mfma_f32_32x32x16_bf16 v[{QA}:{QA+15}], v[{hb}:{hb+3}], v[{hb}:{hb+3}], {z(QA, 16)}')
        if k + 2 < 28: w_read(o, WB + 4 * ((k + 2) % NWB), 0, k + 2)
        elif k == 26: w_read(o, cb0, 0, 28)
        ndma = 0
        while nissued < 28 and (nissued <= k + AH) and ndma < 2:
            h_dma(nissued); nissued += 1; ndma += 1
        if not X_NOSTAT: o(f'v_mfma_f32_16x16x32_bf16 v[{SD}:{SD+3}], v[{SA}:{SA+3}], v[{hb}:{hb+3}], {z(SD, 4)}')
        if nissued >= 28 and ndma == 0 and later:
            emit_group(later.pop(0))
    if stamps: o('s_memtime s[64:65]')
    while later: emit_group(later.pop(0))
    o('s_min_u32 s41, s28, 13')
    def tree(lo, hi, path):
        if hi - lo == 1:
            for q in range(2):
                kk = 2 * lo + q; hb = HF + 4 * kk
                o(f'buffer_store_dwordx4 v[{hb}:{hb+3}], v{vHN}, s[20:23], 0 offen offset:{kk * 32} {ST}')
            o('s_branch LC_hn_done')
            return
        mid = (lo + hi) // 2
        o(f's_cmp_ge_u32 s41, {mid}')
        o(f's_cbranch_scc1 LC_hn_{path}1')
        tree(lo, mid, path + '0')
        o.label(f'LC_hn_{path}1')
        tree(mid, hi, path + '1')
    tree(0, 14, 'p')
    o.label('LC_hn_done')
    vm.issue('hn'); vm.issue('hn')
    masks = [0xAAAAAAAA, 0xCCCCCCCC, 0xFF00FF00, 0xFFFF0000, 0xF0F0F0F0]
    for r, m in zip([52, 54, 56, 58, 72], masks): o(f's_mov_b32 s{r}, {hex(m)}\ns_mov_b32 s{r+1}, {hex(m)}')
    o('s_nop 3')
    for j in range(8): o(f'v_cndmask_b32 v{T+j}, v{QA+2*j}, v{QA+2*j+1}, s[52:53]')
    for j in range(4): o(f'v_cndmask_b32 v{T+j}, v{T+2*j}, v{T+2*j+1}, s[54:55]')
    for j in range(2): o(f'v_cndmask_b32 v{T+j}, v{T+2*j}, v{T+2*j+1}, s[56:57]')
    o(f'v_cndmask_b32 v{vQ}, v{T}, v{T+1}, s[58:59]')
    o(f'v_mov_b32 v{vT0}, v{vQ}')
    o(f'v_mov_b32 v{vT1}, v{SD}')
    o(f'v_mov_b32 v{vS}, v{SD+1}')
    o('s_nop 0')
    o(f'v_permlane32_swap_b32 v{vQ}, v{vT0}')
    o(f'v_permlane16_swap_b32 v{vT1}, v{vS}')
    o('s_nop 1')
    o(f'v_cndmask_b32 v{vQ}, v{vQ}, v{vT0}, s[72:73]')
    o(f'v_mov_b32 v{vS}, v{vT1}')
    o('s_nop 1')
    o(f'v_permlane32_swap_b32 v{vS}, v{vT1}')
    o('s_nop 1')
    o(f's_mov_b32 s40, {hex(0x3b124925)}')
    o(f'v_mul_f32 v{vS}, s40, v{vS}')
    o(f'v_mul_f32 v{vQ}, s40, v{vQ}')
    o(f'v_fma_f32 v{vQ}, -v{vS}, v{vS}, v{vQ}')
    o(f'v_max_f32 v{vQ}, 0, v{vQ}')
    o(f'v_cvt_pk_bf16_f32 v{vT0}, v{vS}, v{vQ}')
    o(f'v_and_b32 v{vT1}, 0xffff0000, v{vT0}')
    o(f'v_add_f32 v{vT1}, {hex(0x3727c5ac)}, v{vT1}')
    o(f'v_cvt_pk_bf16_f32 v{vT1}, v{vT1}, v{vT1}')
    o(f'v_and_b32 v{vT1}, 0xffff0000, v{vT1}')
    o(f'v_sqrt_f32 v{vT1}, v{vT1}')
    o('s_nop 0')
    o(f'v_cvt_pk_bf16_f32 v{vT1}, v{vT1}, v{vT1}')
    o(f'v_and_b32 v{vSB}, 0xffff0000, v{vT1}')
    o(f'v_rcp_f32 v{vC1}, v{vSB}')
    o(f'v_and_b32 v{vT0}, 0xffff, v{vT0}')
    o(f'v_xor_b32 v{vT0}, 0x8000, v{vT0}')
    o(f'v_mul_f32 v{vC1}, {hex(0xbfb8aa3b)}, v{vC1}')
    o(f'v_lshl_or_b32 v{BC}, v{vT0}, 16, v{vT0}')
    o(f'v_mov_b32 v{BC+1}, 0')
    o(f'v_mov_b32 v{BC+2}, 0')
    o(f'v_mov_b32 v{BC+3}, 0')
    o('s_waitcnt lgkmcnt(0)')
    o(f'v_mfma_f32_32x32x16_bf16 v[{ACC[0]}:{ACC[0]+15}], v[{cb0}:{cb0+3}], v[{BC}:{BC+3}], v[{ACC[0]}:{ACC[0]+15}]')
    vm.wait('w1')
    o('s_barrier')
    if stamps: o('s_memtime s[66:67]')
    PF = 7; WE = 4
    bi = 29 % NWB
    seq = [(t, kk) for t in range(1, 7) for kk in range(29)]
    bufof = {}
    for i, (t, kk) in enumerate(seq): bufof[(t, kk)] = WB + 4 * ((bi + i) % NWB)
    for i in range(PF):
        t, kk = seq[i]; w_read(o, bufof[(t, kk)], t, kk)
    fill = []; dmaq = []
    waited_upto = -1
    for i, (t, kk) in enumerate(seq):
        acc = ACC[t & 1]
        if kk == 0:
            assert not fill, fill
            fill = epilogue_gaps(ACC[(t - 1) & 1]) + [('store', t - 1)]
        if kk == 0 and t + 2 <= 6: dmaq += w_dma_ops(t + 2, f'w{t+2}')
        if PF_WD and t == 5 and kk == 1:
            srd(o, 76, 4, WD_BYTES, WS_WD)
            o('s_lshl_b32 s43, s26, 2\ns_add_u32 s43, s43, s24\ns_mul_i32 s43, s43, 12544')
            o('v_lshlrev_b32 v240, 7, v0')
            o('buffer_load_dword v244, v240, s[76:79], s43 offen'); vm.issue('pf')
            o('s_add_u32 s43, s43, 8192')
            o('s_mov_b32 exec_hi, 3')
            o('buffer_load_dword v245, v240, s[76:79], s43 offen'); vm.issue('pf')
            o('s_mov_b32 exec_hi, -1')
        if kk == 29 - PF - 1 and t + 1 <= 6:
            if not X_NOBAR:
                vm.wait(f'w{t+1}')
                o('s_barrier')
        nxt = i + PF
        if nxt < len(seq) and not X_NOREAD:
            t2, k2 = seq[nxt]; w_read(o, bufof[(t2, k2)], t2, k2)
        if i > waited_upto and not X_NOREAD:
            last_issued = min(nxt, len(seq) - 1)
            upto = min(i + WE - 1, len(seq) - 1)
            o(f's_waitcnt lgkmcnt({last_issued - upto})')
            waited_upto = upto
        wb = bufof[(t, kk)]
        bop = f'v[{HF+4*kk}:{HF+4*kk+3}]' if kk < 28 else f'v[{BC}:{BC+3}]'
        c = '0' if kk == 0 else f'v[{acc}:{acc+15}]'
        o(f'v_mfma_f32_32x32x16_bf16 v[{acc}:{acc+15}], v[{wb}:{wb+3}], {bop}, {c}')
        if dmaq:
            g = dmaq.pop(0)
            if not X_NODMA: emit_group(g)
        elif 4 <= kk and fill:
            g = fill.pop(0)
            if isinstance(g, tuple):
                o(f's_add_u32 s42, s31, {g[1] * 1024}')
                o(f'buffer_store_dwordx4 v[{PK}:{PK+3}], v{vLane16}, s[16:19], s42 offen {ST}'); vm.issue('hs')
            elif not X_NOEPI:
                for op in g: o(op)
    assert not fill and not dmaq, (fill, dmaq)
    if stamps: o('s_memtime s[68:69]')
    o('s_nop 7'); o('s_nop 7')
    for cst, op in epilogue_ops(ACC[6 & 1]): o(op)
    o(f's_add_u32 s42, s31, {6 * 1024}')
    o(f'buffer_store_dwordx4 v[{PK}:{PK+3}], v{vLane16}, s[16:19], s42 offen {ST}')
    if stamps:
        o('s_waitcnt vmcnt(0)')
        o('s_memtime s[70:71]')
        o('s_waitcnt lgkmcnt(0)')
        o('s_sub_u32 s70, s70, s74\ns_sub_u32 s68, s68, s74\ns_sub_u32 s66, s66, s74\ns_sub_u32 s64, s64, s74\ns_sub_u32 s62, s62, s74')
        o('v_mov_b32 v16, s62\nv_mov_b32 v17, s64\nv_mov_b32 v18, s66\nv_mov_b32 v19, s68\nv_mov_b32 v20, s70\nv_mov_b32 v21, 0\nv_mov_b32 v22, 0\nv_mov_b32 v23, 0')
        srd(o, 8, 4, 0x10000, 0x1800000)
        o('s_lshl_b32 s43, s2, 2\ns_add_u32 s43, s43, s24\ns_lshl_b32 s43, s43, 5')
        o('v_mov_b32 v24, s43')
        o('s_mov_b64 exec, 1')
        o('buffer_store_dwordx4 v[16:19], v24, s[8:11], 0 offen')
        o('buffer_store_dwordx4 v[20:23], v24, s[8:11], 0 offen offset:16')
    o.label('LC_end')
    o('s_endpgm')
def desc_c(): return kernel_desc(NAME, 248, 84)
def launch_c(): return f'; @launch kernel={NAME} grid=(256,1,1) block=(256,1,1) lds={LDS_BYTES}'
```

```python
WS_E    = 0x0
WS_REC  = 0x1000
WS_FLAG = 0x6000
WS_HT   = 0x10000
WS_HN   = 0x200000
WS_WP   = 0x400000
WS_WD   = 0x800000
WS_H    = 0xA00000
HT_BYTES = 448 * 2048 * 2
HN_BYTES = 2048 * 448 * 2
WP_BYTES = 112 * 29 * 1024
WD_BYTES = 14 * 112 * 1024
H_BYTES  = 64 * 112 * 1024
KA = dict(x=0, A_re=8, A_im=16, B_re=24, B_im=32, C_re=40, C_im=48, log_dt=56, Dskip=64, bx=72, w_gate=80, w_up=88, w_down=96, out=104, dbg=112, ws=120)
WS_T    = 0x1200000
T_BYTES = 224 * 8192
WS_T2   = 0x1400000
WS_END  = WS_T2 + T_BYTES
import os
WS_SHIFT = int(os.environ.get('WS_SHIFT', '0'), 0)
```

```python
import sys, build, kab, kc, kd
out = sys.argv[1]
for a in sys.argv[2:]:
    k, v = a.split('=', 1); m, n = k.split('.')
    mod = {'kab': kab, 'kc': kc, 'kd': kd}[m]
    old = getattr(mod, n)
    if isinstance(old, bool): v = v in ('1', 'True')
    elif isinstance(old, int): v = int(v)
    setattr(mod, n, v)
open(out, 'w').write(build.make(['ab', 'c', 'd']))
```

```python
from asmlib import *
from layout import *
from vm import VM
NAME = 'ffn1_kernel'
FNAME = 'ffn_kernel'
PREFETCH = False
USE_PK = False
ST = ''
PF_WD = True
PF_T = 2
PF_N = 4
WPER = 1
X_NOEPI = False; X_NOBAR = False; X_NODMA = False; X_NOREAD = False; X_NOSTAT = False
LDS_S4 = 4 * 28672
LDS_CORR = LDS_S4 + 28672
LDS_BYTES = LDS_CORR + 7 * 1024
ACC = [16, 32]
WB = 48; NWB = 8
HF = 80
T = 192
PK = 200
vS, vQ, vC1, vSB, vT0, vT1 = 204, 205, 206, 208, 210, 211
BC = 212
SA = 216
SD = 220
vLane16, vLB0, vLB1, vLB2, vTR, vHoff, vHN = 1, 2, 3, 4, 5, 6, 8
def w_lds_addr(t, kk):
    if kk == 28: return LDS_CORR + t * 1024
    if t in (0, 5): return LDS_S4 + kk * 1024
    tt = 1 if t == 6 else t
    return (kk // 7) * 28672 + (7 * (tt - 1) + kk % 7) * 1024
def w_read(o, dst, t, kk):
    a_ = w_lds_addr(t, kk)
    base = [vLB0, vLB1, vLB2][a_ >> 16]
    o(f'ds_read_b128 v[{dst}:{dst+3}], v{base} offset:{a_ & 0xffff}')
def epilogue_ops(acc):
    ops = []
    if USE_PK:
        for j in range(0, 8, 2): ops.append((4, f'v_pk_mul_f32 v[{T+j}:{T+j+1}], v[{acc+j}:{acc+j+1}], v[{vC1}:{vC1+1}] op_sel_hi:[1,0]'))
    else:
        for j in range(8): ops.append((4, f'v_mul_f32 v{T+j}, v{acc+j}, v{vC1}'))
    for j in range(8): ops.append((8, f'v_exp_f32 v{T+j}, v{T+j}'))
    if USE_PK:
        for j in range(0, 8, 2): ops.append((4, f'v_pk_fma_f32 v[{T+j}:{T+j+1}], v[{T+j}:{T+j+1}], v[{vSB}:{vSB+1}], v[{vSB}:{vSB+1}] op_sel_hi:[1,0,0]'))
    else:
        for j in range(8): ops.append((4, f'v_fma_f32 v{T+j}, v{T+j}, v{vSB}, v{vSB}'))
    for j in range(8): ops.append((8, f'v_rcp_f32 v{T+j}, v{T+j}'))
    if USE_PK:
        for j in range(0, 8, 2): ops.append((4, f'v_pk_mul_f32 v[{T+j}:{T+j+1}], v[{acc+8+j}:{acc+8+j+1}], v[{T+j}:{T+j+1}]'))
    else:
        for j in range(8): ops.append((4, f'v_mul_f32 v{T+j}, v{acc+8+j}, v{T+j}'))
    for j in range(4): ops.append((4, f'v_cvt_pk_bf16_f32 v{PK+j}, v{T+2*j}, v{T+2*j+1}'))
    return ops
def epilogue_gaps(acc):
    mul = [f'v_mul_f32 v{T+j}, v{acc+j}, v{vC1}' for j in range(8)]
    ex = [f'v_exp_f32 v{T+j}, v{T+j}' for j in range(8)]
    fma = [f'v_fma_f32 v{T+j}, v{T+j}, v{vSB}, v{vSB}' for j in range(8)]
    rcp = [f'v_rcp_f32 v{T+j}, v{T+j}' for j in range(8)]
    mu = [f'v_mul_f32 v{T+j}, v{acc+8+j}, v{T+j}' for j in range(8)]
    cv = [f'v_cvt_pk_bf16_f32 v{PK+j}, v{T+2*j}, v{T+2*j+1}' for j in range(4)]
    g = [[mul[0], mul[1], mul[2]]]
    for j in range(5): g.append([ex[j], mul[3+j]])
    for j in range(5, 8): g.append([ex[j], fma[j-5]])
    for j in range(5): g.append([rcp[j], fma[3+j]])
    for j in range(5, 8): g.append([rcp[j], mu[j-5]])
    g += [[mu[3], mu[4], mu[5]], [mu[6], mu[7], cv[0]], [cv[1], cv[2], cv[3]]]
    return g
def take_fill(fill, budget, force):
    out = []
    while fill and (fill[0][0] <= budget or force > 0):
        c, op = fill.pop(0); out.append(op); budget -= c; force -= 1
    return out
def gen_c(o, stamps=False, merged=False):
    vm = VM(o)
    global ST
    if merged: ST = 'sc1'
    kernel_begin(o, FNAME if merged else NAME)
    o('s_cmp_ge_u32 s2, 256')
    o('s_cbranch_scc1 LC_end')
    o(f's_load_dwordx2 s[4:5], s[0:1], {KA["ws"]}')
    if merged: o(f's_load_dwordx2 s[6:7], s[0:1], {KA["out"]}')
    if stamps: o('s_memtime s[74:75]')
    o('v_lshrrev_b32 v9, 6, v0')
    o('v_and_b32 v0, 63, v0')
    o('v_readfirstlane_b32 s24, v9')
    o('s_and_b32 s25, s2, 7')
    o('s_lshr_b32 s26, s2, 3')
    if PREFETCH: code_prefetch(o, NAME, 'code_end', 26, 24, 4, 240, 244, 44, 'c')
    o('s_lshr_b32 s27, s25, 1')
    o('s_lshl_b32 s27, s27, 2')
    o('s_and_b32 s28, s26, 3')
    o('s_add_u32 s27, s27, s28')
    o('s_and_b32 s28, s25, 1')
    o('s_lshl_b32 s28, s28, 3')
    o('s_lshr_b32 s29, s26, 2')
    o('s_add_u32 s28, s28, s29')
    o('s_lshl_b32 s29, s27, 2')
    o('s_add_u32 s29, s29, s24')
    o(f'v_lshlrev_b32 v{vLane16}, 4, v0')
    o('s_mul_i32 s30, s24, 28672')
    o('s_mul_i32 s33, s28, 7')
    o('s_mul_i32 s32, s33, 29696')
    o('s_lshl_b32 s34, s29, 5')
    o('s_mul_i32 s35, s29, 28672')
    o('s_mul_i32 s36, s24, 7168')
    o('s_add_u32 s46, s36, s32')
    o('s_waitcnt lgkmcnt(0)')
    srd(o, 12, 4, WP_BYTES, WS_WP)
    srd(o, 8, 4, HT_BYTES, WS_HT)
    def w_dma_ops(t, tag):
        ops = [f's_add_u32 s37, s46, {t * 29696}']
        if t in (0, 5): ops.append(f's_add_u32 s38, s36, {LDS_S4}')
        else:
            tt = 1 if t == 6 else t
            ops.append(f's_add_u32 s38, s30, {7 * (tt - 1) * 1024}')
        groups = []
        cur = ops
        for j in range(7):
            if j == 0: cur += ['s_mov_b32 m0, s38', 's_nop 0']
            if j == 4: cur += ['s_add_u32 s38, s38, 4096', 's_mov_b32 m0, s38', 's_add_u32 s37, s37, 4096']
            cur.append(('dma', f'buffer_load_dwordx4 v{vLane16}, s[12:15], s37 offen offset:{(j % 4) * 1024} lds', tag))
            groups.append(cur); cur = []
        return groups
    def emit_group(g):
        for op in g:
            if isinstance(op, tuple): o(op[1]); vm.issue(op[2])
            else: o(op)
    for g in w_dma_ops(0, 'w0'): emit_group(g)
    for which in range(2):
        if which == 0: o('s_mov_b32 s39, s24')
        else:
            o('s_add_u32 s39, s24, 4'); o('s_min_u32 s39, s39, 6')
        o('s_mul_i32 s37, s39, 29696')
        o('s_add_u32 s37, s37, s32')
        o(f's_add_u32 s37, s37, {28 * 1024}')
        o('s_lshl_b32 s38, s39, 10')
        o(f's_add_u32 s38, s38, {LDS_CORR}')
        o('s_mov_b32 m0, s38')
        o('s_nop 0')
        o(f'buffer_load_dwordx4 v{vLane16}, s[12:15], s37 offen lds'); vm.issue('w0')
    o('s_mov_b32 s47, s30')
    o('s_mov_b32 s48, s35')
    def h_dma(kk):
        if kk % 4 == 0:
            o('s_mov_b32 m0, s47')
            o('s_add_u32 s47, s47, 4096')
            if kk: o('s_add_u32 s48, s48, 4096')
            else: o('s_nop 0')
        o(f'buffer_load_dwordx4 v{vLane16}, s[8:11], s48 offen offset:{(kk % 4) * 1024} lds'); vm.issue(f'h{kk}')
    AH = 10; AH0 = 4
    for kk in range(AH0): h_dma(kk)
    srd(o, 16, 4, H_BYTES, WS_H)
    srd(o, 20, 4, HN_BYTES, WS_HN)
    o(f'v_mov_b32 v{vLB0}, v{vLane16}')
    o(f'v_add_u32 v{vLB1}, 0x10000, v{vLane16}')
    o(f'v_add_u32 v{vLB2}, 0x20000, v{vLane16}')
    o('v_lshrrev_b32 v9, 5, v0')
    o('v_lshlrev_b32 v9, 9, v9')
    o('v_bfe_u32 v10, v0, 2, 2')
    o('v_lshlrev_b32 v10, 6, v10')
    o('v_add_u32 v9, v9, v10')
    o('v_bfe_u32 v10, v0, 4, 1')
    o('v_lshlrev_b32 v10, 5, v10')
    o('v_add_u32 v9, v9, v10')
    o('v_and_b32 v10, 3, v0')
    o('v_lshlrev_b32 v10, 3, v10')
    o('v_add_u32 v9, v9, v10')
    o(f'v_add_u32 v{vTR}, s30, v9')
    o('s_mul_i32 s31, s29, 112')
    o('s_add_u32 s31, s31, s33')
    o('s_lshl_b32 s31, s31, 10')
    o('v_and_b32 v9, 31, v0')
    o('v_add_u32 v9, s34, v9')
    o('v_mul_u32_u24 v9, 896, v9')
    o('v_lshrrev_b32 v10, 5, v0')
    o('v_lshlrev_b32 v10, 4, v10')
    o(f'v_add_u32 v{vHN}, v9, v10')
    o('s_mov_b32 s50, 0x00020001\ns_mov_b32 s51, 0x00020001')
    o(f'v_mov_b32 v{SA}, 0\nv_mov_b32 v9, 0x3f803f80')
    o(f'v_cndmask_b32 v{SA}, v{SA}, v9, s[50:51]')
    for j in range(1, 4): o(f'v_mov_b32 v{SA+j}, v{SA}')
    vm.wait('w0')
    o('s_barrier')
    if stamps: o('s_memtime s[62:63]')
    later = []
    for t in (1, 2): later += w_dma_ops(t, f'w{t}')
    def reads(k):
        vm.wait(f'h{k}')
        hb = HF + 4 * k
        o(f'ds_read_b64_tr_b16 v[{hb}:{hb+1}], v{vTR} offset:{k * 1024}')
        o(f'ds_read_b64_tr_b16 v[{hb+2}:{hb+3}], v{vTR} offset:{k * 1024 + 256}')
    QA = ACC[1]
    cb0 = WB + 4 * (28 % NWB)
    nissued = AH0
    reads(0); w_read(o, WB, 0, 0)
    h_dma(nissued); nissued += 1
    reads(1); w_read(o, WB + 4, 0, 1)
    h_dma(nissued); nissued += 1
    for k in range(28):
        hb = HF + 4 * k; wb = WB + 4 * (k % NWB)
        z = lambda r, n: '0' if k == 0 else f'v[{r}:{r+n-1}]'
        o(f's_waitcnt lgkmcnt({3 if k < 27 else 0})')
        o(f'v_mfma_f32_32x32x16_bf16 v[{ACC[0]}:{ACC[0]+15}], v[{wb}:{wb+3}], v[{hb}:{hb+3}], {z(ACC[0], 16)}')
        if k + 2 < 28: reads(k + 2)
        if not X_NOSTAT: o(f'v_mfma_f32_32x32x16_bf16 v[{QA}:{QA+15}], v[{hb}:{hb+3}], v[{hb}:{hb+3}], {z(QA, 16)}')
        if k + 2 < 28: w_read(o, WB + 4 * ((k + 2) % NWB), 0, k + 2)
        elif k == 26: w_read(o, cb0, 0, 28)
        ndma = 0
        while nissued < 28 and (nissued <= k + AH) and ndma < 2:
            h_dma(nissued); nissued += 1; ndma += 1
        if not X_NOSTAT: o(f'v_mfma_f32_16x16x32_bf16 v[{SD}:{SD+3}], v[{SA}:{SA+3}], v[{hb}:{hb+3}], {z(SD, 4)}')
        if nissued >= 28 and ndma == 0 and later:
            emit_group(later.pop(0))
    if stamps: o('s_memtime s[64:65]')
    while later: emit_group(later.pop(0))
    o('s_min_u32 s41, s28, 13')
    def tree(lo, hi, path):
        if hi - lo == 1:
            for q in range(2):
                kk = 2 * lo + q; hb = HF + 4 * kk
                o(f'buffer_store_dwordx4 v[{hb}:{hb+3}], v{vHN}, s[20:23], 0 offen offset:{kk * 32} {ST}')
            o('s_branch LC_hn_done')
            return
        mid = (lo + hi) // 2
        o(f's_cmp_ge_u32 s41, {mid}')
        o(f's_cbranch_scc1 LC_hn_{path}1')
        tree(lo, mid, path + '0')
        o.label(f'LC_hn_{path}1')
        tree(mid, hi, path + '1')
    tree(0, 14, 'p')
    o.label('LC_hn_done')
    vm.issue('hn'); vm.issue('hn')
    masks = [0xAAAAAAAA, 0xCCCCCCCC, 0xFF00FF00, 0xFFFF0000, 0xF0F0F0F0]
    for r, m in zip([52, 54, 56, 58, 72], masks): o(f's_mov_b32 s{r}, {hex(m)}\ns_mov_b32 s{r+1}, {hex(m)}')
    o('s_nop 3')
    for j in range(8): o(f'v_cndmask_b32 v{T+j}, v{QA+2*j}, v{QA+2*j+1}, s[52:53]')
    for j in range(4): o(f'v_cndmask_b32 v{T+j}, v{T+2*j}, v{T+2*j+1}, s[54:55]')
    for j in range(2): o(f'v_cndmask_b32 v{T+j}, v{T+2*j}, v{T+2*j+1}, s[56:57]')
    o(f'v_cndmask_b32 v{vQ}, v{T}, v{T+1}, s[58:59]')
    o(f'v_mov_b32 v{vT0}, v{vQ}')
    o(f'v_mov_b32 v{vT1}, v{SD}')
    o(f'v_mov_b32 v{vS}, v{SD+1}')
    o('s_nop 0')
    o(f'v_permlane32_swap_b32 v{vQ}, v{vT0}')
    o(f'v_permlane16_swap_b32 v{vT1}, v{vS}')
    o('s_nop 1')
    o(f'v_cndmask_b32 v{vQ}, v{vQ}, v{vT0}, s[72:73]')
    o(f'v_mov_b32 v{vS}, v{vT1}')
    o('s_nop 1')
    o(f'v_permlane32_swap_b32 v{vS}, v{vT1}')
    o('s_nop 1')
    o(f's_mov_b32 s40, {hex(0x3b124925)}')
    o(f'v_mul_f32 v{vS}, s40, v{vS}')
    o(f'v_mul_f32 v{vQ}, s40, v{vQ}')
    o(f'v_fma_f32 v{vQ}, -v{vS}, v{vS}, v{vQ}')
    o(f'v_max_f32 v{vQ}, 0, v{vQ}')
    o(f'v_cvt_pk_bf16_f32 v{vT0}, v{vS}, v{vQ}')
    o(f'v_and_b32 v{vT1}, 0xffff0000, v{vT0}')
    o(f'v_add_f32 v{vT1}, {hex(0x3727c5ac)}, v{vT1}')
    o(f'v_cvt_pk_bf16_f32 v{vT1}, v{vT1}, v{vT1}')
    o(f'v_and_b32 v{vT1}, 0xffff0000, v{vT1}')
    o(f'v_sqrt_f32 v{vT1}, v{vT1}')
    o('s_nop 0')
    o(f'v_cvt_pk_bf16_f32 v{vT1}, v{vT1}, v{vT1}')
    o(f'v_and_b32 v{vSB}, 0xffff0000, v{vT1}')
    o(f'v_rcp_f32 v{vC1}, v{vSB}')
    o(f'v_and_b32 v{vT0}, 0xffff, v{vT0}')
    o(f'v_xor_b32 v{vT0}, 0x8000, v{vT0}')
    o(f'v_mul_f32 v{vC1}, {hex(0xbfb8aa3b)}, v{vC1}')
    o(f'v_lshl_or_b32 v{BC}, v{vT0}, 16, v{vT0}')
    o(f'v_mov_b32 v{BC+1}, 0')
    o(f'v_mov_b32 v{BC+2}, 0')
    o(f'v_mov_b32 v{BC+3}, 0')
    o('s_waitcnt lgkmcnt(0)')
    o(f'v_mfma_f32_32x32x16_bf16 v[{ACC[0]}:{ACC[0]+15}], v[{cb0}:{cb0+3}], v[{BC}:{BC+3}], v[{ACC[0]}:{ACC[0]+15}]')
    if merged:
        import kdm
        kdm.wsetup(o)
    vm.wait('w1')
    o('s_barrier')
    if stamps: o('s_memtime s[66:67]')
    PF = 7; WE = 4
    bi = 29 % NWB
    seq = [(t, kk) for t in range(1, 7) for kk in range(29)]
    bufof = {}
    for i, (t, kk) in enumerate(seq): bufof[(t, kk)] = WB + 4 * ((bi + i) % NWB)
    for i in range(PF):
        t, kk = seq[i]; w_read(o, bufof[(t, kk)], t, kk)
    fill = []; dmaq = []
    wq = []
    if merged:
        import kdm
        wq = [kdm.wload_ops(k) for k in range(kdm.NPRE)]
    waited_upto = -1
    for i, (t, kk) in enumerate(seq):
        acc = ACC[t & 1]
        if kk == 0:
            assert not fill, fill
            fill = epilogue_gaps(ACC[(t - 1) & 1]) + [('store', t - 1)]
        if kk == 0 and t + 2 <= 6: dmaq += w_dma_ops(t + 2, f'w{t+2}')
        if PF_WD and not merged and t == 5 and kk == 8:
            srd(o, 76, 4, WD_BYTES, WS_WD)
            o('s_lshl_b32 s43, s26, 2\ns_add_u32 s43, s43, s24\ns_mul_i32 s43, s43, 12544')
            o('v_lshlrev_b32 v240, 7, v0')
            o('buffer_load_dword v244, v240, s[76:79], s43 offen'); vm.issue('pf')
            o('s_add_u32 s43, s43, 8192')
            o('s_mov_b32 exec_hi, 3')
            o('buffer_load_dword v245, v240, s[76:79], s43 offen'); vm.issue('pf')
            o('s_mov_b32 exec_hi, -1')
        if PF_WD and merged and kk == 8 and t <= PF_N:
            per = -(-98 // PF_N)
            if t == 1:
                o('s_lshl_b32 s43, s26, 2\ns_add_u32 s43, s43, s24\ns_mul_i32 s43, s43, 12544')
                o('v_lshlrev_b32 v240, 7, v0')
            n = min(per, 98 - per * (t - 1))
            o(f's_mov_b64 exec, {hex((1 << n) - 1)}')
            o(f'buffer_load_dword v{244 + (t & 1)}, v240, s[76:79], s43 offen'); vm.issue('pf')
            o('s_mov_b64 exec, -1')
            o(f's_add_u32 s43, s43, {per * 128}')
        if kk == 29 - PF - 1 and t + 1 <= 6:
            if not X_NOBAR:
                vm.wait(f'w{t+1}')
                o('s_barrier')
        nxt = i + PF
        if nxt < len(seq) and not X_NOREAD:
            t2, k2 = seq[nxt]; w_read(o, bufof[(t2, k2)], t2, k2)
        if i > waited_upto and not X_NOREAD:
            last_issued = min(nxt, len(seq) - 1)
            upto = min(i + WE - 1, len(seq) - 1)
            o(f's_waitcnt lgkmcnt({last_issued - upto})')
            waited_upto = upto
        wb = bufof[(t, kk)]
        bop = f'v[{HF+4*kk}:{HF+4*kk+3}]' if kk < 28 else f'v[{BC}:{BC+3}]'
        c = '0' if kk == 0 else f'v[{acc}:{acc+15}]'
        o(f'v_mfma_f32_32x32x16_bf16 v[{acc}:{acc+15}], v[{wb}:{wb+3}], {bop}, {c}')
        if merged and t >= 5 and (kk < 4 or not fill) and wq:
            for _ in range(WPER):
                if wq:
                    for op in wq.pop(0): o(op)
                    vm.issue('wp'); vm.issue('wp')
        elif dmaq:
            g = dmaq.pop(0)
            if not X_NODMA: emit_group(g)
        elif 4 <= kk and fill:
            g = fill.pop(0)
            if isinstance(g, tuple):
                o(f's_add_u32 s42, s31, {g[1] * 1024}')
                o(f'buffer_store_dwordx4 v[{PK}:{PK+3}], v{vLane16}, s[16:19], s42 offen {ST}'); vm.issue('hs')
            elif not X_NOEPI:
                for op in g: o(op)
    assert not fill and not dmaq and not wq, (fill, dmaq, wq)
    if stamps: o('s_memtime s[68:69]')
    o('s_nop 7'); o('s_nop 7')
    for cst, op in epilogue_ops(ACC[6 & 1]): o(op)
    o(f's_add_u32 s42, s31, {6 * 1024}')
    o(f'buffer_store_dwordx4 v[{PK}:{PK+3}], v{vLane16}, s[16:19], s42 offen {ST}'); vm.issue('hs')
    if merged:
        import kdm
        kdm.gen_dphase(o, vm, stamps)
        return
    if stamps:
        o('s_waitcnt vmcnt(0)')
        o('s_memtime s[70:71]')
        o('s_waitcnt lgkmcnt(0)')
        o('s_sub_u32 s70, s70, s74\ns_sub_u32 s68, s68, s74\ns_sub_u32 s66, s66, s74\ns_sub_u32 s64, s64, s74\ns_sub_u32 s62, s62, s74')
        o('v_mov_b32 v16, s62\nv_mov_b32 v17, s64\nv_mov_b32 v18, s66\nv_mov_b32 v19, s68\nv_mov_b32 v20, s70\nv_mov_b32 v21, 0\nv_mov_b32 v22, 0\nv_mov_b32 v23, 0')
        srd(o, 8, 4, 0x10000, 0x1800000)
        o('s_lshl_b32 s43, s2, 2\ns_add_u32 s43, s43, s24\ns_lshl_b32 s43, s43, 5')
        o('v_mov_b32 v24, s43')
        o('s_mov_b64 exec, 1')
        o('buffer_store_dwordx4 v[16:19], v24, s[8:11], 0 offen')
        o('buffer_store_dwordx4 v[20:23], v24, s[8:11], 0 offen offset:16')
    o.label('LC_end')
    o('s_endpgm')
def desc_c(): return kernel_desc(NAME, 248, 84)
def launch_c(): return f'; @launch kernel={NAME} grid=(256,1,1) block=(256,1,1) lds={LDS_BYTES}'

def desc_f(): return kernel_desc(FNAME, 256 + 224, 96, accum=256)
def launch_f(): return f'; @launch kernel={FNAME} grid=(256,1,1) block=(256,1,1) lds={LDS_BYTES}'
```

```python
from asmlib import *
from layout import *
ACC = 16
HB = 80
DEPTH = 8
RES = 208
N1 = 16
ROT = 1
HPOL = ''
vLane16, vRes, vL, vA0, vA1, vB0, vB1, vF = 1, 2, 4, 5, 6, 7, 8, 9
NPRE = 16
def wsetup(o):
    srd(o, 76, 4, WD_BYTES, WS_WD)
    o('s_min_u32 s45, s26, 27')
    o('s_and_b32 s44, s45, 3\ns_lshl_b32 s49, s25, 2\ns_add_u32 s44, s44, s49')
    o('s_lshr_b32 s45, s45, 2')
    o('s_mul_i32 s49, s24, 28')
    o('s_mul_i32 s47, s45, 224\ns_add_u32 s47, s47, s49\ns_lshl_b32 s47, s47, 10')
    o(f'v_add_u32 v{vA0}, s47, v{vLane16}\ns_add_u32 s47, s47, {112 * 1024}\nv_add_u32 v{vA1}, s47, v{vLane16}')
    o('s_mul_i32 s47, s44, 224\ns_add_u32 s47, s47, s49\ns_lshl_b32 s47, s47, 10')
    o(f'v_add_u32 v{vB0}, s47, v{vLane16}\ns_add_u32 s47, s47, {112 * 1024}\nv_add_u32 v{vB1}, s47, v{vLane16}')
    o(f's_mul_i32 s48, s45, {ROT * 1024}')
    o('s_mov_b32 s49, s48')
def wload_ops(k):
    return [f'buffer_load_dwordx4 a[{8*k}:{8*k+3}], v{vA0}, s[76:79], s48 offen',
            f'buffer_load_dwordx4 a[{8*k+4}:{8*k+7}], v{vA1}, s[76:79], s48 offen',
            's_add_u32 s48, s48, 1024', 's_cmp_eq_u32 s48, 28672', 's_cselect_b32 s48, 0, s48']
def gen_dphase(o, vm, stamps):
    if stamps: o('s_memtime s[68:69]')
    srd(o, 84, 4, 0x10000)
    o('buffer_load_dword v10, off, s[84:87], 0 sc1'); vm.issue('tag')
    o('s_cmp_ge_u32 s26, 28')
    o('s_cbranch_scc0 LF_work')
    o('s_waitcnt vmcnt(0)')
    o('s_barrier')
    flag_store(o, 'a')
    o('s_branch LF_end')
    o.label('LF_work')
    srd(o, 80, 6, 1835008)
    def step(r): o(f's_add_u32 s{r}, s{r}, 1024\ns_cmp_eq_u32 s{r}, 28672\ns_cselect_b32 s{r}, 0, s{r}')
    def wload(k):
        for op in wload_ops(k): o(op)
        vm.issue('w'); vm.issue('w2')
    n1 = min(28, NPRE + N1 // 2)
    for k in range(NPRE, n1): wload(k)
    vm.wait('tag')
    o('s_barrier')
    flag_store(o, 'b')
    vm.issue('flag')
    for k in range(n1, 28): wload(k)
    o('s_and_b32 s50, s24, 1\ns_lshl_b32 s50, s50, 5\ns_lshl_b32 s51, s44, 6\ns_add_u32 s50, s50, s51')
    o('v_and_b32 v11, 31, v0\nv_add_u32 v11, s50, v11\nv_mul_u32_u24 v11, 896, v11')
    o('s_lshr_b32 s51, s24, 1\ns_lshl_b32 s51, s51, 5\ns_lshl_b32 s52, s45, 6\ns_add_u32 s51, s51, s52\ns_lshl_b32 s51, s51, 1')
    o('v_lshrrev_b32 v12, 5, v0\nv_lshlrev_b32 v12, 3, v12\nv_add_u32 v11, v11, v12')
    o(f'v_add_u32 v{vRes}, s51, v11')
    o('s_waitcnt vmcnt(0)')
    vm.q = []
    if stamps: o('s_memtime s[70:71]')
    o('s_cmp_eq_u32 s24, 0')
    o('s_cbranch_scc0 LF_nopoll')
    o('s_lshr_b32 s50, s44, 1\ns_lshl_b32 s50, s50, 10')
    o(f's_add_u32 s50, s50, {WS_FLAG}')
    o(f'v_and_b32 v{vF}, 15, v0\nv_lshlrev_b32 v{vF}, 6, v{vF}')
    o('s_mov_b32 s51, 0')
    o.label('LF_poll')
    o(f'buffer_load_dword v11, v{vF}, s[84:87], s50 offen sc1')
    o('s_waitcnt vmcnt(0)')
    o('v_cmp_ne_u32 vcc, v11, v10')
    o('s_cbranch_vccz LF_nopoll')
    o('s_add_u32 s51, s51, 1\ns_cmp_lt_u32 s51, 0x80000')
    o('s_cbranch_scc1 LF_poll')
    o.label('LF_nopoll')
    o('s_barrier')
    if stamps: o('s_memtime s[72:73]')
    def hload(k):
        b = HB + 8 * (k % DEPTH)
        o(f'buffer_load_dwordx4 v[{b}:{b+3}], v{vB0}, s[16:19], s49 offen {HPOL}'); vm.issue(f'k{k}')
        o(f'buffer_load_dwordx4 v[{b+4}:{b+7}], v{vB1}, s[16:19], s49 offen {HPOL}'); vm.issue(f'k{k}')
        step(49)
    for k in range(DEPTH): hload(k)
    for q in range(4):
        o(f'buffer_load_dwordx2 v[{RES+2*q}:{RES+2*q+1}], v{vRes}, s[20:23], 0 offen offset:{q * 16} sc1'); vm.issue('res')
    for k in range(28):
        vm.wait(f'k{k}')
        b = HB + 8 * (k % DEPTH)
        for mt in range(2):
            for nt in range(2):
                ac = ACC + 16 * (mt * 2 + nt)
                c = '0' if k == 0 else f'v[{ac}:{ac+15}]'
                o(f'v_mfma_f32_32x32x16_bf16 v[{ac}:{ac+15}], a[{8*k+4*mt}:{8*k+4*mt+3}], v[{b+4*nt}:{b+4*nt+3}], {c}')
        if k + DEPTH < 28: hload(k + DEPTH)
    if stamps: o('s_memtime s[88:89]')
    o(f'v_add_u32 v{vL}, 0, v{vLane16}')
    o('s_nop 7'); o('s_nop 3')
    R = HB
    def send(v):
        for q in range(4):
            if q == v: continue
            si = (v - q - 1) % 4
            for g in range(4):
                ac = ACC + 16 * q + 4 * g
                o(f'ds_write_b128 v{vL}, v[{ac}:{ac+3}] offset:{(q * 3 + si) * 4096 + g * 1024}')
        if v:
            for j in range(0, 16, 2): o(f'v_pk_mul_f32 v[{ACC+j}:{ACC+j+1}], v[{ACC+16*v+j}:{ACC+16*v+j+1}], 1.0 op_sel_hi:[1,0]')
    o('s_cmp_lt_u32 s24, 2\ns_cbranch_scc0 LF_w23')
    o('s_cmp_eq_u32 s24, 0\ns_cbranch_scc0 LF_w1')
    send(0); o('s_branch LF_sent')
    o.label('LF_w1'); send(1); o('s_branch LF_sent')
    o.label('LF_w23')
    o('s_cmp_eq_u32 s24, 2\ns_cbranch_scc0 LF_w3')
    send(2); o('s_branch LF_sent')
    o.label('LF_w3'); send(3)
    o.label('LF_sent')
    o('s_mul_i32 s37, s24, 12288')
    o(f'v_add_u32 v{vL}, s37, v{vLane16}')
    o('s_waitcnt lgkmcnt(0)')
    o('s_barrier')
    for src in range(3):
        for g in range(4):
            d = R + 16 * src + 4 * g
            o(f'ds_read_b128 v[{d}:{d+3}], v{vL} offset:{src * 4096 + g * 1024}')
    vm.wait('res')
    U = R + 48
    for q in range(4):
        r0, r1 = RES + 2 * q, RES + 2 * q + 1
        o(f'v_lshlrev_b32 v{U+4*q}, 16, v{r0}')
        o(f'v_and_b32 v{U+4*q+1}, 0xffff0000, v{r0}')
        o(f'v_lshlrev_b32 v{U+4*q+2}, 16, v{r1}')
        o(f'v_and_b32 v{U+4*q+3}, 0xffff0000, v{r1}')
    for j in range(0, 16, 2): o(f'v_pk_add_f32 v[{ACC+j}:{ACC+j+1}], v[{ACC+j}:{ACC+j+1}], v[{U+j}:{U+j+1}]')
    for src in range(3):
        o(f's_waitcnt lgkmcnt({8 - 4 * src})')
        for j in range(0, 16, 2): o(f'v_pk_add_f32 v[{ACC+j}:{ACC+j+1}], v[{ACC+j}:{ACC+j+1}], v[{R+16*src+j}:{R+16*src+j+1}]')
    for q in range(4):
        o(f'v_cvt_pk_bf16_f32 v{R+2*q}, v{ACC+4*q}, v{ACC+4*q+1}')
        o(f'v_cvt_pk_bf16_f32 v{R+2*q+1}, v{ACC+4*q+2}, v{ACC+4*q+3}')
        o(f'buffer_store_dwordx2 v[{R+2*q}:{R+2*q+1}], v{vRes}, s[80:83], 0 offen offset:{q * 16}')
    if stamps:
        o('s_waitcnt vmcnt(0)')
        o('s_memtime s[90:91]')
        o('s_waitcnt lgkmcnt(0)')
        for r in (62, 64, 66, 68, 70, 72, 88, 90): o(f's_sub_u32 s{r}, s{r}, s74')
        o('v_mov_b32 v16, s62\nv_mov_b32 v17, s64\nv_mov_b32 v18, s66\nv_mov_b32 v19, s68\nv_mov_b32 v20, s70\nv_mov_b32 v21, s72\nv_mov_b32 v22, s88\nv_mov_b32 v23, s90')
        srd(o, 8, 4, 0x10000, 0x1800000)
        o('s_lshl_b32 s43, s2, 2\ns_add_u32 s43, s43, s24\ns_lshl_b32 s43, s43, 5')
        o('v_mov_b32 v24, s43')
        o('s_mov_b64 exec, 1')
        o('buffer_store_dwordx4 v[16:19], v24, s[8:11], 0 offen')
        o('buffer_store_dwordx4 v[20:23], v24, s[8:11], 0 offen offset:16')
    o.label('LF_end')
    o.label('LC_end')
    o('s_endpgm')
def flag_store(o, tagname):
    o('s_cmp_eq_u32 s24, 0')
    o(f's_cbranch_scc0 LF_nf{tagname}')
    o(f's_lshl_b32 s53, s27, 4\ns_add_u32 s53, s53, s28\ns_lshl_b32 s53, s53, 6\ns_add_u32 s53, s53, {WS_FLAG}')
    o('v_mov_b32 v12, 0')
    o('s_mov_b64 exec, 1')
    o('buffer_store_dword v10, v12, s[84:87], s53 offen sc1')
    o('s_mov_b64 exec, -1')
    o.label(f'LF_nf{tagname}')
```

```python
import sys, build, kab, kc, kd
out = sys.argv[1]
parts = ['ab', 'c', 'd']
for a in sys.argv[2:]:
    if a.startswith('parts='): parts = a[6:].split(','); continue
    k, v = a.split('=', 1); m, n = k.split('.')
    import kdm
    mod = {'kab': kab, 'kc': kc, 'kd': kd, 'kdm': kdm}[m]
    old = getattr(mod, n)
    if isinstance(old, bool): v = v in ('1', 'True')
    elif isinstance(old, int): v = int(v)
    setattr(mod, n, v)
open(out, 'w').write(build.make(parts))
```

```python
from asmlib import *
from layout import *
from vm import VM
NAME = 'ssm_kernel'
PREFETCH = False
SPARE_WAIT = False
POL0 = 'sc1'
REC_AT = 21
RP_AT = 29
ST = ''
TAB = 16896
LDS_US = 8 * TAB
LDS_XS = LDS_US + 2 * 4608
LDS_EX = LDS_XS + 2 * 4096
LDS_BYTES = LDS_EX + 8192
KR_COPY = 4160; KR_CH = 2 * KR_COPY
LDS_CX = 17408
LDS_RP = LDS_CX + 16384
LOG2E = 0x3fb8aa3b; INV2PI = 0x3e22f983; INV448 = 0x3b124925; EPS = 0x3727c5ac
sX, sAre, sAim, sBre, sBim, sCre, sCim, sLdt = 8, 10, 12, 14, 16, 18, 20, 22
sDsk, sWd, sWg, sWu, sDbg, sWs = 24, 26, 28, 30, 32, 34
SRD_X, SRD_WS = 36, 40
SRD_P = [44, 48, 52, 56, 60, 64]
SRD_WG, SRD_WU, SRD_WD, SRD_DBG = 68, 72, 76, 80
sWave, sPair, sCh, sMh, sLdtV, sDskV = 3, 84, 85, 86, 87, 88
sT0, sT1, sT2, sT3, sT4, sT5 = 89, 90, 91, 92, 93, 94
sSp = 95
vLane, vTag, vE, vT0, vT1, vT2, vT3 = 0, 1, 2, 3, 4, 6, 7
vXR = 8
vS, vQ = 12, 13
def cmul(o, d, p, q):
    o(f'v_pk_mul_f32 v[{d}:{d+1}], v[{p}:{p+1}], v[{q}:{q+1}] op_sel_hi:[0,1]')
    o(f'v_pk_fma_f32 v[{d}:{d+1}], v[{p}:{p+1}], v[{q}:{q+1}], v[{d}:{d+1}] op_sel:[1,1,0] op_sel_hi:[1,0,1] neg_lo:[1,0,0]')
def cmul2(o, dA, pA, qA, dB, pB, qB):
    o(f'v_pk_mul_f32 v[{dA}:{dA+1}], v[{pA}:{pA+1}], v[{qA}:{qA+1}] op_sel_hi:[0,1]')
    o(f'v_pk_mul_f32 v[{dB}:{dB+1}], v[{pB}:{pB+1}], v[{qB}:{qB+1}] op_sel_hi:[0,1]')
    o(f'v_pk_fma_f32 v[{dA}:{dA+1}], v[{pA}:{pA+1}], v[{qA}:{qA+1}], v[{dA}:{dA+1}] op_sel:[1,1,0] op_sel_hi:[1,0,1] neg_lo:[1,0,0]')
    o(f'v_pk_fma_f32 v[{dB}:{dB+1}], v[{pB}:{pB+1}], v[{qB}:{qB+1}], v[{dB}:{dB+1}] op_sel:[1,1,0] op_sel_hi:[1,0,1] neg_lo:[1,0,0]')
vXB = 168
vTL = 172
IMG_A = LDS_US
IMG_B = LDS_XS
def e_load(o, vm):
    o(f'buffer_load_dword v{vE}, off, s[{SRD_WS}:{SRD_WS+3}], 0 sc1'); vm.issue('E')
def make_tag(o):
    o(f's_mov_b32 s{sT0}, 0x9E3779B1')
    o(f'v_mul_lo_u32 v{vTag}, v{vE}, s{sT0}')
    o(f'v_add_u32 v{vTag}, 0x7F4A7C15, v{vTag}')
def row_loads(o, vm, woff=0):
    for j in range(4): o(f'v_mov_b32 v{vXR+j}, 0\nv_mov_b32 v{vXB+j}, 0')
    o(f's_lshl_b32 s{sT2}, s2, 3\ns_sub_u32 s{sT4}, s{sWave}, {woff}\ns_lshl_b32 s{sT4}, s{sT4}, 1\ns_add_u32 s{sT2}, s{sT2}, s{sT4}')
    o(f's_mul_i32 s{sT2}, s{sT2}, 896')
    o(f'v_lshlrev_b32 v{vT1}, 4, v0')
    o('s_mov_b32 exec_hi, 0x00ffffff')
    o(f'buffer_load_dwordx4 v[{vXR}:{vXR+3}], v{vT1}, s[{SRD_X}:{SRD_X+3}], s{sT2} offen'); vm.issue('xrow')
    o(f'buffer_load_dwordx4 v[{vXB}:{vXB+3}], v{vT1}, s[{SRD_X}:{SRD_X+3}], s{sT2} offen offset:896'); vm.issue('xrow')
    o('s_mov_b32 exec_hi, -1')
def row_stats(o, vm, woff=0):
    SA, QA, SB, QB = 12, 13, 180, 181
    vm.wait('xrow')
    make_tag(o)
    for r in (SA, QA, SB, QB): o(f'v_mov_b32 v{r}, 0')
    o(f'v_mov_b32 v{vT1}, 0x3f803f80')
    for j in range(4):
        o(f'v_dot2c_f32_bf16 v{SA}, v{vXR+j}, v{vT1}')
        o(f'v_dot2c_f32_bf16 v{QA}, v{vXR+j}, v{vXR+j}')
        o(f'v_dot2c_f32_bf16 v{SB}, v{vXB+j}, v{vT1}')
        o(f'v_dot2c_f32_bf16 v{QB}, v{vXB+j}, v{vXB+j}')
    o('s_nop 2')
    for ctl in ['row_shr:1', 'row_shr:2', 'row_shr:4', 'row_shr:8']:
        for r in (SA, QA, SB, QB): o(f'v_add_f32_dpp v{r}, v{r}, v{r} {ctl} row_mask:0xf bank_mask:0xf bound_ctrl:0')
    for ctl, rm in [('row_bcast:15', '0xa'), ('row_bcast:31', '0xc')]:
        for r in (SA, QA, SB, QB): o(f'v_add_f32_dpp v{r}, v{r}, v{r} {ctl} row_mask:{rm} bank_mask:0xf')
    RR = 192
    for S_, Q_, dst in ((SA, QA, RR), (SB, QB, RR + 2)):
        o(f'v_mul_f32 v{S_}, {hex(INV448)}, v{S_}\nv_mul_f32 v{Q_}, {hex(INV448)}, v{Q_}')
    for S_, Q_, dst in ((SA, QA, RR), (SB, QB, RR + 2)):
        o(f'v_fma_f32 v{Q_}, -v{S_}, v{S_}, v{Q_}\nv_max_f32 v{Q_}, 0, v{Q_}')
    for op in ('v_cvt_pk_bf16_f32 v{q}, v{q}, v{q}', 'v_and_b32 v{q}, 0xffff0000, v{q}', 'v_add_f32 v{q}, ' + hex(EPS) + ', v{q}',
               'v_cvt_pk_bf16_f32 v{q}, v{q}, v{q}', 'v_and_b32 v{q}, 0xffff0000, v{q}', 'v_sqrt_f32 v{q}, v{q}'):
        for Q_ in (QA, QB): o(op.format(q=Q_))
    o(f'v_mov_b32 v{RR+1}, v{vTag}\nv_mov_b32 v{RR+3}, v{vTag}')
    o(f'v_cvt_pk_bf16_f32 v{RR}, v{SA}, v{QA}\nv_cvt_pk_bf16_f32 v{RR+2}, v{SB}, v{QB}')
    o(f's_lshl_b32 s{sT0}, s2, 3\ns_sub_u32 s{sT1}, s{sWave}, {woff}\ns_lshl_b32 s{sT1}, s{sT1}, 1\ns_add_u32 s{sT0}, s{sT0}, s{sT1}')
    o(f's_lshl_b32 s{sT0}, s{sT0}, 3\ns_add_u32 s{sT0}, s{sT0}, {WS_REC}')
    o('s_mov_b32 exec_lo, 0\ns_mov_b32 exec_hi, 0x80000000')
    o(f'buffer_store_dwordx4 v[{RR}:{RR+3}], v251, s[{SRD_WS}:{SRD_WS+3}], s{sT0} offen sc1'); vm.issue('rec')
    o('s_mov_b64 exec, -1')
def tile_loads(o, vm):
    o(f's_mul_i32 s{sT2}, s{sPair}, 9363\ns_lshr_b32 s{sT2}, s{sT2}, 16')
    o(f's_mul_i32 s{sT4}, s{sT2}, 7\ns_sub_u32 s{sT4}, s{sPair}, s{sT4}')
    o(f's_mul_i32 s{sT2}, s{sT2}, {64 * 896}\ns_lshl_b32 s{sT4}, s{sT4}, 7\ns_add_u32 s{sT2}, s{sT2}, s{sT4}')
    o(f's_sub_u32 s{sT4}, s{sWave}, 4\ns_lshl_b32 s{sT4}, s{sT4}, 3')
    o(f'v_lshrrev_b32 v{vT0}, 3, v0\nv_add_u32 v{vT0}, s{sT4}, v{vT0}\nv_mul_u32_u24 v{vT0}, 896, v{vT0}')
    o(f'v_and_b32 v{vT1}, 7, v0\nv_lshlrev_b32 v{vT1}, 4, v{vT1}\nv_add_u32 v{vT0}, v{vT0}, v{vT1}')
    o(f'buffer_load_dwordx4 v[{vTL}:{vTL+3}], v{vT0}, s[{SRD_X}:{SRD_X+3}], s{sT2} offen'); vm.issue('tile')
    o(f's_add_u32 s{sT2}, s{sT2}, {32 * 896}')
    o(f'buffer_load_dwordx4 v[{vTL+4}:{vTL+7}], v{vT0}, s[{SRD_X}:{SRD_X+3}], s{sT2} offen'); vm.issue('tile')
def tile_image(o, vm):
    vm.wait('tile')
    o(f's_sub_u32 s{sT4}, s{sWave}, 4\ns_lshl_b32 s{sT4}, s{sT4}, 3')
    o(f'v_lshrrev_b32 v{vT0}, 3, v0\nv_add_u32 v{vT0}, s{sT4}, v{vT0}\nv_mul_u32_u24 v{vT0}, 144, v{vT0}')
    o(f'v_and_b32 v{vT1}, 7, v0\nv_lshlrev_b32 v{vT1}, 4, v{vT1}\nv_add_u32 v{vT0}, v{vT0}, v{vT1}')
    o(f'v_add_u32 v{vT0}, {IMG_A}, v{vT0}')
    o(f'ds_write_b128 v{vT0}, v[{vTL}:{vTL+3}]')
    o(f'ds_write_b128 v{vT0}, v[{vTL+4}:{vTL+7}] offset:{32 * 144}')
    make_tag(o)
def tile_transpose(o, vm, woff=4):
    o(f'v_lshrrev_b32 v{vT0}, 4, v0\nv_lshlrev_b32 v{vT0}, 2, v{vT0}\nv_bfe_u32 v{vT1}, v0, 2, 2\nv_add_u32 v{vT0}, v{vT0}, v{vT1}')
    o(f'v_mul_u32_u24 v{vT0}, 144, v{vT0}')
    o(f'v_and_b32 v{vT1}, 3, v0\nv_lshlrev_b32 v{vT1}, 3, v{vT1}\nv_add_u32 v{vT0}, v{vT0}, v{vT1}')
    o(f's_sub_u32 s{sT4}, s{sWave}, {woff}\ns_lshl_b32 s{sT0}, s{sT4}, 5\ns_add_u32 s{sT0}, s{sT0}, {IMG_A}')
    o(f'v_add_u32 v{vT0}, s{sT0}, v{vT0}')
    for i in range(4): o(f'ds_read_b64_tr_b16 v[{vTL+2*i}:{vTL+2*i+1}], v{vT0} offset:{16 * 144 * i}')
    o(f'v_and_b32 v{vT1}, 15, v0\nv_mul_u32_u24 v{vT1}, 144, v{vT1}')
    o(f'v_lshrrev_b32 v{vT2}, 4, v0\nv_lshlrev_b32 v{vT2}, 3, v{vT2}\nv_add_u32 v{vT1}, v{vT1}, v{vT2}')
    o(f's_mul_i32 s{sT0}, s{sT4}, {16 * 144}\ns_add_u32 s{sT0}, s{sT0}, {IMG_B}')
    o(f'v_add_u32 v{vT1}, s{sT0}, v{vT1}')
    o(f'v_lshrrev_b32 v{vT2}, 3, v0\nv_mul_u32_u24 v{vT2}, 144, v{vT2}')
    o(f'v_and_b32 v{vT3}, 7, v0\nv_lshlrev_b32 v{vT3}, 4, v{vT3}\nv_add_u32 v{vT2}, v{vT2}, v{vT3}')
    o(f'v_add_u32 v{vT2}, s{sT0}, v{vT2}')
    for i in range(4):
        o(f's_waitcnt lgkmcnt({3 - i})' if i == 0 else f's_waitcnt lgkmcnt(3)')
        o(f'ds_write_b64 v{vT1}, v[{vTL+2*i}:{vTL+2*i+1}] offset:{32 * i}')
    o(f's_mul_i32 s{sT0}, s{sPair}, 9363\ns_lshr_b32 s{sT0}, s{sT0}, 16')
    o(f's_mul_i32 s{sT1}, s{sT0}, 7\ns_sub_u32 s{sT1}, s{sPair}, s{sT1}')
    o(f's_lshl_b32 s{sT1}, s{sT1}, 5\ns_add_u32 s{sT0}, s{sT0}, s{sT1}\ns_lshl_b32 s{sT0}, s{sT0}, 13')
    o(f's_lshl_b32 s{sT1}, s{sT4}, 11\ns_add_u32 s{sT0}, s{sT0}, s{sT1}')
    o(f's_add_u32 s{sT1}, s{sT0}, {WS_T2}\ns_add_u32 s{sT0}, s{sT0}, {WS_T}')
    o(f'v_lshlrev_b32 v{vT0}, 4, v0')
    o('s_waitcnt lgkmcnt(0)')
    o(f'ds_read_b128 v[{vTL}:{vTL+3}], v{vT2}')
    o(f'ds_read_b128 v[{vTL+4}:{vTL+7}], v{vT2} offset:{8 * 144}')
    X2 = 184
    for h in range(2):
        o(f's_waitcnt lgkmcnt({1 - h})')
        o(f'buffer_store_dwordx4 v[{vTL+4*h}:{vTL+4*h+3}], v{vT0}, s[{SRD_WS}:{SRD_WS+3}], s{sT0} offen offset:{1024*h} sc1'); vm.issue('ts')
        for j in range(4): o(f'v_xor_b32 v{X2+4*h+j}, v{vTL+4*h+j}, v{vTag}')
        o(f'buffer_store_dwordx4 v[{X2+4*h}:{X2+4*h+3}], v{vT0}, s[{SRD_WS}:{SRD_WS+3}], s{sT1} offen offset:{1024*h} sc1'); vm.issue('ts')
def seed(o, dst, ar2, ai2, t, tmp, conj=False):
    o(f'v_mul_f32 v{tmp}, {float(t)}, v{ar2}' if t in (1, 2, 4) else f'v_mul_f32 v{tmp}, {hex(f32(t))}, v{ar2}')
    o(f'v_mul_f32 v{tmp+1}, {float(t)}, v{ai2}' if t in (1, 2, 4) else f'v_mul_f32 v{tmp+1}, {hex(f32(t))}, v{ai2}')
    o(f'v_exp_f32 v{tmp}, v{tmp}')
    o(f'v_fract_f32 v{tmp+1}, v{tmp+1}')
    o('s_nop 0')
    o(f'v_cos_f32 v{dst}, v{tmp+1}')
    o(f'v_sin_f32 v{dst+1}, v{tmp+1}')
    o('s_nop 0')
    o(f'v_mul_f32 v{dst}, v{tmp}, v{dst}')
    if conj: o(f'v_mul_f32 v{dst+1}, -v{dst+1}, v{tmp}'.replace('v_mul_f32', 'v_mul_f32_e64'))
    else: o(f'v_mul_f32 v{dst+1}, v{tmp}, v{dst+1}')
import struct
def f32(x): return struct.unpack('<I', struct.pack('<f', float(x)))[0]
def compute_dt(o, vdt):
    o(f's_lshl_b32 s{sT0}, s{sLdtV}, 16')
    o(f's_and_b32 s{sT1}, s{sLdtV}, 0xffff0000')
    o(f's_cmp_eq_u32 s{sCh}, 0')
    o(f's_cselect_b32 s{sT0}, s{sT0}, s{sT1}')
    o(f'v_mov_b32 v{vdt}, s{sT0}')
    o(f'v_mul_f32 v{vdt}, {hex(LOG2E)}, v{vdt}')
    o(f'v_exp_f32 v{vdt}, v{vdt}')
    o('s_nop 0')
    o(f'v_cvt_pk_bf16_f32 v{vdt}, v{vdt}, v{vdt}')
    o(f'v_and_b32 v{vdt}, 0xffff0000, v{vdt}')
def unpack(o, dlo, dhi, src):
    o(f'v_lshlrev_b32 v{dlo}, 16, v{src}')
    o(f'v_and_b32 v{dhi}, 0xffff0000, v{src}')
class RowWriter:
    def __init__(self, o, vaddr, out0): self.o, self.va, self.out0, self.n = o, vaddr, out0, 0
    def write(self, rows, cA, cB):
        r = self.out0 + 2 * (self.n % 4); self.n += 1
        self.o(f'v_cvt_pk_bf16_f32 v{r}, v{cA}, v{cA+1}')
        self.o(f'v_cvt_pk_bf16_f32 v{r+1}, v{cB}, v{cB+1}')
        for m in rows: self.o(f'ds_write_b64 v{self.va}, v[{r}:{r+1}] offset:{m * 528}')
def stamp(o, on, idx):
    if on: o(f's_memtime s[{96 + 0}:{97}]'); o('s_waitcnt lgkmcnt(0)'); o(f'v_writelane_b32 v255, s96, {idx}')

def gen_ab(o, stamps=False):
    kernel_begin(o, NAME)
    o('s_cmp_ge_u32 s2, 256')
    o('s_cbranch_scc1 LA_end')
    o('s_load_dwordx16 s[8:23], s[0:1], 0')
    o(f's_load_dwordx2 s[{sDsk}:{sDsk+1}], s[0:1], 64')
    o(f's_load_dwordx4 s[{sWg}:{sWg+3}], s[0:1], 80')
    o(f's_load_dwordx2 s[{sWd}:{sWd+1}], s[0:1], 96')
    o(f's_load_dwordx4 s[{sDbg}:{sDbg+3}], s[0:1], 112')
    if stamps: o('v_mov_b32 v255, 0'); o('s_memtime s[98:99]')
    o(f'v_lshrrev_b32 v{vT0}, 6, v0')
    o('v_and_b32 v0, 63, v0')
    o(f'v_readfirstlane_b32 s{sWave}, v{vT0}')
    o(f's_and_b32 s{sT0}, s2, 7')
    o(f's_lshr_b32 s{sT1}, s2, 3')
    if PREFETCH: code_prefetch(o, NAME, 'code_end', sT1, sWave, 8, 240, 244, 96, 'ab')
    o(f's_mul_i32 s{sPair}, s{sT0}, 28')
    o(f's_add_u32 s{sPair}, s{sPair}, s{sT1}')
    o(f's_lshl_b32 s{sSp}, s{sT0}, 2')
    o(f's_add_u32 s{sSp}, s{sSp}, s{sT1}')
    o(f's_sub_u32 s{sSp}, s{sSp}, 28')
    o(f's_lshr_b32 s{sCh}, s{sWave}, 1')
    o(f's_and_b32 s{sCh}, s{sCh}, 1')
    o(f's_and_b32 s{sMh}, s{sWave}, 1')
    o('v_mov_b32 v250, 0\nv_mov_b32 v251, 0')
    o('s_waitcnt lgkmcnt(0)')
    srd(o, SRD_X, sX, 1835008)
    srd(o, SRD_WS, sWs, WS_END)
    vm = VM(o)
    o(f's_cmp_ge_u32 s{sT1}, 28')
    o('s_cbranch_scc1 LA_spare')
    o(f's_lshl_b32 s{sT2}, s{sPair}, 2')
    o(f's_load_dword s{sLdtV}, s[{sLdt}:{sLdt+1}], s{sT2}')
    o(f's_load_dword s{sDskV}, s[{sDsk}:{sDsk+1}], s{sT2}')
    for i, p in enumerate([sAre, sAim, sBre, sBim, sCre, sCim]): srd(o, SRD_P[i], p, 229376)
    o(f's_lshl_b32 s{sT2}, s{sPair}, 1')
    o(f's_add_u32 s{sT2}, s{sT2}, s{sCh}')
    o(f's_lshl_b32 s{sT3}, s{sT2}, 9')
    o(f's_lshl_b32 s{sT4}, s{sMh}, 8')
    o(f's_add_u32 s{sT3}, s{sT3}, s{sT4}')
    o(f'v_lshlrev_b32 v{vT2}, 2, v0')
    o(f's_cmp_ge_u32 s{sWave}, 4')
    o('s_cbranch_scc1 LA_nwave')
    gen_mwave(o, vm.q[:], stamps)
    o.label('LA_nwave')
    gen_nwave(o, vm.q[:], stamps)
    o.label('LA_spare')
    gen_spare(o, vm.q[:], stamps)
    o.label('LA_end')
    o('s_endpgm')

def finish(o, stamps):
    if stamps:
        o('s_waitcnt vmcnt(0) lgkmcnt(0)')
        stamp(o, True, 15)
        o('v_writelane_b32 v255, s98, 14')
        srd(o, 44, sWs, 0x40000, 0x1820000)
        o(f's_lshl_b32 s{sT0}, s2, 3\ns_add_u32 s{sT0}, s{sT0}, s{sWave}\ns_lshl_b32 s{sT0}, s{sT0}, 6')
        o(f'v_lshlrev_b32 v254, 2, v0')
        o('s_mov_b64 exec, 0xffff')
        o(f'buffer_store_dword v255, v254, s[44:47], s{sT0} offen')
    o('s_endpgm')

def gen_mwave(o, q0, stamps):
    vm = VM(o); vm.q = q0
    P = 16
    e_load(o, vm)
    for i in range(6):
        o(f'buffer_load_dword v{P+i}, v{vT2}, s[{SRD_P[i]}:{SRD_P[i]+3}], s{sT3} offen'); vm.issue('par')
    vm.wait('E')
    make_tag(o)
    o('s_waitcnt lgkmcnt(0)')
    o('s_barrier')
    tile_transpose(o, vm, 0)
    stamp(o, stamps, 0)
    vm.wait('par')
    o('s_waitcnt lgkmcnt(0)')
    o(f's_cmp_eq_u32 s{sWave}, 3')
    o('s_cbranch_scc0 LM_noat')
    epoch_atomic(o)
    o.label('LM_noat')
    vdt = 22
    compute_dt(o, vdt)
    U = 24
    for i in range(6): unpack(o, U + 2*i, U + 2*i + 1, P + i)
    for i in range(4): o(f'v_mul_f32 v{U+i}, v{vdt}, v{U+i}')
    for i in range(4, 8): o(f'v_mul_f32 v{U+i}, v{vdt}, v{U+i}')
    o(f'v_mul_f32 v{U}, {hex(LOG2E)}, v{U}\nv_mul_f32 v{U+1}, {hex(LOG2E)}, v{U+1}')
    o(f'v_mul_f32 v{U+2}, {hex(INV2PI)}, v{U+2}\nv_mul_f32 v{U+3}, {hex(INV2PI)}, v{U+3}')
    X0 = 36; X2 = 40; X4 = 44; X6 = 48; X8 = 52; E1 = 56; CUR = 60; CU2 = 64
    Pw = {k: 68 + 4 * (k - 1) for k in range(1, 8)}
    TMP = 96; OUT = 100
    for mu in range(2):
        bre, bim, cre, cim = U + 4 + mu, U + 6 + mu, U + 8 + mu, U + 10 + mu
        w = X0 + 2 * mu
        o(f'v_mul_f32 v{w}, v{cre}, v{bre}')
        o(f'v_mul_f32 v{w+1}, v{cre}, v{bim}')
        o(f'v_fma_f32 v{w}, -v{cim}, v{bim}, v{w}')
        o(f'v_fma_f32 v{w+1}, v{cim}, v{bre}, v{w+1}')
    for mu in range(2):
        seed(o, E1 + 2*mu, U + mu, U + 2 + mu, 1, TMP + 2*mu)
        seed(o, Pw[1] + 2*mu, U + mu, U + 2 + mu, 256, TMP + 2*mu)
    stamp(o, stamps, 1)
    vTab = 108
    o(f's_lshl_b32 s{sT0}, s{sCh}, 1\ns_add_u32 s{sT0}, s{sT0}, s{sMh}\ns_mul_i32 s{sT0}, s{sT0}, {TAB}')
    o(f'v_lshlrev_b32 v{vTab}, 3, v0\nv_add_u32 v{vTab}, s{sT0}, v{vTab}')
    rw = RowWriter(o, vTab, OUT)
    def c2(d, p, q): cmul2(o, d, p, q, d + 2, p + 2, q + 2)
    rw.write([0], X0, X0 + 2)
    keep = {0: X0, 2: X2, 4: X4, 6: X6, 8: X8}
    prev = X0
    for t in range(1, 9):
        d = keep.get(t, CUR)
        c2(d, prev, E1)
        rows = [t] if t < 8 else [12]
        if t == 4: rows = [4, 8]
        rw.write(rows, d, d + 2)
        prev = d
    c2(Pw[2], Pw[1], Pw[1]); c2(Pw[3], Pw[2], Pw[1]); c2(Pw[4], Pw[2], Pw[2])
    c2(Pw[5], Pw[4], Pw[1]); c2(Pw[6], Pw[4], Pw[2]); c2(Pw[7], Pw[4], Pw[3])
    alt = [CUR, CU2]; n = 0
    def prod(rows, xs, pk):
        nonlocal n
        d = alt[n % 2]; n += 1
        c2(d, keep[xs], Pw[pk]); rw.write(rows, d, d + 2)
    prod([9], 0, 1); prod([10], 2, 1); prod([11, 13], 4, 1); prod([14], 6, 1); prod([15], 8, 1)
    prod([16], 0, 2); prod([17], 4, 2); prod([18], 8, 2)
    prod([20], 0, 3); prod([21], 4, 3); prod([22], 8, 3)
    prod([19], 0, 4); prod([24], 8, 4)
    prod([25], 0, 5); prod([26], 8, 5)
    prod([23], 0, 6); prod([28], 8, 6)
    prod([29], 0, 7); prod([30], 8, 7)
    vA, vB = 109, 110
    o(f'v_and_b32 v{vT0}, 31, v0\nv_mul_u32_u24 v{vT0}, 528, v{vT0}')
    o(f'v_lshrrev_b32 v{vT1}, 5, v0\nv_lshlrev_b32 v{vT1}, 4, v{vT1}')
    o(f'v_add3_u32 v{vA}, v{vT0}, v{vT1}, s{sT0}')
    o(f'v_add_u32 v{vB}, {4 * TAB}, v{vA}')
    AF = 64; ACC = 32; BB = 192; vKA = [208, 209, 210, 211]; vBa = 212
    vR, vHh = 213, 214
    o(f'v_and_b32 v{vR}, 15, v0\nv_lshrrev_b32 v{vHh}, 4, v0')
    o(f'v_and_b32 v{vT0}, 1, v{vR}')
    o(f'v_add_u32 v{vT1}, v{vR}, v{vT0}')
    o(f'v_mul_u32_u24 v{vT0}, {KR_COPY}, v{vT0}')
    o(f'v_lshlrev_b32 v{vT1}, 1, v{vT1}')
    o(f'v_sub_u32 v{vT0}, v{vT0}, v{vT1}')
    o(f'v_lshlrev_b32 v{vT1}, 4, v{vHh}')
    o(f'v_add_u32 v{vT0}, v{vT0}, v{vT1}')
    o(f's_mul_i32 s{sT1}, s{sCh}, {KR_CH}')
    o(f's_lshl_b32 s{sT2}, s{sMh}, 6')
    o(f's_sub_u32 s{sT1}, s{sT1}, s{sT2}')
    o(f's_add_u32 s{sT1}, s{sT1}, {2 * 2032}')
    for g in range(4):
        o(f's_sub_u32 s{sT3}, s{sT1}, {128 * (8 * g + 7)}')
        o(f'v_add_u32 v{vKA[g]}, s{sT3}, v{vT0}')
    o(f'v_lshlrev_b32 v{vT0}, 5, v{vR}\nv_lshlrev_b32 v{vT1}, 4, v{vHh}\nv_add_u32 v{vT0}, v{vT0}, v{vT1}')
    o(f's_mul_i32 s{sT1}, s{sCh}, 4608')
    o(f's_sub_u32 s{sT1}, s{sT1}, s{sT2}')
    o(f's_add_u32 s{sT1}, s{sT1}, {LDS_US + 480 + 64 * 56 - 128 * 31}')
    o(f'v_add_u32 v{vBa}, s{sT1}, v{vT0}')
    vCx = 215
    o(f's_lshl_b32 s{sT1}, s{sWave}, 12')
    o(f's_add_u32 s{sT1}, s{sT1}, {LDS_CX}')
    o(f'v_lshlrev_b32 v{vCx}, 4, v0\nv_add_u32 v{vCx}, s{sT1}, v{vCx}')
    vCp = 220
    o(f's_xor_b32 s{sT1}, s{sWave}, 1\ns_lshl_b32 s{sT1}, s{sT1}, 12\ns_add_u32 s{sT1}, s{sT1}, {LDS_CX}')
    o(f'v_lshlrev_b32 v{vCp}, 4, v0\nv_add_u32 v{vCp}, s{sT1}, v{vCp}')
    vU, vXs, vO = 216, 217, 218
    o(f'v_lshlrev_b32 v{vT0}, 5, v{vR}\nv_lshlrev_b32 v{vT1}, 3, v{vHh}\nv_add_u32 v{vT0}, v{vT0}, v{vT1}')
    o(f's_lshl_b32 s{sT2}, s{sMh}, 11')
    o(f's_mul_i32 s{sT1}, s{sCh}, 4608\ns_add_u32 s{sT1}, s{sT1}, s{sT2}\ns_add_u32 s{sT1}, s{sT1}, {LDS_US + 512}')
    o(f'v_add_u32 v{vU}, s{sT1}, v{vT0}')
    o(f's_lshl_b32 s{sT1}, s{sCh}, 12\ns_add_u32 s{sT1}, s{sT1}, s{sT2}\ns_add_u32 s{sT1}, s{sT1}, {LDS_XS}')
    o(f'v_add_u32 v{vXs}, s{sT1}, v{vT0}')
    o(f's_lshl_b32 s{sT1}, s{sPair}, 1\ns_add_u32 s{sT1}, s{sT1}, s{sCh}\ns_lshl_b32 s{sT1}, s{sT1}, 6')
    o(f's_mul_i32 s{sT2}, s{sMh}, {32 * 28672}')
    o(f's_add_u32 s{sT1}, s{sT1}, s{sT2}\ns_add_u32 s{sT4}, s{sT1}, {WS_HT}')
    vHo = 219
    o(f'v_lshrrev_b32 v{vHo}, 1, v{vR}\nv_mul_u32_u24 v{vHo}, 28672, v{vHo}')
    o(f'v_and_b32 v{vT1}, 1, v{vR}\nv_lshlrev_b32 v{vT1}, 5, v{vT1}\nv_add_u32 v{vHo}, v{vHo}, v{vT1}')
    o(f'v_lshlrev_b32 v{vT1}, 3, v{vHh}\nv_add_u32 v{vHo}, v{vHo}, v{vT1}')
    o(f's_lshl_b32 s{sT1}, s{sDskV}, 16\ns_and_b32 s{sT2}, s{sDskV}, 0xffff0000')
    o(f's_cmp_eq_u32 s{sCh}, 0\ns_cselect_b32 s{sT5}, s{sT1}, s{sT2}')
    o('s_waitcnt lgkmcnt(0)')
    stamp(o, stamps, 2)
    o('s_barrier')
    FR = 112; KD = 16
    def rd(kk):
        b = FR + 8 * (kk % 4)
        o(f'ds_read_b128 v[{b}:{b+3}], v{vA} offset:{kk * 32}')
        o(f'ds_read_b128 v[{b+4}:{b+7}], v{vB} offset:{kk * 32}')
    for kk in range(3): rd(kk)
    for kk in range(16):
        if kk + 3 < 16: rd(kk + 3)
        o(f's_waitcnt lgkmcnt({2 * min(3, 15 - kk)})')
        b = FR + 8 * (kk % 4)
        c = '0' if kk == 0 else f'v[{KD}:{KD+15}]'
        o(f'v_mfma_f32_32x32x16_bf16 v[{KD}:{KD+15}], v[{b}:{b+3}], v[{b+4}:{b+7}], {c}')
    vEx = 111
    o(f's_add_u32 s{sT1}, s{sWave}, 4\ns_mul_i32 s{sT1}, s{sT1}, {TAB}')
    o(f'v_lshlrev_b32 v{vEx}, 4, v0\nv_add_u32 v{vEx}, s{sT1}, v{vEx}')
    o(f's_xor_b32 s{sT2}, s{sWave}, 1\ns_add_u32 s{sT2}, s{sT2}, 4\ns_mul_i32 s{sT2}, s{sT2}, {TAB}')
    o(f'v_lshlrev_b32 v106, 4, v0\nv_add_u32 v106, s{sT2}, v106')
    o('s_nop 7\ns_nop 3')
    o(f's_cmp_eq_u32 s{sMh}, 0')
    o('s_cbranch_scc0 LM_send1')
    o(f'ds_write_b128 v{vEx}, v[{KD+8}:{KD+11}]\nds_write_b128 v{vEx}, v[{KD+12}:{KD+15}] offset:1024')
    o('s_branch LM_sent')
    o.label('LM_send1')
    o(f'ds_write_b128 v{vEx}, v[{KD}:{KD+3}]\nds_write_b128 v{vEx}, v[{KD+4}:{KD+7}] offset:1024')
    o.label('LM_sent')
    o(f'v_mov_b32 v{vEx}, v106')
    o('s_waitcnt lgkmcnt(0)')
    stamp(o, stamps, 3)
    o('s_barrier')
    R = 32
    o(f'ds_read_b128 v[{R}:{R+3}], v{vEx}\nds_read_b128 v[{R+4}:{R+7}], v{vEx} offset:1024')
    vK = 40; vJ = 41; vH = 42; O = 44
    o(f'v_and_b32 v{vJ}, 31, v0\nv_lshrrev_b32 v{vH}, 5, v0')
    o(f's_mul_i32 s{sT1}, s{sCh}, {KR_CH}')
    o(f's_cmp_eq_u32 s{sMh}, 0')
    o('s_cbranch_scc0 LM_exp1')
    o(f'v_lshlrev_b32 v{vK}, 4, v{vJ}\nv_lshlrev_b32 v{vT0}, 3, v{vH}\nv_add_u32 v{vK}, v{vK}, v{vT0}')
    o(f'v_sub_u32 v{vK}, 4088, v{vK}\nv_add_u32 v{vK}, s{sT1}, v{vK}')
    o('s_waitcnt lgkmcnt(0)')
    for j in range(8): o(f'v_add_f32 v{KD+j}, v{KD+j}, v{R+j}')
    a0, a1, a2, a3, a4, sa, sb, sc = [KD + j for j in range(8)]
    cv = lambda d, lo, hi: o(f'v_cvt_pk_bf16_f32 v{d}, v{lo}, v{hi}')
    cv(O, a3, a2); cv(O+1, a1, a0); cv(O+2, a4, a3); cv(O+3, a2, a1)
    o(f'ds_write_b64 v{vK}, v[{O}:{O+1}] offset:{KR_COPY}')
    o(f'ds_write_b64 v{vK}, v[{O+2}:{O+3}]')
    cv(O+4, sc, sb); cv(O+5, sa, sa); cv(O+6, sc, sc); cv(O+7, sb, sa)
    o(f'v_subrev_u32 v{vK}, 512, v{vK}')
    o(f'ds_write_b64 v{vK}, v[{O+4}:{O+5}] offset:{KR_COPY}')
    o(f'ds_write_b64 v{vK}, v[{O+6}:{O+7}]')
    o(f'v_mov_b32 v{O+8}, 0')
    cv(O+9, a0, O+8)
    o(f'v_cmp_eq_u32 vcc, 0, v0')
    o(f'v_lshlrev_b32 v{vT0}, 2, v0')
    o(f'v_add_u32 v{vT0}, s{sT1}, v{vT0}')
    o(f'v_cndmask_b32 v{O+9}, v{O+8}, v{O+9}, vcc')
    o('s_mov_b64 exec, 0xff')
    o(f'ds_write_b32 v{vT0}, v{O+9} offset:4096')
    o(f'ds_write_b32 v{vT0}, v{O+8} offset:{4096 + KR_COPY}')
    o('s_mov_b64 exec, -1')
    o('s_branch LM_expd')
    o.label('LM_exp1')
    o(f'v_lshlrev_b32 v{vK}, 4, v{vJ}\nv_lshlrev_b32 v{vT0}, 9, v{vH}\nv_add_u32 v{vK}, v{vK}, v{vT0}')
    o(f'v_sub_u32 v{vK}, {4080 - 1024}, v{vK}\nv_add_u32 v{vK}, s{sT1}, v{vK}')
    vK3 = 43
    o(f'v_lshlrev_b32 v{vK3}, 4, v{vJ}\nv_lshlrev_b32 v{vT0}, 10, v{vH}\nv_add_u32 v{vK3}, v{vK3}, v{vT0}')
    o(f'v_sub_u32 v{vK3}, {4080 - 2048 - 512}, v{vK3}\nv_add_u32 v{vK3}, s{sT1}, v{vK3}')
    o(f'v_and_b32 v{vT0}, 1, v{vJ}')
    o(f'v_cmp_eq_u32 vcc, 0, v{vT0}')
    o('s_waitcnt lgkmcnt(0)')
    for j in range(8): o(f'v_add_f32 v{KD+8+j}, v{KD+8+j}, v{R+j}')
    T0, T1, T2 = KD + 8, KD + 9, KD + 10
    cv(O, T2, T2); cv(O+1, T1, T1); cv(O+2, T1, T0); cv(O+3, T0, T0)
    o(f'ds_write_b128 v{vK}, v[{O}:{O+3}] offset:{KR_COPY}')
    cv(O+4, T2, T2); cv(O+5, T2, T1); cv(O+6, T1, T1); cv(O+7, T0, T0)
    o(f'ds_write_b128 v{vK}, v[{O+4}:{O+7}]')
    for ii in range(2):
        t0, t1 = KD + 11 + 2*ii, KD + 12 + 2*ii
        sel = O + 16
        q = O + 8 * (ii + 1) if ii == 0 else O
        o(f'v_cndmask_b32 v{sel}, v{t1}, v{t0}, vcc')
        off = 512 if ii == 0 else 0
        cv(q, t1, t1); cv(q+1, t1, sel); cv(q+2, t0, t0); cv(q+3, t0, t0)
        o(f'ds_write_b128 v{vK3}, v[{q}:{q+3}] offset:{KR_COPY + off}')
        cv(q+4, t1, t1); cv(q+5, t1, t1); cv(q+6, sel, t0); cv(q+7, t0, t0)
        o(f'ds_write_b128 v{vK3}, v[{q+4}:{q+7}] offset:{off}')
    o.label('LM_expd')
    o('s_waitcnt lgkmcnt(0)')
    stamp(o, stamps, 4)
    o('s_barrier')
    def rdA(sg):
        d = AF + 4 * sg; g = sg // 8; off = 32 * (7 - (sg - 8 * g))
        o(f'ds_read2_b32 v[{d}:{d+1}], v{vKA[g]} offset0:{off} offset1:{off+1}')
        o(f'ds_read2_b32 v[{d+2}:{d+3}], v{vKA[g]} offset0:{off+2} offset1:{off+3}')
    def rdB(t):
        d = BB + 4 * (t % 4)
        o(f'ds_read_b128 v[{d}:{d+3}], v{vBa} offset:{128 * (31 - t)}')
    LA = 3
    def rdA_ops(sg):
        d = AF + 4 * sg; g = sg // 8; off = 32 * (7 - (sg - 8 * g))
        return [f'ds_read2_b32 v[{d}:{d+1}], v{vKA[g]} offset0:{off} offset1:{off+1}',
                f'ds_read2_b32 v[{d+2}:{d+3}], v{vKA[g]} offset0:{off+2} offset1:{off+3}']
    def rdB_op(t):
        d = BB + 4 * (t % 4)
        return f'ds_read_b128 v[{d}:{d+3}], v{vBa} offset:{128 * (31 - t)}'
    for t in range(LA):
        for op in rdA_ops(t): o(op)
        o(rdB_op(t))
    started = set()
    for t in range(32):
        o(f's_waitcnt lgkmcnt({3 * min(LA - 1, 31 - t)})')
        pend = (rdA_ops(t + LA) + [rdB_op(t + LA)]) if t + LA < 32 else []
        cmin = max(0, -(-(28 - t) // 4))
        for c in range(7, cmin - 1, -1):
            sg = 4 * c - 28 + t
            ac = ACC + 4 * c
            cc = f'v[{ac}:{ac+3}]' if c in started else '0'
            started.add(c)
            o(f'v_mfma_f32_16x16x32_bf16 v[{ac}:{ac+3}], v[{AF+4*sg}:{AF+4*sg+3}], v[{BB+4*(t%4)}:{BB+4*(t%4)+3}], {cc}')
            if pend: o(pend.pop(0))
        for op in pend: o(op)
    stamp(o, stamps, 5)
    UB = 64; XB = 72; PB = 80; W = 96
    vDk = 222
    o(f'v_mov_b32 v{vDk}, s{sT5}')
    for j in range(4): o(f'ds_read_b64 v[{UB+2*j}:{UB+2*j+1}], v{vU} offset:{512*j}')
    o('s_nop 3')
    o(f's_cmp_eq_u32 s{sMh}, 0')
    o('s_cbranch_scc0 LM_cx1')
    for par in range(2):
        keep = ACC + 16 * par; send = ACC + 16 * (1 - par)
        if par: o.label('LM_cx1')
        for j in range(4): o(f'ds_write_b128 v{vCx}, v[{send+4*j}:{send+4*j+3}] offset:{1024*j}')
        o('s_waitcnt lgkmcnt(0)')
        o('s_barrier')
        for j in range(4): o(f'ds_read_b64 v[{XB+2*j}:{XB+2*j+1}], v{vXs} offset:{512*j}')
        for j in range(4): o(f'ds_read_b128 v[{PB+4*j}:{PB+4*j+3}], v{vCp} offset:{1024*j}')
        for j in range(4):
            unpack(o, W, W+1, UB+2*j); unpack(o, W+2, W+3, UB+2*j+1)
            for e in (0, 2): o(f'v_pk_fma_f32 v[{keep+4*j+e}:{keep+4*j+e+1}], v[{W+e}:{W+e+1}], v[{vDk}:{vDk+1}], v[{keep+4*j+e}:{keep+4*j+e+1}] op_sel_hi:[1,0,1]')
        so = sT4
        for j in range(4):
            o(f's_waitcnt lgkmcnt({3-j})')
            unpack(o, W+4, W+5, XB+2*j); unpack(o, W+6, W+7, XB+2*j+1)
            for e in (0, 2): o(f'v_pk_add_f32 v[{keep+4*j+e}:{keep+4*j+e+1}], v[{keep+4*j+e}:{keep+4*j+e+1}], v[{PB+4*j+e}:{PB+4*j+e+1}]')
            for e in (0, 2): o(f'v_pk_add_f32 v[{keep+4*j+e}:{keep+4*j+e+1}], v[{keep+4*j+e}:{keep+4*j+e+1}], v[{W+4+e}:{W+4+e+1}]')
            d = W + 8 + 2 * j
            cv(d, keep+4*j, keep+4*j+1); cv(d+1, keep+4*j+2, keep+4*j+3)
            o(f'buffer_store_dwordx2 v[{d}:{d+1}], v{vHo}, s[{SRD_WS}:{SRD_WS+3}], s{so} offen {ST}')
            if j < 3: o(f's_add_u32 s{so}, s{so}, {8 * 28672}')
        if par == 0:
            stamp(o, stamps, 6)
            finish(o, stamps)
    stamp(o, stamps, 6)
    finish(o, stamps)

def gen_nwave(o, q0, stamps):
    vm = VM(o); vm.q = q0
    P = 16
    o(f'v_mov_b32 v20, v{vT2}')
    e_load(o, vm)
    tile_loads(o, vm)
    row_loads(o, vm, 4)
    for i in range(2):
        o(f'buffer_load_dword v{P+i}, v20, s[{SRD_P[i]}:{SRD_P[i]+3}], s{sT3} offen'); vm.issue('par')
    sNw, sSb, sKk, sKt, sDb, sL = 52, 53, 54, 55, 56, 57
    o(f's_lshl_b32 s{sNw}, s{sPair}, 2\ns_add_u32 s{sNw}, s{sNw}, s{sWave}\ns_sub_u32 s{sNw}, s{sNw}, 4')
    o(f's_min_u32 s{sT0}, s{sNw}, 783')
    o(f's_mul_i32 s{sSb}, s{sT0}, 2341\ns_lshr_b32 s{sSb}, s{sSb}, 16')
    o(f's_mul_i32 s{sKk}, s{sSb}, 28\ns_sub_u32 s{sKk}, s{sT0}, s{sKk}')
    o(f's_mul_i32 s{sKt}, s{sT0}, 9363\ns_lshr_b32 s{sKt}, s{sKt}, 16')
    o(f's_mul_i32 s{sDb}, s{sKt}, 7\ns_sub_u32 s{sDb}, s{sT0}, s{sDb}')
    o(f's_sub_u32 s{sL}, s{sWave}, 4\ns_mul_i32 s{sL}, s{sL}, 6144\ns_add_u32 s{sL}, s{sL}, {LDS_RP}')
    srd(o, SRD_WG, sWg, 1605632); srd(o, SRD_WU, sWu, 1605632); srd(o, SRD_WD, sWd, 1605632)
    tile_image(o, vm)
    o('s_waitcnt lgkmcnt(0)')
    o('s_barrier')
    stamp(o, stamps, 0)
    row_stats(o, vm, 4)
    vm.wait('par')
    G = 128; vG0, vTp = 24, 26
    o(f's_sub_u32 s{sT0}, s{sWave}, 4\ns_lshl_b32 s{sT0}, s{sT0}, 6')
    o(f'v_add_u32 v{vTp}, s{sT0}, v0')
    o(f'v_lshrrev_b32 v{vG0}, 4, v{vTp}\nv_lshlrev_b32 v{vG0}, 13, v{vG0}')
    o(f'v_and_b32 v{vT0}, 15, v{vTp}\nv_lshlrev_b32 v{vT0}, 4, v{vT0}\nv_add_u32 v{vG0}, v{vG0}, v{vT0}')
    o(f's_lshr_b32 s{sT1}, s{sPair}, 5\ns_lshl_b32 s{sT1}, s{sT1}, 18')
    o(f's_and_b32 s{sT2}, s{sPair}, 31\ns_lshl_b32 s{sT2}, s{sT2}, 8\ns_add_u32 s{sT1}, s{sT1}, s{sT2}')
    o(f'v_add_u32 v{vG0}, s{sT1}, v{vG0}')
    o(f'v_add_u32 v25, {16 * 8192}, v{vG0}')
    vdt = 22
    compute_dt(o, vdt)
    U = 28
    for i in range(2): unpack(o, U + 2*i, U + 2*i + 1, P + i)
    for i in range(4): o(f'v_mul_f32 v{U+i}, v{vdt}, v{U+i}')
    o(f'v_mul_f32 v{U}, {hex(LOG2E)}, v{U}\nv_mul_f32 v{U+1}, {hex(LOG2E)}, v{U+1}')
    o(f'v_mul_f32 v{U+2}, {hex(INV2PI)}, v{U+2}\nv_mul_f32 v{U+3}, {hex(INV2PI)}, v{U+3}')
    E8 = 36; YA = 40; YB = 44; TMP = 48; OUT = 52; vTab = 60
    for mu in range(2): seed(o, E8 + 2*mu, U + mu, U + 2 + mu, 8, TMP + 2*mu, conj=True)
    stamp(o, stamps, 1)
    o(f's_lshl_b32 s{sT0}, s{sCh}, 1\ns_add_u32 s{sT0}, s{sT0}, s{sMh}\ns_add_u32 s{sT0}, s{sT0}, 4\ns_mul_i32 s{sT0}, s{sT0}, {TAB}')
    o(f'v_lshlrev_b32 v{vTab}, 3, v0\nv_add_u32 v{vTab}, s{sT0}, v{vTab}')
    o(f'v_mov_b32 v{YA}, 0x3f80\nv_mov_b32 v{YA+1}, 0x3f80')
    o(f'ds_write_b64 v{vTab}, v[{YA}:{YA+1}]')
    rw = RowWriter(o, vTab, OUT)
    rw.write([1], E8, E8 + 2)
    E16 = 200; YC = 204; YD = 208
    RP = 144
    def rp_loads():
        vGu, vDn = 20, 21
        o(f'v_lshrrev_b32 v{vT0}, 3, v0\nv_and_b32 v{vT1}, 7, v0\nv_lshlrev_b32 v{vT1}, 4, v{vT1}')
        o(f'v_mul_u32_u24 v{vGu}, 3584, v{vT0}\nv_add_u32 v{vGu}, v{vGu}, v{vT1}')
        o(f'v_mul_u32_u24 v{vDn}, 896, v{vT0}\nv_add_u32 v{vDn}, v{vDn}, v{vT1}')
        o(f's_mul_i32 s{sT1}, s{sKk}, {16 * 3584}\ns_lshl_b32 s{sT2}, s{sSb}, 7\ns_add_u32 s{sT1}, s{sT1}, s{sT2}')
        o(f's_add_u32 s{sT2}, s{sT1}, {8 * 3584}')
        for mat, sr in enumerate([SRD_WG, SRD_WU]):
            for i in range(2):
                d = RP + 8 * mat + 4 * i
                o(f'buffer_load_dwordx4 v[{d}:{d+3}], v{vGu}, s[{sr}:{sr+3}], s{sT1 if i == 0 else sT2} offen'); vm.issue('rp')
        o(f's_mul_i32 s{sT1}, s{sKt}, {16 * 896}\ns_lshl_b32 s{sT2}, s{sDb}, 7\ns_add_u32 s{sT1}, s{sT1}, s{sT2}')
        o(f's_add_u32 s{sT2}, s{sT1}, {8 * 896}')
        for i in range(2):
            d = RP + 16 + 4 * i
            o(f'buffer_load_dwordx4 v[{d}:{d+3}], v{vDn}, s[{SRD_WD}:{SRD_WD+3}], s{sT1 if i == 0 else sT2} offen'); vm.issue('rp')

    RC = 64; vRa = 27
    o(f'v_lshlrev_b32 v{vRa}, 4, v{vTp}')
    o(f's_mov_b32 s{sT3}, {WS_REC}')
    o(f's_mov_b32 s{sT4}, {WS_T}\ns_mov_b32 s{sT5}, {WS_T2}')
    def rec_loads(pol):
        for j in range(4):
            if j: o(f's_add_u32 s{sT3}, s{sT3}, 4096')
            o(f'buffer_load_dwordx4 v[{RC+4*j}:{RC+4*j+3}], v{vRa}, s[{SRD_WS}:{SRD_WS+3}], s{sT3} offen {pol}')
        o(f's_mov_b32 s{sT3}, {WS_REC}')
        o(f'buffer_load_dwordx4 v[{G}:{G+3}], v{vG0}, s[{SRD_WS}:{SRD_WS+3}], s{sT4} offen {pol}')
        o(f'buffer_load_dwordx4 v[{G+4}:{G+7}], v25, s[{SRD_WS}:{SRD_WS+3}], s{sT4} offen {pol}')
        o(f'buffer_load_dwordx4 v[{G+8}:{G+11}], v{vG0}, s[{SRD_WS}:{SRD_WS+3}], s{sT5} offen {pol}')
        o(f'buffer_load_dwordx4 v[{G+12}:{G+15}], v25, s[{SRD_WS}:{SRD_WS+3}], s{sT5} offen {pol}')
    cmul2(o, E16, E8, E8, E16 + 2, E8 + 2, E8 + 2)
    rw.write([2], E16, E16 + 2)
    ev, od = [E16, YA, YB], [E8, YC, YD]
    pe, po = E16, E8
    step = 0
    for j in range(3, 32, 2):
        do = YC if step % 2 == 0 else YD
        de = YA if step % 2 == 0 else YB
        step += 1
        last = (j + 1 > 31)
        prods = [(do, po), (do + 2, po + 2)] + ([] if last else [(de, pe), (de + 2, pe + 2)])
        for d, p in prods:
            q = E16 + (2 if (d - (do if d in (do, do + 2) else de)) else 0)
            o(f'v_pk_mul_f32 v[{d}:{d+1}], v[{p}:{p+1}], v[{q}:{q+1}] op_sel_hi:[0,1]')
        for d, p in prods:
            q = E16 + (2 if (d - (do if d in (do, do + 2) else de)) else 0)
            o(f'v_pk_fma_f32 v[{d}:{d+1}], v[{p}:{p+1}], v[{q}:{q+1}], v[{d}:{d+1}] op_sel:[1,1,0] op_sel_hi:[1,0,1] neg_lo:[1,0,0]')
        rw.write([j], do, do + 2)
        if not last: rw.write([j + 1], de, de + 2)
        po = do; pe = de
        if j == RP_AT and RP_AT <= REC_AT: rp_loads()
        if j == REC_AT: rec_loads(POL0)
        if j == RP_AT and RP_AT > REC_AT: rp_loads()
    o('s_waitcnt lgkmcnt(0)')
    stamp(o, stamps, 2)
    o('s_barrier')
    o(f'v_lshrrev_b32 v{vT0}, 5, v0\nv_mul_u32_u24 v{vT0}, 4608, v{vT0}')
    o(f'v_and_b32 v{vT1}, 31, v0\nv_lshlrev_b32 v{vT1}, 4, v{vT1}\nv_add_u32 v{vT0}, v{vT0}, v{vT1}')
    o(f'v_add_u32 v{vT0}, {LDS_US}, v{vT0}')
    for j in range(4): o(f'v_mov_b32 v{OUT+j}, 0')
    o(f'ds_write_b128 v{vT0}, v[{OUT}:{OUT+3}]')
    o(f's_mov_b32 s{sT1}, 0')
    o(f's_waitcnt vmcnt({6 if RP_AT > REC_AT else 0})')
    o.label('LN_chk')
    C0 = RC + 16
    for k in range(8): o(f'v_xor_b32 v{C0+k}, v{RC+2*k+1}, v{vTag}')
    for k in range(8): o(f'v_xor_b32 v{C0+8+k}, v{G+k}, v{G+8+k}')
    for k in range(8): o(f'v_xor_b32 v{C0+8+k}, v{C0+8+k}, v{vTag}')
    for k in range(0, 15, 3): o(f'v_or3_b32 v{C0+k}, v{C0+k}, v{C0+k+1}, v{C0+k+2}')
    o(f'v_or3_b32 v{C0}, v{C0}, v{C0+3}, v{C0+6}')
    o(f'v_or3_b32 v{C0+9}, v{C0+9}, v{C0+12}, v{C0+15}')
    o(f'v_or_b32 v{C0}, v{C0}, v{C0+9}')
    o(f'v_cmp_ne_u32 vcc, 0, v{C0}')
    o('s_cbranch_vccz LN_got')
    o(f's_add_u32 s{sT1}, s{sT1}, 1')
    o(f's_cmp_lt_u32 s{sT1}, 0x40000')
    o('s_cbranch_scc0 LN_got')
    rec_loads('sc1')
    o('s_waitcnt vmcnt(0)')
    o('s_branch LN_chk')
    o.label('LN_got')
    vm.q = []
    if stamps: o(f'v_writelane_b32 v255, s{sT1}, 13')
    stamp(o, stamps, 3)
    o(f'v_lshlrev_b32 v{vT0}, 4, v{vTp}\nv_add_u32 v{vT0}, {LDS_XS}, v{vT0}')
    for j in range(4):
        a_ = RC + 4 * j
        o(f'v_and_b32 v{a_+1}, 0xffff0000, v{a_}\nv_and_b32 v{a_+3}, 0xffff0000, v{a_+2}')
        o(f'v_lshlrev_b32 v{a_}, 16, v{a_}\nv_lshlrev_b32 v{a_+2}, 16, v{a_+2}')
        o(f'v_rcp_f32 v{a_+1}, v{a_+1}\nv_rcp_f32 v{a_+3}, v{a_+3}')
    for j in range(4):
        a_ = RC + 4 * j
        o(f'v_mul_f32_e64 v{a_}, -v{a_}, v{a_+1}\nv_mul_f32_e64 v{a_+2}, -v{a_+2}, v{a_+3}')
        o(f'ds_write_b128 v{vT0}, v[{a_}:{a_+3}] offset:{4096*j}')
    XF = 96
    for i in range(2):
        for j in range(4): unpack(o, XF + 8*i + 2*j, XF + 8*i + 2*j + 1, G + 4*i + j)
    o('s_waitcnt lgkmcnt(0)')
    o('s_barrier')
    vL0, vCh = 22, 23
    o(f'v_lshrrev_b32 v{vL0}, 4, v{vTp}\nv_lshlrev_b32 v{vL0}, 6, v{vL0}')
    o(f'v_and_b32 v{vT0}, 7, v{vTp}\nv_lshlrev_b32 v{vT0}, 3, v{vT0}\nv_add_u32 v{vL0}, v{vL0}, v{vT0}')
    o(f'v_bfe_u32 v{vCh}, v{vTp}, 3, 1')
    o(f'v_lshlrev_b32 v{vT0}, 3, v{vL0}\nv_add_u32 v{vT0}, {LDS_XS}, v{vT0}')
    TB = 64
    for i in range(2):
        for q in range(4): o(f'ds_read_b128 v[{TB+16*i+4*q}:{TB+16*i+4*q+3}], v{vT0} offset:{8192*i+16*q}')
    o(f'v_mul_u32_u24 v{vT1}, 4608, v{vCh}\nv_lshlrev_b32 v{vT3}, 1, v{vL0}\nv_add_u32 v{vT1}, v{vT1}, v{vT3}')
    o(f'v_add_u32 v{vT1}, {LDS_US + 512}, v{vT1}')
    Pk = 120
    for i in range(2):
        o(f's_waitcnt lgkmcnt({4 - 4*i})' if i == 0 else 's_waitcnt lgkmcnt(1)')
        for k in range(8): o(f'v_fma_f32 v{XF+8*i+k}, v{XF+8*i+k}, v{TB+16*i+2*k+1}, v{TB+16*i+2*k}')
        for j in range(4): o(f'v_cvt_pk_bf16_f32 v{Pk+4*i+j}, v{XF+8*i+2*j}, v{XF+8*i+2*j+1}')
        o(f'ds_write_b128 v{vT1}, v[{Pk+4*i}:{Pk+4*i+3}] offset:{2048*i}')
    o('s_waitcnt lgkmcnt(0)')
    stamp(o, stamps, 4)
    o('s_barrier')
    o(f'v_lshlrev_b32 v{vT1}, 12, v{vCh}\nv_lshlrev_b32 v{vT3}, 1, v{vL0}\nv_add_u32 v{vT1}, v{vT1}, v{vT3}')
    o(f'v_add_u32 v{vT1}, {LDS_XS}, v{vT1}')
    for i in range(2): o(f'ds_write_b128 v{vT1}, v[{G+4*i}:{G+4*i+3}] offset:{2048*i}')
    o(f's_cmp_ge_u32 s{sNw}, 784')
    o('s_cbranch_scc1 LN_norep2')
    o(f'v_lshlrev_b32 v{vT0}, 4, v0\nv_add_u32 v{vT1}, s{sL}, v{vT0}')
    o('s_waitcnt vmcnt(0)')
    for j in range(6): o(f'ds_write_b128 v{vT1}, v[{RP+4*j}:{RP+4*j+3}] offset:{1024*j}')
    g_, rho, c_ = 20, 21, 22
    o(f'v_lshrrev_b32 v{g_}, 4, v0\nv_bfe_u32 v{rho}, v0, 2, 2\nv_and_b32 v{c_}, 3, v0')
    vA1, vA2 = 18, 19
    o(f'v_and_b32 v{vT3}, 1, v{g_}\nv_lshlrev_b32 v{vT3}, 11, v{vT3}')
    o(f'v_lshrrev_b32 v{vT1}, 1, v{g_}\nv_lshlrev_b32 v{vT1}, 10, v{vT1}\nv_add_u32 v{vT3}, v{vT3}, v{vT1}')
    o(f'v_lshlrev_b32 v{vT1}, 7, v{rho}\nv_add_u32 v{vT3}, v{vT3}, v{vT1}')
    o(f'v_lshlrev_b32 v{vT1}, 3, v{c_}\nv_add3_u32 v{vA1}, v{vT3}, v{vT1}, s{sL}')
    o(f'v_lshrrev_b32 v{vT3}, 1, v{g_}\nv_lshlrev_b32 v{vT3}, 9, v{vT3}')
    o(f'v_lshlrev_b32 v{vT1}, 7, v{rho}\nv_add_u32 v{vT3}, v{vT3}, v{vT1}')
    o(f'v_and_b32 v{vT1}, 1, v{g_}\nv_lshlrev_b32 v{vT1}, 5, v{vT1}\nv_add_u32 v{vT3}, v{vT3}, v{vT1}')
    o(f'v_lshlrev_b32 v{vT1}, 3, v{c_}\nv_add3_u32 v{vA2}, v{vT3}, v{vT1}, s{sL}')
    o('s_waitcnt lgkmcnt(0)')
    F = 32
    for tt in range(4):
        o(f'ds_read_b64_tr_b16 v[{F+4*tt}:{F+4*tt+1}], v{vA1} offset:{tt*32}')
        o(f'ds_read_b64_tr_b16 v[{F+4*tt+2}:{F+4*tt+3}], v{vA1} offset:{tt*32 + 512}')
    for mt in range(2):
        o(f'ds_read_b64_tr_b16 v[{F+16+4*mt}:{F+16+4*mt+1}], v{vA2} offset:{4096 + mt*64}')
        o(f'ds_read_b64_tr_b16 v[{F+16+4*mt+2}:{F+16+4*mt+3}], v{vA2} offset:{4096 + mt*64 + 1024}')
    o(f's_mul_i32 s{sT1}, s{sSb}, {4 * 29}\ns_add_u32 s{sT1}, s{sT1}, s{sKk}\ns_lshl_b32 s{sT1}, s{sT1}, 10\ns_add_u32 s{sT1}, s{sT1}, {WS_WP}')
    o('s_waitcnt lgkmcnt(0)')
    for tt in range(4):
        o(f'buffer_store_dwordx4 v[{F+4*tt}:{F+4*tt+3}], v{vT0}, s[{SRD_WS}:{SRD_WS+3}], s{sT1} offen {ST}')
        if tt < 3: o(f's_add_u32 s{sT1}, s{sT1}, {29 * 1024}')
    o(f's_mul_i32 s{sT1}, s{sDb}, 224\ns_add_u32 s{sT1}, s{sT1}, s{sKt}\ns_lshl_b32 s{sT1}, s{sT1}, 10\ns_add_u32 s{sT1}, s{sT1}, {WS_WD}')
    o(f'buffer_store_dwordx4 v[{F+16}:{F+19}], v{vT0}, s[{SRD_WS}:{SRD_WS+3}], s{sT1} offen {ST}')
    o(f's_add_u32 s{sT1}, s{sT1}, {112 * 1024}')
    o(f'buffer_store_dwordx4 v[{F+20}:{F+23}], v{vT0}, s[{SRD_WS}:{SRD_WS+3}], s{sT1} offen {ST}')
    o.label('LN_norep2')
    o('s_waitcnt lgkmcnt(0)')
    stamp(o, stamps, 5)
    o('s_barrier')
    stamp(o, stamps, 6)
    finish(o, stamps)

vAt, vAt2 = 250, 251
def epoch_atomic(o):
    srd(o, SRD_DBG, sDbg, 256)
    o(f's_and_b32 s{sT1}, s2, 3\ns_lshl_b32 s{sT1}, s{sT1}, 6')
    o(f'v_mov_b32 v{vAt}, 1\nv_mov_b32 v{vAt2}, 0')
    o('s_mov_b64 exec, 1')
    o(f'buffer_atomic_add v{vAt}, v{vAt2}, s[{SRD_DBG}:{SRD_DBG+3}], s{sT1} offen sc1')
    o('s_mov_b64 exec, -1')
def epoch_finish(o, pfx):
    srd(o, SRD_DBG, sDbg, 256)
    o(f'v_and_b32 v{vAt}, 3, v0\nv_lshlrev_b32 v{vAt}, 6, v{vAt}')
    o(f's_mov_b32 s{sT1}, 0')
    o.label(f'L{pfx}_epoll')
    o(f'buffer_load_dword v252, v{vAt}, s[{SRD_DBG}:{SRD_DBG+3}], 0 offen sc1')
    o('s_waitcnt vmcnt(0)')
    o('v_cmp_ne_u32 vcc, 64, v252')
    o(f's_cbranch_vccz L{pfx}_eok')
    o(f's_add_u32 s{sT1}, s{sT1}, 1\ns_cmp_lt_u32 s{sT1}, 0x40000')
    o(f's_cbranch_scc1 L{pfx}_epoll')
    o(f'L{pfx}_eok:')
    o('s_mov_b64 exec, 1')
    o(f'buffer_store_dword v{vTag}, v{vAt2}, s[{SRD_WS}:{SRD_WS+3}], 0 offen sc1')
    o('s_mov_b64 exec, -1')

def gen_spare(o, q0, stamps):
    vm = VM(o); vm.q = q0
    e_load(o, vm)
    o(f's_cmp_ge_u32 s{sWave}, 4')
    o('s_cbranch_scc1 LS_prodd')
    row_loads(o, vm)
    row_stats(o, vm)
    o.label('LS_prodd')
    o('s_waitcnt vmcnt(0)')
    make_tag(o)
    o('s_barrier')
    stamp(o, stamps, 0)
    o(f's_cmp_eq_u32 s{sWave}, 7')
    o('s_cbranch_scc0 LS_noat')
    epoch_atomic(o)
    o.label('LS_noat')
    if SPARE_WAIT:
        o(f's_and_b32 s{sT0}, s{sWave}, 3\ns_lshl_b32 s{sT0}, s{sT0}, 6\nv_add_u32 v20, s{sT0}, v0\nv_lshlrev_b32 v20, 6, v20')
        o(f's_mov_b32 s{sT3}, {WS_REC}\ns_mov_b32 s{sT1}, 0')
        o.label('LS_poll')
        for j in range(4): o(f'buffer_load_dwordx4 v[{64+4*j}:{67+4*j}], v20, s[{SRD_WS}:{SRD_WS+3}], s{sT3} offen offset:{16*j} sc1')
        o('s_waitcnt vmcnt(0)')
        for k in range(8): o(f'v_xor_b32 v{80+k}, v{65+2*k}, v{vTag}')
        o('v_or3_b32 v80, v80, v81, v82\nv_or3_b32 v83, v83, v84, v85\nv_or3_b32 v80, v80, v86, v87\nv_or_b32 v80, v80, v83')
        o('v_cmp_ne_u32 vcc, 0, v80')
        o('s_cbranch_vccz LS_go')
        o(f's_add_u32 s{sT1}, s{sT1}, 1\ns_cmp_lt_u32 s{sT1}, 0x40000\ns_cbranch_scc1 LS_poll')
        o.label('LS_go')
    sMat, sFs = 44, 45
    o(f's_lshr_b32 s{sMat}, s{sSp}, 4\ns_and_b32 s{sFs}, s{sSp}, 15')
    o(f's_cmp_eq_u32 s{sMat}, 0')
    o(f's_cselect_b32 s48, s{sWg}, s{sWu}\ns_cselect_b32 s49, s{sWg+1}, s{sWu+1}')
    o('s_mov_b32 s50, 1605632\ns_mov_b32 s51, 0x00020000')
    vTid, vG, vC, vOf = 16, 17, 18, 19
    o(f's_lshl_b32 s{sT0}, s{sWave}, 6\nv_add_u32 v{vTid}, s{sT0}, v0')
    o(f'v_mul_u32_u24 v{vG}, 4682, v{vTid}\nv_lshrrev_b32 v{vG}, 16, v{vG}')
    o(f'v_mul_u32_u24 v{vC}, 14, v{vG}\nv_sub_u32 v{vC}, v{vTid}, v{vC}')
    o(f'v_mul_u32_u24 v{vOf}, 3584, v{vG}\nv_lshlrev_b32 v{vT0}, 4, v{vC}\nv_add_u32 v{vOf}, v{vOf}, v{vT0}')
    o(f's_mul_i32 s{sT1}, s{sFs}, 224')
    L = 32
    o(f's_cmp_ge_u32 s{sWave}, 7')
    o('s_cbranch_scc1 LS_skip')
    for i in range(14):
        o(f'buffer_load_dwordx4 v[{L+4*i}:{L+4*i+3}], v{vOf}, s[48:51], s{sT1} offen')
        if i < 13: o(f's_add_u32 s{sT1}, s{sT1}, {32 * 3584}')
    A = 96
    for j in range(8): o(f'v_mov_b32 v{A+j}, 0')
    for i in range(14):
        o(f's_waitcnt vmcnt({13 - i})')
        for r in range(4):
            unpack(o, 104, 105, L + 4*i + r)
            o(f'v_add_f32 v{A+2*r}, v{A+2*r}, v104\nv_add_f32 v{A+2*r+1}, v{A+2*r+1}, v105')
    o(f'v_mul_u32_u24 v{vT0}, 448, v{vG}\nv_lshlrev_b32 v{vT1}, 5, v{vC}\nv_add_u32 v{vT0}, v{vT0}, v{vT1}')
    o(f'ds_write_b128 v{vT0}, v[{A}:{A+3}]\nds_write_b128 v{vT0}, v[{A+4}:{A+7}] offset:16')
    o.label('LS_skip')
    o('s_waitcnt lgkmcnt(0)')
    o('s_barrier')
    o(f's_cmp_ge_u32 s{sWave}, 2')
    o('s_cbranch_scc1 LS_done')
    o(f'v_lshlrev_b32 v{vT0}, 2, v{vTid}')
    for g in range(32): o(f'ds_read_b32 v{L+g}, v{vT0} offset:{448*g}')
    o('s_waitcnt lgkmcnt(0)')
    for g in range(1, 32): o(f'v_add_f32 v{L}, v{L}, v{L+g}')
    o(f'v_cvt_pk_bf16_f32 v{L+1}, v{L}, v{L}\nv_and_b32 v{L+1}, 0xffff0000, v{L+1}\nv_sub_f32 v{L+1}, v{L}, v{L+1}')
    Z = 68
    o(f'v_cvt_pk_bf16_f32 v{Z}, v{L}, v{L+1}')
    for j in range(1, 8): o(f'v_mov_b32 v{Z+j}, 0')
    o(f'v_lshrrev_b32 v{vT0}, 4, v{vTid}\ns_mul_i32 s{sT1}, s{sFs}, 7\nv_add_u32 v{vT0}, s{sT1}, v{vT0}')
    o(f'v_mul_u32_u24 v{vT0}, 29, v{vT0}\nv_add_u32 v{vT0}, 28, v{vT0}\nv_lshlrev_b32 v{vT0}, 10, v{vT0}')
    o(f'v_and_b32 v{vT1}, 15, v{vTid}\ns_lshl_b32 s{sT1}, s{sMat}, 4\nv_add_u32 v{vT1}, s{sT1}, v{vT1}\nv_lshlrev_b32 v{vT1}, 4, v{vT1}')
    o(f'v_add_u32 v{vT0}, v{vT0}, v{vT1}')
    o(f's_mov_b32 s{sT1}, {WS_WP}')
    o(f'v_cmp_gt_u32 vcc, 112, v{vTid}')
    o(f's_and_saveexec_b64 s[52:53], vcc')
    o('s_cbranch_execz LS_rest')
    o(f'buffer_store_dwordx4 v[{Z}:{Z+3}], v{vT0}, s[{SRD_WS}:{SRD_WS+3}], s{sT1} offen {ST}')
    o(f'buffer_store_dwordx4 v[{Z+4}:{Z+7}], v{vT0}, s[{SRD_WS}:{SRD_WS+3}], s{sT1} offen offset:512')
    o.label('LS_rest')
    o('s_mov_b64 exec, s[52:53]')
    o.label('LS_done')
    o(f's_cmp_eq_u32 s{sWave}, 7')
    o('s_cbranch_scc0 LS_noe')
    o(f's_cmp_eq_u32 s{sSp}, 0')
    o('s_cbranch_scc0 LS_noe')
    epoch_finish(o, 'S')
    o.label('LS_noe')
    finish(o, stamps)
def desc_ab(): return kernel_desc(NAME, 256, 100, accum=256)
def launch_ab(): return f'; @launch kernel={NAME} grid=(256,1,1) block=(512,1,1) lds={LDS_BYTES}'
```

```python
from asmlib import *
from layout import *
from vm import VM
NAME = 'ssm_kernel'
PREFETCH = False
SPARE_WAIT = False
POL0 = 'sc1'
REC_AT = 21
SWAP_ROLES = 1
HST = ''
X_NOA = 0
X_NOB = 0
X_NOM = 0
LA = 3
RP_AT = 29
ST = ''
TAB = 16896
LDS_US = 8 * TAB
LDS_XS = LDS_US + 2 * 4608
LDS_EX = LDS_XS + 2 * 4096
LDS_BYTES = LDS_EX + 8192
KR_COPY = 4160; KR_CH = 2 * KR_COPY
LDS_CX = 17408
LDS_RP = LDS_CX + 16384
LOG2E = 0x3fb8aa3b; INV2PI = 0x3e22f983; INV448 = 0x3b124925; EPS = 0x3727c5ac
sX, sAre, sAim, sBre, sBim, sCre, sCim, sLdt = 8, 10, 12, 14, 16, 18, 20, 22
sDsk, sWd, sWg, sWu, sDbg, sWs = 24, 26, 28, 30, 32, 34
SRD_X, SRD_WS = 36, 40
SRD_P = [44, 48, 52, 56, 60, 64]
SRD_WG, SRD_WU, SRD_WD, SRD_DBG = 68, 72, 76, 80
sWave, sPair, sCh, sMh, sLdtV, sDskV = 3, 84, 85, 86, 87, 88
sT0, sT1, sT2, sT3, sT4, sT5 = 89, 90, 91, 92, 93, 94
sSp = 95
vLane, vTag, vE, vT0, vT1, vT2, vT3 = 0, 1, 2, 3, 4, 6, 7
vXR = 8
vS, vQ = 12, 13
def cmul(o, d, p, q):
    o(f'v_pk_mul_f32 v[{d}:{d+1}], v[{p}:{p+1}], v[{q}:{q+1}] op_sel_hi:[0,1]')
    o(f'v_pk_fma_f32 v[{d}:{d+1}], v[{p}:{p+1}], v[{q}:{q+1}], v[{d}:{d+1}] op_sel:[1,1,0] op_sel_hi:[1,0,1] neg_lo:[1,0,0]')
def cmul2(o, dA, pA, qA, dB, pB, qB):
    o(f'v_pk_mul_f32 v[{dA}:{dA+1}], v[{pA}:{pA+1}], v[{qA}:{qA+1}] op_sel_hi:[0,1]')
    o(f'v_pk_mul_f32 v[{dB}:{dB+1}], v[{pB}:{pB+1}], v[{qB}:{qB+1}] op_sel_hi:[0,1]')
    o(f'v_pk_fma_f32 v[{dA}:{dA+1}], v[{pA}:{pA+1}], v[{qA}:{qA+1}], v[{dA}:{dA+1}] op_sel:[1,1,0] op_sel_hi:[1,0,1] neg_lo:[1,0,0]')
    o(f'v_pk_fma_f32 v[{dB}:{dB+1}], v[{pB}:{pB+1}], v[{qB}:{qB+1}], v[{dB}:{dB+1}] op_sel:[1,1,0] op_sel_hi:[1,0,1] neg_lo:[1,0,0]')
vXB = 168
vTL = 172
IMG_A = LDS_US
IMG_B = LDS_XS
def e_load(o, vm):
    o(f'buffer_load_dword v{vE}, off, s[{SRD_WS}:{SRD_WS+3}], 0 sc1'); vm.issue('E')
def make_tag(o):
    o(f's_mov_b32 s{sT0}, 0x9E3779B1')
    o(f'v_mul_lo_u32 v{vTag}, v{vE}, s{sT0}')
    o(f'v_add_u32 v{vTag}, 0x7F4A7C15, v{vTag}')
def row_loads(o, vm, woff=0):
    for j in range(4): o(f'v_mov_b32 v{vXR+j}, 0\nv_mov_b32 v{vXB+j}, 0')
    o(f's_lshl_b32 s{sT2}, s2, 3\ns_sub_u32 s{sT4}, s{sWave}, {woff}\ns_lshl_b32 s{sT4}, s{sT4}, 1\ns_add_u32 s{sT2}, s{sT2}, s{sT4}')
    o(f's_mul_i32 s{sT2}, s{sT2}, 896')
    o(f'v_lshlrev_b32 v{vT1}, 4, v0')
    o('s_mov_b32 exec_hi, 0x00ffffff')
    o(f'buffer_load_dwordx4 v[{vXR}:{vXR+3}], v{vT1}, s[{SRD_X}:{SRD_X+3}], s{sT2} offen'); vm.issue('xrow')
    o(f'buffer_load_dwordx4 v[{vXB}:{vXB+3}], v{vT1}, s[{SRD_X}:{SRD_X+3}], s{sT2} offen offset:896'); vm.issue('xrow')
    o('s_mov_b32 exec_hi, -1')
def row_stats(o, vm, woff=0):
    SA, QA, SB, QB = 12, 13, 180, 181
    vm.wait('xrow')
    make_tag(o)
    for r in (SA, QA, SB, QB): o(f'v_mov_b32 v{r}, 0')
    o(f'v_mov_b32 v{vT1}, 0x3f803f80')
    for j in range(4):
        o(f'v_dot2c_f32_bf16 v{SA}, v{vXR+j}, v{vT1}')
        o(f'v_dot2c_f32_bf16 v{QA}, v{vXR+j}, v{vXR+j}')
        o(f'v_dot2c_f32_bf16 v{SB}, v{vXB+j}, v{vT1}')
        o(f'v_dot2c_f32_bf16 v{QB}, v{vXB+j}, v{vXB+j}')
    o('s_nop 2')
    for ctl in ['row_shr:1', 'row_shr:2', 'row_shr:4', 'row_shr:8']:
        for r in (SA, QA, SB, QB): o(f'v_add_f32_dpp v{r}, v{r}, v{r} {ctl} row_mask:0xf bank_mask:0xf bound_ctrl:0')
    for ctl, rm in [('row_bcast:15', '0xa'), ('row_bcast:31', '0xc')]:
        for r in (SA, QA, SB, QB): o(f'v_add_f32_dpp v{r}, v{r}, v{r} {ctl} row_mask:{rm} bank_mask:0xf')
    RR = 192
    for S_, Q_, dst in ((SA, QA, RR), (SB, QB, RR + 2)):
        o(f'v_mul_f32 v{S_}, {hex(INV448)}, v{S_}\nv_mul_f32 v{Q_}, {hex(INV448)}, v{Q_}')
    for S_, Q_, dst in ((SA, QA, RR), (SB, QB, RR + 2)):
        o(f'v_fma_f32 v{Q_}, -v{S_}, v{S_}, v{Q_}\nv_max_f32 v{Q_}, 0, v{Q_}')
    for op in ('v_cvt_pk_bf16_f32 v{q}, v{q}, v{q}', 'v_and_b32 v{q}, 0xffff0000, v{q}', 'v_add_f32 v{q}, ' + hex(EPS) + ', v{q}',
               'v_cvt_pk_bf16_f32 v{q}, v{q}, v{q}', 'v_and_b32 v{q}, 0xffff0000, v{q}', 'v_sqrt_f32 v{q}, v{q}'):
        for Q_ in (QA, QB): o(op.format(q=Q_))
    o(f'v_mov_b32 v{RR+1}, v{vTag}\nv_mov_b32 v{RR+3}, v{vTag}')
    o(f'v_cvt_pk_bf16_f32 v{RR}, v{SA}, v{QA}\nv_cvt_pk_bf16_f32 v{RR+2}, v{SB}, v{QB}')
    o(f's_lshl_b32 s{sT0}, s2, 3\ns_sub_u32 s{sT1}, s{sWave}, {woff}\ns_lshl_b32 s{sT1}, s{sT1}, 1\ns_add_u32 s{sT0}, s{sT0}, s{sT1}')
    o(f's_lshl_b32 s{sT0}, s{sT0}, 3\ns_add_u32 s{sT0}, s{sT0}, {WS_REC}')
    o('s_mov_b32 exec_lo, 0\ns_mov_b32 exec_hi, 0x80000000')
    o(f'buffer_store_dwordx4 v[{RR}:{RR+3}], v251, s[{SRD_WS}:{SRD_WS+3}], s{sT0} offen sc1'); vm.issue('rec')
    o('s_mov_b64 exec, -1')
def tile_loads(o, vm):
    o(f's_mul_i32 s{sT2}, s{sPair}, 9363\ns_lshr_b32 s{sT2}, s{sT2}, 16')
    o(f's_mul_i32 s{sT4}, s{sT2}, 7\ns_sub_u32 s{sT4}, s{sPair}, s{sT4}')
    o(f's_mul_i32 s{sT2}, s{sT2}, {64 * 896}\ns_lshl_b32 s{sT4}, s{sT4}, 7\ns_add_u32 s{sT2}, s{sT2}, s{sT4}')
    o(f's_sub_u32 s{sT4}, s{sWave}, 4\ns_lshl_b32 s{sT4}, s{sT4}, 3')
    o(f'v_lshrrev_b32 v{vT0}, 3, v0\nv_add_u32 v{vT0}, s{sT4}, v{vT0}\nv_mul_u32_u24 v{vT0}, 896, v{vT0}')
    o(f'v_and_b32 v{vT1}, 7, v0\nv_lshlrev_b32 v{vT1}, 4, v{vT1}\nv_add_u32 v{vT0}, v{vT0}, v{vT1}')
    o(f'buffer_load_dwordx4 v[{vTL}:{vTL+3}], v{vT0}, s[{SRD_X}:{SRD_X+3}], s{sT2} offen'); vm.issue('tile')
    o(f's_add_u32 s{sT2}, s{sT2}, {32 * 896}')
    o(f'buffer_load_dwordx4 v[{vTL+4}:{vTL+7}], v{vT0}, s[{SRD_X}:{SRD_X+3}], s{sT2} offen'); vm.issue('tile')
def tile_image(o, vm):
    vm.wait('tile')
    o(f's_sub_u32 s{sT4}, s{sWave}, 4\ns_lshl_b32 s{sT4}, s{sT4}, 3')
    o(f'v_lshrrev_b32 v{vT0}, 3, v0\nv_add_u32 v{vT0}, s{sT4}, v{vT0}\nv_mul_u32_u24 v{vT0}, 144, v{vT0}')
    o(f'v_and_b32 v{vT1}, 7, v0\nv_lshlrev_b32 v{vT1}, 4, v{vT1}\nv_add_u32 v{vT0}, v{vT0}, v{vT1}')
    o(f'v_add_u32 v{vT0}, {IMG_A}, v{vT0}')
    o(f'ds_write_b128 v{vT0}, v[{vTL}:{vTL+3}]')
    o(f'ds_write_b128 v{vT0}, v[{vTL+4}:{vTL+7}] offset:{32 * 144}')
    make_tag(o)
def tile_transpose(o, vm, woff=4):
    o(f'v_lshrrev_b32 v{vT0}, 4, v0\nv_lshlrev_b32 v{vT0}, 2, v{vT0}\nv_bfe_u32 v{vT1}, v0, 2, 2\nv_add_u32 v{vT0}, v{vT0}, v{vT1}')
    o(f'v_mul_u32_u24 v{vT0}, 144, v{vT0}')
    o(f'v_and_b32 v{vT1}, 3, v0\nv_lshlrev_b32 v{vT1}, 3, v{vT1}\nv_add_u32 v{vT0}, v{vT0}, v{vT1}')
    o(f's_sub_u32 s{sT4}, s{sWave}, {woff}\ns_lshl_b32 s{sT0}, s{sT4}, 5\ns_add_u32 s{sT0}, s{sT0}, {IMG_A}')
    o(f'v_add_u32 v{vT0}, s{sT0}, v{vT0}')
    for i in range(4): o(f'ds_read_b64_tr_b16 v[{vTL+2*i}:{vTL+2*i+1}], v{vT0} offset:{16 * 144 * i}')
    o(f'v_and_b32 v{vT1}, 15, v0\nv_mul_u32_u24 v{vT1}, 144, v{vT1}')
    o(f'v_lshrrev_b32 v{vT2}, 4, v0\nv_lshlrev_b32 v{vT2}, 3, v{vT2}\nv_add_u32 v{vT1}, v{vT1}, v{vT2}')
    o(f's_mul_i32 s{sT0}, s{sT4}, {16 * 144}\ns_add_u32 s{sT0}, s{sT0}, {IMG_B}')
    o(f'v_add_u32 v{vT1}, s{sT0}, v{vT1}')
    o(f'v_lshrrev_b32 v{vT2}, 3, v0\nv_mul_u32_u24 v{vT2}, 144, v{vT2}')
    o(f'v_and_b32 v{vT3}, 7, v0\nv_lshlrev_b32 v{vT3}, 4, v{vT3}\nv_add_u32 v{vT2}, v{vT2}, v{vT3}')
    o(f'v_add_u32 v{vT2}, s{sT0}, v{vT2}')
    for i in range(4):
        o(f's_waitcnt lgkmcnt({3 - i})' if i == 0 else f's_waitcnt lgkmcnt(3)')
        o(f'ds_write_b64 v{vT1}, v[{vTL+2*i}:{vTL+2*i+1}] offset:{32 * i}')
    o(f's_mul_i32 s{sT0}, s{sPair}, 9363\ns_lshr_b32 s{sT0}, s{sT0}, 16')
    o(f's_mul_i32 s{sT1}, s{sT0}, 7\ns_sub_u32 s{sT1}, s{sPair}, s{sT1}')
    o(f's_lshl_b32 s{sT1}, s{sT1}, 5\ns_add_u32 s{sT0}, s{sT0}, s{sT1}\ns_lshl_b32 s{sT0}, s{sT0}, 13')
    o(f's_lshl_b32 s{sT1}, s{sT4}, 11\ns_add_u32 s{sT0}, s{sT0}, s{sT1}')
    o(f's_add_u32 s{sT1}, s{sT0}, {WS_T2}\ns_add_u32 s{sT0}, s{sT0}, {WS_T}')
    o(f'v_lshlrev_b32 v{vT0}, 4, v0')
    o('s_waitcnt lgkmcnt(0)')
    o(f'ds_read_b128 v[{vTL}:{vTL+3}], v{vT2}')
    o(f'ds_read_b128 v[{vTL+4}:{vTL+7}], v{vT2} offset:{8 * 144}')
    X2 = 184
    for h in range(2):
        o(f's_waitcnt lgkmcnt({1 - h})')
        o(f'buffer_store_dwordx4 v[{vTL+4*h}:{vTL+4*h+3}], v{vT0}, s[{SRD_WS}:{SRD_WS+3}], s{sT0} offen offset:{1024*h} sc1'); vm.issue('ts')
        for j in range(4): o(f'v_xor_b32 v{X2+4*h+j}, v{vTL+4*h+j}, v{vTag}')
        o(f'buffer_store_dwordx4 v[{X2+4*h}:{X2+4*h+3}], v{vT0}, s[{SRD_WS}:{SRD_WS+3}], s{sT1} offen offset:{1024*h} sc1'); vm.issue('ts')
def seed(o, dst, ar2, ai2, t, tmp, conj=False):
    o(f'v_mul_f32 v{tmp}, {float(t)}, v{ar2}' if t in (1, 2, 4) else f'v_mul_f32 v{tmp}, {hex(f32(t))}, v{ar2}')
    o(f'v_mul_f32 v{tmp+1}, {float(t)}, v{ai2}' if t in (1, 2, 4) else f'v_mul_f32 v{tmp+1}, {hex(f32(t))}, v{ai2}')
    o(f'v_exp_f32 v{tmp}, v{tmp}')
    o(f'v_fract_f32 v{tmp+1}, v{tmp+1}')
    o('s_nop 0')
    o(f'v_cos_f32 v{dst}, v{tmp+1}')
    o(f'v_sin_f32 v{dst+1}, v{tmp+1}')
    o('s_nop 0')
    o(f'v_mul_f32 v{dst}, v{tmp}, v{dst}')
    if conj: o(f'v_mul_f32 v{dst+1}, -v{dst+1}, v{tmp}'.replace('v_mul_f32', 'v_mul_f32_e64'))
    else: o(f'v_mul_f32 v{dst+1}, v{tmp}, v{dst+1}')
import struct
def f32(x): return struct.unpack('<I', struct.pack('<f', float(x)))[0]
def compute_dt(o, vdt):
    o(f's_lshl_b32 s{sT0}, s{sLdtV}, 16')
    o(f's_and_b32 s{sT1}, s{sLdtV}, 0xffff0000')
    o(f's_cmp_eq_u32 s{sCh}, 0')
    o(f's_cselect_b32 s{sT0}, s{sT0}, s{sT1}')
    o(f'v_mov_b32 v{vdt}, s{sT0}')
    o(f'v_mul_f32 v{vdt}, {hex(LOG2E)}, v{vdt}')
    o(f'v_exp_f32 v{vdt}, v{vdt}')
    o('s_nop 0')
    o(f'v_cvt_pk_bf16_f32 v{vdt}, v{vdt}, v{vdt}')
    o(f'v_and_b32 v{vdt}, 0xffff0000, v{vdt}')
def unpack(o, dlo, dhi, src):
    o(f'v_lshlrev_b32 v{dlo}, 16, v{src}')
    o(f'v_and_b32 v{dhi}, 0xffff0000, v{src}')
class RowWriter:
    def __init__(self, o, vaddr, out0): self.o, self.va, self.out0, self.n = o, vaddr, out0, 0
    def write(self, rows, cA, cB):
        r = self.out0 + 2 * (self.n % 4); self.n += 1
        self.o(f'v_cvt_pk_bf16_f32 v{r}, v{cA}, v{cA+1}')
        self.o(f'v_cvt_pk_bf16_f32 v{r+1}, v{cB}, v{cB+1}')
        for m in rows: self.o(f'ds_write_b64 v{self.va}, v[{r}:{r+1}] offset:{m * 528}')
def stamp(o, on, idx):
    if on: o(f's_memtime s[{96 + 0}:{97}]'); o('s_waitcnt lgkmcnt(0)'); o(f'v_writelane_b32 v255, s96, {idx}')

def gen_ab(o, stamps=False):
    kernel_begin(o, NAME)
    o('s_cmp_ge_u32 s2, 256')
    o('s_cbranch_scc1 LA_end')
    o('s_load_dwordx16 s[8:23], s[0:1], 0')
    o(f's_load_dwordx2 s[{sDsk}:{sDsk+1}], s[0:1], 64')
    o(f's_load_dwordx4 s[{sWg}:{sWg+3}], s[0:1], 80')
    o(f's_load_dwordx2 s[{sWd}:{sWd+1}], s[0:1], 96')
    o(f's_load_dwordx4 s[{sDbg}:{sDbg+3}], s[0:1], 112')
    if stamps: o('v_mov_b32 v255, 0'); o('s_memtime s[98:99]')
    o(f'v_lshrrev_b32 v{vT0}, 6, v0')
    o('v_and_b32 v0, 63, v0')
    o(f'v_readfirstlane_b32 s{sWave}, v{vT0}')
    o(f's_and_b32 s{sT0}, s2, 7')
    o(f's_lshr_b32 s{sT1}, s2, 3')
    if PREFETCH: code_prefetch(o, NAME, 'code_end', sT1, sWave, 8, 240, 244, 96, 'ab')
    o(f's_mul_i32 s{sPair}, s{sT0}, 28')
    o(f's_add_u32 s{sPair}, s{sPair}, s{sT1}')
    o(f's_lshl_b32 s{sSp}, s{sT0}, 2')
    o(f's_add_u32 s{sSp}, s{sSp}, s{sT1}')
    o(f's_sub_u32 s{sSp}, s{sSp}, 28')
    o(f's_lshr_b32 s{sCh}, s{sWave}, 1')
    o(f's_and_b32 s{sCh}, s{sCh}, 1')
    o(f's_and_b32 s{sMh}, s{sWave}, 1')
    o('v_mov_b32 v250, 0\nv_mov_b32 v251, 0')
    o('s_waitcnt lgkmcnt(0)')
    srd(o, SRD_X, sX, 1835008)
    srd(o, SRD_WS, sWs, WS_END)
    vm = VM(o)
    o(f's_cmp_ge_u32 s{sT1}, 28')
    o('s_cbranch_scc1 LA_spare')
    if SWAP_ROLES: o(f's_xor_b32 s{sWave}, s{sWave}, 4')
    o(f's_lshl_b32 s{sT2}, s{sPair}, 2')
    o(f's_load_dword s{sLdtV}, s[{sLdt}:{sLdt+1}], s{sT2}')
    o(f's_load_dword s{sDskV}, s[{sDsk}:{sDsk+1}], s{sT2}')
    o(f's_lshl_b32 s{sT2}, s{sPair}, 1')
    o(f's_add_u32 s{sT2}, s{sT2}, s{sCh}')
    o(f's_lshl_b32 s{sT3}, s{sT2}, 9')
    o(f's_lshl_b32 s{sT4}, s{sMh}, 8')
    o(f's_add_u32 s{sT3}, s{sT3}, s{sT4}')
    o(f'v_lshlrev_b32 v{vT2}, 2, v0')
    o(f's_cmp_ge_u32 s{sWave}, 4')
    o('s_cbranch_scc1 LA_nwave')
    gen_mwave(o, vm.q[:], stamps)
    o.label('LA_nwave')
    gen_nwave(o, vm.q[:], stamps)
    o.label('LA_spare')
    gen_spare(o, vm.q[:], stamps)
    o.label('LA_end')
    o('s_endpgm')

def finish(o, stamps):
    if stamps:
        o('s_waitcnt vmcnt(0) lgkmcnt(0)')
        stamp(o, True, 15)
        o('v_writelane_b32 v255, s98, 14')
        srd(o, 44, sWs, 0x40000, 0x1820000)
        o(f's_lshl_b32 s{sT0}, s2, 3\ns_add_u32 s{sT0}, s{sT0}, s{sWave}\ns_lshl_b32 s{sT0}, s{sT0}, 6')
        o(f'v_lshlrev_b32 v254, 2, v0')
        o('s_mov_b64 exec, 0xffff')
        o(f'buffer_store_dword v255, v254, s[44:47], s{sT0} offen')
    o('s_endpgm')

def gen_mwave(o, q0, stamps):
    vm = VM(o); vm.q = q0
    P = 16
    e_load(o, vm)
    for i, p in enumerate([sAre, sAim, sBre, sBim, sCre, sCim]):
        srd(o, SRD_P[i], p, 229376)
        o(f'buffer_load_dword v{P+i}, v{vT2}, s[{SRD_P[i]}:{SRD_P[i]+3}], s{sT3} offen'); vm.issue('par')
    vm.wait('E')
    make_tag(o)
    o('s_waitcnt lgkmcnt(0)')
    o('s_barrier')
    tile_transpose(o, vm, 0)
    stamp(o, stamps, 0)
    vm.wait('par')
    o('s_waitcnt lgkmcnt(0)')
    o(f's_cmp_eq_u32 s{sWave}, 3')
    o('s_cbranch_scc0 LM_noat')
    epoch_atomic(o)
    o.label('LM_noat')
    vdt = 22
    compute_dt(o, vdt)
    U = 24
    for i in range(6): unpack(o, U + 2*i, U + 2*i + 1, P + i)
    for i in range(4): o(f'v_mul_f32 v{U+i}, v{vdt}, v{U+i}')
    for i in range(4, 8): o(f'v_mul_f32 v{U+i}, v{vdt}, v{U+i}')
    o(f'v_mul_f32 v{U}, {hex(LOG2E)}, v{U}\nv_mul_f32 v{U+1}, {hex(LOG2E)}, v{U+1}')
    o(f'v_mul_f32 v{U+2}, {hex(INV2PI)}, v{U+2}\nv_mul_f32 v{U+3}, {hex(INV2PI)}, v{U+3}')
    X0 = 36; X2 = 40; X4 = 44; X6 = 48; X8 = 52; E1 = 56; CUR = 60; CU2 = 64
    Pw = {k: 68 + 4 * (k - 1) for k in range(1, 8)}
    TMP = 96; OUT = 100
    for mu in range(2):
        bre, bim, cre, cim = U + 4 + mu, U + 6 + mu, U + 8 + mu, U + 10 + mu
        w = X0 + 2 * mu
        o(f'v_mul_f32 v{w}, v{cre}, v{bre}')
        o(f'v_mul_f32 v{w+1}, v{cre}, v{bim}')
        o(f'v_fma_f32 v{w}, -v{cim}, v{bim}, v{w}')
        o(f'v_fma_f32 v{w+1}, v{cim}, v{bre}, v{w+1}')
    for mu in range(2):
        seed(o, E1 + 2*mu, U + mu, U + 2 + mu, 1, TMP + 2*mu)
        seed(o, Pw[1] + 2*mu, U + mu, U + 2 + mu, 256, TMP + 2*mu)
    stamp(o, stamps, 1)
    vTab = 108
    o(f's_lshl_b32 s{sT0}, s{sCh}, 1\ns_add_u32 s{sT0}, s{sT0}, s{sMh}\ns_mul_i32 s{sT0}, s{sT0}, {TAB}')
    o(f'v_lshlrev_b32 v{vTab}, 3, v0\nv_add_u32 v{vTab}, s{sT0}, v{vTab}')
    rw = RowWriter(o, vTab, OUT)
    def c2(d, p, q): cmul2(o, d, p, q, d + 2, p + 2, q + 2)
    rw.write([0], X0, X0 + 2)
    keep = {0: X0, 2: X2, 4: X4, 6: X6, 8: X8}
    prev = X0
    for t in range(1, 9):
        d = keep.get(t, CUR)
        c2(d, prev, E1)
        rows = [t] if t < 8 else [12]
        if t == 4: rows = [4, 8]
        rw.write(rows, d, d + 2)
        prev = d
    c2(Pw[2], Pw[1], Pw[1]); c2(Pw[3], Pw[2], Pw[1]); c2(Pw[4], Pw[2], Pw[2])
    c2(Pw[5], Pw[4], Pw[1]); c2(Pw[6], Pw[4], Pw[2]); c2(Pw[7], Pw[4], Pw[3])
    alt = [CUR, CU2]; n = 0
    def prod(rows, xs, pk):
        nonlocal n
        d = alt[n % 2]; n += 1
        c2(d, keep[xs], Pw[pk]); rw.write(rows, d, d + 2)
    prod([9], 0, 1); prod([10], 2, 1); prod([11, 13], 4, 1); prod([14], 6, 1); prod([15], 8, 1)
    prod([16], 0, 2); prod([17], 4, 2); prod([18], 8, 2)
    prod([20], 0, 3); prod([21], 4, 3); prod([22], 8, 3)
    prod([19], 0, 4); prod([24], 8, 4)
    prod([25], 0, 5); prod([26], 8, 5)
    prod([23], 0, 6); prod([28], 8, 6)
    prod([29], 0, 7); prod([30], 8, 7)
    vA, vB = 109, 110
    o(f'v_and_b32 v{vT0}, 31, v0\nv_mul_u32_u24 v{vT0}, 528, v{vT0}')
    o(f'v_lshrrev_b32 v{vT1}, 5, v0\nv_lshlrev_b32 v{vT1}, 4, v{vT1}')
    o(f'v_add3_u32 v{vA}, v{vT0}, v{vT1}, s{sT0}')
    o(f'v_add_u32 v{vB}, {4 * TAB}, v{vA}')
    AF = 64; ACC = 32; BB = 192; vKA = [208, 209, 210, 211]; vBa = 212
    vR, vHh = 213, 214
    o(f'v_and_b32 v{vR}, 15, v0\nv_lshrrev_b32 v{vHh}, 4, v0')
    o(f'v_and_b32 v{vT0}, 1, v{vR}')
    o(f'v_add_u32 v{vT1}, v{vR}, v{vT0}')
    o(f'v_mul_u32_u24 v{vT0}, {KR_COPY}, v{vT0}')
    o(f'v_lshlrev_b32 v{vT1}, 1, v{vT1}')
    o(f'v_sub_u32 v{vT0}, v{vT0}, v{vT1}')
    o(f'v_lshlrev_b32 v{vT1}, 4, v{vHh}')
    o(f'v_add_u32 v{vT0}, v{vT0}, v{vT1}')
    o(f's_mul_i32 s{sT1}, s{sCh}, {KR_CH}')
    o(f's_lshl_b32 s{sT2}, s{sMh}, 6')
    o(f's_sub_u32 s{sT1}, s{sT1}, s{sT2}')
    o(f's_add_u32 s{sT1}, s{sT1}, {2 * 2032}')
    for g in range(4):
        o(f's_sub_u32 s{sT3}, s{sT1}, {128 * (8 * g + 7)}')
        o(f'v_add_u32 v{vKA[g]}, s{sT3}, v{vT0}')
    o(f'v_lshlrev_b32 v{vT0}, 5, v{vR}\nv_lshlrev_b32 v{vT1}, 4, v{vHh}\nv_add_u32 v{vT0}, v{vT0}, v{vT1}')
    o(f's_mul_i32 s{sT1}, s{sCh}, 4608')
    o(f's_sub_u32 s{sT1}, s{sT1}, s{sT2}')
    o(f's_add_u32 s{sT1}, s{sT1}, {LDS_US + 480 + 64 * 56 - 128 * 31}')
    o(f'v_add_u32 v{vBa}, s{sT1}, v{vT0}')
    vCx = 215
    o(f's_lshl_b32 s{sT1}, s{sWave}, 12')
    o(f's_add_u32 s{sT1}, s{sT1}, {LDS_CX}')
    o(f'v_lshlrev_b32 v{vCx}, 4, v0\nv_add_u32 v{vCx}, s{sT1}, v{vCx}')
    vCp = 220
    o(f's_xor_b32 s{sT1}, s{sWave}, 1\ns_lshl_b32 s{sT1}, s{sT1}, 12\ns_add_u32 s{sT1}, s{sT1}, {LDS_CX}')
    o(f'v_lshlrev_b32 v{vCp}, 4, v0\nv_add_u32 v{vCp}, s{sT1}, v{vCp}')
    vU, vXs, vO = 216, 217, 218
    o(f'v_lshlrev_b32 v{vT0}, 5, v{vR}\nv_lshlrev_b32 v{vT1}, 3, v{vHh}\nv_add_u32 v{vT0}, v{vT0}, v{vT1}')
    o(f's_lshl_b32 s{sT2}, s{sMh}, 11')
    o(f's_mul_i32 s{sT1}, s{sCh}, 4608\ns_add_u32 s{sT1}, s{sT1}, s{sT2}\ns_add_u32 s{sT1}, s{sT1}, {LDS_US + 512}')
    o(f'v_add_u32 v{vU}, s{sT1}, v{vT0}')
    o(f's_lshl_b32 s{sT1}, s{sCh}, 12\ns_add_u32 s{sT1}, s{sT1}, s{sT2}\ns_add_u32 s{sT1}, s{sT1}, {LDS_XS}')
    o(f'v_add_u32 v{vXs}, s{sT1}, v{vT0}')
    o(f's_lshl_b32 s{sT1}, s{sPair}, 1\ns_add_u32 s{sT1}, s{sT1}, s{sCh}\ns_lshl_b32 s{sT1}, s{sT1}, 6')
    o(f's_mul_i32 s{sT2}, s{sMh}, {32 * 28672}')
    o(f's_add_u32 s{sT1}, s{sT1}, s{sT2}\ns_add_u32 s{sT4}, s{sT1}, {WS_HT}')
    vHo = 219
    o(f'v_lshrrev_b32 v{vHo}, 1, v{vR}\nv_mul_u32_u24 v{vHo}, 28672, v{vHo}')
    o(f'v_and_b32 v{vT1}, 1, v{vR}\nv_lshlrev_b32 v{vT1}, 5, v{vT1}\nv_add_u32 v{vHo}, v{vHo}, v{vT1}')
    o(f'v_lshlrev_b32 v{vT1}, 3, v{vHh}\nv_add_u32 v{vHo}, v{vHo}, v{vT1}')
    o(f's_lshl_b32 s{sT1}, s{sDskV}, 16\ns_and_b32 s{sT2}, s{sDskV}, 0xffff0000')
    o(f's_cmp_eq_u32 s{sCh}, 0\ns_cselect_b32 s{sT5}, s{sT1}, s{sT2}')
    o('s_waitcnt lgkmcnt(0)')
    stamp(o, stamps, 2)
    o('s_barrier')
    FR = 112; KD = 16
    def rd(kk):
        b = FR + 8 * (kk % 4)
        o(f'ds_read_b128 v[{b}:{b+3}], v{vA} offset:{kk * 32}')
        o(f'ds_read_b128 v[{b+4}:{b+7}], v{vB} offset:{kk * 32}')
    for kk in range(3): rd(kk)
    for kk in range(16):
        if kk + 3 < 16: rd(kk + 3)
        o(f's_waitcnt lgkmcnt({2 * min(3, 15 - kk)})')
        b = FR + 8 * (kk % 4)
        c = '0' if kk == 0 else f'v[{KD}:{KD+15}]'
        o(f'v_mfma_f32_32x32x16_bf16 v[{KD}:{KD+15}], v[{b}:{b+3}], v[{b+4}:{b+7}], {c}')
    vEx = 111
    o(f's_add_u32 s{sT1}, s{sWave}, 4\ns_mul_i32 s{sT1}, s{sT1}, {TAB}')
    o(f'v_lshlrev_b32 v{vEx}, 4, v0\nv_add_u32 v{vEx}, s{sT1}, v{vEx}')
    o(f's_xor_b32 s{sT2}, s{sWave}, 1\ns_add_u32 s{sT2}, s{sT2}, 4\ns_mul_i32 s{sT2}, s{sT2}, {TAB}')
    o(f'v_lshlrev_b32 v106, 4, v0\nv_add_u32 v106, s{sT2}, v106')
    o('s_nop 7\ns_nop 3')
    o(f's_cmp_eq_u32 s{sMh}, 0')
    o('s_cbranch_scc0 LM_send1')
    o(f'ds_write_b128 v{vEx}, v[{KD+8}:{KD+11}]\nds_write_b128 v{vEx}, v[{KD+12}:{KD+15}] offset:1024')
    o('s_branch LM_sent')
    o.label('LM_send1')
    o(f'ds_write_b128 v{vEx}, v[{KD}:{KD+3}]\nds_write_b128 v{vEx}, v[{KD+4}:{KD+7}] offset:1024')
    o.label('LM_sent')
    o(f'v_mov_b32 v{vEx}, v106')
    o('s_waitcnt lgkmcnt(0)')
    stamp(o, stamps, 3)
    o('s_barrier')
    R = 32
    o(f'ds_read_b128 v[{R}:{R+3}], v{vEx}\nds_read_b128 v[{R+4}:{R+7}], v{vEx} offset:1024')
    vK = 40; vJ = 41; vH = 42; O = 44
    o(f'v_and_b32 v{vJ}, 31, v0\nv_lshrrev_b32 v{vH}, 5, v0')
    o(f's_mul_i32 s{sT1}, s{sCh}, {KR_CH}')
    o(f's_cmp_eq_u32 s{sMh}, 0')
    o('s_cbranch_scc0 LM_exp1')
    o(f'v_lshlrev_b32 v{vK}, 4, v{vJ}\nv_lshlrev_b32 v{vT0}, 3, v{vH}\nv_add_u32 v{vK}, v{vK}, v{vT0}')
    o(f'v_sub_u32 v{vK}, 4088, v{vK}\nv_add_u32 v{vK}, s{sT1}, v{vK}')
    o('s_waitcnt lgkmcnt(0)')
    for j in range(8): o(f'v_add_f32 v{KD+j}, v{KD+j}, v{R+j}')
    a0, a1, a2, a3, a4, sa, sb, sc = [KD + j for j in range(8)]
    cv = lambda d, lo, hi: o(f'v_cvt_pk_bf16_f32 v{d}, v{lo}, v{hi}')
    cv(O, a3, a2); cv(O+1, a1, a0); cv(O+2, a4, a3); cv(O+3, a2, a1)
    o(f'ds_write_b64 v{vK}, v[{O}:{O+1}] offset:{KR_COPY}')
    o(f'ds_write_b64 v{vK}, v[{O+2}:{O+3}]')
    cv(O+4, sc, sb); cv(O+5, sa, sa); cv(O+6, sc, sc); cv(O+7, sb, sa)
    o(f'v_subrev_u32 v{vK}, 512, v{vK}')
    o(f'ds_write_b64 v{vK}, v[{O+4}:{O+5}] offset:{KR_COPY}')
    o(f'ds_write_b64 v{vK}, v[{O+6}:{O+7}]')
    o(f'v_mov_b32 v{O+8}, 0')
    cv(O+9, a0, O+8)
    o(f'v_cmp_eq_u32 vcc, 0, v0')
    o(f'v_lshlrev_b32 v{vT0}, 2, v0')
    o(f'v_add_u32 v{vT0}, s{sT1}, v{vT0}')
    o(f'v_cndmask_b32 v{O+9}, v{O+8}, v{O+9}, vcc')
    o('s_mov_b64 exec, 0xff')
    o(f'ds_write_b32 v{vT0}, v{O+9} offset:4096')
    o(f'ds_write_b32 v{vT0}, v{O+8} offset:{4096 + KR_COPY}')
    o('s_mov_b64 exec, -1')
    o('s_branch LM_expd')
    o.label('LM_exp1')
    o(f'v_lshlrev_b32 v{vK}, 4, v{vJ}\nv_lshlrev_b32 v{vT0}, 9, v{vH}\nv_add_u32 v{vK}, v{vK}, v{vT0}')
    o(f'v_sub_u32 v{vK}, {4080 - 1024}, v{vK}\nv_add_u32 v{vK}, s{sT1}, v{vK}')
    vK3 = 43
    o(f'v_lshlrev_b32 v{vK3}, 4, v{vJ}\nv_lshlrev_b32 v{vT0}, 10, v{vH}\nv_add_u32 v{vK3}, v{vK3}, v{vT0}')
    o(f'v_sub_u32 v{vK3}, {4080 - 2048 - 512}, v{vK3}\nv_add_u32 v{vK3}, s{sT1}, v{vK3}')
    o(f'v_and_b32 v{vT0}, 1, v{vJ}')
    o(f'v_cmp_eq_u32 vcc, 0, v{vT0}')
    o('s_waitcnt lgkmcnt(0)')
    for j in range(8): o(f'v_add_f32 v{KD+8+j}, v{KD+8+j}, v{R+j}')
    T0, T1, T2 = KD + 8, KD + 9, KD + 10
    cv(O, T2, T2); cv(O+1, T1, T1); cv(O+2, T1, T0); cv(O+3, T0, T0)
    o(f'ds_write_b128 v{vK}, v[{O}:{O+3}] offset:{KR_COPY}')
    cv(O+4, T2, T2); cv(O+5, T2, T1); cv(O+6, T1, T1); cv(O+7, T0, T0)
    o(f'ds_write_b128 v{vK}, v[{O+4}:{O+7}]')
    for ii in range(2):
        t0, t1 = KD + 11 + 2*ii, KD + 12 + 2*ii
        sel = O + 16
        q = O + 8 * (ii + 1) if ii == 0 else O
        o(f'v_cndmask_b32 v{sel}, v{t1}, v{t0}, vcc')
        off = 512 if ii == 0 else 0
        cv(q, t1, t1); cv(q+1, t1, sel); cv(q+2, t0, t0); cv(q+3, t0, t0)
        o(f'ds_write_b128 v{vK3}, v[{q}:{q+3}] offset:{KR_COPY + off}')
        cv(q+4, t1, t1); cv(q+5, t1, t1); cv(q+6, sel, t0); cv(q+7, t0, t0)
        o(f'ds_write_b128 v{vK3}, v[{q+4}:{q+7}] offset:{off}')
    o.label('LM_expd')
    o('s_waitcnt lgkmcnt(0)')
    stamp(o, stamps, 4)
    o('s_barrier')
    def rdA(sg):
        d = AF + 4 * sg; g = sg // 8; off = 32 * (7 - (sg - 8 * g))
        o(f'ds_read2_b32 v[{d}:{d+1}], v{vKA[g]} offset0:{off} offset1:{off+1}')
        o(f'ds_read2_b32 v[{d+2}:{d+3}], v{vKA[g]} offset0:{off+2} offset1:{off+3}')
    def rdB(t):
        d = BB + 4 * (t % 4)
        o(f'ds_read_b128 v[{d}:{d+3}], v{vBa} offset:{128 * (31 - t)}')
    NBB = LA + 1 if LA > 3 else 4
    def rdA_ops(sg):
        d = AF + 4 * sg; g = sg // 8; off = 32 * (7 - (sg - 8 * g))
        if X_NOA: return ['s_nop 0', 's_nop 0']
        return [f'ds_read2_b32 v[{d}:{d+1}], v{vKA[g]} offset0:{off} offset1:{off+1}',
                f'ds_read2_b32 v[{d+2}:{d+3}], v{vKA[g]} offset0:{off+2} offset1:{off+3}']
    def rdB_op(t):
        d = BB + 4 * (t % NBB)
        if X_NOB: return 's_nop 0'
        return f'ds_read_b128 v[{d}:{d+3}], v{vBa} offset:{128 * (31 - t)}'
    for t in range(LA):
        for op in rdA_ops(t): o(op)
        o(rdB_op(t))
    started = set()
    for t in range(32):
        o(f's_waitcnt lgkmcnt({(3 - 2 * X_NOA - X_NOB) * min(LA - 1, 31 - t)})')
        pend = (rdA_ops(t + LA) + [rdB_op(t + LA)]) if t + LA < 32 else []
        cmin = max(0, -(-(28 - t) // 4))
        for c in range(7, cmin - 1, -1):
            sg = 4 * c - 28 + t
            ac = ACC + 4 * c
            cc = f'v[{ac}:{ac+3}]' if c in started else '0'
            started.add(c)
            if not X_NOM: o(f'v_mfma_f32_16x16x32_bf16 v[{ac}:{ac+3}], v[{AF+4*sg}:{AF+4*sg+3}], v[{BB+4*(t%NBB)}:{BB+4*(t%NBB)+3}], {cc}')
            if pend: o(pend.pop(0))
        for op in pend: o(op)
    stamp(o, stamps, 5)
    UB = 64; XB = 72; PB = 80; W = 96
    vDk = 222
    o(f'v_mov_b32 v{vDk}, s{sT5}')
    for j in range(4): o(f'ds_read_b64 v[{UB+2*j}:{UB+2*j+1}], v{vU} offset:{512*j}')
    o('s_nop 3')
    o(f's_cmp_eq_u32 s{sMh}, 0')
    o('s_cbranch_scc0 LM_cx1')
    for par in range(2):
        keep = ACC + 16 * par; send = ACC + 16 * (1 - par)
        if par: o.label('LM_cx1')
        for j in range(4): o(f'ds_write_b128 v{vCx}, v[{send+4*j}:{send+4*j+3}] offset:{1024*j}')
        o('s_waitcnt lgkmcnt(0)')
        o('s_barrier')
        for j in range(4): o(f'ds_read_b64 v[{XB+2*j}:{XB+2*j+1}], v{vXs} offset:{512*j}')
        for j in range(4): o(f'ds_read_b128 v[{PB+4*j}:{PB+4*j+3}], v{vCp} offset:{1024*j}')
        for j in range(4):
            unpack(o, W, W+1, UB+2*j); unpack(o, W+2, W+3, UB+2*j+1)
            for e in (0, 2): o(f'v_pk_fma_f32 v[{keep+4*j+e}:{keep+4*j+e+1}], v[{W+e}:{W+e+1}], v[{vDk}:{vDk+1}], v[{keep+4*j+e}:{keep+4*j+e+1}] op_sel_hi:[1,0,1]')
        so = sT4
        for j in range(4):
            o(f's_waitcnt lgkmcnt({3-j})')
            unpack(o, W+4, W+5, XB+2*j); unpack(o, W+6, W+7, XB+2*j+1)
            for e in (0, 2): o(f'v_pk_add_f32 v[{keep+4*j+e}:{keep+4*j+e+1}], v[{keep+4*j+e}:{keep+4*j+e+1}], v[{PB+4*j+e}:{PB+4*j+e+1}]')
            for e in (0, 2): o(f'v_pk_add_f32 v[{keep+4*j+e}:{keep+4*j+e+1}], v[{keep+4*j+e}:{keep+4*j+e+1}], v[{W+4+e}:{W+4+e+1}]')
            d = W + 8 + 2 * j
            cv(d, keep+4*j, keep+4*j+1); cv(d+1, keep+4*j+2, keep+4*j+3)
            o(f'buffer_store_dwordx2 v[{d}:{d+1}], v{vHo}, s[{SRD_WS}:{SRD_WS+3}], s{so} offen {HST}')
            if j < 3: o(f's_add_u32 s{so}, s{so}, {8 * 28672}')
        if par == 0:
            stamp(o, stamps, 6)
            finish(o, stamps)
    stamp(o, stamps, 6)
    finish(o, stamps)

def gen_nwave(o, q0, stamps):
    vm = VM(o); vm.q = q0
    P = 16
    o(f'v_mov_b32 v20, v{vT2}')
    e_load(o, vm)
    tile_loads(o, vm)
    row_loads(o, vm, 4)
    for i, p in enumerate([sAre, sAim]): srd(o, SRD_P[i], p, 229376)
    for i in range(2):
        o(f'buffer_load_dword v{P+i}, v20, s[{SRD_P[i]}:{SRD_P[i]+3}], s{sT3} offen'); vm.issue('par')
    sNw, sSb, sKk, sKt, sDb, sL = 52, 53, 54, 55, 56, 57
    o(f's_lshl_b32 s{sNw}, s{sPair}, 2\ns_add_u32 s{sNw}, s{sNw}, s{sWave}\ns_sub_u32 s{sNw}, s{sNw}, 4')
    o(f's_min_u32 s{sT0}, s{sNw}, 783')
    o(f's_mul_i32 s{sSb}, s{sT0}, 2341\ns_lshr_b32 s{sSb}, s{sSb}, 16')
    o(f's_mul_i32 s{sKk}, s{sSb}, 28\ns_sub_u32 s{sKk}, s{sT0}, s{sKk}')
    o(f's_mul_i32 s{sKt}, s{sT0}, 9363\ns_lshr_b32 s{sKt}, s{sKt}, 16')
    o(f's_mul_i32 s{sDb}, s{sKt}, 7\ns_sub_u32 s{sDb}, s{sT0}, s{sDb}')
    o(f's_sub_u32 s{sL}, s{sWave}, 4\ns_mul_i32 s{sL}, s{sL}, 6144\ns_add_u32 s{sL}, s{sL}, {LDS_RP}')
    srd(o, SRD_WG, sWg, 1605632); srd(o, SRD_WU, sWu, 1605632); srd(o, SRD_WD, sWd, 1605632)
    tile_image(o, vm)
    o('s_waitcnt lgkmcnt(0)')
    o('s_barrier')
    stamp(o, stamps, 0)
    row_stats(o, vm, 4)
    vm.wait('par')
    G = 128; vG0, vTp = 24, 26
    o(f's_sub_u32 s{sT0}, s{sWave}, 4\ns_lshl_b32 s{sT0}, s{sT0}, 6')
    o(f'v_add_u32 v{vTp}, s{sT0}, v0')
    o(f'v_lshrrev_b32 v{vG0}, 4, v{vTp}\nv_lshlrev_b32 v{vG0}, 13, v{vG0}')
    o(f'v_and_b32 v{vT0}, 15, v{vTp}\nv_lshlrev_b32 v{vT0}, 4, v{vT0}\nv_add_u32 v{vG0}, v{vG0}, v{vT0}')
    o(f's_lshr_b32 s{sT1}, s{sPair}, 5\ns_lshl_b32 s{sT1}, s{sT1}, 18')
    o(f's_and_b32 s{sT2}, s{sPair}, 31\ns_lshl_b32 s{sT2}, s{sT2}, 8\ns_add_u32 s{sT1}, s{sT1}, s{sT2}')
    o(f'v_add_u32 v{vG0}, s{sT1}, v{vG0}')
    o(f'v_add_u32 v25, {16 * 8192}, v{vG0}')
    vdt = 22
    compute_dt(o, vdt)
    U = 28
    for i in range(2): unpack(o, U + 2*i, U + 2*i + 1, P + i)
    for i in range(4): o(f'v_mul_f32 v{U+i}, v{vdt}, v{U+i}')
    o(f'v_mul_f32 v{U}, {hex(LOG2E)}, v{U}\nv_mul_f32 v{U+1}, {hex(LOG2E)}, v{U+1}')
    o(f'v_mul_f32 v{U+2}, {hex(INV2PI)}, v{U+2}\nv_mul_f32 v{U+3}, {hex(INV2PI)}, v{U+3}')
    E8 = 36; YA = 40; YB = 44; TMP = 48; OUT = 52; vTab = 60
    for mu in range(2): seed(o, E8 + 2*mu, U + mu, U + 2 + mu, 8, TMP + 2*mu, conj=True)
    stamp(o, stamps, 1)
    o(f's_lshl_b32 s{sT0}, s{sCh}, 1\ns_add_u32 s{sT0}, s{sT0}, s{sMh}\ns_add_u32 s{sT0}, s{sT0}, 4\ns_mul_i32 s{sT0}, s{sT0}, {TAB}')
    o(f'v_lshlrev_b32 v{vTab}, 3, v0\nv_add_u32 v{vTab}, s{sT0}, v{vTab}')
    o(f'v_mov_b32 v{YA}, 0x3f80\nv_mov_b32 v{YA+1}, 0x3f80')
    o(f'ds_write_b64 v{vTab}, v[{YA}:{YA+1}]')
    rw = RowWriter(o, vTab, OUT)
    rw.write([1], E8, E8 + 2)
    E16 = 200; YC = 204; YD = 208
    RP = 144
    def rp_loads():
        vGu, vDn = 20, 21
        o(f'v_lshrrev_b32 v{vT0}, 3, v0\nv_and_b32 v{vT1}, 7, v0\nv_lshlrev_b32 v{vT1}, 4, v{vT1}')
        o(f'v_mul_u32_u24 v{vGu}, 3584, v{vT0}\nv_add_u32 v{vGu}, v{vGu}, v{vT1}')
        o(f'v_mul_u32_u24 v{vDn}, 896, v{vT0}\nv_add_u32 v{vDn}, v{vDn}, v{vT1}')
        o(f's_mul_i32 s{sT1}, s{sKk}, {16 * 3584}\ns_lshl_b32 s{sT2}, s{sSb}, 7\ns_add_u32 s{sT1}, s{sT1}, s{sT2}')
        o(f's_add_u32 s{sT2}, s{sT1}, {8 * 3584}')
        for mat, sr in enumerate([SRD_WG, SRD_WU]):
            for i in range(2):
                d = RP + 8 * mat + 4 * i
                o(f'buffer_load_dwordx4 v[{d}:{d+3}], v{vGu}, s[{sr}:{sr+3}], s{sT1 if i == 0 else sT2} offen'); vm.issue('rp')
        o(f's_mul_i32 s{sT1}, s{sKt}, {16 * 896}\ns_lshl_b32 s{sT2}, s{sDb}, 7\ns_add_u32 s{sT1}, s{sT1}, s{sT2}')
        o(f's_add_u32 s{sT2}, s{sT1}, {8 * 896}')
        for i in range(2):
            d = RP + 16 + 4 * i
            o(f'buffer_load_dwordx4 v[{d}:{d+3}], v{vDn}, s[{SRD_WD}:{SRD_WD+3}], s{sT1 if i == 0 else sT2} offen'); vm.issue('rp')

    RC = 64; vRa = 27
    o(f'v_lshlrev_b32 v{vRa}, 4, v{vTp}')
    o(f's_mov_b32 s{sT3}, {WS_REC}')
    o(f's_mov_b32 s{sT4}, {WS_T}\ns_mov_b32 s{sT5}, {WS_T2}')
    def rec_loads(pol):
        for j in range(4):
            if j: o(f's_add_u32 s{sT3}, s{sT3}, 4096')
            o(f'buffer_load_dwordx4 v[{RC+4*j}:{RC+4*j+3}], v{vRa}, s[{SRD_WS}:{SRD_WS+3}], s{sT3} offen {pol}')
        o(f's_mov_b32 s{sT3}, {WS_REC}')
        o(f'buffer_load_dwordx4 v[{G}:{G+3}], v{vG0}, s[{SRD_WS}:{SRD_WS+3}], s{sT4} offen {pol}')
        o(f'buffer_load_dwordx4 v[{G+4}:{G+7}], v25, s[{SRD_WS}:{SRD_WS+3}], s{sT4} offen {pol}')
        o(f'buffer_load_dwordx4 v[{G+8}:{G+11}], v{vG0}, s[{SRD_WS}:{SRD_WS+3}], s{sT5} offen {pol}')
        o(f'buffer_load_dwordx4 v[{G+12}:{G+15}], v25, s[{SRD_WS}:{SRD_WS+3}], s{sT5} offen {pol}')
    cmul2(o, E16, E8, E8, E16 + 2, E8 + 2, E8 + 2)
    rw.write([2], E16, E16 + 2)
    ev, od = [E16, YA, YB], [E8, YC, YD]
    pe, po = E16, E8
    step = 0
    for j in range(3, 32, 2):
        do = YC if step % 2 == 0 else YD
        de = YA if step % 2 == 0 else YB
        step += 1
        last = (j + 1 > 31)
        prods = [(do, po), (do + 2, po + 2)] + ([] if last else [(de, pe), (de + 2, pe + 2)])
        for d, p in prods:
            q = E16 + (2 if (d - (do if d in (do, do + 2) else de)) else 0)
            o(f'v_pk_mul_f32 v[{d}:{d+1}], v[{p}:{p+1}], v[{q}:{q+1}] op_sel_hi:[0,1]')
        for d, p in prods:
            q = E16 + (2 if (d - (do if d in (do, do + 2) else de)) else 0)
            o(f'v_pk_fma_f32 v[{d}:{d+1}], v[{p}:{p+1}], v[{q}:{q+1}], v[{d}:{d+1}] op_sel:[1,1,0] op_sel_hi:[1,0,1] neg_lo:[1,0,0]')
        rw.write([j], do, do + 2)
        if not last: rw.write([j + 1], de, de + 2)
        po = do; pe = de
        if j == RP_AT and RP_AT <= REC_AT: rp_loads()
        if j == REC_AT: rec_loads(POL0)
        if j == RP_AT and RP_AT > REC_AT: rp_loads()
    o('s_waitcnt lgkmcnt(0)')
    stamp(o, stamps, 2)
    o('s_barrier')
    o(f'v_lshrrev_b32 v{vT0}, 5, v0\nv_mul_u32_u24 v{vT0}, 4608, v{vT0}')
    o(f'v_and_b32 v{vT1}, 31, v0\nv_lshlrev_b32 v{vT1}, 4, v{vT1}\nv_add_u32 v{vT0}, v{vT0}, v{vT1}')
    o(f'v_add_u32 v{vT0}, {LDS_US}, v{vT0}')
    for j in range(4): o(f'v_mov_b32 v{OUT+j}, 0')
    o(f'ds_write_b128 v{vT0}, v[{OUT}:{OUT+3}]')
    o(f's_mov_b32 s{sT1}, 0')
    o(f's_waitcnt vmcnt({6 if RP_AT > REC_AT else 0})')
    o.label('LN_chk')
    C0 = RC + 16
    for k in range(8): o(f'v_xor_b32 v{C0+k}, v{RC+2*k+1}, v{vTag}')
    for k in range(8): o(f'v_xor_b32 v{C0+8+k}, v{G+k}, v{G+8+k}')
    for k in range(8): o(f'v_xor_b32 v{C0+8+k}, v{C0+8+k}, v{vTag}')
    for k in range(0, 15, 3): o(f'v_or3_b32 v{C0+k}, v{C0+k}, v{C0+k+1}, v{C0+k+2}')
    o(f'v_or3_b32 v{C0}, v{C0}, v{C0+3}, v{C0+6}')
    o(f'v_or3_b32 v{C0+9}, v{C0+9}, v{C0+12}, v{C0+15}')
    o(f'v_or_b32 v{C0}, v{C0}, v{C0+9}')
    o(f'v_cmp_ne_u32 vcc, 0, v{C0}')
    o('s_cbranch_vccz LN_got')
    o(f's_add_u32 s{sT1}, s{sT1}, 1')
    o(f's_cmp_lt_u32 s{sT1}, 0x40000')
    o('s_cbranch_scc0 LN_got')
    rec_loads('sc1')
    o('s_waitcnt vmcnt(0)')
    o('s_branch LN_chk')
    o.label('LN_got')
    vm.q = []
    if stamps: o(f'v_writelane_b32 v255, s{sT1}, 13')
    stamp(o, stamps, 3)
    o(f'v_lshlrev_b32 v{vT0}, 4, v{vTp}\nv_add_u32 v{vT0}, {LDS_XS}, v{vT0}')
    for j in range(4):
        a_ = RC + 4 * j
        o(f'v_and_b32 v{a_+1}, 0xffff0000, v{a_}\nv_and_b32 v{a_+3}, 0xffff0000, v{a_+2}')
        o(f'v_lshlrev_b32 v{a_}, 16, v{a_}\nv_lshlrev_b32 v{a_+2}, 16, v{a_+2}')
        o(f'v_rcp_f32 v{a_+1}, v{a_+1}\nv_rcp_f32 v{a_+3}, v{a_+3}')
    for j in range(4):
        a_ = RC + 4 * j
        o(f'v_mul_f32_e64 v{a_}, -v{a_}, v{a_+1}\nv_mul_f32_e64 v{a_+2}, -v{a_+2}, v{a_+3}')
        o(f'ds_write_b128 v{vT0}, v[{a_}:{a_+3}] offset:{4096*j}')
    XF = 96
    for i in range(2):
        for j in range(4): unpack(o, XF + 8*i + 2*j, XF + 8*i + 2*j + 1, G + 4*i + j)
    vL0, vCh = 22, 23
    o(f'v_lshrrev_b32 v{vL0}, 4, v{vTp}\nv_lshlrev_b32 v{vL0}, 6, v{vL0}')
    o(f'v_and_b32 v{vT0}, 7, v{vTp}\nv_lshlrev_b32 v{vT0}, 3, v{vT0}\nv_add_u32 v{vL0}, v{vL0}, v{vT0}')
    o(f'v_bfe_u32 v{vCh}, v{vTp}, 3, 1')
    o(f'v_lshlrev_b32 v21, 3, v{vL0}\nv_add_u32 v21, {LDS_XS}, v21')
    o('s_waitcnt lgkmcnt(0)')
    o('s_barrier')
    TB = 64
    for i in range(2):
        for q in range(4): o(f'ds_read_b128 v[{TB+16*i+4*q}:{TB+16*i+4*q+3}], v21 offset:{8192*i+16*q}')
    o(f'v_mul_u32_u24 v{vT1}, 4608, v{vCh}\nv_lshlrev_b32 v{vT3}, 1, v{vL0}\nv_add_u32 v{vT1}, v{vT1}, v{vT3}')
    o(f'v_add_u32 v{vT1}, {LDS_US + 512}, v{vT1}')
    Pk = 120
    for i in range(2):
        o(f's_waitcnt lgkmcnt({4 - 4*i})' if i == 0 else 's_waitcnt lgkmcnt(1)')
        for k in range(8): o(f'v_fma_f32 v{XF+8*i+k}, v{XF+8*i+k}, v{TB+16*i+2*k+1}, v{TB+16*i+2*k}')
        for j in range(4): o(f'v_cvt_pk_bf16_f32 v{Pk+4*i+j}, v{XF+8*i+2*j}, v{XF+8*i+2*j+1}')
        o(f'ds_write_b128 v{vT1}, v[{Pk+4*i}:{Pk+4*i+3}] offset:{2048*i}')
    o('s_waitcnt lgkmcnt(0)')
    stamp(o, stamps, 4)
    o('s_barrier')
    o(f'v_lshlrev_b32 v{vT1}, 12, v{vCh}\nv_lshlrev_b32 v{vT3}, 1, v{vL0}\nv_add_u32 v{vT1}, v{vT1}, v{vT3}')
    o(f'v_add_u32 v{vT1}, {LDS_XS}, v{vT1}')
    for i in range(2): o(f'ds_write_b128 v{vT1}, v[{G+4*i}:{G+4*i+3}] offset:{2048*i}')
    o(f's_cmp_ge_u32 s{sNw}, 784')
    o('s_cbranch_scc1 LN_norep2')
    o(f'v_lshlrev_b32 v{vT0}, 4, v0\nv_add_u32 v{vT1}, s{sL}, v{vT0}')
    o('s_waitcnt vmcnt(0)')
    for j in range(6): o(f'ds_write_b128 v{vT1}, v[{RP+4*j}:{RP+4*j+3}] offset:{1024*j}')
    g_, rho, c_ = 20, 21, 22
    o(f'v_lshrrev_b32 v{g_}, 4, v0\nv_bfe_u32 v{rho}, v0, 2, 2\nv_and_b32 v{c_}, 3, v0')
    vA1, vA2 = 18, 19
    o(f'v_and_b32 v{vT3}, 1, v{g_}\nv_lshlrev_b32 v{vT3}, 11, v{vT3}')
    o(f'v_lshrrev_b32 v{vT1}, 1, v{g_}\nv_lshlrev_b32 v{vT1}, 10, v{vT1}\nv_add_u32 v{vT3}, v{vT3}, v{vT1}')
    o(f'v_lshlrev_b32 v{vT1}, 7, v{rho}\nv_add_u32 v{vT3}, v{vT3}, v{vT1}')
    o(f'v_lshlrev_b32 v{vT1}, 3, v{c_}\nv_add3_u32 v{vA1}, v{vT3}, v{vT1}, s{sL}')
    o(f'v_lshrrev_b32 v{vT3}, 1, v{g_}\nv_lshlrev_b32 v{vT3}, 9, v{vT3}')
    o(f'v_lshlrev_b32 v{vT1}, 7, v{rho}\nv_add_u32 v{vT3}, v{vT3}, v{vT1}')
    o(f'v_and_b32 v{vT1}, 1, v{g_}\nv_lshlrev_b32 v{vT1}, 5, v{vT1}\nv_add_u32 v{vT3}, v{vT3}, v{vT1}')
    o(f'v_lshlrev_b32 v{vT1}, 3, v{c_}\nv_add3_u32 v{vA2}, v{vT3}, v{vT1}, s{sL}')
    o('s_waitcnt lgkmcnt(0)')
    F = 32
    for tt in range(4):
        o(f'ds_read_b64_tr_b16 v[{F+4*tt}:{F+4*tt+1}], v{vA1} offset:{tt*32}')
        o(f'ds_read_b64_tr_b16 v[{F+4*tt+2}:{F+4*tt+3}], v{vA1} offset:{tt*32 + 512}')
    for mt in range(2):
        o(f'ds_read_b64_tr_b16 v[{F+16+4*mt}:{F+16+4*mt+1}], v{vA2} offset:{4096 + mt*64}')
        o(f'ds_read_b64_tr_b16 v[{F+16+4*mt+2}:{F+16+4*mt+3}], v{vA2} offset:{4096 + mt*64 + 1024}')
    o(f's_mul_i32 s{sT1}, s{sSb}, {4 * 29}\ns_add_u32 s{sT1}, s{sT1}, s{sKk}\ns_lshl_b32 s{sT1}, s{sT1}, 10\ns_add_u32 s{sT1}, s{sT1}, {WS_WP}')
    o('s_waitcnt lgkmcnt(0)')
    for tt in range(4):
        o(f'buffer_store_dwordx4 v[{F+4*tt}:{F+4*tt+3}], v{vT0}, s[{SRD_WS}:{SRD_WS+3}], s{sT1} offen {ST}')
        if tt < 3: o(f's_add_u32 s{sT1}, s{sT1}, {29 * 1024}')
    o(f's_mul_i32 s{sT1}, s{sDb}, 224\ns_add_u32 s{sT1}, s{sT1}, s{sKt}\ns_lshl_b32 s{sT1}, s{sT1}, 10\ns_add_u32 s{sT1}, s{sT1}, {WS_WD}')
    o(f'buffer_store_dwordx4 v[{F+16}:{F+19}], v{vT0}, s[{SRD_WS}:{SRD_WS+3}], s{sT1} offen {ST}')
    o(f's_add_u32 s{sT1}, s{sT1}, {112 * 1024}')
    o(f'buffer_store_dwordx4 v[{F+20}:{F+23}], v{vT0}, s[{SRD_WS}:{SRD_WS+3}], s{sT1} offen {ST}')
    o.label('LN_norep2')
    o('s_waitcnt lgkmcnt(0)')
    stamp(o, stamps, 5)
    o('s_barrier')
    stamp(o, stamps, 6)
    finish(o, stamps)

vAt, vAt2 = 250, 251
def epoch_atomic(o):
    srd(o, SRD_DBG, sDbg, 256)
    o(f's_and_b32 s{sT1}, s2, 3\ns_lshl_b32 s{sT1}, s{sT1}, 6')
    o(f'v_mov_b32 v{vAt}, 1\nv_mov_b32 v{vAt2}, 0')
    o('s_mov_b64 exec, 1')
    o(f'buffer_atomic_add v{vAt}, v{vAt2}, s[{SRD_DBG}:{SRD_DBG+3}], s{sT1} offen sc1')
    o('s_mov_b64 exec, -1')
def epoch_finish(o, pfx):
    srd(o, SRD_DBG, sDbg, 256)
    o(f'v_and_b32 v{vAt}, 3, v0\nv_lshlrev_b32 v{vAt}, 6, v{vAt}')
    o(f's_mov_b32 s{sT1}, 0')
    o.label(f'L{pfx}_epoll')
    o(f'buffer_load_dword v252, v{vAt}, s[{SRD_DBG}:{SRD_DBG+3}], 0 offen sc1')
    o('s_waitcnt vmcnt(0)')
    o('v_cmp_ne_u32 vcc, 64, v252')
    o(f's_cbranch_vccz L{pfx}_eok')
    o(f's_add_u32 s{sT1}, s{sT1}, 1\ns_cmp_lt_u32 s{sT1}, 0x40000')
    o(f's_cbranch_scc1 L{pfx}_epoll')
    o(f'L{pfx}_eok:')
    o('s_mov_b64 exec, 1')
    o(f'buffer_store_dword v{vTag}, v{vAt2}, s[{SRD_WS}:{SRD_WS+3}], 0 offen sc1')
    o('s_mov_b64 exec, -1')

def gen_spare(o, q0, stamps):
    vm = VM(o); vm.q = q0
    e_load(o, vm)
    o(f's_cmp_ge_u32 s{sWave}, 4')
    o('s_cbranch_scc1 LS_prodd')
    row_loads(o, vm)
    row_stats(o, vm)
    o.label('LS_prodd')
    o('s_waitcnt vmcnt(0)')
    make_tag(o)
    o('s_barrier')
    stamp(o, stamps, 0)
    o(f's_cmp_eq_u32 s{sWave}, 7')
    o('s_cbranch_scc0 LS_noat')
    epoch_atomic(o)
    o.label('LS_noat')
    if SPARE_WAIT:
        o(f's_and_b32 s{sT0}, s{sWave}, 3\ns_lshl_b32 s{sT0}, s{sT0}, 6\nv_add_u32 v20, s{sT0}, v0\nv_lshlrev_b32 v20, 6, v20')
        o(f's_mov_b32 s{sT3}, {WS_REC}\ns_mov_b32 s{sT1}, 0')
        o.label('LS_poll')
        for j in range(4): o(f'buffer_load_dwordx4 v[{64+4*j}:{67+4*j}], v20, s[{SRD_WS}:{SRD_WS+3}], s{sT3} offen offset:{16*j} sc1')
        o('s_waitcnt vmcnt(0)')
        for k in range(8): o(f'v_xor_b32 v{80+k}, v{65+2*k}, v{vTag}')
        o('v_or3_b32 v80, v80, v81, v82\nv_or3_b32 v83, v83, v84, v85\nv_or3_b32 v80, v80, v86, v87\nv_or_b32 v80, v80, v83')
        o('v_cmp_ne_u32 vcc, 0, v80')
        o('s_cbranch_vccz LS_go')
        o(f's_add_u32 s{sT1}, s{sT1}, 1\ns_cmp_lt_u32 s{sT1}, 0x40000\ns_cbranch_scc1 LS_poll')
        o.label('LS_go')
    sMat, sFs = 44, 45
    o(f's_lshr_b32 s{sMat}, s{sSp}, 4\ns_and_b32 s{sFs}, s{sSp}, 15')
    o(f's_cmp_eq_u32 s{sMat}, 0')
    o(f's_cselect_b32 s48, s{sWg}, s{sWu}\ns_cselect_b32 s49, s{sWg+1}, s{sWu+1}')
    o('s_mov_b32 s50, 1605632\ns_mov_b32 s51, 0x00020000')
    vTid, vG, vC, vOf = 16, 17, 18, 19
    o(f's_lshl_b32 s{sT0}, s{sWave}, 6\nv_add_u32 v{vTid}, s{sT0}, v0')
    o(f'v_mul_u32_u24 v{vG}, 4682, v{vTid}\nv_lshrrev_b32 v{vG}, 16, v{vG}')
    o(f'v_mul_u32_u24 v{vC}, 14, v{vG}\nv_sub_u32 v{vC}, v{vTid}, v{vC}')
    o(f'v_mul_u32_u24 v{vOf}, 3584, v{vG}\nv_lshlrev_b32 v{vT0}, 4, v{vC}\nv_add_u32 v{vOf}, v{vOf}, v{vT0}')
    o(f's_mul_i32 s{sT1}, s{sFs}, 224')
    L = 32
    o(f's_cmp_ge_u32 s{sWave}, 7')
    o('s_cbranch_scc1 LS_skip')
    for i in range(14):
        o(f'buffer_load_dwordx4 v[{L+4*i}:{L+4*i+3}], v{vOf}, s[48:51], s{sT1} offen')
        if i < 13: o(f's_add_u32 s{sT1}, s{sT1}, {32 * 3584}')
    A = 96
    for j in range(8): o(f'v_mov_b32 v{A+j}, 0')
    for i in range(14):
        o(f's_waitcnt vmcnt({13 - i})')
        for r in range(4):
            unpack(o, 104, 105, L + 4*i + r)
            o(f'v_add_f32 v{A+2*r}, v{A+2*r}, v104\nv_add_f32 v{A+2*r+1}, v{A+2*r+1}, v105')
    o(f'v_mul_u32_u24 v{vT0}, 448, v{vG}\nv_lshlrev_b32 v{vT1}, 5, v{vC}\nv_add_u32 v{vT0}, v{vT0}, v{vT1}')
    o(f'ds_write_b128 v{vT0}, v[{A}:{A+3}]\nds_write_b128 v{vT0}, v[{A+4}:{A+7}] offset:16')
    o.label('LS_skip')
    o('s_waitcnt lgkmcnt(0)')
    o('s_barrier')
    o(f's_cmp_ge_u32 s{sWave}, 2')
    o('s_cbranch_scc1 LS_done')
    o(f'v_lshlrev_b32 v{vT0}, 2, v{vTid}')
    for g in range(32): o(f'ds_read_b32 v{L+g}, v{vT0} offset:{448*g}')
    o('s_waitcnt lgkmcnt(0)')
    for g in range(1, 32): o(f'v_add_f32 v{L}, v{L}, v{L+g}')
    o(f'v_cvt_pk_bf16_f32 v{L+1}, v{L}, v{L}\nv_and_b32 v{L+1}, 0xffff0000, v{L+1}\nv_sub_f32 v{L+1}, v{L}, v{L+1}')
    Z = 68
    o(f'v_cvt_pk_bf16_f32 v{Z}, v{L}, v{L+1}')
    for j in range(1, 8): o(f'v_mov_b32 v{Z+j}, 0')
    o(f'v_lshrrev_b32 v{vT0}, 4, v{vTid}\ns_mul_i32 s{sT1}, s{sFs}, 7\nv_add_u32 v{vT0}, s{sT1}, v{vT0}')
    o(f'v_mul_u32_u24 v{vT0}, 29, v{vT0}\nv_add_u32 v{vT0}, 28, v{vT0}\nv_lshlrev_b32 v{vT0}, 10, v{vT0}')
    o(f'v_and_b32 v{vT1}, 15, v{vTid}\ns_lshl_b32 s{sT1}, s{sMat}, 4\nv_add_u32 v{vT1}, s{sT1}, v{vT1}\nv_lshlrev_b32 v{vT1}, 4, v{vT1}')
    o(f'v_add_u32 v{vT0}, v{vT0}, v{vT1}')
    o(f's_mov_b32 s{sT1}, {WS_WP}')
    o(f'v_cmp_gt_u32 vcc, 112, v{vTid}')
    o(f's_and_saveexec_b64 s[52:53], vcc')
    o('s_cbranch_execz LS_rest')
    o(f'buffer_store_dwordx4 v[{Z}:{Z+3}], v{vT0}, s[{SRD_WS}:{SRD_WS+3}], s{sT1} offen {ST}')
    o(f'buffer_store_dwordx4 v[{Z+4}:{Z+7}], v{vT0}, s[{SRD_WS}:{SRD_WS+3}], s{sT1} offen offset:512')
    o.label('LS_rest')
    o('s_mov_b64 exec, s[52:53]')
    o.label('LS_done')
    o(f's_cmp_eq_u32 s{sWave}, 7')
    o('s_cbranch_scc0 LS_noe')
    o(f's_cmp_eq_u32 s{sSp}, 0')
    o('s_cbranch_scc0 LS_noe')
    epoch_finish(o, 'S')
    o.label('LS_noe')
    finish(o, stamps)
def desc_ab(): return kernel_desc(NAME, 256, 100, accum=256)
def launch_ab(): return f'; @launch kernel={NAME} grid=(256,1,1) block=(512,1,1) lds={LDS_BYTES}'
```

```python
from asmlib import *
from layout import *
from vm import VM
NAME = 'ffn1_kernel'
FNAME = 'ffn_kernel'
PREFETCH = False
USE_PK = False
ST = ''
PF_WD = False
PF_T = 2
PF_N = 4
MST = 'sc1'
WPER = 1
WSPREAD = 8
X_NOEPI = False; X_NOBAR = False; X_NODMA = False; X_NOREAD = False; X_NOSTAT = False
LDS_S4 = 4 * 28672
LDS_CORR = LDS_S4 + 28672
LDS_BYTES = LDS_CORR + 7 * 1024
ACC = [16, 32]
WB = 48; NWB = 8
HF = 80
T = 192
PK = 200
vS, vQ, vC1, vSB, vT0, vT1 = 204, 205, 206, 208, 210, 211
BC = 212
SA = 216
SD = 220
vLane16, vLB0, vLB1, vLB2, vTR, vHoff, vHN = 1, 2, 3, 4, 5, 6, 8
def w_lds_addr(t, kk):
    if kk == 28: return LDS_CORR + t * 1024
    if t in (0, 5): return LDS_S4 + kk * 1024
    tt = 1 if t == 6 else t
    return (kk // 7) * 28672 + (7 * (tt - 1) + kk % 7) * 1024
def w_read(o, dst, t, kk):
    a_ = w_lds_addr(t, kk)
    base = [vLB0, vLB1, vLB2][a_ >> 16]
    o(f'ds_read_b128 v[{dst}:{dst+3}], v{base} offset:{a_ & 0xffff}')
def epilogue_ops(acc):
    ops = []
    if USE_PK:
        for j in range(0, 8, 2): ops.append((4, f'v_pk_mul_f32 v[{T+j}:{T+j+1}], v[{acc+j}:{acc+j+1}], v[{vC1}:{vC1+1}] op_sel_hi:[1,0]'))
    else:
        for j in range(8): ops.append((4, f'v_mul_f32 v{T+j}, v{acc+j}, v{vC1}'))
    for j in range(8): ops.append((8, f'v_exp_f32 v{T+j}, v{T+j}'))
    if USE_PK:
        for j in range(0, 8, 2): ops.append((4, f'v_pk_fma_f32 v[{T+j}:{T+j+1}], v[{T+j}:{T+j+1}], v[{vSB}:{vSB+1}], v[{vSB}:{vSB+1}] op_sel_hi:[1,0,0]'))
    else:
        for j in range(8): ops.append((4, f'v_fma_f32 v{T+j}, v{T+j}, v{vSB}, v{vSB}'))
    for j in range(8): ops.append((8, f'v_rcp_f32 v{T+j}, v{T+j}'))
    if USE_PK:
        for j in range(0, 8, 2): ops.append((4, f'v_pk_mul_f32 v[{T+j}:{T+j+1}], v[{acc+8+j}:{acc+8+j+1}], v[{T+j}:{T+j+1}]'))
    else:
        for j in range(8): ops.append((4, f'v_mul_f32 v{T+j}, v{acc+8+j}, v{T+j}'))
    for j in range(4): ops.append((4, f'v_cvt_pk_bf16_f32 v{PK+j}, v{T+2*j}, v{T+2*j+1}'))
    return ops
def epilogue_gaps(acc):
    mul = [f'v_mul_f32 v{T+j}, v{acc+j}, v{vC1}' for j in range(8)]
    ex = [f'v_exp_f32 v{T+j}, v{T+j}' for j in range(8)]
    fma = [f'v_fma_f32 v{T+j}, v{T+j}, v{vSB}, v{vSB}' for j in range(8)]
    rcp = [f'v_rcp_f32 v{T+j}, v{T+j}' for j in range(8)]
    mu = [f'v_mul_f32 v{T+j}, v{acc+8+j}, v{T+j}' for j in range(8)]
    cv = [f'v_cvt_pk_bf16_f32 v{PK+j}, v{T+2*j}, v{T+2*j+1}' for j in range(4)]
    g = [[mul[0], mul[1], mul[2]]]
    for j in range(5): g.append([ex[j], mul[3+j]])
    for j in range(5, 8): g.append([ex[j], fma[j-5]])
    for j in range(5): g.append([rcp[j], fma[3+j]])
    for j in range(5, 8): g.append([rcp[j], mu[j-5]])
    g += [[mu[3], mu[4], mu[5]], [mu[6], mu[7], cv[0]], [cv[1], cv[2], cv[3]]]
    return g
def take_fill(fill, budget, force):
    out = []
    while fill and (fill[0][0] <= budget or force > 0):
        c, op = fill.pop(0); out.append(op); budget -= c; force -= 1
    return out
def gen_c(o, stamps=False, merged=False):
    vm = VM(o)
    global ST
    if merged: ST = MST
    kernel_begin(o, FNAME if merged else NAME)
    o('s_cmp_ge_u32 s2, 256')
    o('s_cbranch_scc1 LC_end')
    o(f's_load_dwordx2 s[4:5], s[0:1], {KA["ws"]}')
    if merged: o(f's_load_dwordx2 s[6:7], s[0:1], {KA["out"]}')
    if stamps: o('s_memtime s[74:75]')
    o('v_lshrrev_b32 v9, 6, v0')
    o('v_and_b32 v0, 63, v0')
    o('v_readfirstlane_b32 s24, v9')
    o('s_and_b32 s25, s2, 7')
    o('s_lshr_b32 s26, s2, 3')
    if PREFETCH: code_prefetch(o, NAME, 'code_end', 26, 24, 4, 240, 244, 44, 'c')
    o('s_lshr_b32 s27, s25, 1')
    o('s_lshl_b32 s27, s27, 2')
    o('s_and_b32 s28, s26, 3')
    o('s_add_u32 s27, s27, s28')
    o('s_and_b32 s28, s25, 1')
    o('s_lshl_b32 s28, s28, 3')
    o('s_lshr_b32 s29, s26, 2')
    o('s_add_u32 s28, s28, s29')
    o('s_lshl_b32 s29, s27, 2')
    o('s_add_u32 s29, s29, s24')
    o(f'v_lshlrev_b32 v{vLane16}, 4, v0')
    o('s_mul_i32 s30, s24, 28672')
    o('s_mul_i32 s33, s28, 7')
    o('s_mul_i32 s32, s33, 29696')
    o('s_lshl_b32 s34, s29, 5')
    o('s_mul_i32 s35, s29, 28672')
    o('s_mul_i32 s36, s24, 7168')
    o('s_add_u32 s46, s36, s32')
    o('s_waitcnt lgkmcnt(0)')
    if WS_SHIFT: o(f's_add_u32 s4, s4, {WS_SHIFT}\ns_addc_u32 s5, s5, 0')
    srd(o, 12, 4, WP_BYTES, WS_WP)
    srd(o, 8, 4, HT_BYTES, WS_HT)
    def w_dma_ops(t, tag):
        ops = [f's_add_u32 s37, s46, {t * 29696}']
        if t in (0, 5): ops.append(f's_add_u32 s38, s36, {LDS_S4}')
        else:
            tt = 1 if t == 6 else t
            ops.append(f's_add_u32 s38, s30, {7 * (tt - 1) * 1024}')
        groups = []
        cur = ops
        for j in range(7):
            if j == 0: cur += ['s_mov_b32 m0, s38', 's_nop 0']
            if j == 4: cur += ['s_add_u32 s38, s38, 4096', 's_mov_b32 m0, s38', 's_add_u32 s37, s37, 4096']
            cur.append(('dma', f'buffer_load_dwordx4 v{vLane16}, s[12:15], s37 offen offset:{(j % 4) * 1024} lds', tag))
            groups.append(cur); cur = []
        return groups
    def emit_group(g):
        for op in g:
            if isinstance(op, tuple): o(op[1]); vm.issue(op[2])
            else: o(op)
    for g in w_dma_ops(0, 'w0'): emit_group(g)
    for which in range(2):
        if which == 0: o('s_mov_b32 s39, s24')
        else:
            o('s_add_u32 s39, s24, 4'); o('s_min_u32 s39, s39, 6')
        o('s_mul_i32 s37, s39, 29696')
        o('s_add_u32 s37, s37, s32')
        o(f's_add_u32 s37, s37, {28 * 1024}')
        o('s_lshl_b32 s38, s39, 10')
        o(f's_add_u32 s38, s38, {LDS_CORR}')
        o('s_mov_b32 m0, s38')
        o('s_nop 0')
        o(f'buffer_load_dwordx4 v{vLane16}, s[12:15], s37 offen lds'); vm.issue('w0')
    o('s_mov_b32 s47, s30')
    o('s_mov_b32 s48, s35')
    def h_dma(kk):
        if kk % 4 == 0:
            o('s_mov_b32 m0, s47')
            o('s_add_u32 s47, s47, 4096')
            if kk: o('s_add_u32 s48, s48, 4096')
            else: o('s_nop 0')
        o(f'buffer_load_dwordx4 v{vLane16}, s[8:11], s48 offen offset:{(kk % 4) * 1024} lds'); vm.issue(f'h{kk}')
    AH = 10; AH0 = 4
    for kk in range(AH0): h_dma(kk)
    srd(o, 16, 4, H_BYTES, WS_H)
    srd(o, 20, 4, HN_BYTES, WS_HN)
    o(f'v_mov_b32 v{vLB0}, v{vLane16}')
    o(f'v_add_u32 v{vLB1}, 0x10000, v{vLane16}')
    o(f'v_add_u32 v{vLB2}, 0x20000, v{vLane16}')
    o('v_lshrrev_b32 v9, 5, v0')
    o('v_lshlrev_b32 v9, 9, v9')
    o('v_bfe_u32 v10, v0, 2, 2')
    o('v_lshlrev_b32 v10, 6, v10')
    o('v_add_u32 v9, v9, v10')
    o('v_bfe_u32 v10, v0, 4, 1')
    o('v_lshlrev_b32 v10, 5, v10')
    o('v_add_u32 v9, v9, v10')
    o('v_and_b32 v10, 3, v0')
    o('v_lshlrev_b32 v10, 3, v10')
    o('v_add_u32 v9, v9, v10')
    o(f'v_add_u32 v{vTR}, s30, v9')
    o('s_mul_i32 s31, s29, 112')
    o('s_add_u32 s31, s31, s33')
    o('s_lshl_b32 s31, s31, 10')
    o('v_and_b32 v9, 31, v0')
    o('v_add_u32 v9, s34, v9')
    o('v_mul_u32_u24 v9, 896, v9')
    o('v_lshrrev_b32 v10, 5, v0')
    o('v_lshlrev_b32 v10, 4, v10')
    o(f'v_add_u32 v{vHN}, v9, v10')
    o('s_mov_b32 s50, 0x00020001\ns_mov_b32 s51, 0x00020001')
    o(f'v_mov_b32 v{SA}, 0\nv_mov_b32 v9, 0x3f803f80')
    o(f'v_cndmask_b32 v{SA}, v{SA}, v9, s[50:51]')
    for j in range(1, 4): o(f'v_mov_b32 v{SA+j}, v{SA}')
    vm.wait('w0')
    o('s_barrier')
    if stamps: o('s_memtime s[62:63]')
    later = []
    for t in (1, 2): later += w_dma_ops(t, f'w{t}')
    def reads(k):
        vm.wait(f'h{k}')
        hb = HF + 4 * k
        o(f'ds_read_b64_tr_b16 v[{hb}:{hb+1}], v{vTR} offset:{k * 1024}')
        o(f'ds_read_b64_tr_b16 v[{hb+2}:{hb+3}], v{vTR} offset:{k * 1024 + 256}')
    QA = ACC[1]
    cb0 = WB + 4 * (28 % NWB)
    nissued = AH0
    reads(0); w_read(o, WB, 0, 0)
    h_dma(nissued); nissued += 1
    reads(1); w_read(o, WB + 4, 0, 1)
    h_dma(nissued); nissued += 1
    for k in range(28):
        hb = HF + 4 * k; wb = WB + 4 * (k % NWB)
        z = lambda r, n: '0' if k == 0 else f'v[{r}:{r+n-1}]'
        o(f's_waitcnt lgkmcnt({3 if k < 27 else 0})')
        o(f'v_mfma_f32_32x32x16_bf16 v[{ACC[0]}:{ACC[0]+15}], v[{wb}:{wb+3}], v[{hb}:{hb+3}], {z(ACC[0], 16)}')
        if k + 2 < 28: reads(k + 2)
        if not X_NOSTAT: o(f'v_mfma_f32_32x32x16_bf16 v[{QA}:{QA+15}], v[{hb}:{hb+3}], v[{hb}:{hb+3}], {z(QA, 16)}')
        if k + 2 < 28: w_read(o, WB + 4 * ((k + 2) % NWB), 0, k + 2)
        elif k == 26: w_read(o, cb0, 0, 28)
        ndma = 0
        while nissued < 28 and (nissued <= k + AH) and ndma < 2:
            h_dma(nissued); nissued += 1; ndma += 1
        if not X_NOSTAT: o(f'v_mfma_f32_16x16x32_bf16 v[{SD}:{SD+3}], v[{SA}:{SA+3}], v[{hb}:{hb+3}], {z(SD, 4)}')
        if nissued >= 28 and ndma == 0 and later:
            emit_group(later.pop(0))
    if stamps: o('s_memtime s[64:65]')
    while later: emit_group(later.pop(0))
    o('s_min_u32 s41, s28, 13')
    def tree(lo, hi, path):
        if hi - lo == 1:
            for q in range(2):
                kk = 2 * lo + q; hb = HF + 4 * kk
                o(f'buffer_store_dwordx4 v[{hb}:{hb+3}], v{vHN}, s[20:23], 0 offen offset:{kk * 32} {ST}')
            o('s_branch LC_hn_done')
            return
        mid = (lo + hi) // 2
        o(f's_cmp_ge_u32 s41, {mid}')
        o(f's_cbranch_scc1 LC_hn_{path}1')
        tree(lo, mid, path + '0')
        o.label(f'LC_hn_{path}1')
        tree(mid, hi, path + '1')
    tree(0, 14, 'p')
    o.label('LC_hn_done')
    vm.issue('hn'); vm.issue('hn')
    masks = [0xAAAAAAAA, 0xCCCCCCCC, 0xFF00FF00, 0xFFFF0000, 0xF0F0F0F0]
    for r, m in zip([52, 54, 56, 58, 72], masks): o(f's_mov_b32 s{r}, {hex(m)}\ns_mov_b32 s{r+1}, {hex(m)}')
    o('s_nop 3')
    for j in range(8): o(f'v_cndmask_b32 v{T+j}, v{QA+2*j}, v{QA+2*j+1}, s[52:53]')
    for j in range(4): o(f'v_cndmask_b32 v{T+j}, v{T+2*j}, v{T+2*j+1}, s[54:55]')
    for j in range(2): o(f'v_cndmask_b32 v{T+j}, v{T+2*j}, v{T+2*j+1}, s[56:57]')
    o(f'v_cndmask_b32 v{vQ}, v{T}, v{T+1}, s[58:59]')
    o(f'v_mov_b32 v{vT0}, v{vQ}')
    o(f'v_mov_b32 v{vT1}, v{SD}')
    o(f'v_mov_b32 v{vS}, v{SD+1}')
    o('s_nop 0')
    o(f'v_permlane32_swap_b32 v{vQ}, v{vT0}')
    o(f'v_permlane16_swap_b32 v{vT1}, v{vS}')
    o('s_nop 1')
    o(f'v_cndmask_b32 v{vQ}, v{vQ}, v{vT0}, s[72:73]')
    o(f'v_mov_b32 v{vS}, v{vT1}')
    o('s_nop 1')
    o(f'v_permlane32_swap_b32 v{vS}, v{vT1}')
    o('s_nop 1')
    o(f's_mov_b32 s40, {hex(0x3b124925)}')
    o(f'v_mul_f32 v{vS}, s40, v{vS}')
    o(f'v_mul_f32 v{vQ}, s40, v{vQ}')
    o(f'v_fma_f32 v{vQ}, -v{vS}, v{vS}, v{vQ}')
    o(f'v_max_f32 v{vQ}, 0, v{vQ}')
    o(f'v_cvt_pk_bf16_f32 v{vT0}, v{vS}, v{vQ}')
    o(f'v_and_b32 v{vT1}, 0xffff0000, v{vT0}')
    o(f'v_add_f32 v{vT1}, {hex(0x3727c5ac)}, v{vT1}')
    o(f'v_cvt_pk_bf16_f32 v{vT1}, v{vT1}, v{vT1}')
    o(f'v_and_b32 v{vT1}, 0xffff0000, v{vT1}')
    o(f'v_sqrt_f32 v{vT1}, v{vT1}')
    o('s_nop 0')
    o(f'v_cvt_pk_bf16_f32 v{vT1}, v{vT1}, v{vT1}')
    o(f'v_and_b32 v{vSB}, 0xffff0000, v{vT1}')
    o(f'v_rcp_f32 v{vC1}, v{vSB}')
    o(f'v_and_b32 v{vT0}, 0xffff, v{vT0}')
    o(f'v_xor_b32 v{vT0}, 0x8000, v{vT0}')
    o(f'v_mul_f32 v{vC1}, {hex(0xbfb8aa3b)}, v{vC1}')
    o(f'v_lshl_or_b32 v{BC}, v{vT0}, 16, v{vT0}')
    o(f'v_mov_b32 v{BC+1}, 0')
    o(f'v_mov_b32 v{BC+2}, 0')
    o(f'v_mov_b32 v{BC+3}, 0')
    o('s_waitcnt lgkmcnt(0)')
    o(f'v_mfma_f32_32x32x16_bf16 v[{ACC[0]}:{ACC[0]+15}], v[{cb0}:{cb0+3}], v[{BC}:{BC+3}], v[{ACC[0]}:{ACC[0]+15}]')
    if merged:
        import kdm
        kdm.wsetup(o)
    vm.wait('w1')
    o('s_barrier')
    if stamps: o('s_memtime s[66:67]')
    PF = 7; WE = 4
    bi = 29 % NWB
    seq = [(t, kk) for t in range(1, 7) for kk in range(29)]
    bufof = {}
    for i, (t, kk) in enumerate(seq): bufof[(t, kk)] = WB + 4 * ((bi + i) % NWB)
    for i in range(PF):
        t, kk = seq[i]; w_read(o, bufof[(t, kk)], t, kk)
    fill = []; dmaq = []
    wq = []
    if merged:
        import kdm
        wq = [kdm.wload_ops(k) for k in range(kdm.NPRE)]
    waited_upto = -1
    for i, (t, kk) in enumerate(seq):
        acc = ACC[t & 1]
        if kk == 0:
            assert not fill, fill
            fill = epilogue_gaps(ACC[(t - 1) & 1]) + [('store', t - 1)]
        if kk == 0 and t + 2 <= 6: dmaq += w_dma_ops(t + 2, f'w{t+2}')
        if PF_WD and not merged and t == 5 and kk == 8:
            srd(o, 76, 4, WD_BYTES, WS_WD)
            o('s_lshl_b32 s43, s26, 2\ns_add_u32 s43, s43, s24\ns_mul_i32 s43, s43, 12544')
            o('v_lshlrev_b32 v240, 7, v0')
            o('buffer_load_dword v244, v240, s[76:79], s43 offen'); vm.issue('pf')
            o('s_add_u32 s43, s43, 8192')
            o('s_mov_b32 exec_hi, 3')
            o('buffer_load_dword v245, v240, s[76:79], s43 offen'); vm.issue('pf')
            o('s_mov_b32 exec_hi, -1')
        if PF_WD and merged and kk == 8 and t <= PF_N:
            per = -(-98 // PF_N)
            if t == 1:
                o('s_lshl_b32 s43, s26, 2\ns_add_u32 s43, s43, s24\ns_mul_i32 s43, s43, 12544')
                o('v_lshlrev_b32 v240, 7, v0')
            n = min(per, 98 - per * (t - 1))
            o(f's_mov_b64 exec, {hex((1 << n) - 1)}')
            o(f'buffer_load_dword v{244 + (t & 1)}, v240, s[76:79], s43 offen'); vm.issue('pf')
            o('s_mov_b64 exec, -1')
            o(f's_add_u32 s43, s43, {per * 128}')
        if kk == 29 - PF - 1 and t + 1 <= 6:
            if not X_NOBAR:
                vm.wait(f'w{t+1}')
                o('s_barrier')
        nxt = i + PF
        if nxt < len(seq) and not X_NOREAD:
            t2, k2 = seq[nxt]; w_read(o, bufof[(t2, k2)], t2, k2)
        if i > waited_upto and not X_NOREAD:
            last_issued = min(nxt, len(seq) - 1)
            upto = min(i + WE - 1, len(seq) - 1)
            o(f's_waitcnt lgkmcnt({last_issued - upto})')
            waited_upto = upto
        wb = bufof[(t, kk)]
        bop = f'v[{HF+4*kk}:{HF+4*kk+3}]' if kk < 28 else f'v[{BC}:{BC+3}]'
        c = '0' if kk == 0 else f'v[{acc}:{acc+15}]'
        o(f'v_mfma_f32_32x32x16_bf16 v[{acc}:{acc+15}], v[{wb}:{wb+3}], {bop}, {c}')
        if merged and WSPREAD and wq and i % WSPREAD == WSPREAD - 1:
            for op in wq.pop(0): o(op)
            vm.issue('wp'); vm.issue('wp')
        if merged and not WSPREAD and t >= 5 and (kk < 4 or not fill) and wq:
            for _ in range(WPER):
                if wq:
                    for op in wq.pop(0): o(op)
                    vm.issue('wp'); vm.issue('wp')
        elif dmaq:
            g = dmaq.pop(0)
            if not X_NODMA: emit_group(g)
        elif 4 <= kk and fill:
            g = fill.pop(0)
            if isinstance(g, tuple):
                o(f's_add_u32 s42, s31, {g[1] * 1024}')
                o(f'buffer_store_dwordx4 v[{PK}:{PK+3}], v{vLane16}, s[16:19], s42 offen {ST}'); vm.issue('hs')
            elif not X_NOEPI:
                for op in g: o(op)
    assert not fill and not dmaq and not wq, (fill, dmaq, wq)
    if stamps: o('s_memtime s[68:69]')
    o('s_nop 7'); o('s_nop 7')
    for cst, op in epilogue_ops(ACC[6 & 1]): o(op)
    o(f's_add_u32 s42, s31, {6 * 1024}')
    o(f'buffer_store_dwordx4 v[{PK}:{PK+3}], v{vLane16}, s[16:19], s42 offen {ST}'); vm.issue('hs')
    if merged:
        import kdm
        kdm.gen_dphase(o, vm, stamps)
        return
    if stamps:
        o('s_waitcnt vmcnt(0)')
        o('s_memtime s[70:71]')
        o('s_waitcnt lgkmcnt(0)')
        o('s_sub_u32 s70, s70, s74\ns_sub_u32 s68, s68, s74\ns_sub_u32 s66, s66, s74\ns_sub_u32 s64, s64, s74\ns_sub_u32 s62, s62, s74')
        o('v_mov_b32 v16, s62\nv_mov_b32 v17, s64\nv_mov_b32 v18, s66\nv_mov_b32 v19, s68\nv_mov_b32 v20, s70\nv_mov_b32 v21, 0\nv_mov_b32 v22, 0\nv_mov_b32 v23, 0')
        srd(o, 8, 4, 0x10000, 0x1800000)
        o('s_lshl_b32 s43, s2, 2\ns_add_u32 s43, s43, s24\ns_lshl_b32 s43, s43, 5')
        o('v_mov_b32 v24, s43')
        o('s_mov_b64 exec, 1')
        o('buffer_store_dwordx4 v[16:19], v24, s[8:11], 0 offen')
        o('buffer_store_dwordx4 v[20:23], v24, s[8:11], 0 offen offset:16')
    o.label('LC_end')
    o('s_endpgm')
def desc_c(): return kernel_desc(NAME, 248, 84)
def launch_c(): return f'; @launch kernel={NAME} grid=(256,1,1) block=(256,1,1) lds={LDS_BYTES}'

def desc_f(): return kernel_desc(FNAME, 256 + 224, 96, accum=256)
def launch_f(): return f'; @launch kernel={FNAME} grid=(256,1,1) block=(256,1,1) lds={LDS_BYTES}'
```

```python
from asmlib import *
from layout import *
from vm import VM
NAME = 'ffn2_kernel'
PREFETCH = False
LDS_BYTES = 98304
ACC = 16
FB = 80
DEPTH = 8
ROT = 1
X_NOW = False
X_NOH = False
ST = ''
RES = 208
vLane16, vRes, vOut, vL = 1, 2, 3, 4
def gen_d(o, stamps=False):
    vm = VM(o)
    kernel_begin(o, NAME)
    o('s_cmp_ge_u32 s2, 224')
    o('s_cbranch_scc1 LD_end')
    o(f's_load_dwordx2 s[4:5], s[0:1], {KA["ws"]}')
    o(f's_load_dwordx2 s[6:7], s[0:1], {KA["out"]}')
    if stamps: o('s_memtime s[60:61]')
    o('v_lshrrev_b32 v9, 6, v0')
    o('v_and_b32 v0, 63, v0')
    o('v_readfirstlane_b32 s24, v9')
    o('s_and_b32 s25, s2, 7')
    o('s_lshr_b32 s26, s2, 3')
    if PREFETCH: code_prefetch(o, NAME, 'code_end', 26, 24, 4, 240, 244, 44, 'd')
    o('s_and_b32 s27, s26, 3')
    o('s_lshl_b32 s25, s25, 2')
    o('s_add_u32 s27, s27, s25')
    o('s_lshr_b32 s28, s26, 2')
    o(f'v_lshlrev_b32 v{vLane16}, 4, v0')
    o('s_mul_i32 s29, s24, 28')
    o('s_mul_i32 s30, s28, 224')
    o('s_add_u32 s30, s30, s29')
    o('s_lshl_b32 s30, s30, 10')
    o(f's_add_u32 s31, s30, {112 * 1024}')
    o('s_mul_i32 s32, s27, 224')
    o('s_add_u32 s32, s32, s29')
    o('s_lshl_b32 s32, s32, 10')
    o(f's_add_u32 s33, s32, {112 * 1024}')
    o('s_and_b32 s34, s24, 1')
    o('s_lshl_b32 s34, s34, 5')
    o('s_lshl_b32 s35, s27, 6')
    o('s_add_u32 s34, s34, s35')
    o('v_and_b32 v9, 31, v0')
    o('v_add_u32 v9, s34, v9')
    o('v_mul_u32_u24 v9, 896, v9')
    o('s_lshr_b32 s35, s24, 1')
    o('s_lshl_b32 s35, s35, 5')
    o('s_lshl_b32 s36, s28, 6')
    o('s_add_u32 s35, s35, s36')
    o('s_lshl_b32 s35, s35, 1')
    o('v_lshrrev_b32 v10, 5, v0')
    o('v_lshlrev_b32 v10, 3, v10')
    o('v_add_u32 v9, v9, v10')
    o(f'v_add_u32 v{vRes}, s35, v9')
    o('s_waitcnt lgkmcnt(0)')
    srd(o, 8, 4, WD_BYTES, WS_WD)
    srd(o, 12, 4, H_BYTES, WS_H)
    srd(o, 16, 4, HN_BYTES, WS_HN)
    srd(o, 20, 6, 1835008)
    vA0, vA1, vB0, vB1 = 5, 6, 7, 8
    if ROT:
        for vr, sr in ((vA0, 30), (vA1, 31), (vB0, 32), (vB1, 33)): o(f'v_add_u32 v{vr}, s{sr}, v{vLane16}')
        o(f's_mul_i32 s38, s28, {ROT * 1024}')
    def loads(k):
        b = FB + 16 * (k % DEPTH)
        if ROT:
            if not X_NOW: o(f'buffer_load_dwordx4 v[{b}:{b+3}], v{vA0}, s[8:11], s38 offen'); vm.issue(f'k{k}')
            if not X_NOH: o(f'buffer_load_dwordx4 v[{b+8}:{b+11}], v{vB0}, s[12:15], s38 offen'); vm.issue(f'k{k}')
            if not X_NOW: o(f'buffer_load_dwordx4 v[{b+4}:{b+7}], v{vA1}, s[8:11], s38 offen'); vm.issue(f'k{k}')
            if not X_NOH: o(f'buffer_load_dwordx4 v[{b+12}:{b+15}], v{vB1}, s[12:15], s38 offen'); vm.issue(f'k{k}')
            o('s_add_u32 s38, s38, 1024\ns_cmp_eq_u32 s38, 28672\ns_cselect_b32 s38, 0, s38')
            return
        off = (k % 4) * 1024
        if k % 4 == 0 and k > 0:
            for r in (30, 31, 32, 33): o(f's_add_u32 s{r}, s{r}, 4096')
        o(f'buffer_load_dwordx4 v[{b}:{b+3}], v{vLane16}, s[8:11], s30 offen offset:{off}'); vm.issue(f'k{k}')
        o(f'buffer_load_dwordx4 v[{b+8}:{b+11}], v{vLane16}, s[12:15], s32 offen offset:{off}'); vm.issue(f'k{k}')
        o(f'buffer_load_dwordx4 v[{b+4}:{b+7}], v{vLane16}, s[8:11], s31 offen offset:{off}'); vm.issue(f'k{k}')
        o(f'buffer_load_dwordx4 v[{b+12}:{b+15}], v{vLane16}, s[12:15], s33 offen offset:{off}'); vm.issue(f'k{k}')
    for k in range(DEPTH): loads(k)
    for q in range(4):
        o(f'buffer_load_dwordx2 v[{RES+2*q}:{RES+2*q+1}], v{vRes}, s[16:19], 0 offen offset:{q * 16}'); vm.issue('res')
    if stamps: o('s_memtime s[62:63]')
    for k in range(28):
        vm.wait(f'k{k}')
        b = FB + 16 * (k % DEPTH)
        for mt in range(2):
            for nt in range(2):
                ac = ACC + 16 * (mt * 2 + nt)
                c = '0' if k == 0 else f'v[{ac}:{ac+15}]'
                o(f'v_mfma_f32_32x32x16_bf16 v[{ac}:{ac+15}], v[{b+4*mt}:{b+4*mt+3}], v[{b+8+4*nt}:{b+8+4*nt+3}], {c}')
        if k + DEPTH < 28:
            loads(k + DEPTH)
    if stamps: o('s_memtime s[64:65]')
    o(f'v_add_u32 v{vL}, 0, v{vLane16}')
    o('s_nop 7'); o('s_nop 3')
    R = FB
    def send(v):
        for q in range(4):
            if q == v: continue
            si = (v - q - 1) % 4
            for g in range(4):
                ac = ACC + 16 * q + 4 * g
                o(f'ds_write_b128 v{vL}, v[{ac}:{ac+3}] offset:{(q * 3 + si) * 4096 + g * 1024}')
        if v:
            for j in range(0, 16, 2): o(f'v_pk_mul_f32 v[{ACC+j}:{ACC+j+1}], v[{ACC+16*v+j}:{ACC+16*v+j+1}], 1.0 op_sel_hi:[1,0]')
    o('s_cmp_lt_u32 s24, 2\ns_cbranch_scc0 LD_w23')
    o('s_cmp_eq_u32 s24, 0\ns_cbranch_scc0 LD_w1')
    send(0); o('s_branch LD_sent')
    o.label('LD_w1'); send(1); o('s_branch LD_sent')
    o.label('LD_w23')
    o('s_cmp_eq_u32 s24, 2\ns_cbranch_scc0 LD_w3')
    send(2); o('s_branch LD_sent')
    o.label('LD_w3'); send(3)
    o.label('LD_sent')
    o('s_mul_i32 s37, s24, 12288')
    o(f'v_add_u32 v{vL}, s37, v{vLane16}')
    o('s_waitcnt lgkmcnt(0)')
    o('s_barrier')
    if stamps: o('s_memtime s[66:67]')
    for src in range(3):
        for g in range(4):
            d = R + 16 * src + 4 * g
            o(f'ds_read_b128 v[{d}:{d+3}], v{vL} offset:{src * 4096 + g * 1024}')
    vm.wait('res')
    U = R + 48
    for q in range(4):
        r0, r1 = RES + 2 * q, RES + 2 * q + 1
        o(f'v_lshlrev_b32 v{U+4*q}, 16, v{r0}')
        o(f'v_and_b32 v{U+4*q+1}, 0xffff0000, v{r0}')
        o(f'v_lshlrev_b32 v{U+4*q+2}, 16, v{r1}')
        o(f'v_and_b32 v{U+4*q+3}, 0xffff0000, v{r1}')
    for j in range(0, 16, 2): o(f'v_pk_add_f32 v[{ACC+j}:{ACC+j+1}], v[{ACC+j}:{ACC+j+1}], v[{U+j}:{U+j+1}]')
    for src in range(3):
        o(f's_waitcnt lgkmcnt({8 - 4 * src})')
        for j in range(0, 16, 2): o(f'v_pk_add_f32 v[{ACC+j}:{ACC+j+1}], v[{ACC+j}:{ACC+j+1}], v[{R+16*src+j}:{R+16*src+j+1}]')
    for q in range(4):
        o(f'v_cvt_pk_bf16_f32 v{R+2*q}, v{ACC+4*q}, v{ACC+4*q+1}')
        o(f'v_cvt_pk_bf16_f32 v{R+2*q+1}, v{ACC+4*q+2}, v{ACC+4*q+3}')
        o(f'buffer_store_dwordx2 v[{R+2*q}:{R+2*q+1}], v{vRes}, s[20:23], 0 offen offset:{q * 16} {ST}')
    if stamps:
        o('s_waitcnt vmcnt(0)')
        o('s_memtime s[68:69]')
        o('s_waitcnt lgkmcnt(0)')
        o('s_sub_u32 s68, s68, s60\ns_sub_u32 s66, s66, s60\ns_sub_u32 s64, s64, s60\ns_sub_u32 s62, s62, s60')
        o('v_mov_b32 v16, s62\nv_mov_b32 v17, s64\nv_mov_b32 v18, s66\nv_mov_b32 v19, s68')
        srd(o, 8, 4, 0x10000, 0x1810000)
        o('s_lshl_b32 s43, s2, 2\ns_add_u32 s43, s43, s24\ns_lshl_b32 s43, s43, 5')
        o('v_mov_b32 v24, s43')
        o('s_mov_b64 exec, 1')
        o('buffer_store_dwordx4 v[16:19], v24, s[8:11], 0 offen')
    o.label('LD_end')
    o('s_endpgm')
def desc_d(): return kernel_desc(NAME, 248, 80)
def launch_d(): return f'; @launch kernel={NAME} grid=(224,1,1) block=(256,1,1) lds={LDS_BYTES}'
```

```python
from asmlib import *
from layout import *
ACC = 16
HB = 80
DEPTH = 8
RES = 208
N1 = 8
ROT = 1
HPOL = ''
vLane16, vRes, vL, vA0, vA1, vB0, vB1, vF = 1, 2, 4, 5, 6, 7, 8, 9
NPRE = 20
def wsetup(o):
    srd(o, 76, 4, WD_BYTES, WS_WD)
    o('s_min_u32 s45, s26, 27')
    o('s_and_b32 s44, s45, 3\ns_lshl_b32 s49, s25, 2\ns_add_u32 s44, s44, s49')
    o('s_lshr_b32 s45, s45, 2')
    o('s_mul_i32 s49, s24, 28')
    o('s_mul_i32 s47, s45, 224\ns_add_u32 s47, s47, s49\ns_lshl_b32 s47, s47, 10')
    o(f'v_add_u32 v{vA0}, s47, v{vLane16}\ns_add_u32 s47, s47, {112 * 1024}\nv_add_u32 v{vA1}, s47, v{vLane16}')
    o('s_mul_i32 s47, s44, 224\ns_add_u32 s47, s47, s49\ns_lshl_b32 s47, s47, 10')
    o(f'v_add_u32 v{vB0}, s47, v{vLane16}\ns_add_u32 s47, s47, {112 * 1024}\nv_add_u32 v{vB1}, s47, v{vLane16}')
    o(f's_mul_i32 s48, s45, {ROT * 1024}')
    o('s_mov_b32 s49, s48')
def wload_ops(k):
    return [f'buffer_load_dwordx4 a[{8*k}:{8*k+3}], v{vA0}, s[76:79], s48 offen',
            f'buffer_load_dwordx4 a[{8*k+4}:{8*k+7}], v{vA1}, s[76:79], s48 offen',
            's_add_u32 s48, s48, 1024', 's_cmp_eq_u32 s48, 28672', 's_cselect_b32 s48, 0, s48']
def gen_dphase(o, vm, stamps):
    if stamps: o('s_memtime s[68:69]')
    srd(o, 84, 4, 0x10000)
    o('buffer_load_dword v10, off, s[84:87], 0 sc1'); vm.issue('tag')
    o('s_cmp_ge_u32 s26, 28')
    o('s_cbranch_scc0 LF_work')
    o('s_waitcnt vmcnt(0)')
    o('s_barrier')
    flag_store(o, 'a')
    o('s_branch LF_end')
    o.label('LF_work')
    srd(o, 80, 6, 1835008)
    def step(r): o(f's_add_u32 s{r}, s{r}, 1024\ns_cmp_eq_u32 s{r}, 28672\ns_cselect_b32 s{r}, 0, s{r}')
    def wload(k):
        for op in wload_ops(k): o(op)
        vm.issue('w'); vm.issue('w2')
    n1 = min(28, NPRE + N1 // 2)
    for k in range(NPRE, n1): wload(k)
    vm.wait('tag')
    o('s_barrier')
    flag_store(o, 'b')
    vm.issue('flag')
    for k in range(n1, 28): wload(k)
    o('s_and_b32 s50, s24, 1\ns_lshl_b32 s50, s50, 5\ns_lshl_b32 s51, s44, 6\ns_add_u32 s50, s50, s51')
    o('v_and_b32 v11, 31, v0\nv_add_u32 v11, s50, v11\nv_mul_u32_u24 v11, 896, v11')
    o('s_lshr_b32 s51, s24, 1\ns_lshl_b32 s51, s51, 5\ns_lshl_b32 s52, s45, 6\ns_add_u32 s51, s51, s52\ns_lshl_b32 s51, s51, 1')
    o('v_lshrrev_b32 v12, 5, v0\nv_lshlrev_b32 v12, 3, v12\nv_add_u32 v11, v11, v12')
    o(f'v_add_u32 v{vRes}, s51, v11')
    o('s_waitcnt vmcnt(0)')
    vm.q = []
    if stamps: o('s_memtime s[70:71]')
    o('s_cmp_eq_u32 s24, 0')
    o('s_cbranch_scc0 LF_nopoll')
    o('s_lshr_b32 s50, s44, 1\ns_lshl_b32 s50, s50, 10')
    o(f's_add_u32 s50, s50, {WS_FLAG}')
    o(f'v_and_b32 v{vF}, 15, v0\nv_lshlrev_b32 v{vF}, 6, v{vF}')
    o('s_mov_b32 s51, 0')
    o.label('LF_poll')
    o(f'buffer_load_dword v11, v{vF}, s[84:87], s50 offen sc1')
    o('s_waitcnt vmcnt(0)')
    o('v_cmp_ne_u32 vcc, v11, v10')
    o('s_cbranch_vccz LF_nopoll')
    o('s_add_u32 s51, s51, 1\ns_cmp_lt_u32 s51, 0x80000')
    o('s_cbranch_scc1 LF_poll')
    o.label('LF_nopoll')
    o('s_barrier')
    if stamps: o('s_memtime s[72:73]')
    def hload(k):
        b = HB + 8 * (k % DEPTH)
        o(f'buffer_load_dwordx4 v[{b}:{b+3}], v{vB0}, s[16:19], s49 offen {HPOL}'); vm.issue(f'k{k}')
        o(f'buffer_load_dwordx4 v[{b+4}:{b+7}], v{vB1}, s[16:19], s49 offen {HPOL}'); vm.issue(f'k{k}')
        step(49)
    for k in range(DEPTH): hload(k)
    for q in range(4):
        o(f'buffer_load_dwordx2 v[{RES+2*q}:{RES+2*q+1}], v{vRes}, s[20:23], 0 offen offset:{q * 16} sc1'); vm.issue('res')
    for k in range(28):
        vm.wait(f'k{k}')
        b = HB + 8 * (k % DEPTH)
        for mt in range(2):
            for nt in range(2):
                ac = ACC + 16 * (mt * 2 + nt)
                c = '0' if k == 0 else f'v[{ac}:{ac+15}]'
                o(f'v_mfma_f32_32x32x16_bf16 v[{ac}:{ac+15}], a[{8*k+4*mt}:{8*k+4*mt+3}], v[{b+4*nt}:{b+4*nt+3}], {c}')
        if k + DEPTH < 28: hload(k + DEPTH)
    if stamps: o('s_memtime s[88:89]')
    o(f'v_add_u32 v{vL}, 0, v{vLane16}')
    o('s_nop 7'); o('s_nop 3')
    R = HB
    def send(v):
        for q in range(4):
            if q == v: continue
            si = (v - q - 1) % 4
            for g in range(4):
                ac = ACC + 16 * q + 4 * g
                o(f'ds_write_b128 v{vL}, v[{ac}:{ac+3}] offset:{(q * 3 + si) * 4096 + g * 1024}')
        if v:
            for j in range(0, 16, 2): o(f'v_pk_mul_f32 v[{ACC+j}:{ACC+j+1}], v[{ACC+16*v+j}:{ACC+16*v+j+1}], 1.0 op_sel_hi:[1,0]')
    o('s_cmp_lt_u32 s24, 2\ns_cbranch_scc0 LF_w23')
    o('s_cmp_eq_u32 s24, 0\ns_cbranch_scc0 LF_w1')
    send(0); o('s_branch LF_sent')
    o.label('LF_w1'); send(1); o('s_branch LF_sent')
    o.label('LF_w23')
    o('s_cmp_eq_u32 s24, 2\ns_cbranch_scc0 LF_w3')
    send(2); o('s_branch LF_sent')
    o.label('LF_w3'); send(3)
    o.label('LF_sent')
    vm.wait('res')
    U = R + 48
    for q in range(4):
        r0, r1 = RES + 2 * q, RES + 2 * q + 1
        o(f'v_lshlrev_b32 v{U+4*q}, 16, v{r0}')
        o(f'v_and_b32 v{U+4*q+1}, 0xffff0000, v{r0}')
        o(f'v_lshlrev_b32 v{U+4*q+2}, 16, v{r1}')
        o(f'v_and_b32 v{U+4*q+3}, 0xffff0000, v{r1}')
    for j in range(0, 16, 2): o(f'v_pk_add_f32 v[{ACC+j}:{ACC+j+1}], v[{ACC+j}:{ACC+j+1}], v[{U+j}:{U+j+1}]')
    o(f'v_lshrrev_b32 v12, 5, v0\nv_lshlrev_b32 v12, 3, v12\nv_add_u32 v{vF}, v{vRes}, v12')
    o('s_mul_i32 s37, s24, 12288')
    o(f'v_add_u32 v{vL}, s37, v{vLane16}')
    o('s_waitcnt lgkmcnt(0)')
    o('s_barrier')
    for src in range(3):
        for g in range(4):
            d = R + 16 * src + 4 * g
            o(f'ds_read_b128 v[{d}:{d+3}], v{vL} offset:{src * 4096 + g * 1024}')
    o('s_waitcnt lgkmcnt(4)')
    for j in range(0, 16, 2): o(f'v_pk_add_f32 v[{R+j}:{R+j+1}], v[{R+j}:{R+j+1}], v[{R+16+j}:{R+16+j+1}]')
    for j in range(0, 16, 2): o(f'v_pk_add_f32 v[{ACC+j}:{ACC+j+1}], v[{ACC+j}:{ACC+j+1}], v[{R+j}:{R+j+1}]')
    P = R + 48
    for half in range(2):
        o(f's_waitcnt lgkmcnt({2 - 2 * half})')
        for j in range(8 * half, 8 * half + 8, 2): o(f'v_pk_add_f32 v[{ACC+j}:{ACC+j+1}], v[{ACC+j}:{ACC+j+1}], v[{R+32+j}:{R+32+j+1}]')
        for q in (2 * half, 2 * half + 1):
            o(f'v_cvt_pk_bf16_f32 v{P+2*q}, v{ACC+4*q}, v{ACC+4*q+1}')
            o(f'v_cvt_pk_bf16_f32 v{P+2*q+1}, v{ACC+4*q+2}, v{ACC+4*q+3}')
        k = 2 * half
        o('s_nop 1')
        o(f'v_permlane32_swap_b32 v{P+2*k}, v{P+2*k+2}')
        o(f'v_permlane32_swap_b32 v{P+2*k+1}, v{P+2*k+3}')
        o(f'buffer_store_dwordx4 v[{P+2*k}:{P+2*k+3}], v{vF}, s[80:83], 0 offen offset:{32 * half}')
    if stamps:
        o('s_waitcnt vmcnt(0)')
        o('s_memtime s[90:91]')
        o('s_waitcnt lgkmcnt(0)')
        for r in (62, 64, 66, 68, 70, 72, 88, 90): o(f's_sub_u32 s{r}, s{r}, s74')
        o('v_mov_b32 v16, s62\nv_mov_b32 v17, s64\nv_mov_b32 v18, s66\nv_mov_b32 v19, s68\nv_mov_b32 v20, s70\nv_mov_b32 v21, s72\nv_mov_b32 v22, s88\nv_mov_b32 v23, s90')
        srd(o, 8, 4, 0x10000, 0x1800000)
        o('s_lshl_b32 s43, s2, 2\ns_add_u32 s43, s43, s24\ns_lshl_b32 s43, s43, 5')
        o('v_mov_b32 v24, s43')
        o('s_mov_b64 exec, 1')
        o('buffer_store_dwordx4 v[16:19], v24, s[8:11], 0 offen')
        o('buffer_store_dwordx4 v[20:23], v24, s[8:11], 0 offen offset:16')
    o.label('LF_end')
    o.label('LC_end')
    o('s_endpgm')
def flag_store(o, tagname):
    o('s_cmp_eq_u32 s24, 0')
    o(f's_cbranch_scc0 LF_nf{tagname}')
    o(f's_lshl_b32 s53, s27, 4\ns_add_u32 s53, s53, s28\ns_lshl_b32 s53, s53, 6\ns_add_u32 s53, s53, {WS_FLAG}')
    o('v_mov_b32 v12, 0')
    o('s_mov_b64 exec, 1')
    o('buffer_store_dword v10, v12, s[84:87], s53 offen sc1')
    o('s_mov_b64 exec, -1')
    o.label(f'LF_nf{tagname}')
```

```python
from asmlib import *
from layout import *
from vm import VM
NAME = 'ssm_kernel'
PREFETCH = False
SPARE_WAIT = False
POL0 = 'sc1'
REC_AT = 21
X_TACK = 0
PRETOUCH = 0
SWAP_ROLES = 1
HST = ''
X_NOA = 0
X_NOB = 0
X_NOM = 0
LA = 3
RP_AT = 29
ST = ''
TAB = 16896
LDS_US = 8 * TAB
LDS_XS = LDS_US + 2 * 4608
LDS_EX = LDS_XS + 2 * 4096
LDS_BYTES = LDS_EX + 8192
KR_COPY = 4160; KR_CH = 2 * KR_COPY
LDS_CX = 17408
LDS_RP = LDS_CX + 16384
LOG2E = 0x3fb8aa3b; INV2PI = 0x3e22f983; INV448 = 0x3b124925; EPS = 0x3727c5ac
sX, sAre, sAim, sBre, sBim, sCre, sCim, sLdt = 8, 10, 12, 14, 16, 18, 20, 22
sDsk, sWd, sWg, sWu, sDbg, sWs = 24, 26, 28, 30, 32, 34
SRD_X, SRD_WS = 36, 40
SRD_P = [44, 48, 52, 56, 60, 64]
SRD_WG, SRD_WU, SRD_WD, SRD_DBG = 68, 72, 76, 80
sWave, sPair, sCh, sMh, sLdtV, sDskV = 3, 84, 85, 86, 87, 88
sT0, sT1, sT2, sT3, sT4, sT5 = 89, 90, 91, 92, 93, 94
sSp = 95
vLane, vTag, vE, vT0, vT1, vT2, vT3 = 0, 1, 2, 3, 4, 6, 7
vXR = 8
vS, vQ = 12, 13
def cmul(o, d, p, q):
    o(f'v_pk_mul_f32 v[{d}:{d+1}], v[{p}:{p+1}], v[{q}:{q+1}] op_sel_hi:[0,1]')
    o(f'v_pk_fma_f32 v[{d}:{d+1}], v[{p}:{p+1}], v[{q}:{q+1}], v[{d}:{d+1}] op_sel:[1,1,0] op_sel_hi:[1,0,1] neg_lo:[1,0,0]')
def cmul2(o, dA, pA, qA, dB, pB, qB):
    o(f'v_pk_mul_f32 v[{dA}:{dA+1}], v[{pA}:{pA+1}], v[{qA}:{qA+1}] op_sel_hi:[0,1]')
    o(f'v_pk_mul_f32 v[{dB}:{dB+1}], v[{pB}:{pB+1}], v[{qB}:{qB+1}] op_sel_hi:[0,1]')
    o(f'v_pk_fma_f32 v[{dA}:{dA+1}], v[{pA}:{pA+1}], v[{qA}:{qA+1}], v[{dA}:{dA+1}] op_sel:[1,1,0] op_sel_hi:[1,0,1] neg_lo:[1,0,0]')
    o(f'v_pk_fma_f32 v[{dB}:{dB+1}], v[{pB}:{pB+1}], v[{qB}:{qB+1}], v[{dB}:{dB+1}] op_sel:[1,1,0] op_sel_hi:[1,0,1] neg_lo:[1,0,0]')
vXB = 168
vTL = 172
IMG_A = LDS_US
IMG_B = LDS_XS
def e_load(o, vm):
    o(f'buffer_load_dword v{vE}, off, s[{SRD_WS}:{SRD_WS+3}], 0 sc1'); vm.issue('E')
def make_tag(o):
    o(f's_mov_b32 s{sT0}, 0x9E3779B1')
    o(f'v_mul_lo_u32 v{vTag}, v{vE}, s{sT0}')
    o(f'v_add_u32 v{vTag}, 0x7F4A7C15, v{vTag}')
def row_loads(o, vm, woff=0):
    for j in range(4): o(f'v_mov_b32 v{vXR+j}, 0\nv_mov_b32 v{vXB+j}, 0')
    o(f's_lshl_b32 s{sT2}, s2, 3\ns_sub_u32 s{sT4}, s{sWave}, {woff}\ns_lshl_b32 s{sT4}, s{sT4}, 1\ns_add_u32 s{sT2}, s{sT2}, s{sT4}')
    o(f's_mul_i32 s{sT2}, s{sT2}, 896')
    o(f'v_lshlrev_b32 v{vT1}, 4, v0')
    o('s_mov_b32 exec_hi, 0x00ffffff')
    o(f'buffer_load_dwordx4 v[{vXR}:{vXR+3}], v{vT1}, s[{SRD_X}:{SRD_X+3}], s{sT2} offen'); vm.issue('xrow')
    o(f'buffer_load_dwordx4 v[{vXB}:{vXB+3}], v{vT1}, s[{SRD_X}:{SRD_X+3}], s{sT2} offen offset:896'); vm.issue('xrow')
    o('s_mov_b32 exec_hi, -1')
def row_stats(o, vm, woff=0):
    SA, QA, SB, QB = 12, 13, 180, 181
    vm.wait('xrow')
    make_tag(o)
    for r in (SA, QA, SB, QB): o(f'v_mov_b32 v{r}, 0')
    o(f'v_mov_b32 v{vT1}, 0x3f803f80')
    for j in range(4):
        o(f'v_dot2c_f32_bf16 v{SA}, v{vXR+j}, v{vT1}')
        o(f'v_dot2c_f32_bf16 v{QA}, v{vXR+j}, v{vXR+j}')
        o(f'v_dot2c_f32_bf16 v{SB}, v{vXB+j}, v{vT1}')
        o(f'v_dot2c_f32_bf16 v{QB}, v{vXB+j}, v{vXB+j}')
    o('s_nop 2')
    for ctl in ['row_shr:1', 'row_shr:2', 'row_shr:4', 'row_shr:8']:
        for r in (SA, QA, SB, QB): o(f'v_add_f32_dpp v{r}, v{r}, v{r} {ctl} row_mask:0xf bank_mask:0xf bound_ctrl:0')
    for ctl, rm in [('row_bcast:15', '0xa'), ('row_bcast:31', '0xc')]:
        for r in (SA, QA, SB, QB): o(f'v_add_f32_dpp v{r}, v{r}, v{r} {ctl} row_mask:{rm} bank_mask:0xf')
    RR = 192
    for S_, Q_, dst in ((SA, QA, RR), (SB, QB, RR + 2)):
        o(f'v_mul_f32 v{S_}, {hex(INV448)}, v{S_}\nv_mul_f32 v{Q_}, {hex(INV448)}, v{Q_}')
    for S_, Q_, dst in ((SA, QA, RR), (SB, QB, RR + 2)):
        o(f'v_fma_f32 v{Q_}, -v{S_}, v{S_}, v{Q_}\nv_max_f32 v{Q_}, 0, v{Q_}')
    for op in ('v_cvt_pk_bf16_f32 v{q}, v{q}, v{q}', 'v_and_b32 v{q}, 0xffff0000, v{q}', 'v_add_f32 v{q}, ' + hex(EPS) + ', v{q}',
               'v_cvt_pk_bf16_f32 v{q}, v{q}, v{q}', 'v_and_b32 v{q}, 0xffff0000, v{q}', 'v_sqrt_f32 v{q}, v{q}'):
        for Q_ in (QA, QB): o(op.format(q=Q_))
    o(f'v_mov_b32 v{RR+1}, v{vTag}\nv_mov_b32 v{RR+3}, v{vTag}')
    o(f'v_cvt_pk_bf16_f32 v{RR}, v{SA}, v{QA}\nv_cvt_pk_bf16_f32 v{RR+2}, v{SB}, v{QB}')
    o(f's_lshl_b32 s{sT0}, s2, 3\ns_sub_u32 s{sT1}, s{sWave}, {woff}\ns_lshl_b32 s{sT1}, s{sT1}, 1\ns_add_u32 s{sT0}, s{sT0}, s{sT1}')
    o(f's_lshl_b32 s{sT0}, s{sT0}, 3\ns_add_u32 s{sT0}, s{sT0}, {WS_REC}')
    o('s_mov_b32 exec_lo, 0\ns_mov_b32 exec_hi, 0x80000000')
    o(f'buffer_store_dwordx4 v[{RR}:{RR+3}], v251, s[{SRD_WS}:{SRD_WS+3}], s{sT0} offen sc1'); vm.issue('rec')
    o('s_mov_b64 exec, -1')
def tile_loads(o, vm):
    o(f's_mul_i32 s{sT2}, s{sPair}, 9363\ns_lshr_b32 s{sT2}, s{sT2}, 16')
    o(f's_mul_i32 s{sT4}, s{sT2}, 7\ns_sub_u32 s{sT4}, s{sPair}, s{sT4}')
    o(f's_mul_i32 s{sT2}, s{sT2}, {64 * 896}\ns_lshl_b32 s{sT4}, s{sT4}, 7\ns_add_u32 s{sT2}, s{sT2}, s{sT4}')
    o(f's_sub_u32 s{sT4}, s{sWave}, 4\ns_lshl_b32 s{sT4}, s{sT4}, 3')
    o(f'v_lshrrev_b32 v{vT0}, 3, v0\nv_add_u32 v{vT0}, s{sT4}, v{vT0}\nv_mul_u32_u24 v{vT0}, 896, v{vT0}')
    o(f'v_and_b32 v{vT1}, 7, v0\nv_lshlrev_b32 v{vT1}, 4, v{vT1}\nv_add_u32 v{vT0}, v{vT0}, v{vT1}')
    o(f'buffer_load_dwordx4 v[{vTL}:{vTL+3}], v{vT0}, s[{SRD_X}:{SRD_X+3}], s{sT2} offen'); vm.issue('tile')
    o(f's_add_u32 s{sT2}, s{sT2}, {32 * 896}')
    o(f'buffer_load_dwordx4 v[{vTL+4}:{vTL+7}], v{vT0}, s[{SRD_X}:{SRD_X+3}], s{sT2} offen'); vm.issue('tile')
def tile_image(o, vm):
    vm.wait('tile')
    o(f's_sub_u32 s{sT4}, s{sWave}, 4\ns_lshl_b32 s{sT4}, s{sT4}, 3')
    o(f'v_lshrrev_b32 v{vT0}, 3, v0\nv_add_u32 v{vT0}, s{sT4}, v{vT0}\nv_mul_u32_u24 v{vT0}, 144, v{vT0}')
    o(f'v_and_b32 v{vT1}, 7, v0\nv_lshlrev_b32 v{vT1}, 4, v{vT1}\nv_add_u32 v{vT0}, v{vT0}, v{vT1}')
    o(f'v_add_u32 v{vT0}, {IMG_A}, v{vT0}')
    o(f'ds_write_b128 v{vT0}, v[{vTL}:{vTL+3}]')
    o(f'ds_write_b128 v{vT0}, v[{vTL+4}:{vTL+7}] offset:{32 * 144}')
    make_tag(o)
def tile_transpose(o, vm, woff=4):
    o(f'v_lshrrev_b32 v{vT0}, 4, v0\nv_lshlrev_b32 v{vT0}, 2, v{vT0}\nv_bfe_u32 v{vT1}, v0, 2, 2\nv_add_u32 v{vT0}, v{vT0}, v{vT1}')
    o(f'v_mul_u32_u24 v{vT0}, 144, v{vT0}')
    o(f'v_and_b32 v{vT1}, 3, v0\nv_lshlrev_b32 v{vT1}, 3, v{vT1}\nv_add_u32 v{vT0}, v{vT0}, v{vT1}')
    o(f's_sub_u32 s{sT4}, s{sWave}, {woff}\ns_lshl_b32 s{sT0}, s{sT4}, 5\ns_add_u32 s{sT0}, s{sT0}, {IMG_A}')
    o(f'v_add_u32 v{vT0}, s{sT0}, v{vT0}')
    for i in range(4): o(f'ds_read_b64_tr_b16 v[{vTL+2*i}:{vTL+2*i+1}], v{vT0} offset:{16 * 144 * i}')
    o(f'v_and_b32 v{vT1}, 15, v0\nv_mul_u32_u24 v{vT1}, 144, v{vT1}')
    o(f'v_lshrrev_b32 v{vT2}, 4, v0\nv_lshlrev_b32 v{vT2}, 3, v{vT2}\nv_add_u32 v{vT1}, v{vT1}, v{vT2}')
    o(f's_mul_i32 s{sT0}, s{sT4}, {16 * 144}\ns_add_u32 s{sT0}, s{sT0}, {IMG_B}')
    o(f'v_add_u32 v{vT1}, s{sT0}, v{vT1}')
    o(f'v_lshrrev_b32 v{vT2}, 3, v0\nv_mul_u32_u24 v{vT2}, 144, v{vT2}')
    o(f'v_and_b32 v{vT3}, 7, v0\nv_lshlrev_b32 v{vT3}, 4, v{vT3}\nv_add_u32 v{vT2}, v{vT2}, v{vT3}')
    o(f'v_add_u32 v{vT2}, s{sT0}, v{vT2}')
    for i in range(4):
        o(f's_waitcnt lgkmcnt({3 - i})' if i == 0 else f's_waitcnt lgkmcnt(3)')
        o(f'ds_write_b64 v{vT1}, v[{vTL+2*i}:{vTL+2*i+1}] offset:{32 * i}')
    o(f's_mul_i32 s{sT0}, s{sPair}, 9363\ns_lshr_b32 s{sT0}, s{sT0}, 16')
    o(f's_mul_i32 s{sT1}, s{sT0}, 7\ns_sub_u32 s{sT1}, s{sPair}, s{sT1}')
    o(f's_lshl_b32 s{sT1}, s{sT1}, 5\ns_add_u32 s{sT0}, s{sT0}, s{sT1}\ns_lshl_b32 s{sT0}, s{sT0}, 13')
    o(f's_lshl_b32 s{sT1}, s{sT4}, 11\ns_add_u32 s{sT0}, s{sT0}, s{sT1}')
    o(f's_add_u32 s{sT1}, s{sT0}, {WS_T2}\ns_add_u32 s{sT0}, s{sT0}, {WS_T}')
    o(f'v_lshlrev_b32 v{vT0}, 4, v0')
    o('s_waitcnt lgkmcnt(0)')
    o(f'ds_read_b128 v[{vTL}:{vTL+3}], v{vT2}')
    o(f'ds_read_b128 v[{vTL+4}:{vTL+7}], v{vT2} offset:{8 * 144}')
    X2 = 184
    for h in range(2):
        o(f's_waitcnt lgkmcnt({1 - h})')
        o(f'buffer_store_dwordx4 v[{vTL+4*h}:{vTL+4*h+3}], v{vT0}, s[{SRD_WS}:{SRD_WS+3}], s{sT0} offen offset:{1024*h} sc1'); vm.issue('ts')
        for j in range(4): o(f'v_xor_b32 v{X2+4*h+j}, v{vTL+4*h+j}, v{vTag}')
        o(f'buffer_store_dwordx4 v[{X2+4*h}:{X2+4*h+3}], v{vT0}, s[{SRD_WS}:{SRD_WS+3}], s{sT1} offen offset:{1024*h} sc1'); vm.issue('ts')
def seed(o, dst, ar2, ai2, t, tmp, conj=False):
    o(f'v_mul_f32 v{tmp}, {float(t)}, v{ar2}' if t in (1, 2, 4) else f'v_mul_f32 v{tmp}, {hex(f32(t))}, v{ar2}')
    o(f'v_mul_f32 v{tmp+1}, {float(t)}, v{ai2}' if t in (1, 2, 4) else f'v_mul_f32 v{tmp+1}, {hex(f32(t))}, v{ai2}')
    o(f'v_exp_f32 v{tmp}, v{tmp}')
    o(f'v_fract_f32 v{tmp+1}, v{tmp+1}')
    o('s_nop 0')
    o(f'v_cos_f32 v{dst}, v{tmp+1}')
    o(f'v_sin_f32 v{dst+1}, v{tmp+1}')
    o('s_nop 0')
    o(f'v_mul_f32 v{dst}, v{tmp}, v{dst}')
    if conj: o(f'v_mul_f32 v{dst+1}, -v{dst+1}, v{tmp}'.replace('v_mul_f32', 'v_mul_f32_e64'))
    else: o(f'v_mul_f32 v{dst+1}, v{tmp}, v{dst+1}')
import struct
def f32(x): return struct.unpack('<I', struct.pack('<f', float(x)))[0]
def compute_dt(o, vdt):
    o(f's_lshl_b32 s{sT0}, s{sLdtV}, 16')
    o(f's_and_b32 s{sT1}, s{sLdtV}, 0xffff0000')
    o(f's_cmp_eq_u32 s{sCh}, 0')
    o(f's_cselect_b32 s{sT0}, s{sT0}, s{sT1}')
    o(f'v_mov_b32 v{vdt}, s{sT0}')
    o(f'v_mul_f32 v{vdt}, {hex(LOG2E)}, v{vdt}')
    o(f'v_exp_f32 v{vdt}, v{vdt}')
    o('s_nop 0')
    o(f'v_cvt_pk_bf16_f32 v{vdt}, v{vdt}, v{vdt}')
    o(f'v_and_b32 v{vdt}, 0xffff0000, v{vdt}')
def unpack(o, dlo, dhi, src):
    o(f'v_lshlrev_b32 v{dlo}, 16, v{src}')
    o(f'v_and_b32 v{dhi}, 0xffff0000, v{src}')
class RowWriter:
    def __init__(self, o, vaddr, out0): self.o, self.va, self.out0, self.n = o, vaddr, out0, 0
    def write(self, rows, cA, cB):
        r = self.out0 + 2 * (self.n % 4); self.n += 1
        self.o(f'v_cvt_pk_bf16_f32 v{r}, v{cA}, v{cA+1}')
        self.o(f'v_cvt_pk_bf16_f32 v{r+1}, v{cB}, v{cB+1}')
        for m in rows: self.o(f'ds_write_b64 v{self.va}, v[{r}:{r+1}] offset:{m * 528}')
def stamp(o, on, idx):
    if on: o(f's_memtime s[{96 + 0}:{97}]'); o('s_waitcnt lgkmcnt(0)'); o(f'v_writelane_b32 v255, s96, {idx}')

def gen_ab(o, stamps=False):
    kernel_begin(o, NAME)
    o('s_cmp_ge_u32 s2, 256')
    o('s_cbranch_scc1 LA_end')
    o('s_load_dwordx16 s[8:23], s[0:1], 0')
    o(f's_load_dwordx2 s[{sDsk}:{sDsk+1}], s[0:1], 64')
    o(f's_load_dwordx4 s[{sWg}:{sWg+3}], s[0:1], 80')
    o(f's_load_dwordx2 s[{sWd}:{sWd+1}], s[0:1], 96')
    o(f's_load_dwordx4 s[{sDbg}:{sDbg+3}], s[0:1], 112')
    if stamps: o('v_mov_b32 v255, 0'); o('s_memtime s[98:99]')
    o(f'v_lshrrev_b32 v{vT0}, 6, v0')
    o('v_and_b32 v0, 63, v0')
    o(f'v_readfirstlane_b32 s{sWave}, v{vT0}')
    o(f's_and_b32 s{sT0}, s2, 7')
    o(f's_lshr_b32 s{sT1}, s2, 3')
    if PREFETCH: code_prefetch(o, NAME, 'code_end', sT1, sWave, 8, 240, 244, 96, 'ab')
    o(f's_mul_i32 s{sPair}, s{sT0}, 28')
    o(f's_add_u32 s{sPair}, s{sPair}, s{sT1}')
    o(f's_lshl_b32 s{sSp}, s{sT0}, 2')
    o(f's_add_u32 s{sSp}, s{sSp}, s{sT1}')
    o(f's_sub_u32 s{sSp}, s{sSp}, 28')
    o(f's_lshr_b32 s{sCh}, s{sWave}, 1')
    o(f's_and_b32 s{sCh}, s{sCh}, 1')
    o(f's_and_b32 s{sMh}, s{sWave}, 1')
    o('v_mov_b32 v250, 0\nv_mov_b32 v251, 0')
    o('s_waitcnt lgkmcnt(0)')
    if WS_SHIFT: o(f's_add_u32 s{sWs}, s{sWs}, {WS_SHIFT}\ns_addc_u32 s{sWs+1}, s{sWs+1}, 0')
    srd(o, SRD_X, sX, 1835008)
    srd(o, SRD_WS, sWs, WS_END)
    vm = VM(o)
    o(f's_cmp_ge_u32 s{sT1}, 28')
    o('s_cbranch_scc1 LA_spare')
    if SWAP_ROLES: o(f's_xor_b32 s{sWave}, s{sWave}, 4')
    o(f's_lshl_b32 s{sT2}, s{sPair}, 2')
    o(f's_load_dword s{sLdtV}, s[{sLdt}:{sLdt+1}], s{sT2}')
    o(f's_load_dword s{sDskV}, s[{sDsk}:{sDsk+1}], s{sT2}')
    o(f's_lshl_b32 s{sT2}, s{sPair}, 1')
    o(f's_add_u32 s{sT2}, s{sT2}, s{sCh}')
    o(f's_lshl_b32 s{sT3}, s{sT2}, 9')
    o(f's_lshl_b32 s{sT4}, s{sMh}, 8')
    o(f's_add_u32 s{sT3}, s{sT3}, s{sT4}')
    o(f'v_lshlrev_b32 v{vT2}, 2, v0')
    o(f's_cmp_ge_u32 s{sWave}, 4')
    o('s_cbranch_scc1 LA_nwave')
    gen_mwave(o, vm.q[:], stamps)
    o.label('LA_nwave')
    gen_nwave(o, vm.q[:], stamps)
    o.label('LA_spare')
    gen_spare(o, vm.q[:], stamps)
    o.label('LA_end')
    o('s_endpgm')

def finish(o, stamps):
    if stamps:
        o('s_waitcnt vmcnt(0) lgkmcnt(0)')
        stamp(o, True, 15)
        o('v_writelane_b32 v255, s98, 14')
        srd(o, 44, sWs, 0x40000, 0x1820000)
        o(f's_lshl_b32 s{sT0}, s2, 3\ns_add_u32 s{sT0}, s{sT0}, s{sWave}\ns_lshl_b32 s{sT0}, s{sT0}, 6')
        o(f'v_lshlrev_b32 v254, 2, v0')
        o('s_mov_b64 exec, 0xffff')
        o(f'buffer_store_dword v255, v254, s[44:47], s{sT0} offen')
    o('s_endpgm')

def gen_mwave(o, q0, stamps):
    vm = VM(o); vm.q = q0
    P = 16
    e_load(o, vm)
    for i, p in enumerate([sAre, sAim, sBre, sBim, sCre, sCim]):
        srd(o, SRD_P[i], p, 229376)
        o(f'buffer_load_dword v{P+i}, v{vT2}, s[{SRD_P[i]}:{SRD_P[i]+3}], s{sT3} offen'); vm.issue('par')
    if PRETOUCH & 4:
        o(f's_mul_i32 s{sT0}, s{sPair}, 9363\ns_lshr_b32 s{sT0}, s{sT0}, 16')
        o(f's_mul_i32 s{sT1}, s{sT0}, 7\ns_sub_u32 s{sT1}, s{sPair}, s{sT1}')
        o(f's_lshl_b32 s{sT1}, s{sT1}, 5\ns_add_u32 s{sT0}, s{sT0}, s{sT1}\ns_lshl_b32 s{sT0}, s{sT0}, 13')
        o(f's_lshl_b32 s{sT1}, s{sWave}, 11\ns_add_u32 s{sT0}, s{sT0}, s{sT1}\ns_add_u32 s{sT0}, s{sT0}, {WS_T}')
        o(f'v_and_b32 v30, 15, v0\nv_lshlrev_b32 v30, 7, v30\nv_bfe_u32 v31, v0, 4, 1\nv_mul_u32_u24 v31, {(WS_T2 - WS_T) >> 4}, v31\nv_lshlrev_b32 v31, 4, v31\nv_add_u32 v30, v30, v31')
        o('s_mov_b64 exec, 0xffffffff')
        o(f'buffer_load_dword v248, v30, s[{SRD_WS}:{SRD_WS+3}], s{sT0} offen sc1'); vm.issue('pt')
        o('s_mov_b64 exec, -1')
    if PRETOUCH & 2:
        o('v_and_b32 v30, 15, v0\nv_lshlrev_b32 v30, 21, v30')
        o('s_mov_b64 exec, 0xffff')
        o(f'buffer_load_dword v249, v30, s[{SRD_WS}:{SRD_WS+3}], 0 offen'); vm.issue('pt')
        o('s_mov_b64 exec, -1')
    vm.wait('E')
    make_tag(o)
    o('s_waitcnt lgkmcnt(0)')
    o('s_barrier')
    tile_transpose(o, vm, 0)
    stamp(o, stamps, 0)
    if stamps and X_TACK:
        o('s_waitcnt vmcnt(0)')
        stamp(o, stamps, 7)
    vm.wait('par')
    o('s_waitcnt lgkmcnt(0)')
    o(f's_cmp_eq_u32 s{sWave}, 3')
    o('s_cbranch_scc0 LM_noat')
    epoch_atomic(o)
    o.label('LM_noat')
    vdt = 22
    compute_dt(o, vdt)
    U = 24
    for i in range(6): unpack(o, U + 2*i, U + 2*i + 1, P + i)
    for i in range(4): o(f'v_mul_f32 v{U+i}, v{vdt}, v{U+i}')
    for i in range(4, 8): o(f'v_mul_f32 v{U+i}, v{vdt}, v{U+i}')
    o(f'v_mul_f32 v{U}, {hex(LOG2E)}, v{U}\nv_mul_f32 v{U+1}, {hex(LOG2E)}, v{U+1}')
    o(f'v_mul_f32 v{U+2}, {hex(INV2PI)}, v{U+2}\nv_mul_f32 v{U+3}, {hex(INV2PI)}, v{U+3}')
    X0 = 36; X2 = 40; X4 = 44; X6 = 48; X8 = 52; E1 = 56; CUR = 60; CU2 = 64
    Pw = {k: 68 + 4 * (k - 1) for k in range(1, 8)}
    TMP = 96; OUT = 100
    for mu in range(2):
        bre, bim, cre, cim = U + 4 + mu, U + 6 + mu, U + 8 + mu, U + 10 + mu
        w = X0 + 2 * mu
        o(f'v_mul_f32 v{w}, v{cre}, v{bre}')
        o(f'v_mul_f32 v{w+1}, v{cre}, v{bim}')
        o(f'v_fma_f32 v{w}, -v{cim}, v{bim}, v{w}')
        o(f'v_fma_f32 v{w+1}, v{cim}, v{bre}, v{w+1}')
    for mu in range(2):
        seed(o, E1 + 2*mu, U + mu, U + 2 + mu, 1, TMP + 2*mu)
        seed(o, Pw[1] + 2*mu, U + mu, U + 2 + mu, 256, TMP + 2*mu)
    stamp(o, stamps, 1)
    vTab = 108
    o(f's_lshl_b32 s{sT0}, s{sCh}, 1\ns_add_u32 s{sT0}, s{sT0}, s{sMh}\ns_mul_i32 s{sT0}, s{sT0}, {TAB}')
    o(f'v_lshlrev_b32 v{vTab}, 3, v0\nv_add_u32 v{vTab}, s{sT0}, v{vTab}')
    rw = RowWriter(o, vTab, OUT)
    def c2(d, p, q): cmul2(o, d, p, q, d + 2, p + 2, q + 2)
    rw.write([0], X0, X0 + 2)
    keep = {0: X0, 2: X2, 4: X4, 6: X6, 8: X8}
    prev = X0
    for t in range(1, 9):
        d = keep.get(t, CUR)
        c2(d, prev, E1)
        rows = [t] if t < 8 else [12]
        if t == 4: rows = [4, 8]
        rw.write(rows, d, d + 2)
        prev = d
    c2(Pw[2], Pw[1], Pw[1]); c2(Pw[3], Pw[2], Pw[1]); c2(Pw[4], Pw[2], Pw[2])
    c2(Pw[5], Pw[4], Pw[1]); c2(Pw[6], Pw[4], Pw[2]); c2(Pw[7], Pw[4], Pw[3])
    alt = [CUR, CU2]; n = 0
    def prod(rows, xs, pk):
        nonlocal n
        d = alt[n % 2]; n += 1
        c2(d, keep[xs], Pw[pk]); rw.write(rows, d, d + 2)
    prod([9], 0, 1); prod([10], 2, 1); prod([11, 13], 4, 1); prod([14], 6, 1); prod([15], 8, 1)
    prod([16], 0, 2); prod([17], 4, 2); prod([18], 8, 2)
    prod([20], 0, 3); prod([21], 4, 3); prod([22], 8, 3)
    prod([19], 0, 4); prod([24], 8, 4)
    prod([25], 0, 5); prod([26], 8, 5)
    prod([23], 0, 6); prod([28], 8, 6)
    prod([29], 0, 7); prod([30], 8, 7)
    vA, vB = 109, 110
    o(f'v_and_b32 v{vT0}, 31, v0\nv_mul_u32_u24 v{vT0}, 528, v{vT0}')
    o(f'v_lshrrev_b32 v{vT1}, 5, v0\nv_lshlrev_b32 v{vT1}, 4, v{vT1}')
    o(f'v_add3_u32 v{vA}, v{vT0}, v{vT1}, s{sT0}')
    o(f'v_add_u32 v{vB}, {4 * TAB}, v{vA}')
    AF = 64; ACC = 32; BB = 192; vKA = [208, 209, 210, 211]; vBa = 212
    vR, vHh = 213, 214
    o(f'v_and_b32 v{vR}, 15, v0\nv_lshrrev_b32 v{vHh}, 4, v0')
    o(f'v_and_b32 v{vT0}, 1, v{vR}')
    o(f'v_add_u32 v{vT1}, v{vR}, v{vT0}')
    o(f'v_mul_u32_u24 v{vT0}, {KR_COPY}, v{vT0}')
    o(f'v_lshlrev_b32 v{vT1}, 1, v{vT1}')
    o(f'v_sub_u32 v{vT0}, v{vT0}, v{vT1}')
    o(f'v_lshlrev_b32 v{vT1}, 4, v{vHh}')
    o(f'v_add_u32 v{vT0}, v{vT0}, v{vT1}')
    o(f's_mul_i32 s{sT1}, s{sCh}, {KR_CH}')
    o(f's_lshl_b32 s{sT2}, s{sMh}, 6')
    o(f's_sub_u32 s{sT1}, s{sT1}, s{sT2}')
    o(f's_add_u32 s{sT1}, s{sT1}, {2 * 2032}')
    for g in range(4):
        o(f's_sub_u32 s{sT3}, s{sT1}, {128 * (8 * g + 7)}')
        o(f'v_add_u32 v{vKA[g]}, s{sT3}, v{vT0}')
    o(f'v_lshlrev_b32 v{vT0}, 5, v{vR}\nv_lshlrev_b32 v{vT1}, 4, v{vHh}\nv_add_u32 v{vT0}, v{vT0}, v{vT1}')
    o(f's_mul_i32 s{sT1}, s{sCh}, 4608')
    o(f's_sub_u32 s{sT1}, s{sT1}, s{sT2}')
    o(f's_add_u32 s{sT1}, s{sT1}, {LDS_US + 480 + 64 * 56 - 128 * 31}')
    o(f'v_add_u32 v{vBa}, s{sT1}, v{vT0}')
    vCx = 215
    o(f's_lshl_b32 s{sT1}, s{sWave}, 12')
    o(f's_add_u32 s{sT1}, s{sT1}, {LDS_CX}')
    o(f'v_lshlrev_b32 v{vCx}, 4, v0\nv_add_u32 v{vCx}, s{sT1}, v{vCx}')
    vCp = 220
    o(f's_xor_b32 s{sT1}, s{sWave}, 1\ns_lshl_b32 s{sT1}, s{sT1}, 12\ns_add_u32 s{sT1}, s{sT1}, {LDS_CX}')
    o(f'v_lshlrev_b32 v{vCp}, 4, v0\nv_add_u32 v{vCp}, s{sT1}, v{vCp}')
    vU, vXs, vO = 216, 217, 218
    o(f'v_lshlrev_b32 v{vT0}, 5, v{vR}\nv_lshlrev_b32 v{vT1}, 3, v{vHh}\nv_add_u32 v{vT0}, v{vT0}, v{vT1}')
    o(f's_lshl_b32 s{sT2}, s{sMh}, 11')
    o(f's_mul_i32 s{sT1}, s{sCh}, 4608\ns_add_u32 s{sT1}, s{sT1}, s{sT2}\ns_add_u32 s{sT1}, s{sT1}, {LDS_US + 512}')
    o(f'v_add_u32 v{vU}, s{sT1}, v{vT0}')
    o(f's_lshl_b32 s{sT1}, s{sCh}, 12\ns_add_u32 s{sT1}, s{sT1}, s{sT2}\ns_add_u32 s{sT1}, s{sT1}, {LDS_XS}')
    o(f'v_add_u32 v{vXs}, s{sT1}, v{vT0}')
    o(f's_lshl_b32 s{sT1}, s{sPair}, 1\ns_add_u32 s{sT1}, s{sT1}, s{sCh}\ns_lshl_b32 s{sT1}, s{sT1}, 6')
    o(f's_mul_i32 s{sT2}, s{sMh}, {32 * 28672}')
    o(f's_add_u32 s{sT1}, s{sT1}, s{sT2}\ns_add_u32 s{sT4}, s{sT1}, {WS_HT}')
    vHo = 219
    o(f'v_lshrrev_b32 v{vHo}, 1, v{vR}\nv_mul_u32_u24 v{vHo}, 28672, v{vHo}')
    o(f'v_and_b32 v{vT1}, 1, v{vR}\nv_lshlrev_b32 v{vT1}, 5, v{vT1}\nv_add_u32 v{vHo}, v{vHo}, v{vT1}')
    o(f'v_lshlrev_b32 v{vT1}, 3, v{vHh}\nv_add_u32 v{vHo}, v{vHo}, v{vT1}')
    o(f's_lshl_b32 s{sT1}, s{sDskV}, 16\ns_and_b32 s{sT2}, s{sDskV}, 0xffff0000')
    o(f's_cmp_eq_u32 s{sCh}, 0\ns_cselect_b32 s{sT5}, s{sT1}, s{sT2}')
    o('s_waitcnt lgkmcnt(0)')
    stamp(o, stamps, 2)
    o('s_barrier')
    FR = 112; KD = 16
    def rd(kk):
        b = FR + 8 * (kk % 4)
        o(f'ds_read_b128 v[{b}:{b+3}], v{vA} offset:{kk * 32}')
        o(f'ds_read_b128 v[{b+4}:{b+7}], v{vB} offset:{kk * 32}')
    for kk in range(3): rd(kk)
    for kk in range(16):
        if kk + 3 < 16: rd(kk + 3)
        o(f's_waitcnt lgkmcnt({2 * min(3, 15 - kk)})')
        b = FR + 8 * (kk % 4)
        c = '0' if kk == 0 else f'v[{KD}:{KD+15}]'
        o(f'v_mfma_f32_32x32x16_bf16 v[{KD}:{KD+15}], v[{b}:{b+3}], v[{b+4}:{b+7}], {c}')
    vEx = 111
    o(f's_add_u32 s{sT1}, s{sWave}, 4\ns_mul_i32 s{sT1}, s{sT1}, {TAB}')
    o(f'v_lshlrev_b32 v{vEx}, 4, v0\nv_add_u32 v{vEx}, s{sT1}, v{vEx}')
    o(f's_xor_b32 s{sT2}, s{sWave}, 1\ns_add_u32 s{sT2}, s{sT2}, 4\ns_mul_i32 s{sT2}, s{sT2}, {TAB}')
    o(f'v_lshlrev_b32 v106, 4, v0\nv_add_u32 v106, s{sT2}, v106')
    o('s_nop 7\ns_nop 3')
    o(f's_cmp_eq_u32 s{sMh}, 0')
    o('s_cbranch_scc0 LM_send1')
    o(f'ds_write_b128 v{vEx}, v[{KD+8}:{KD+11}]\nds_write_b128 v{vEx}, v[{KD+12}:{KD+15}] offset:1024')
    o('s_branch LM_sent')
    o.label('LM_send1')
    o(f'ds_write_b128 v{vEx}, v[{KD}:{KD+3}]\nds_write_b128 v{vEx}, v[{KD+4}:{KD+7}] offset:1024')
    o.label('LM_sent')
    o(f'v_mov_b32 v{vEx}, v106')
    o('s_waitcnt lgkmcnt(0)')
    stamp(o, stamps, 3)
    o('s_barrier')
    R = 32
    o(f'ds_read_b128 v[{R}:{R+3}], v{vEx}\nds_read_b128 v[{R+4}:{R+7}], v{vEx} offset:1024')
    vK = 40; vJ = 41; vH = 42; O = 44
    o(f'v_and_b32 v{vJ}, 31, v0\nv_lshrrev_b32 v{vH}, 5, v0')
    o(f's_mul_i32 s{sT1}, s{sCh}, {KR_CH}')
    o(f's_cmp_eq_u32 s{sMh}, 0')
    o('s_cbranch_scc0 LM_exp1')
    o(f'v_lshlrev_b32 v{vK}, 4, v{vJ}\nv_lshlrev_b32 v{vT0}, 3, v{vH}\nv_add_u32 v{vK}, v{vK}, v{vT0}')
    o(f'v_sub_u32 v{vK}, 4088, v{vK}\nv_add_u32 v{vK}, s{sT1}, v{vK}')
    o('s_waitcnt lgkmcnt(0)')
    for j in range(8): o(f'v_add_f32 v{KD+j}, v{KD+j}, v{R+j}')
    a0, a1, a2, a3, a4, sa, sb, sc = [KD + j for j in range(8)]
    cv = lambda d, lo, hi: o(f'v_cvt_pk_bf16_f32 v{d}, v{lo}, v{hi}')
    cv(O, a3, a2); cv(O+1, a1, a0); cv(O+2, a4, a3); cv(O+3, a2, a1)
    o(f'ds_write_b64 v{vK}, v[{O}:{O+1}] offset:{KR_COPY}')
    o(f'ds_write_b64 v{vK}, v[{O+2}:{O+3}]')
    cv(O+4, sc, sb); cv(O+5, sa, sa); cv(O+6, sc, sc); cv(O+7, sb, sa)
    o(f'v_subrev_u32 v{vK}, 512, v{vK}')
    o(f'ds_write_b64 v{vK}, v[{O+4}:{O+5}] offset:{KR_COPY}')
    o(f'ds_write_b64 v{vK}, v[{O+6}:{O+7}]')
    o(f'v_mov_b32 v{O+8}, 0')
    cv(O+9, a0, O+8)
    o(f'v_cmp_eq_u32 vcc, 0, v0')
    o(f'v_lshlrev_b32 v{vT0}, 2, v0')
    o(f'v_add_u32 v{vT0}, s{sT1}, v{vT0}')
    o(f'v_cndmask_b32 v{O+9}, v{O+8}, v{O+9}, vcc')
    o('s_mov_b64 exec, 0xff')
    o(f'ds_write_b32 v{vT0}, v{O+9} offset:4096')
    o(f'ds_write_b32 v{vT0}, v{O+8} offset:{4096 + KR_COPY}')
    o('s_mov_b64 exec, -1')
    o('s_branch LM_expd')
    o.label('LM_exp1')
    o(f'v_lshlrev_b32 v{vK}, 4, v{vJ}\nv_lshlrev_b32 v{vT0}, 9, v{vH}\nv_add_u32 v{vK}, v{vK}, v{vT0}')
    o(f'v_sub_u32 v{vK}, {4080 - 1024}, v{vK}\nv_add_u32 v{vK}, s{sT1}, v{vK}')
    vK3 = 43
    o(f'v_lshlrev_b32 v{vK3}, 4, v{vJ}\nv_lshlrev_b32 v{vT0}, 10, v{vH}\nv_add_u32 v{vK3}, v{vK3}, v{vT0}')
    o(f'v_sub_u32 v{vK3}, {4080 - 2048 - 512}, v{vK3}\nv_add_u32 v{vK3}, s{sT1}, v{vK3}')
    o(f'v_and_b32 v{vT0}, 1, v{vJ}')
    o(f'v_cmp_eq_u32 vcc, 0, v{vT0}')
    o('s_waitcnt lgkmcnt(0)')
    for j in range(8): o(f'v_add_f32 v{KD+8+j}, v{KD+8+j}, v{R+j}')
    T0, T1, T2 = KD + 8, KD + 9, KD + 10
    cv(O, T2, T2); cv(O+1, T1, T1); cv(O+2, T1, T0); cv(O+3, T0, T0)
    o(f'ds_write_b128 v{vK}, v[{O}:{O+3}] offset:{KR_COPY}')
    cv(O+4, T2, T2); cv(O+5, T2, T1); cv(O+6, T1, T1); cv(O+7, T0, T0)
    o(f'ds_write_b128 v{vK}, v[{O+4}:{O+7}]')
    for ii in range(2):
        t0, t1 = KD + 11 + 2*ii, KD + 12 + 2*ii
        sel = O + 16
        q = O + 8 * (ii + 1) if ii == 0 else O
        o(f'v_cndmask_b32 v{sel}, v{t1}, v{t0}, vcc')
        off = 512 if ii == 0 else 0
        cv(q, t1, t1); cv(q+1, t1, sel); cv(q+2, t0, t0); cv(q+3, t0, t0)
        o(f'ds_write_b128 v{vK3}, v[{q}:{q+3}] offset:{KR_COPY + off}')
        cv(q+4, t1, t1); cv(q+5, t1, t1); cv(q+6, sel, t0); cv(q+7, t0, t0)
        o(f'ds_write_b128 v{vK3}, v[{q+4}:{q+7}] offset:{off}')
    o.label('LM_expd')
    o('s_waitcnt lgkmcnt(0)')
    stamp(o, stamps, 4)
    o('s_barrier')
    def rdA(sg):
        d = AF + 4 * sg; g = sg // 8; off = 32 * (7 - (sg - 8 * g))
        o(f'ds_read2_b32 v[{d}:{d+1}], v{vKA[g]} offset0:{off} offset1:{off+1}')
        o(f'ds_read2_b32 v[{d+2}:{d+3}], v{vKA[g]} offset0:{off+2} offset1:{off+3}')
    def rdB(t):
        d = BB + 4 * (t % 4)
        o(f'ds_read_b128 v[{d}:{d+3}], v{vBa} offset:{128 * (31 - t)}')
    NBB = LA + 1 if LA > 3 else 4
    def rdA_ops(sg):
        d = AF + 4 * sg; g = sg // 8; off = 32 * (7 - (sg - 8 * g))
        if X_NOA: return ['s_nop 0', 's_nop 0']
        return [f'ds_read2_b32 v[{d}:{d+1}], v{vKA[g]} offset0:{off} offset1:{off+1}',
                f'ds_read2_b32 v[{d+2}:{d+3}], v{vKA[g]} offset0:{off+2} offset1:{off+3}']
    def rdB_op(t):
        d = BB + 4 * (t % NBB)
        if X_NOB: return 's_nop 0'
        return f'ds_read_b128 v[{d}:{d+3}], v{vBa} offset:{128 * (31 - t)}'
    for t in range(LA):
        for op in rdA_ops(t): o(op)
        o(rdB_op(t))
    started = set()
    for t in range(32):
        o(f's_waitcnt lgkmcnt({(3 - 2 * X_NOA - X_NOB) * min(LA - 1, 31 - t)})')
        pend = (rdA_ops(t + LA) + [rdB_op(t + LA)]) if t + LA < 32 else []
        cmin = max(0, -(-(28 - t) // 4))
        for c in range(7, cmin - 1, -1):
            sg = 4 * c - 28 + t
            ac = ACC + 4 * c
            cc = f'v[{ac}:{ac+3}]' if c in started else '0'
            started.add(c)
            if not X_NOM: o(f'v_mfma_f32_16x16x32_bf16 v[{ac}:{ac+3}], v[{AF+4*sg}:{AF+4*sg+3}], v[{BB+4*(t%NBB)}:{BB+4*(t%NBB)+3}], {cc}')
            if pend: o(pend.pop(0))
        for op in pend: o(op)
    stamp(o, stamps, 5)
    UB = 64; XB = 72; PB = 80; W = 96
    vDk = 222
    o(f'v_mov_b32 v{vDk}, s{sT5}')
    for j in range(4): o(f'ds_read_b64 v[{UB+2*j}:{UB+2*j+1}], v{vU} offset:{512*j}')
    o('s_nop 3')
    o(f's_cmp_eq_u32 s{sMh}, 0')
    o('s_cbranch_scc0 LM_cx1')
    for par in range(2):
        keep = ACC + 16 * par; send = ACC + 16 * (1 - par)
        if par: o.label('LM_cx1')
        for j in range(4): o(f'ds_write_b128 v{vCx}, v[{send+4*j}:{send+4*j+3}] offset:{1024*j}')
        o('s_waitcnt lgkmcnt(0)')
        o('s_barrier')
        for j in range(4): o(f'ds_read_b64 v[{XB+2*j}:{XB+2*j+1}], v{vXs} offset:{512*j}')
        for j in range(4): o(f'ds_read_b128 v[{PB+4*j}:{PB+4*j+3}], v{vCp} offset:{1024*j}')
        for j in range(4):
            unpack(o, W, W+1, UB+2*j); unpack(o, W+2, W+3, UB+2*j+1)
            for e in (0, 2): o(f'v_pk_fma_f32 v[{keep+4*j+e}:{keep+4*j+e+1}], v[{W+e}:{W+e+1}], v[{vDk}:{vDk+1}], v[{keep+4*j+e}:{keep+4*j+e+1}] op_sel_hi:[1,0,1]')
        so = sT4
        for j in range(4):
            o(f's_waitcnt lgkmcnt({3-j})')
            unpack(o, W+4, W+5, XB+2*j); unpack(o, W+6, W+7, XB+2*j+1)
            for e in (0, 2): o(f'v_pk_add_f32 v[{keep+4*j+e}:{keep+4*j+e+1}], v[{keep+4*j+e}:{keep+4*j+e+1}], v[{PB+4*j+e}:{PB+4*j+e+1}]')
            for e in (0, 2): o(f'v_pk_add_f32 v[{keep+4*j+e}:{keep+4*j+e+1}], v[{keep+4*j+e}:{keep+4*j+e+1}], v[{W+4+e}:{W+4+e+1}]')
            d = W + 8 + 2 * j
            cv(d, keep+4*j, keep+4*j+1); cv(d+1, keep+4*j+2, keep+4*j+3)
            o(f'buffer_store_dwordx2 v[{d}:{d+1}], v{vHo}, s[{SRD_WS}:{SRD_WS+3}], s{so} offen {HST}')
            if j < 3: o(f's_add_u32 s{so}, s{so}, {8 * 28672}')
        if par == 0:
            stamp(o, stamps, 6)
            finish(o, stamps)
    stamp(o, stamps, 6)
    finish(o, stamps)

def gen_nwave(o, q0, stamps):
    vm = VM(o); vm.q = q0
    P = 16
    o(f'v_mov_b32 v20, v{vT2}')
    e_load(o, vm)
    tile_loads(o, vm)
    row_loads(o, vm, 4)
    if PRETOUCH & 4:
        o(f's_lshl_b32 s{sT0}, s2, 6\ns_add_u32 s{sT0}, s{sT0}, {WS_REC}')
        o('s_mov_b64 exec, 1')
        o(f'buffer_load_dword v248, v251, s[{SRD_WS}:{SRD_WS+3}], s{sT0} offen sc1'); vm.issue('pt')
        o('s_mov_b64 exec, -1')
    for i, p in enumerate([sAre, sAim]): srd(o, SRD_P[i], p, 229376)
    for i in range(2):
        o(f'buffer_load_dword v{P+i}, v20, s[{SRD_P[i]}:{SRD_P[i]+3}], s{sT3} offen'); vm.issue('par')
    sNw, sSb, sKk, sKt, sDb, sL = 52, 53, 54, 55, 56, 57
    o(f's_lshl_b32 s{sNw}, s{sPair}, 2\ns_add_u32 s{sNw}, s{sNw}, s{sWave}\ns_sub_u32 s{sNw}, s{sNw}, 4')
    o(f's_min_u32 s{sT0}, s{sNw}, 783')
    o(f's_mul_i32 s{sSb}, s{sT0}, 2341\ns_lshr_b32 s{sSb}, s{sSb}, 16')
    o(f's_mul_i32 s{sKk}, s{sSb}, 28\ns_sub_u32 s{sKk}, s{sT0}, s{sKk}')
    o(f's_mul_i32 s{sKt}, s{sT0}, 9363\ns_lshr_b32 s{sKt}, s{sKt}, 16')
    o(f's_mul_i32 s{sDb}, s{sKt}, 7\ns_sub_u32 s{sDb}, s{sT0}, s{sDb}')
    o(f's_sub_u32 s{sL}, s{sWave}, 4\ns_mul_i32 s{sL}, s{sL}, 6144\ns_add_u32 s{sL}, s{sL}, {LDS_RP}')
    srd(o, SRD_WG, sWg, 1605632); srd(o, SRD_WU, sWu, 1605632); srd(o, SRD_WD, sWd, 1605632)
    tile_image(o, vm)
    o('s_waitcnt lgkmcnt(0)')
    o('s_barrier')
    stamp(o, stamps, 0)
    row_stats(o, vm, 4)
    vm.wait('par')
    G = 128; vG0, vTp = 24, 26
    o(f's_sub_u32 s{sT0}, s{sWave}, 4\ns_lshl_b32 s{sT0}, s{sT0}, 6')
    o(f'v_add_u32 v{vTp}, s{sT0}, v0')
    o(f'v_lshrrev_b32 v{vG0}, 4, v{vTp}\nv_lshlrev_b32 v{vG0}, 13, v{vG0}')
    o(f'v_and_b32 v{vT0}, 15, v{vTp}\nv_lshlrev_b32 v{vT0}, 4, v{vT0}\nv_add_u32 v{vG0}, v{vG0}, v{vT0}')
    o(f's_lshr_b32 s{sT1}, s{sPair}, 5\ns_lshl_b32 s{sT1}, s{sT1}, 18')
    o(f's_and_b32 s{sT2}, s{sPair}, 31\ns_lshl_b32 s{sT2}, s{sT2}, 8\ns_add_u32 s{sT1}, s{sT1}, s{sT2}')
    o(f'v_add_u32 v{vG0}, s{sT1}, v{vG0}')
    o(f'v_add_u32 v25, {16 * 8192}, v{vG0}')
    vdt = 22
    compute_dt(o, vdt)
    U = 28
    for i in range(2): unpack(o, U + 2*i, U + 2*i + 1, P + i)
    for i in range(4): o(f'v_mul_f32 v{U+i}, v{vdt}, v{U+i}')
    o(f'v_mul_f32 v{U}, {hex(LOG2E)}, v{U}\nv_mul_f32 v{U+1}, {hex(LOG2E)}, v{U+1}')
    o(f'v_mul_f32 v{U+2}, {hex(INV2PI)}, v{U+2}\nv_mul_f32 v{U+3}, {hex(INV2PI)}, v{U+3}')
    E8 = 36; YA = 40; YB = 44; TMP = 48; OUT = 52; vTab = 60
    for mu in range(2): seed(o, E8 + 2*mu, U + mu, U + 2 + mu, 8, TMP + 2*mu, conj=True)
    stamp(o, stamps, 1)
    o(f's_lshl_b32 s{sT0}, s{sCh}, 1\ns_add_u32 s{sT0}, s{sT0}, s{sMh}\ns_add_u32 s{sT0}, s{sT0}, 4\ns_mul_i32 s{sT0}, s{sT0}, {TAB}')
    o(f'v_lshlrev_b32 v{vTab}, 3, v0\nv_add_u32 v{vTab}, s{sT0}, v{vTab}')
    o(f'v_mov_b32 v{YA}, 0x3f80\nv_mov_b32 v{YA+1}, 0x3f80')
    o(f'ds_write_b64 v{vTab}, v[{YA}:{YA+1}]')
    rw = RowWriter(o, vTab, OUT)
    rw.write([1], E8, E8 + 2)
    E16 = 200; YC = 204; YD = 208
    RP = 144
    def rp_loads():
        vGu, vDn = 20, 21
        o(f'v_lshrrev_b32 v{vT0}, 3, v0\nv_and_b32 v{vT1}, 7, v0\nv_lshlrev_b32 v{vT1}, 4, v{vT1}')
        o(f'v_mul_u32_u24 v{vGu}, 3584, v{vT0}\nv_add_u32 v{vGu}, v{vGu}, v{vT1}')
        o(f'v_mul_u32_u24 v{vDn}, 896, v{vT0}\nv_add_u32 v{vDn}, v{vDn}, v{vT1}')
        o(f's_mul_i32 s{sT1}, s{sKk}, {16 * 3584}\ns_lshl_b32 s{sT2}, s{sSb}, 7\ns_add_u32 s{sT1}, s{sT1}, s{sT2}')
        o(f's_add_u32 s{sT2}, s{sT1}, {8 * 3584}')
        for mat, sr in enumerate([SRD_WG, SRD_WU]):
            for i in range(2):
                d = RP + 8 * mat + 4 * i
                o(f'buffer_load_dwordx4 v[{d}:{d+3}], v{vGu}, s[{sr}:{sr+3}], s{sT1 if i == 0 else sT2} offen'); vm.issue('rp')
        o(f's_mul_i32 s{sT1}, s{sKt}, {16 * 896}\ns_lshl_b32 s{sT2}, s{sDb}, 7\ns_add_u32 s{sT1}, s{sT1}, s{sT2}')
        o(f's_add_u32 s{sT2}, s{sT1}, {8 * 896}')
        for i in range(2):
            d = RP + 16 + 4 * i
            o(f'buffer_load_dwordx4 v[{d}:{d+3}], v{vDn}, s[{SRD_WD}:{SRD_WD+3}], s{sT1 if i == 0 else sT2} offen'); vm.issue('rp')

    RC = 64; vRa = 27
    o(f'v_lshlrev_b32 v{vRa}, 4, v{vTp}')
    o(f's_mov_b32 s{sT3}, {WS_REC}')
    o(f's_mov_b32 s{sT4}, {WS_T}\ns_mov_b32 s{sT5}, {WS_T2}')
    def rec_loads(pol):
        for j in range(4):
            if j: o(f's_add_u32 s{sT3}, s{sT3}, 4096')
            o(f'buffer_load_dwordx4 v[{RC+4*j}:{RC+4*j+3}], v{vRa}, s[{SRD_WS}:{SRD_WS+3}], s{sT3} offen {pol}')
        o(f's_mov_b32 s{sT3}, {WS_REC}')
        o(f'buffer_load_dwordx4 v[{G}:{G+3}], v{vG0}, s[{SRD_WS}:{SRD_WS+3}], s{sT4} offen {pol}')
        o(f'buffer_load_dwordx4 v[{G+4}:{G+7}], v25, s[{SRD_WS}:{SRD_WS+3}], s{sT4} offen {pol}')
        o(f'buffer_load_dwordx4 v[{G+8}:{G+11}], v{vG0}, s[{SRD_WS}:{SRD_WS+3}], s{sT5} offen {pol}')
        o(f'buffer_load_dwordx4 v[{G+12}:{G+15}], v25, s[{SRD_WS}:{SRD_WS+3}], s{sT5} offen {pol}')
    cmul2(o, E16, E8, E8, E16 + 2, E8 + 2, E8 + 2)
    rw.write([2], E16, E16 + 2)
    ev, od = [E16, YA, YB], [E8, YC, YD]
    pe, po = E16, E8
    step = 0
    for j in range(3, 32, 2):
        do = YC if step % 2 == 0 else YD
        de = YA if step % 2 == 0 else YB
        step += 1
        last = (j + 1 > 31)
        prods = [(do, po), (do + 2, po + 2)] + ([] if last else [(de, pe), (de + 2, pe + 2)])
        for d, p in prods:
            q = E16 + (2 if (d - (do if d in (do, do + 2) else de)) else 0)
            o(f'v_pk_mul_f32 v[{d}:{d+1}], v[{p}:{p+1}], v[{q}:{q+1}] op_sel_hi:[0,1]')
        for d, p in prods:
            q = E16 + (2 if (d - (do if d in (do, do + 2) else de)) else 0)
            o(f'v_pk_fma_f32 v[{d}:{d+1}], v[{p}:{p+1}], v[{q}:{q+1}], v[{d}:{d+1}] op_sel:[1,1,0] op_sel_hi:[1,0,1] neg_lo:[1,0,0]')
        rw.write([j], do, do + 2)
        if not last: rw.write([j + 1], de, de + 2)
        po = do; pe = de
        if j == RP_AT and RP_AT <= REC_AT: rp_loads()
        if j == REC_AT: rec_loads(POL0)
        if j == RP_AT and RP_AT > REC_AT: rp_loads()
    o('s_waitcnt lgkmcnt(0)')
    stamp(o, stamps, 2)
    o('s_barrier')
    o(f'v_lshrrev_b32 v{vT0}, 5, v0\nv_mul_u32_u24 v{vT0}, 4608, v{vT0}')
    o(f'v_and_b32 v{vT1}, 31, v0\nv_lshlrev_b32 v{vT1}, 4, v{vT1}\nv_add_u32 v{vT0}, v{vT0}, v{vT1}')
    o(f'v_add_u32 v{vT0}, {LDS_US}, v{vT0}')
    for j in range(4): o(f'v_mov_b32 v{OUT+j}, 0')
    o(f'ds_write_b128 v{vT0}, v[{OUT}:{OUT+3}]')
    o(f's_mov_b32 s{sT1}, 0')
    o(f's_waitcnt vmcnt({6 if RP_AT > REC_AT else 0})')
    o.label('LN_chk')
    C0 = RC + 16
    for k in range(8): o(f'v_xor_b32 v{C0+k}, v{RC+2*k+1}, v{vTag}')
    for k in range(8): o(f'v_xor_b32 v{C0+8+k}, v{G+k}, v{G+8+k}')
    for k in range(8): o(f'v_xor_b32 v{C0+8+k}, v{C0+8+k}, v{vTag}')
    for k in range(0, 15, 3): o(f'v_or3_b32 v{C0+k}, v{C0+k}, v{C0+k+1}, v{C0+k+2}')
    o(f'v_or3_b32 v{C0}, v{C0}, v{C0+3}, v{C0+6}')
    o(f'v_or3_b32 v{C0+9}, v{C0+9}, v{C0+12}, v{C0+15}')
    o(f'v_or_b32 v{C0}, v{C0}, v{C0+9}')
    o(f'v_cmp_ne_u32 vcc, 0, v{C0}')
    o('s_cbranch_vccz LN_got')
    o(f's_add_u32 s{sT1}, s{sT1}, 1')
    o(f's_cmp_lt_u32 s{sT1}, 0x40000')
    o('s_cbranch_scc0 LN_got')
    rec_loads('sc1')
    o('s_waitcnt vmcnt(0)')
    o('s_branch LN_chk')
    o.label('LN_got')
    vm.q = []
    if stamps: o(f'v_writelane_b32 v255, s{sT1}, 13')
    stamp(o, stamps, 3)
    o(f'v_lshlrev_b32 v{vT0}, 4, v{vTp}\nv_add_u32 v{vT0}, {LDS_XS}, v{vT0}')
    for j in range(4):
        a_ = RC + 4 * j
        o(f'v_and_b32 v{a_+1}, 0xffff0000, v{a_}\nv_and_b32 v{a_+3}, 0xffff0000, v{a_+2}')
        o(f'v_lshlrev_b32 v{a_}, 16, v{a_}\nv_lshlrev_b32 v{a_+2}, 16, v{a_+2}')
        o(f'v_rcp_f32 v{a_+1}, v{a_+1}\nv_rcp_f32 v{a_+3}, v{a_+3}')
    for j in range(4):
        a_ = RC + 4 * j
        o(f'v_mul_f32_e64 v{a_}, -v{a_}, v{a_+1}\nv_mul_f32_e64 v{a_+2}, -v{a_+2}, v{a_+3}')
        o(f'ds_write_b128 v{vT0}, v[{a_}:{a_+3}] offset:{4096*j}')
    XF = 96
    for i in range(2):
        for j in range(4): unpack(o, XF + 8*i + 2*j, XF + 8*i + 2*j + 1, G + 4*i + j)
    vL0, vCh = 22, 23
    o(f'v_lshrrev_b32 v{vL0}, 4, v{vTp}\nv_lshlrev_b32 v{vL0}, 6, v{vL0}')
    o(f'v_and_b32 v{vT0}, 7, v{vTp}\nv_lshlrev_b32 v{vT0}, 3, v{vT0}\nv_add_u32 v{vL0}, v{vL0}, v{vT0}')
    o(f'v_bfe_u32 v{vCh}, v{vTp}, 3, 1')
    o(f'v_lshlrev_b32 v21, 3, v{vL0}\nv_add_u32 v21, {LDS_XS}, v21')
    o('s_waitcnt lgkmcnt(0)')
    o('s_barrier')
    TB = 64
    for i in range(2):
        for q in range(4): o(f'ds_read_b128 v[{TB+16*i+4*q}:{TB+16*i+4*q+3}], v21 offset:{8192*i+16*q}')
    o(f'v_mul_u32_u24 v{vT1}, 4608, v{vCh}\nv_lshlrev_b32 v{vT3}, 1, v{vL0}\nv_add_u32 v{vT1}, v{vT1}, v{vT3}')
    o(f'v_add_u32 v{vT1}, {LDS_US + 512}, v{vT1}')
    Pk = 120
    for i in range(2):
        o(f's_waitcnt lgkmcnt({4 - 4*i})' if i == 0 else 's_waitcnt lgkmcnt(1)')
        for k in range(8): o(f'v_fma_f32 v{XF+8*i+k}, v{XF+8*i+k}, v{TB+16*i+2*k+1}, v{TB+16*i+2*k}')
        for j in range(4): o(f'v_cvt_pk_bf16_f32 v{Pk+4*i+j}, v{XF+8*i+2*j}, v{XF+8*i+2*j+1}')
        o(f'ds_write_b128 v{vT1}, v[{Pk+4*i}:{Pk+4*i+3}] offset:{2048*i}')
    o('s_waitcnt lgkmcnt(0)')
    stamp(o, stamps, 4)
    o('s_barrier')
    o(f'v_lshlrev_b32 v{vT1}, 12, v{vCh}\nv_lshlrev_b32 v{vT3}, 1, v{vL0}\nv_add_u32 v{vT1}, v{vT1}, v{vT3}')
    o(f'v_add_u32 v{vT1}, {LDS_XS}, v{vT1}')
    for i in range(2): o(f'ds_write_b128 v{vT1}, v[{G+4*i}:{G+4*i+3}] offset:{2048*i}')
    o(f's_cmp_ge_u32 s{sNw}, 784')
    o('s_cbranch_scc1 LN_norep2')
    o(f'v_lshlrev_b32 v{vT0}, 4, v0\nv_add_u32 v{vT1}, s{sL}, v{vT0}')
    o('s_waitcnt vmcnt(0)')
    for j in range(6): o(f'ds_write_b128 v{vT1}, v[{RP+4*j}:{RP+4*j+3}] offset:{1024*j}')
    g_, rho, c_ = 20, 21, 22
    o(f'v_lshrrev_b32 v{g_}, 4, v0\nv_bfe_u32 v{rho}, v0, 2, 2\nv_and_b32 v{c_}, 3, v0')
    vA1, vA2 = 18, 19
    o(f'v_and_b32 v{vT3}, 1, v{g_}\nv_lshlrev_b32 v{vT3}, 11, v{vT3}')
    o(f'v_lshrrev_b32 v{vT1}, 1, v{g_}\nv_lshlrev_b32 v{vT1}, 10, v{vT1}\nv_add_u32 v{vT3}, v{vT3}, v{vT1}')
    o(f'v_lshlrev_b32 v{vT1}, 7, v{rho}\nv_add_u32 v{vT3}, v{vT3}, v{vT1}')
    o(f'v_lshlrev_b32 v{vT1}, 3, v{c_}\nv_add3_u32 v{vA1}, v{vT3}, v{vT1}, s{sL}')
    o(f'v_lshrrev_b32 v{vT3}, 1, v{g_}\nv_lshlrev_b32 v{vT3}, 9, v{vT3}')
    o(f'v_lshlrev_b32 v{vT1}, 7, v{rho}\nv_add_u32 v{vT3}, v{vT3}, v{vT1}')
    o(f'v_and_b32 v{vT1}, 1, v{g_}\nv_lshlrev_b32 v{vT1}, 5, v{vT1}\nv_add_u32 v{vT3}, v{vT3}, v{vT1}')
    o(f'v_lshlrev_b32 v{vT1}, 3, v{c_}\nv_add3_u32 v{vA2}, v{vT3}, v{vT1}, s{sL}')
    o('s_waitcnt lgkmcnt(0)')
    F = 32
    for tt in range(4):
        o(f'ds_read_b64_tr_b16 v[{F+4*tt}:{F+4*tt+1}], v{vA1} offset:{tt*32}')
        o(f'ds_read_b64_tr_b16 v[{F+4*tt+2}:{F+4*tt+3}], v{vA1} offset:{tt*32 + 512}')
    for mt in range(2):
        o(f'ds_read_b64_tr_b16 v[{F+16+4*mt}:{F+16+4*mt+1}], v{vA2} offset:{4096 + mt*64}')
        o(f'ds_read_b64_tr_b16 v[{F+16+4*mt+2}:{F+16+4*mt+3}], v{vA2} offset:{4096 + mt*64 + 1024}')
    o(f's_mul_i32 s{sT1}, s{sSb}, {4 * 29}\ns_add_u32 s{sT1}, s{sT1}, s{sKk}\ns_lshl_b32 s{sT1}, s{sT1}, 10\ns_add_u32 s{sT1}, s{sT1}, {WS_WP}')
    o('s_waitcnt lgkmcnt(0)')
    for tt in range(4):
        o(f'buffer_store_dwordx4 v[{F+4*tt}:{F+4*tt+3}], v{vT0}, s[{SRD_WS}:{SRD_WS+3}], s{sT1} offen {ST}')
        if tt < 3: o(f's_add_u32 s{sT1}, s{sT1}, {29 * 1024}')
    o(f's_mul_i32 s{sT1}, s{sDb}, 224\ns_add_u32 s{sT1}, s{sT1}, s{sKt}\ns_lshl_b32 s{sT1}, s{sT1}, 10\ns_add_u32 s{sT1}, s{sT1}, {WS_WD}')
    o(f'buffer_store_dwordx4 v[{F+16}:{F+19}], v{vT0}, s[{SRD_WS}:{SRD_WS+3}], s{sT1} offen {ST}')
    o(f's_add_u32 s{sT1}, s{sT1}, {112 * 1024}')
    o(f'buffer_store_dwordx4 v[{F+20}:{F+23}], v{vT0}, s[{SRD_WS}:{SRD_WS+3}], s{sT1} offen {ST}')
    o.label('LN_norep2')
    o('s_waitcnt lgkmcnt(0)')
    stamp(o, stamps, 5)
    o('s_barrier')
    stamp(o, stamps, 6)
    finish(o, stamps)

vAt, vAt2 = 250, 251
def epoch_atomic(o):
    srd(o, SRD_DBG, sDbg, 256)
    o(f's_and_b32 s{sT1}, s2, 3\ns_lshl_b32 s{sT1}, s{sT1}, 6')
    o(f'v_mov_b32 v{vAt}, 1\nv_mov_b32 v{vAt2}, 0')
    o('s_mov_b64 exec, 1')
    o(f'buffer_atomic_add v{vAt}, v{vAt2}, s[{SRD_DBG}:{SRD_DBG+3}], s{sT1} offen sc1')
    o('s_mov_b64 exec, -1')
def epoch_finish(o, pfx):
    srd(o, SRD_DBG, sDbg, 256)
    o(f'v_and_b32 v{vAt}, 3, v0\nv_lshlrev_b32 v{vAt}, 6, v{vAt}')
    o(f's_mov_b32 s{sT1}, 0')
    o.label(f'L{pfx}_epoll')
    o(f'buffer_load_dword v252, v{vAt}, s[{SRD_DBG}:{SRD_DBG+3}], 0 offen sc1')
    o('s_waitcnt vmcnt(0)')
    o('v_cmp_ne_u32 vcc, 64, v252')
    o(f's_cbranch_vccz L{pfx}_eok')
    o(f's_add_u32 s{sT1}, s{sT1}, 1\ns_cmp_lt_u32 s{sT1}, 0x40000')
    o(f's_cbranch_scc1 L{pfx}_epoll')
    o(f'L{pfx}_eok:')
    o('s_mov_b64 exec, 1')
    o(f'buffer_store_dword v{vTag}, v{vAt2}, s[{SRD_WS}:{SRD_WS+3}], 0 offen sc1')
    o('s_mov_b64 exec, -1')

def gen_spare(o, q0, stamps):
    vm = VM(o); vm.q = q0
    e_load(o, vm)
    if PRETOUCH & 1:
        o(f's_cmp_eq_u32 s{sWave}, 5')
        o('s_cbranch_scc0 LS_notouch')
        o('v_and_b32 v30, 15, v0\nv_lshlrev_b32 v30, 21, v30')
        o(f'buffer_load_dword v31, v30, s[{SRD_WS}:{SRD_WS+3}], 0 offen')
        o(f's_load_dwordx2 s[48:49], s[0:1], 104')
        o('s_waitcnt lgkmcnt(0)')
        o(f's_mov_b32 s50, 1835008\ns_mov_b32 s51, 0x00020000')
        o('v_and_b32 v30, 1, v0\nv_mul_u32_u24 v30, 0x1bfffc, v30')
        o('s_mov_b64 exec, 3')
        o(f'buffer_load_dword v32, v30, s[48:51], 0 offen')
        o('s_mov_b64 exec, -1')
        o.label('LS_notouch')
    o(f's_cmp_ge_u32 s{sWave}, 4')
    o('s_cbranch_scc1 LS_prodd')
    row_loads(o, vm)
    row_stats(o, vm)
    o.label('LS_prodd')
    o('s_waitcnt vmcnt(0)')
    make_tag(o)
    o('s_barrier')
    stamp(o, stamps, 0)
    o(f's_cmp_eq_u32 s{sWave}, 7')
    o('s_cbranch_scc0 LS_noat')
    epoch_atomic(o)
    o.label('LS_noat')
    if SPARE_WAIT:
        o(f's_and_b32 s{sT0}, s{sWave}, 3\ns_lshl_b32 s{sT0}, s{sT0}, 6\nv_add_u32 v20, s{sT0}, v0\nv_lshlrev_b32 v20, 6, v20')
        o(f's_mov_b32 s{sT3}, {WS_REC}\ns_mov_b32 s{sT1}, 0')
        o.label('LS_poll')
        for j in range(4): o(f'buffer_load_dwordx4 v[{64+4*j}:{67+4*j}], v20, s[{SRD_WS}:{SRD_WS+3}], s{sT3} offen offset:{16*j} sc1')
        o('s_waitcnt vmcnt(0)')
        for k in range(8): o(f'v_xor_b32 v{80+k}, v{65+2*k}, v{vTag}')
        o('v_or3_b32 v80, v80, v81, v82\nv_or3_b32 v83, v83, v84, v85\nv_or3_b32 v80, v80, v86, v87\nv_or_b32 v80, v80, v83')
        o('v_cmp_ne_u32 vcc, 0, v80')
        o('s_cbranch_vccz LS_go')
        o(f's_add_u32 s{sT1}, s{sT1}, 1\ns_cmp_lt_u32 s{sT1}, 0x40000\ns_cbranch_scc1 LS_poll')
        o.label('LS_go')
    sMat, sFs = 44, 45
    o(f's_lshr_b32 s{sMat}, s{sSp}, 4\ns_and_b32 s{sFs}, s{sSp}, 15')
    o(f's_cmp_eq_u32 s{sMat}, 0')
    o(f's_cselect_b32 s48, s{sWg}, s{sWu}\ns_cselect_b32 s49, s{sWg+1}, s{sWu+1}')
    o('s_mov_b32 s50, 1605632\ns_mov_b32 s51, 0x00020000')
    vTid, vG, vC, vOf = 16, 17, 18, 19
    o(f's_lshl_b32 s{sT0}, s{sWave}, 6\nv_add_u32 v{vTid}, s{sT0}, v0')
    o(f'v_mul_u32_u24 v{vG}, 4682, v{vTid}\nv_lshrrev_b32 v{vG}, 16, v{vG}')
    o(f'v_mul_u32_u24 v{vC}, 14, v{vG}\nv_sub_u32 v{vC}, v{vTid}, v{vC}')
    o(f'v_mul_u32_u24 v{vOf}, 3584, v{vG}\nv_lshlrev_b32 v{vT0}, 4, v{vC}\nv_add_u32 v{vOf}, v{vOf}, v{vT0}')
    o(f's_mul_i32 s{sT1}, s{sFs}, 224')
    L = 32
    o(f's_cmp_ge_u32 s{sWave}, 7')
    o('s_cbranch_scc1 LS_skip')
    for i in range(14):
        o(f'buffer_load_dwordx4 v[{L+4*i}:{L+4*i+3}], v{vOf}, s[48:51], s{sT1} offen')
        if i < 13: o(f's_add_u32 s{sT1}, s{sT1}, {32 * 3584}')
    A = 96
    for j in range(8): o(f'v_mov_b32 v{A+j}, 0')
    for i in range(14):
        o(f's_waitcnt vmcnt({13 - i})')
        for r in range(4):
            unpack(o, 104, 105, L + 4*i + r)
            o(f'v_add_f32 v{A+2*r}, v{A+2*r}, v104\nv_add_f32 v{A+2*r+1}, v{A+2*r+1}, v105')
    o(f'v_mul_u32_u24 v{vT0}, 448, v{vG}\nv_lshlrev_b32 v{vT1}, 5, v{vC}\nv_add_u32 v{vT0}, v{vT0}, v{vT1}')
    o(f'ds_write_b128 v{vT0}, v[{A}:{A+3}]\nds_write_b128 v{vT0}, v[{A+4}:{A+7}] offset:16')
    o.label('LS_skip')
    o('s_waitcnt lgkmcnt(0)')
    o('s_barrier')
    o(f's_cmp_ge_u32 s{sWave}, 2')
    o('s_cbranch_scc1 LS_done')
    o(f'v_lshlrev_b32 v{vT0}, 2, v{vTid}')
    for g in range(32): o(f'ds_read_b32 v{L+g}, v{vT0} offset:{448*g}')
    o('s_waitcnt lgkmcnt(0)')
    for g in range(1, 32): o(f'v_add_f32 v{L}, v{L}, v{L+g}')
    o(f'v_cvt_pk_bf16_f32 v{L+1}, v{L}, v{L}\nv_and_b32 v{L+1}, 0xffff0000, v{L+1}\nv_sub_f32 v{L+1}, v{L}, v{L+1}')
    Z = 68
    o(f'v_cvt_pk_bf16_f32 v{Z}, v{L}, v{L+1}')
    for j in range(1, 8): o(f'v_mov_b32 v{Z+j}, 0')
    o(f'v_lshrrev_b32 v{vT0}, 4, v{vTid}\ns_mul_i32 s{sT1}, s{sFs}, 7\nv_add_u32 v{vT0}, s{sT1}, v{vT0}')
    o(f'v_mul_u32_u24 v{vT0}, 29, v{vT0}\nv_add_u32 v{vT0}, 28, v{vT0}\nv_lshlrev_b32 v{vT0}, 10, v{vT0}')
    o(f'v_and_b32 v{vT1}, 15, v{vTid}\ns_lshl_b32 s{sT1}, s{sMat}, 4\nv_add_u32 v{vT1}, s{sT1}, v{vT1}\nv_lshlrev_b32 v{vT1}, 4, v{vT1}')
    o(f'v_add_u32 v{vT0}, v{vT0}, v{vT1}')
    o(f's_mov_b32 s{sT1}, {WS_WP}')
    o(f'v_cmp_gt_u32 vcc, 112, v{vTid}')
    o(f's_and_saveexec_b64 s[52:53], vcc')
    o('s_cbranch_execz LS_rest')
    o(f'buffer_store_dwordx4 v[{Z}:{Z+3}], v{vT0}, s[{SRD_WS}:{SRD_WS+3}], s{sT1} offen {ST}')
    o(f'buffer_store_dwordx4 v[{Z+4}:{Z+7}], v{vT0}, s[{SRD_WS}:{SRD_WS+3}], s{sT1} offen offset:512')
    o.label('LS_rest')
    o('s_mov_b64 exec, s[52:53]')
    o.label('LS_done')
    o(f's_cmp_eq_u32 s{sWave}, 7')
    o('s_cbranch_scc0 LS_noe')
    o(f's_cmp_eq_u32 s{sSp}, 0')
    o('s_cbranch_scc0 LS_noe')
    epoch_finish(o, 'S')
    o.label('LS_noe')
    finish(o, stamps)
def desc_ab(): return kernel_desc(NAME, 256, 100, accum=256)
def launch_ab(): return f'; @launch kernel={NAME} grid=(256,1,1) block=(512,1,1) lds={LDS_BYTES}'
```

```python
from asmlib import *
from layout import *
from vm import VM
NAME = 'ssm_kernel'
PREFETCH = False
SPARE_WAIT = False
POL0 = 'sc1'
REC_AT = 99
X_TACK = 0
PRETOUCH = 0
SWAP_ROLES = 1
HST = ''
X_NOA = 0
X_NOB = 0
X_NOM = 0
LA = 3
RP_AT = 99
ST = ''
TAB = 16896
LDS_US = 8 * TAB
LDS_XS = LDS_US + 2 * 4608
LDS_EX = LDS_XS + 2 * 4096
LDS_BYTES = LDS_EX + 8192
KR_COPY = 4160; KR_CH = 2 * KR_COPY
LDS_CX = 17408
LDS_RP = LDS_CX + 16384
LOG2E = 0x3fb8aa3b; INV2PI = 0x3e22f983; INV448 = 0x3b124925; EPS = 0x3727c5ac
sX, sAre, sAim, sBre, sBim, sCre, sCim, sLdt = 8, 10, 12, 14, 16, 18, 20, 22
sDsk, sWd, sWg, sWu, sDbg, sWs = 24, 26, 28, 30, 32, 34
SRD_X, SRD_WS = 36, 40
SRD_P = [44, 48, 52, 56, 60, 64]
SRD_WG, SRD_WU, SRD_WD, SRD_DBG = 68, 72, 76, 80
sWave, sPair, sCh, sMh, sLdtV, sDskV = 3, 84, 85, 86, 87, 88
sT0, sT1, sT2, sT3, sT4, sT5 = 89, 90, 91, 92, 93, 94
sSp = 95
vLane, vTag, vE, vT0, vT1, vT2, vT3 = 0, 1, 2, 3, 4, 6, 7
vXR = 8
vS, vQ = 12, 13
def cmul(o, d, p, q):
    o(f'v_pk_mul_f32 v[{d}:{d+1}], v[{p}:{p+1}], v[{q}:{q+1}] op_sel_hi:[0,1]')
    o(f'v_pk_fma_f32 v[{d}:{d+1}], v[{p}:{p+1}], v[{q}:{q+1}], v[{d}:{d+1}] op_sel:[1,1,0] op_sel_hi:[1,0,1] neg_lo:[1,0,0]')
def cmul2(o, dA, pA, qA, dB, pB, qB):
    o(f'v_pk_mul_f32 v[{dA}:{dA+1}], v[{pA}:{pA+1}], v[{qA}:{qA+1}] op_sel_hi:[0,1]')
    o(f'v_pk_mul_f32 v[{dB}:{dB+1}], v[{pB}:{pB+1}], v[{qB}:{qB+1}] op_sel_hi:[0,1]')
    o(f'v_pk_fma_f32 v[{dA}:{dA+1}], v[{pA}:{pA+1}], v[{qA}:{qA+1}], v[{dA}:{dA+1}] op_sel:[1,1,0] op_sel_hi:[1,0,1] neg_lo:[1,0,0]')
    o(f'v_pk_fma_f32 v[{dB}:{dB+1}], v[{pB}:{pB+1}], v[{qB}:{qB+1}], v[{dB}:{dB+1}] op_sel:[1,1,0] op_sel_hi:[1,0,1] neg_lo:[1,0,0]')
vXB = 168
vTL = 172
IMG_A = LDS_US
IMG_B = LDS_XS
def e_load(o, vm):
    o(f'buffer_load_dword v{vE}, off, s[{SRD_WS}:{SRD_WS+3}], 0 sc1'); vm.issue('E')
def make_tag(o):
    o(f's_mov_b32 s{sT0}, 0x9E3779B1')
    o(f'v_mul_lo_u32 v{vTag}, v{vE}, s{sT0}')
    o(f'v_add_u32 v{vTag}, 0x7F4A7C15, v{vTag}')
def row_loads(o, vm, woff=0):
    for j in range(4): o(f'v_mov_b32 v{vXR+j}, 0\nv_mov_b32 v{vXB+j}, 0')
    o(f's_lshl_b32 s{sT2}, s2, 3\ns_sub_u32 s{sT4}, s{sWave}, {woff}\ns_lshl_b32 s{sT4}, s{sT4}, 1\ns_add_u32 s{sT2}, s{sT2}, s{sT4}')
    o(f's_mul_i32 s{sT2}, s{sT2}, 896')
    o(f'v_lshlrev_b32 v{vT1}, 4, v0')
    o('s_mov_b32 exec_hi, 0x00ffffff')
    o(f'buffer_load_dwordx4 v[{vXR}:{vXR+3}], v{vT1}, s[{SRD_X}:{SRD_X+3}], s{sT2} offen'); vm.issue('xrow')
    o(f'buffer_load_dwordx4 v[{vXB}:{vXB+3}], v{vT1}, s[{SRD_X}:{SRD_X+3}], s{sT2} offen offset:896'); vm.issue('xrow')
    o('s_mov_b32 exec_hi, -1')
def row_stats(o, vm, woff=0):
    SA, QA, SB, QB = 12, 13, 180, 181
    vm.wait('xrow')
    make_tag(o)
    for r in (SA, QA, SB, QB): o(f'v_mov_b32 v{r}, 0')
    o(f'v_mov_b32 v{vT1}, 0x3f803f80')
    for j in range(4):
        o(f'v_dot2c_f32_bf16 v{SA}, v{vXR+j}, v{vT1}')
        o(f'v_dot2c_f32_bf16 v{QA}, v{vXR+j}, v{vXR+j}')
        o(f'v_dot2c_f32_bf16 v{SB}, v{vXB+j}, v{vT1}')
        o(f'v_dot2c_f32_bf16 v{QB}, v{vXB+j}, v{vXB+j}')
    o('s_nop 2')
    for ctl in ['row_shr:1', 'row_shr:2', 'row_shr:4', 'row_shr:8']:
        for r in (SA, QA, SB, QB): o(f'v_add_f32_dpp v{r}, v{r}, v{r} {ctl} row_mask:0xf bank_mask:0xf bound_ctrl:0')
    for ctl, rm in [('row_bcast:15', '0xa'), ('row_bcast:31', '0xc')]:
        for r in (SA, QA, SB, QB): o(f'v_add_f32_dpp v{r}, v{r}, v{r} {ctl} row_mask:{rm} bank_mask:0xf')
    RR = 192
    for S_, Q_, dst in ((SA, QA, RR), (SB, QB, RR + 2)):
        o(f'v_mul_f32 v{S_}, {hex(INV448)}, v{S_}\nv_mul_f32 v{Q_}, {hex(INV448)}, v{Q_}')
    for S_, Q_, dst in ((SA, QA, RR), (SB, QB, RR + 2)):
        o(f'v_fma_f32 v{Q_}, -v{S_}, v{S_}, v{Q_}\nv_max_f32 v{Q_}, 0, v{Q_}')
    for op in ('v_cvt_pk_bf16_f32 v{q}, v{q}, v{q}', 'v_and_b32 v{q}, 0xffff0000, v{q}', 'v_add_f32 v{q}, ' + hex(EPS) + ', v{q}',
               'v_cvt_pk_bf16_f32 v{q}, v{q}, v{q}', 'v_and_b32 v{q}, 0xffff0000, v{q}', 'v_sqrt_f32 v{q}, v{q}'):
        for Q_ in (QA, QB): o(op.format(q=Q_))
    o(f'v_cvt_pk_bf16_f32 v{RR}, v{SA}, v{QA}\nv_cvt_pk_bf16_f32 v{RR+2}, v{SB}, v{QB}')
    o(f'v_xor_b32 v{RR+1}, v{RR}, v{vTag}\nv_xor_b32 v{RR+3}, v{RR+2}, v{vTag}')
    o(f's_lshl_b32 s{sT0}, s2, 3\ns_sub_u32 s{sT1}, s{sWave}, {woff}\ns_lshl_b32 s{sT1}, s{sT1}, 1\ns_add_u32 s{sT0}, s{sT0}, s{sT1}')
    o(f's_lshl_b32 s{sT0}, s{sT0}, 3\ns_add_u32 s{sT0}, s{sT0}, {WS_REC}')
    o('s_mov_b32 exec_lo, 0\ns_mov_b32 exec_hi, 0x80000000')
    o(f'buffer_store_dwordx4 v[{RR}:{RR+3}], v251, s[{SRD_WS}:{SRD_WS+3}], s{sT0} offen sc1'); vm.issue('rec')
    o('s_mov_b64 exec, -1')
def tile_loads(o, vm):
    o(f'buffer_load_dwordx4 v[{vTL}:{vTL+3}], v21, s[{SRD_X}:{SRD_X+3}], s96 offen'); vm.issue('tile')
    o(f'buffer_load_dwordx4 v[{vTL+4}:{vTL+7}], v21, s[{SRD_X}:{SRD_X+3}], s97 offen'); vm.issue('tile')
def tile_image(o, vm):
    vm.wait('tile')
    o(f's_sub_u32 s{sT4}, s{sWave}, 4\ns_lshl_b32 s{sT4}, s{sT4}, 3')
    o(f'v_lshrrev_b32 v{vT0}, 3, v0\nv_add_u32 v{vT0}, s{sT4}, v{vT0}\nv_mul_u32_u24 v{vT0}, 144, v{vT0}')
    o(f'v_and_b32 v{vT1}, 7, v0\nv_lshlrev_b32 v{vT1}, 4, v{vT1}\nv_add_u32 v{vT0}, v{vT0}, v{vT1}')
    o(f'v_add_u32 v{vT0}, {IMG_A}, v{vT0}')
    o(f'ds_write_b128 v{vT0}, v[{vTL}:{vTL+3}]')
    o(f'ds_write_b128 v{vT0}, v[{vTL+4}:{vTL+7}] offset:{32 * 144}')
def tile_transpose(o, vm, woff=4):
    o(f'v_lshrrev_b32 v{vT0}, 4, v0\nv_lshlrev_b32 v{vT0}, 2, v{vT0}\nv_bfe_u32 v{vT1}, v0, 2, 2\nv_add_u32 v{vT0}, v{vT0}, v{vT1}')
    o(f'v_mul_u32_u24 v{vT0}, 144, v{vT0}')
    o(f'v_and_b32 v{vT1}, 3, v0\nv_lshlrev_b32 v{vT1}, 3, v{vT1}\nv_add_u32 v{vT0}, v{vT0}, v{vT1}')
    o(f's_sub_u32 s{sT4}, s{sWave}, {woff}\ns_lshl_b32 s{sT0}, s{sT4}, 5\ns_add_u32 s{sT0}, s{sT0}, {IMG_A}')
    o(f'v_add_u32 v{vT0}, s{sT0}, v{vT0}')
    for i in range(4): o(f'ds_read_b64_tr_b16 v[{vTL+2*i}:{vTL+2*i+1}], v{vT0} offset:{16 * 144 * i}')
    o(f'v_and_b32 v{vT1}, 15, v0\nv_mul_u32_u24 v{vT1}, 144, v{vT1}')
    o(f'v_lshrrev_b32 v{vT2}, 4, v0\nv_lshlrev_b32 v{vT2}, 3, v{vT2}\nv_add_u32 v{vT1}, v{vT1}, v{vT2}')
    o(f's_mul_i32 s{sT0}, s{sT4}, {16 * 144}\ns_add_u32 s{sT0}, s{sT0}, {IMG_B}')
    o(f'v_add_u32 v{vT1}, s{sT0}, v{vT1}')
    o(f'v_lshrrev_b32 v{vT2}, 3, v0\nv_mul_u32_u24 v{vT2}, 144, v{vT2}')
    o(f'v_and_b32 v{vT3}, 7, v0\nv_lshlrev_b32 v{vT3}, 4, v{vT3}\nv_add_u32 v{vT2}, v{vT2}, v{vT3}')
    o(f'v_add_u32 v{vT2}, s{sT0}, v{vT2}')
    for i in range(4):
        o(f's_waitcnt lgkmcnt({3 - i})' if i == 0 else f's_waitcnt lgkmcnt(3)')
        o(f'ds_write_b64 v{vT1}, v[{vTL+2*i}:{vTL+2*i+1}] offset:{32 * i}')
    o(f's_mul_i32 s{sT0}, s{sPair}, 9363\ns_lshr_b32 s{sT0}, s{sT0}, 16')
    o(f's_mul_i32 s{sT1}, s{sT0}, 7\ns_sub_u32 s{sT1}, s{sPair}, s{sT1}')
    o(f's_lshl_b32 s{sT1}, s{sT1}, 5\ns_add_u32 s{sT0}, s{sT0}, s{sT1}\ns_lshl_b32 s{sT0}, s{sT0}, 13')
    o(f's_lshl_b32 s{sT1}, s{sT4}, 11\ns_add_u32 s{sT0}, s{sT0}, s{sT1}')
    o(f's_add_u32 s{sT1}, s{sT0}, {WS_T2}\ns_add_u32 s{sT0}, s{sT0}, {WS_T}')
    o(f'v_lshlrev_b32 v{vT0}, 4, v0')
    o('s_waitcnt lgkmcnt(0)')
    o(f'ds_read_b128 v[{vTL}:{vTL+3}], v{vT2}')
    o(f'ds_read_b128 v[{vTL+4}:{vTL+7}], v{vT2} offset:{8 * 144}')
    X2 = 184
    for h in range(2):
        o(f's_waitcnt lgkmcnt({1 - h})')
        o(f'buffer_store_dwordx4 v[{vTL+4*h}:{vTL+4*h+3}], v{vT0}, s[{SRD_WS}:{SRD_WS+3}], s{sT0} offen offset:{1024*h} sc1'); vm.issue('ts')
        for j in range(4): o(f'v_xor_b32 v{X2+4*h+j}, v{vTL+4*h+j}, v{vTag}')
        o(f'buffer_store_dwordx4 v[{X2+4*h}:{X2+4*h+3}], v{vT0}, s[{SRD_WS}:{SRD_WS+3}], s{sT1} offen offset:{1024*h} sc1'); vm.issue('ts')
def seed(o, dst, ar2, ai2, t, tmp, conj=False):
    o(f'v_mul_f32 v{tmp}, {float(t)}, v{ar2}' if t in (1, 2, 4) else f'v_mul_f32 v{tmp}, {hex(f32(t))}, v{ar2}')
    o(f'v_mul_f32 v{tmp+1}, {float(t)}, v{ai2}' if t in (1, 2, 4) else f'v_mul_f32 v{tmp+1}, {hex(f32(t))}, v{ai2}')
    o(f'v_exp_f32 v{tmp}, v{tmp}')
    o(f'v_fract_f32 v{tmp+1}, v{tmp+1}')
    o('s_nop 0')
    o(f'v_cos_f32 v{dst}, v{tmp+1}')
    o(f'v_sin_f32 v{dst+1}, v{tmp+1}')
    o('s_nop 0')
    o(f'v_mul_f32 v{dst}, v{tmp}, v{dst}')
    if conj: o(f'v_mul_f32 v{dst+1}, -v{dst+1}, v{tmp}'.replace('v_mul_f32', 'v_mul_f32_e64'))
    else: o(f'v_mul_f32 v{dst+1}, v{tmp}, v{dst+1}')
import struct
def f32(x): return struct.unpack('<I', struct.pack('<f', float(x)))[0]
def compute_dt(o, vdt):
    o(f's_lshl_b32 s{sT0}, s{sLdtV}, 16')
    o(f's_and_b32 s{sT1}, s{sLdtV}, 0xffff0000')
    o(f's_cmp_eq_u32 s{sCh}, 0')
    o(f's_cselect_b32 s{sT0}, s{sT0}, s{sT1}')
    o(f'v_mov_b32 v{vdt}, s{sT0}')
    o(f'v_mul_f32 v{vdt}, {hex(LOG2E)}, v{vdt}')
    o(f'v_exp_f32 v{vdt}, v{vdt}')
    o('s_nop 0')
    o(f'v_cvt_pk_bf16_f32 v{vdt}, v{vdt}, v{vdt}')
    o(f'v_and_b32 v{vdt}, 0xffff0000, v{vdt}')
def unpack(o, dlo, dhi, src):
    o(f'v_lshlrev_b32 v{dlo}, 16, v{src}')
    o(f'v_and_b32 v{dhi}, 0xffff0000, v{src}')
class RowWriter:
    def __init__(self, o, vaddr, out0): self.o, self.va, self.out0, self.n = o, vaddr, out0, 0
    def write(self, rows, cA, cB):
        r = self.out0 + 2 * (self.n % 4); self.n += 1
        self.o(f'v_cvt_pk_bf16_f32 v{r}, v{cA}, v{cA+1}')
        self.o(f'v_cvt_pk_bf16_f32 v{r+1}, v{cB}, v{cB+1}')
        for m in rows: self.o(f'ds_write_b64 v{self.va}, v[{r}:{r+1}] offset:{m * 528}')
def stamp(o, on, idx):
    if on: o(f's_memtime s[{96 + 0}:{97}]'); o('s_waitcnt lgkmcnt(0)'); o(f'v_writelane_b32 v255, s96, {idx}')

def gen_ab(o, stamps=False):
    kernel_begin(o, NAME)
    o('s_cmp_ge_u32 s2, 256')
    o('s_cbranch_scc1 LA_end')
    o('s_load_dwordx16 s[8:23], s[0:1], 0')
    o(f's_load_dwordx2 s[{sDsk}:{sDsk+1}], s[0:1], 64')
    o(f's_load_dwordx4 s[{sWg}:{sWg+3}], s[0:1], 80')
    o(f's_load_dwordx2 s[{sWd}:{sWd+1}], s[0:1], 96')
    o(f's_load_dwordx4 s[{sDbg}:{sDbg+3}], s[0:1], 112')
    if stamps: o('v_mov_b32 v255, 0'); o('s_memtime s[98:99]')
    o(f'v_lshrrev_b32 v{vT0}, 6, v0')
    o('v_and_b32 v0, 63, v0')
    o(f'v_readfirstlane_b32 s{sWave}, v{vT0}')
    o(f's_and_b32 s{sT0}, s2, 7')
    o(f's_lshr_b32 s{sT1}, s2, 3')
    if PREFETCH: code_prefetch(o, NAME, 'code_end', sT1, sWave, 8, 240, 244, 96, 'ab')
    o(f's_mul_i32 s{sPair}, s{sT0}, 28')
    o(f's_add_u32 s{sPair}, s{sPair}, s{sT1}')
    o(f's_lshl_b32 s{sSp}, s{sT0}, 2')
    o(f's_add_u32 s{sSp}, s{sSp}, s{sT1}')
    o(f's_sub_u32 s{sSp}, s{sSp}, 28')
    o(f's_lshr_b32 s{sCh}, s{sWave}, 1')
    o(f's_and_b32 s{sCh}, s{sCh}, 1')
    o(f's_and_b32 s{sMh}, s{sWave}, 1')
    o('v_mov_b32 v250, 0\nv_mov_b32 v251, 0')
    if SWAP_ROLES:
        o(f's_xor_b32 s{sT2}, s{sWave}, 4\ns_cmp_lt_u32 s{sT1}, 28\ns_cselect_b32 s{sWave}, s{sT2}, s{sWave}')
    o(f's_lshl_b32 s{sT2}, s{sPair}, 1\ns_add_u32 s{sT2}, s{sT2}, s{sCh}\ns_lshl_b32 s{sT3}, s{sT2}, 9')
    o(f's_lshl_b32 s{sT4}, s{sMh}, 8\ns_add_u32 s{sT3}, s{sT3}, s{sT4}')
    o(f'v_lshlrev_b32 v{vT2}, 2, v0')
    o(f's_mul_i32 s96, s{sPair}, 9363\ns_lshr_b32 s96, s96, 16')
    o(f's_mul_i32 s97, s96, 7\ns_sub_u32 s97, s{sPair}, s97')
    o(f's_mul_i32 s96, s96, {64 * 896}\ns_lshl_b32 s97, s97, 7\ns_add_u32 s96, s96, s97')
    o(f's_and_b32 s97, s{sWave}, 3\ns_lshl_b32 s97, s97, 3')
    o(f'v_lshrrev_b32 v21, 3, v0\nv_add_u32 v21, s97, v21\nv_mul_u32_u24 v21, 896, v21')
    o(f'v_and_b32 v{vT1}, 7, v0\nv_lshlrev_b32 v{vT1}, 4, v{vT1}\nv_add_u32 v21, v21, v{vT1}')
    o(f's_add_u32 s97, s96, {32 * 896}')
    o(f's_lshl_b32 s{sT5}, s{sPair}, 2')
    o('s_waitcnt lgkmcnt(0)')
    if WS_SHIFT: o(f's_add_u32 s{sWs}, s{sWs}, {WS_SHIFT}\ns_addc_u32 s{sWs+1}, s{sWs+1}, 0')
    srd(o, SRD_X, sX, 1835008)
    srd(o, SRD_WS, sWs, WS_END)
    vm = VM(o)
    o(f's_cmp_ge_u32 s{sT1}, 28')
    o('s_cbranch_scc1 LA_spare')
    o(f's_load_dword s{sLdtV}, s[{sLdt}:{sLdt+1}], s{sT5}')
    o(f's_load_dword s{sDskV}, s[{sDsk}:{sDsk+1}], s{sT5}')
    o(f's_cmp_ge_u32 s{sWave}, 4')
    o('s_cbranch_scc1 LA_nwave')
    gen_mwave(o, vm.q[:], stamps)
    o.label('LA_nwave')
    gen_nwave(o, vm.q[:], stamps)
    o.label('LA_spare')
    gen_spare(o, vm.q[:], stamps)
    o.label('LA_end')
    o('s_endpgm')

def finish(o, stamps):
    if stamps:
        o('s_waitcnt vmcnt(0) lgkmcnt(0)')
        stamp(o, True, 15)
        o('v_writelane_b32 v255, s98, 14')
        srd(o, 44, sWs, 0x40000, 0x1820000)
        o(f's_lshl_b32 s{sT0}, s2, 3\ns_add_u32 s{sT0}, s{sT0}, s{sWave}\ns_lshl_b32 s{sT0}, s{sT0}, 6')
        o(f'v_lshlrev_b32 v254, 2, v0')
        o('s_mov_b64 exec, 0xffff')
        o(f'buffer_store_dword v255, v254, s[44:47], s{sT0} offen')
    o('s_endpgm')

def gen_mwave(o, q0, stamps):
    vm = VM(o); vm.q = q0
    P = 16
    e_load(o, vm)
    for i, p in enumerate([sAre, sAim, sBre, sBim, sCre, sCim]):
        srd(o, SRD_P[i], p, 229376)
        o(f'buffer_load_dword v{P+i}, v{vT2}, s[{SRD_P[i]}:{SRD_P[i]+3}], s{sT3} offen'); vm.issue('par')
    if PRETOUCH & 4:
        o(f's_mul_i32 s{sT0}, s{sPair}, 9363\ns_lshr_b32 s{sT0}, s{sT0}, 16')
        o(f's_mul_i32 s{sT1}, s{sT0}, 7\ns_sub_u32 s{sT1}, s{sPair}, s{sT1}')
        o(f's_lshl_b32 s{sT1}, s{sT1}, 5\ns_add_u32 s{sT0}, s{sT0}, s{sT1}\ns_lshl_b32 s{sT0}, s{sT0}, 13')
        o(f's_lshl_b32 s{sT1}, s{sWave}, 11\ns_add_u32 s{sT0}, s{sT0}, s{sT1}\ns_add_u32 s{sT0}, s{sT0}, {WS_T}')
        o(f'v_and_b32 v30, 15, v0\nv_lshlrev_b32 v30, 7, v30\nv_bfe_u32 v31, v0, 4, 1\nv_mul_u32_u24 v31, {(WS_T2 - WS_T) >> 4}, v31\nv_lshlrev_b32 v31, 4, v31\nv_add_u32 v30, v30, v31')
        o('s_mov_b64 exec, 0xffffffff')
        o(f'buffer_load_dword v248, v30, s[{SRD_WS}:{SRD_WS+3}], s{sT0} offen sc1'); vm.issue('pt')
        o('s_mov_b64 exec, -1')
    if PRETOUCH & 2:
        o('v_and_b32 v30, 15, v0\nv_lshlrev_b32 v30, 21, v30')
        o('s_mov_b64 exec, 0xffff')
        o(f'buffer_load_dword v249, v30, s[{SRD_WS}:{SRD_WS+3}], 0 offen'); vm.issue('pt')
        o('s_mov_b64 exec, -1')
    vm.wait('E')
    make_tag(o)
    o('s_waitcnt lgkmcnt(0)')
    o('s_barrier')
    tile_transpose(o, vm, 0)
    stamp(o, stamps, 0)
    if stamps and X_TACK:
        o('s_waitcnt vmcnt(0)')
        stamp(o, stamps, 7)
    vm.wait('par')
    o('s_waitcnt lgkmcnt(0)')
    o(f's_cmp_eq_u32 s{sWave}, 3')
    o('s_cbranch_scc0 LM_noat')
    epoch_atomic(o)
    o.label('LM_noat')
    vdt = 22
    compute_dt(o, vdt)
    U = 24
    for i in range(6): unpack(o, U + 2*i, U + 2*i + 1, P + i)
    for i in range(4): o(f'v_mul_f32 v{U+i}, v{vdt}, v{U+i}')
    for i in range(4, 8): o(f'v_mul_f32 v{U+i}, v{vdt}, v{U+i}')
    o(f'v_mul_f32 v{U}, {hex(LOG2E)}, v{U}\nv_mul_f32 v{U+1}, {hex(LOG2E)}, v{U+1}')
    o(f'v_mul_f32 v{U+2}, {hex(INV2PI)}, v{U+2}\nv_mul_f32 v{U+3}, {hex(INV2PI)}, v{U+3}')
    X0 = 36; X2 = 40; X4 = 44; X6 = 48; X8 = 52; E1 = 56; CUR = 60; CU2 = 64
    Pw = {k: 68 + 4 * (k - 1) for k in range(1, 8)}
    TMP = 96; OUT = 100
    for mu in range(2):
        bre, bim, cre, cim = U + 4 + mu, U + 6 + mu, U + 8 + mu, U + 10 + mu
        w = X0 + 2 * mu
        o(f'v_mul_f32 v{w}, v{cre}, v{bre}')
        o(f'v_mul_f32 v{w+1}, v{cre}, v{bim}')
        o(f'v_fma_f32 v{w}, -v{cim}, v{bim}, v{w}')
        o(f'v_fma_f32 v{w+1}, v{cim}, v{bre}, v{w+1}')
    for mu in range(2):
        seed(o, E1 + 2*mu, U + mu, U + 2 + mu, 1, TMP + 2*mu)
        seed(o, Pw[1] + 2*mu, U + mu, U + 2 + mu, 256, TMP + 2*mu)
    stamp(o, stamps, 1)
    vTab = 108
    o(f's_lshl_b32 s{sT0}, s{sCh}, 1\ns_add_u32 s{sT0}, s{sT0}, s{sMh}\ns_mul_i32 s{sT0}, s{sT0}, {TAB}')
    o(f'v_lshlrev_b32 v{vTab}, 3, v0\nv_add_u32 v{vTab}, s{sT0}, v{vTab}')
    rw = RowWriter(o, vTab, OUT)
    def c2(d, p, q): cmul2(o, d, p, q, d + 2, p + 2, q + 2)
    rw.write([0], X0, X0 + 2)
    keep = {0: X0, 2: X2, 4: X4, 6: X6, 8: X8}
    prev = X0
    for t in range(1, 9):
        d = keep.get(t, CUR)
        c2(d, prev, E1)
        rows = [t] if t < 8 else [12]
        if t == 4: rows = [4, 8]
        rw.write(rows, d, d + 2)
        prev = d
    c2(Pw[2], Pw[1], Pw[1]); c2(Pw[3], Pw[2], Pw[1]); c2(Pw[4], Pw[2], Pw[2])
    c2(Pw[5], Pw[4], Pw[1]); c2(Pw[6], Pw[4], Pw[2]); c2(Pw[7], Pw[4], Pw[3])
    alt = [CUR, CU2]; n = 0
    def prod(rows, xs, pk):
        nonlocal n
        d = alt[n % 2]; n += 1
        c2(d, keep[xs], Pw[pk]); rw.write(rows, d, d + 2)
    prod([9], 0, 1); prod([10], 2, 1); prod([11, 13], 4, 1); prod([14], 6, 1); prod([15], 8, 1)
    prod([16], 0, 2); prod([17], 4, 2); prod([18], 8, 2)
    prod([20], 0, 3); prod([21], 4, 3); prod([22], 8, 3)
    prod([19], 0, 4); prod([24], 8, 4)
    prod([25], 0, 5); prod([26], 8, 5)
    prod([23], 0, 6); prod([28], 8, 6)
    prod([29], 0, 7); prod([30], 8, 7)
    vA, vB = 109, 110
    o(f'v_and_b32 v{vT0}, 31, v0\nv_mul_u32_u24 v{vT0}, 528, v{vT0}')
    o(f'v_lshrrev_b32 v{vT1}, 5, v0\nv_lshlrev_b32 v{vT1}, 4, v{vT1}')
    o(f'v_add3_u32 v{vA}, v{vT0}, v{vT1}, s{sT0}')
    o(f'v_add_u32 v{vB}, {4 * TAB}, v{vA}')
    AF = 64; ACC = 32; BB = 192; vKA = [208, 209, 210, 211]; vBa = 212
    vR, vHh = 213, 214
    o(f'v_and_b32 v{vR}, 15, v0\nv_lshrrev_b32 v{vHh}, 4, v0')
    o(f'v_and_b32 v{vT0}, 1, v{vR}')
    o(f'v_add_u32 v{vT1}, v{vR}, v{vT0}')
    o(f'v_mul_u32_u24 v{vT0}, {KR_COPY}, v{vT0}')
    o(f'v_lshlrev_b32 v{vT1}, 1, v{vT1}')
    o(f'v_sub_u32 v{vT0}, v{vT0}, v{vT1}')
    o(f'v_lshlrev_b32 v{vT1}, 4, v{vHh}')
    o(f'v_add_u32 v{vT0}, v{vT0}, v{vT1}')
    o(f's_mul_i32 s{sT1}, s{sCh}, {KR_CH}')
    o(f's_lshl_b32 s{sT2}, s{sMh}, 6')
    o(f's_sub_u32 s{sT1}, s{sT1}, s{sT2}')
    o(f's_add_u32 s{sT1}, s{sT1}, {2 * 2032}')
    for g in range(4):
        o(f's_sub_u32 s{sT3}, s{sT1}, {128 * (8 * g + 7)}')
        o(f'v_add_u32 v{vKA[g]}, s{sT3}, v{vT0}')
    o(f'v_lshlrev_b32 v{vT0}, 5, v{vR}\nv_lshlrev_b32 v{vT1}, 4, v{vHh}\nv_add_u32 v{vT0}, v{vT0}, v{vT1}')
    o(f's_mul_i32 s{sT1}, s{sCh}, 4608')
    o(f's_sub_u32 s{sT1}, s{sT1}, s{sT2}')
    o(f's_add_u32 s{sT1}, s{sT1}, {LDS_US + 480 + 64 * 56 - 128 * 31}')
    o(f'v_add_u32 v{vBa}, s{sT1}, v{vT0}')
    vCx = 215
    o(f's_lshl_b32 s{sT1}, s{sWave}, 12')
    o(f's_add_u32 s{sT1}, s{sT1}, {LDS_CX}')
    o(f'v_lshlrev_b32 v{vCx}, 4, v0\nv_add_u32 v{vCx}, s{sT1}, v{vCx}')
    vCp = 220
    o(f's_xor_b32 s{sT1}, s{sWave}, 1\ns_lshl_b32 s{sT1}, s{sT1}, 12\ns_add_u32 s{sT1}, s{sT1}, {LDS_CX}')
    o(f'v_lshlrev_b32 v{vCp}, 4, v0\nv_add_u32 v{vCp}, s{sT1}, v{vCp}')
    vU, vXs, vO = 216, 217, 218
    o(f'v_lshlrev_b32 v{vT0}, 5, v{vR}\nv_lshlrev_b32 v{vT1}, 3, v{vHh}\nv_add_u32 v{vT0}, v{vT0}, v{vT1}')
    o(f's_lshl_b32 s{sT2}, s{sMh}, 11')
    o(f's_mul_i32 s{sT1}, s{sCh}, 4608\ns_add_u32 s{sT1}, s{sT1}, s{sT2}\ns_add_u32 s{sT1}, s{sT1}, {LDS_US + 512}')
    o(f'v_add_u32 v{vU}, s{sT1}, v{vT0}')
    o(f's_lshl_b32 s{sT1}, s{sCh}, 12\ns_add_u32 s{sT1}, s{sT1}, s{sT2}\ns_add_u32 s{sT1}, s{sT1}, {LDS_XS}')
    o(f'v_add_u32 v{vXs}, s{sT1}, v{vT0}')
    o(f's_lshl_b32 s{sT1}, s{sPair}, 1\ns_add_u32 s{sT1}, s{sT1}, s{sCh}\ns_lshl_b32 s{sT1}, s{sT1}, 6')
    o(f's_mul_i32 s{sT2}, s{sMh}, {32 * 28672}')
    o(f's_add_u32 s{sT1}, s{sT1}, s{sT2}\ns_add_u32 s{sT4}, s{sT1}, {WS_HT}')
    vHo = 219
    o(f'v_lshrrev_b32 v{vHo}, 1, v{vR}\nv_mul_u32_u24 v{vHo}, 28672, v{vHo}')
    o(f'v_and_b32 v{vT1}, 1, v{vR}\nv_lshlrev_b32 v{vT1}, 5, v{vT1}\nv_add_u32 v{vHo}, v{vHo}, v{vT1}')
    o(f'v_lshlrev_b32 v{vT1}, 3, v{vHh}\nv_add_u32 v{vHo}, v{vHo}, v{vT1}')
    o(f's_lshl_b32 s{sT1}, s{sDskV}, 16\ns_and_b32 s{sT2}, s{sDskV}, 0xffff0000')
    o(f's_cmp_eq_u32 s{sCh}, 0\ns_cselect_b32 s{sT5}, s{sT1}, s{sT2}')
    o('s_waitcnt lgkmcnt(0)')
    stamp(o, stamps, 2)
    o('s_barrier')
    FR = 112; KD = 16
    def rd(kk):
        b = FR + 8 * (kk % 4)
        o(f'ds_read_b128 v[{b}:{b+3}], v{vA} offset:{kk * 32}')
        o(f'ds_read_b128 v[{b+4}:{b+7}], v{vB} offset:{kk * 32}')
    for kk in range(3): rd(kk)
    for kk in range(16):
        if kk + 3 < 16: rd(kk + 3)
        o(f's_waitcnt lgkmcnt({2 * min(3, 15 - kk)})')
        b = FR + 8 * (kk % 4)
        c = '0' if kk == 0 else f'v[{KD}:{KD+15}]'
        o(f'v_mfma_f32_32x32x16_bf16 v[{KD}:{KD+15}], v[{b}:{b+3}], v[{b+4}:{b+7}], {c}')
    vEx = 111
    o(f's_add_u32 s{sT1}, s{sWave}, 4\ns_mul_i32 s{sT1}, s{sT1}, {TAB}')
    o(f'v_lshlrev_b32 v{vEx}, 4, v0\nv_add_u32 v{vEx}, s{sT1}, v{vEx}')
    o(f's_xor_b32 s{sT2}, s{sWave}, 1\ns_add_u32 s{sT2}, s{sT2}, 4\ns_mul_i32 s{sT2}, s{sT2}, {TAB}')
    o(f'v_lshlrev_b32 v106, 4, v0\nv_add_u32 v106, s{sT2}, v106')
    o('s_nop 7\ns_nop 3')
    o(f's_cmp_eq_u32 s{sMh}, 0')
    o('s_cbranch_scc0 LM_send1')
    o(f'ds_write_b128 v{vEx}, v[{KD+8}:{KD+11}]\nds_write_b128 v{vEx}, v[{KD+12}:{KD+15}] offset:1024')
    o('s_branch LM_sent')
    o.label('LM_send1')
    o(f'ds_write_b128 v{vEx}, v[{KD}:{KD+3}]\nds_write_b128 v{vEx}, v[{KD+4}:{KD+7}] offset:1024')
    o.label('LM_sent')
    o(f'v_mov_b32 v{vEx}, v106')
    o('s_waitcnt lgkmcnt(0)')
    stamp(o, stamps, 3)
    o('s_barrier')
    R = 32
    o(f'ds_read_b128 v[{R}:{R+3}], v{vEx}\nds_read_b128 v[{R+4}:{R+7}], v{vEx} offset:1024')
    vK = 40; vJ = 41; vH = 42; O = 44
    o(f'v_and_b32 v{vJ}, 31, v0\nv_lshrrev_b32 v{vH}, 5, v0')
    o(f's_mul_i32 s{sT1}, s{sCh}, {KR_CH}')
    o(f's_cmp_eq_u32 s{sMh}, 0')
    o('s_cbranch_scc0 LM_exp1')
    o(f'v_lshlrev_b32 v{vK}, 4, v{vJ}\nv_lshlrev_b32 v{vT0}, 3, v{vH}\nv_add_u32 v{vK}, v{vK}, v{vT0}')
    o(f'v_sub_u32 v{vK}, 4088, v{vK}\nv_add_u32 v{vK}, s{sT1}, v{vK}')
    o('s_waitcnt lgkmcnt(0)')
    for j in range(8): o(f'v_add_f32 v{KD+j}, v{KD+j}, v{R+j}')
    a0, a1, a2, a3, a4, sa, sb, sc = [KD + j for j in range(8)]
    cv = lambda d, lo, hi: o(f'v_cvt_pk_bf16_f32 v{d}, v{lo}, v{hi}')
    cv(O, a3, a2); cv(O+1, a1, a0); cv(O+2, a4, a3); cv(O+3, a2, a1)
    o(f'ds_write_b64 v{vK}, v[{O}:{O+1}] offset:{KR_COPY}')
    o(f'ds_write_b64 v{vK}, v[{O+2}:{O+3}]')
    cv(O+4, sc, sb); cv(O+5, sa, sa); cv(O+6, sc, sc); cv(O+7, sb, sa)
    o(f'v_subrev_u32 v{vK}, 512, v{vK}')
    o(f'ds_write_b64 v{vK}, v[{O+4}:{O+5}] offset:{KR_COPY}')
    o(f'ds_write_b64 v{vK}, v[{O+6}:{O+7}]')
    o(f'v_mov_b32 v{O+8}, 0')
    cv(O+9, a0, O+8)
    o(f'v_cmp_eq_u32 vcc, 0, v0')
    o(f'v_lshlrev_b32 v{vT0}, 2, v0')
    o(f'v_add_u32 v{vT0}, s{sT1}, v{vT0}')
    o(f'v_cndmask_b32 v{O+9}, v{O+8}, v{O+9}, vcc')
    o('s_mov_b64 exec, 0xff')
    o(f'ds_write_b32 v{vT0}, v{O+9} offset:4096')
    o(f'ds_write_b32 v{vT0}, v{O+8} offset:{4096 + KR_COPY}')
    o('s_mov_b64 exec, -1')
    o('s_branch LM_expd')
    o.label('LM_exp1')
    o(f'v_lshlrev_b32 v{vK}, 4, v{vJ}\nv_lshlrev_b32 v{vT0}, 9, v{vH}\nv_add_u32 v{vK}, v{vK}, v{vT0}')
    o(f'v_sub_u32 v{vK}, {4080 - 1024}, v{vK}\nv_add_u32 v{vK}, s{sT1}, v{vK}')
    vK3 = 43
    o(f'v_lshlrev_b32 v{vK3}, 4, v{vJ}\nv_lshlrev_b32 v{vT0}, 10, v{vH}\nv_add_u32 v{vK3}, v{vK3}, v{vT0}')
    o(f'v_sub_u32 v{vK3}, {4080 - 2048 - 512}, v{vK3}\nv_add_u32 v{vK3}, s{sT1}, v{vK3}')
    o(f'v_and_b32 v{vT0}, 1, v{vJ}')
    o(f'v_cmp_eq_u32 vcc, 0, v{vT0}')
    o('s_waitcnt lgkmcnt(0)')
    for j in range(8): o(f'v_add_f32 v{KD+8+j}, v{KD+8+j}, v{R+j}')
    T0, T1, T2 = KD + 8, KD + 9, KD + 10
    cv(O, T2, T2); cv(O+1, T1, T1); cv(O+2, T1, T0); cv(O+3, T0, T0)
    o(f'ds_write_b128 v{vK}, v[{O}:{O+3}] offset:{KR_COPY}')
    cv(O+4, T2, T2); cv(O+5, T2, T1); cv(O+6, T1, T1); cv(O+7, T0, T0)
    o(f'ds_write_b128 v{vK}, v[{O+4}:{O+7}]')
    for ii in range(2):
        t0, t1 = KD + 11 + 2*ii, KD + 12 + 2*ii
        sel = O + 16
        q = O + 8 * (ii + 1) if ii == 0 else O
        o(f'v_cndmask_b32 v{sel}, v{t1}, v{t0}, vcc')
        off = 512 if ii == 0 else 0
        cv(q, t1, t1); cv(q+1, t1, sel); cv(q+2, t0, t0); cv(q+3, t0, t0)
        o(f'ds_write_b128 v{vK3}, v[{q}:{q+3}] offset:{KR_COPY + off}')
        cv(q+4, t1, t1); cv(q+5, t1, t1); cv(q+6, sel, t0); cv(q+7, t0, t0)
        o(f'ds_write_b128 v{vK3}, v[{q+4}:{q+7}] offset:{off}')
    o.label('LM_expd')
    o('s_waitcnt lgkmcnt(0)')
    stamp(o, stamps, 4)
    o('s_barrier')
    def rdA(sg):
        d = AF + 4 * sg; g = sg // 8; off = 32 * (7 - (sg - 8 * g))
        o(f'ds_read2_b32 v[{d}:{d+1}], v{vKA[g]} offset0:{off} offset1:{off+1}')
        o(f'ds_read2_b32 v[{d+2}:{d+3}], v{vKA[g]} offset0:{off+2} offset1:{off+3}')
    def rdB(t):
        d = BB + 4 * (t % 4)
        o(f'ds_read_b128 v[{d}:{d+3}], v{vBa} offset:{128 * (31 - t)}')
    NBB = LA + 1 if LA > 3 else 4
    def rdA_ops(sg):
        d = AF + 4 * sg; g = sg // 8; off = 32 * (7 - (sg - 8 * g))
        if X_NOA: return ['s_nop 0', 's_nop 0']
        return [f'ds_read2_b32 v[{d}:{d+1}], v{vKA[g]} offset0:{off} offset1:{off+1}',
                f'ds_read2_b32 v[{d+2}:{d+3}], v{vKA[g]} offset0:{off+2} offset1:{off+3}']
    def rdB_op(t):
        d = BB + 4 * (t % NBB)
        if X_NOB: return 's_nop 0'
        return f'ds_read_b128 v[{d}:{d+3}], v{vBa} offset:{128 * (31 - t)}'
    for t in range(LA):
        for op in rdA_ops(t): o(op)
        o(rdB_op(t))
    started = set()
    for t in range(32):
        o(f's_waitcnt lgkmcnt({(3 - 2 * X_NOA - X_NOB) * min(LA - 1, 31 - t)})')
        pend = (rdA_ops(t + LA) + [rdB_op(t + LA)]) if t + LA < 32 else []
        cmin = max(0, -(-(28 - t) // 4))
        for c in range(7, cmin - 1, -1):
            sg = 4 * c - 28 + t
            ac = ACC + 4 * c
            cc = f'v[{ac}:{ac+3}]' if c in started else '0'
            started.add(c)
            if not X_NOM: o(f'v_mfma_f32_16x16x32_bf16 v[{ac}:{ac+3}], v[{AF+4*sg}:{AF+4*sg+3}], v[{BB+4*(t%NBB)}:{BB+4*(t%NBB)+3}], {cc}')
            if pend: o(pend.pop(0))
        for op in pend: o(op)
    stamp(o, stamps, 5)
    UB = 64; XB = 72; PB = 80; W = 96
    vDk = 222
    o(f'v_mov_b32 v{vDk}, s{sT5}')
    for j in range(4): o(f'ds_read_b64 v[{UB+2*j}:{UB+2*j+1}], v{vU} offset:{512*j}')
    o('s_nop 3')
    o(f's_cmp_eq_u32 s{sMh}, 0')
    o('s_cbranch_scc0 LM_cx1')
    for par in range(2):
        keep = ACC + 16 * par; send = ACC + 16 * (1 - par)
        if par: o.label('LM_cx1')
        for j in range(4): o(f'ds_write_b128 v{vCx}, v[{send+4*j}:{send+4*j+3}] offset:{1024*j}')
        o('s_waitcnt lgkmcnt(0)')
        o('s_barrier')
        for j in range(4): o(f'ds_read_b64 v[{XB+2*j}:{XB+2*j+1}], v{vXs} offset:{512*j}')
        for j in range(4): o(f'ds_read_b128 v[{PB+4*j}:{PB+4*j+3}], v{vCp} offset:{1024*j}')
        for j in range(4):
            unpack(o, W, W+1, UB+2*j); unpack(o, W+2, W+3, UB+2*j+1)
            for e in (0, 2): o(f'v_pk_fma_f32 v[{keep+4*j+e}:{keep+4*j+e+1}], v[{W+e}:{W+e+1}], v[{vDk}:{vDk+1}], v[{keep+4*j+e}:{keep+4*j+e+1}] op_sel_hi:[1,0,1]')
        so = sT4
        for j in range(4):
            o(f's_waitcnt lgkmcnt({3-j})')
            unpack(o, W+4, W+5, XB+2*j); unpack(o, W+6, W+7, XB+2*j+1)
            for e in (0, 2): o(f'v_pk_add_f32 v[{keep+4*j+e}:{keep+4*j+e+1}], v[{keep+4*j+e}:{keep+4*j+e+1}], v[{PB+4*j+e}:{PB+4*j+e+1}]')
            for e in (0, 2): o(f'v_pk_add_f32 v[{keep+4*j+e}:{keep+4*j+e+1}], v[{keep+4*j+e}:{keep+4*j+e+1}], v[{W+4+e}:{W+4+e+1}]')
            d = W + 8 + 2 * j
            cv(d, keep+4*j, keep+4*j+1); cv(d+1, keep+4*j+2, keep+4*j+3)
            o(f'buffer_store_dwordx2 v[{d}:{d+1}], v{vHo}, s[{SRD_WS}:{SRD_WS+3}], s{so} offen {HST}')
            if j < 3: o(f's_add_u32 s{so}, s{so}, {8 * 28672}')
        if par == 0:
            stamp(o, stamps, 6)
            finish(o, stamps)
    stamp(o, stamps, 6)
    finish(o, stamps)

def gen_nwave(o, q0, stamps):
    vm = VM(o); vm.q = q0
    P = 16
    tile_loads(o, vm)
    e_load(o, vm)
    o(f'v_mov_b32 v20, v{vT2}')
    row_loads(o, vm, 4)
    if PRETOUCH & 4:
        o(f's_lshl_b32 s{sT0}, s2, 6\ns_add_u32 s{sT0}, s{sT0}, {WS_REC}')
        o('s_mov_b64 exec, 1')
        o(f'buffer_load_dword v248, v251, s[{SRD_WS}:{SRD_WS+3}], s{sT0} offen sc1'); vm.issue('pt')
        o('s_mov_b64 exec, -1')
    for i, p in enumerate([sAre, sAim]): srd(o, SRD_P[i], p, 229376)
    for i in range(2):
        o(f'buffer_load_dword v{P+i}, v20, s[{SRD_P[i]}:{SRD_P[i]+3}], s{sT3} offen'); vm.issue('par')
    sNw, sSb, sKk, sKt, sDb, sL = 52, 53, 54, 55, 56, 57
    o(f's_lshl_b32 s{sNw}, s{sPair}, 2\ns_add_u32 s{sNw}, s{sNw}, s{sWave}\ns_sub_u32 s{sNw}, s{sNw}, 4')
    o(f's_min_u32 s{sT0}, s{sNw}, 783')
    o(f's_mul_i32 s{sSb}, s{sT0}, 2341\ns_lshr_b32 s{sSb}, s{sSb}, 16')
    o(f's_mul_i32 s{sKk}, s{sSb}, 28\ns_sub_u32 s{sKk}, s{sT0}, s{sKk}')
    o(f's_mul_i32 s{sKt}, s{sT0}, 9363\ns_lshr_b32 s{sKt}, s{sKt}, 16')
    o(f's_mul_i32 s{sDb}, s{sKt}, 7\ns_sub_u32 s{sDb}, s{sT0}, s{sDb}')
    o(f's_sub_u32 s{sL}, s{sWave}, 4\ns_mul_i32 s{sL}, s{sL}, 6144\ns_add_u32 s{sL}, s{sL}, {LDS_RP}')
    srd(o, SRD_WG, sWg, 1605632); srd(o, SRD_WU, sWu, 1605632); srd(o, SRD_WD, sWd, 1605632)
    tile_image(o, vm)
    o('s_waitcnt lgkmcnt(0)')
    o('s_barrier')
    stamp(o, stamps, 0)
    row_stats(o, vm, 4)
    vm.wait('par')
    G = 128; vG0, vTp = 24, 26
    o(f's_sub_u32 s{sT0}, s{sWave}, 4\ns_lshl_b32 s{sT0}, s{sT0}, 6')
    o(f'v_add_u32 v{vTp}, s{sT0}, v0')
    o(f'v_lshrrev_b32 v{vG0}, 4, v{vTp}\nv_lshlrev_b32 v{vG0}, 13, v{vG0}')
    o(f'v_and_b32 v{vT0}, 15, v{vTp}\nv_lshlrev_b32 v{vT0}, 4, v{vT0}\nv_add_u32 v{vG0}, v{vG0}, v{vT0}')
    o(f's_lshr_b32 s{sT1}, s{sPair}, 5\ns_lshl_b32 s{sT1}, s{sT1}, 18')
    o(f's_and_b32 s{sT2}, s{sPair}, 31\ns_lshl_b32 s{sT2}, s{sT2}, 8\ns_add_u32 s{sT1}, s{sT1}, s{sT2}')
    o(f'v_add_u32 v{vG0}, s{sT1}, v{vG0}')
    o(f'v_add_u32 v25, {16 * 8192}, v{vG0}')
    vdt = 22
    compute_dt(o, vdt)
    U = 28
    for i in range(2): unpack(o, U + 2*i, U + 2*i + 1, P + i)
    for i in range(4): o(f'v_mul_f32 v{U+i}, v{vdt}, v{U+i}')
    o(f'v_mul_f32 v{U}, {hex(LOG2E)}, v{U}\nv_mul_f32 v{U+1}, {hex(LOG2E)}, v{U+1}')
    o(f'v_mul_f32 v{U+2}, {hex(INV2PI)}, v{U+2}\nv_mul_f32 v{U+3}, {hex(INV2PI)}, v{U+3}')
    E8 = 36; YA = 40; YB = 44; TMP = 48; OUT = 52; vTab = 60
    for mu in range(2): seed(o, E8 + 2*mu, U + mu, U + 2 + mu, 8, TMP + 2*mu, conj=True)
    stamp(o, stamps, 1)
    o(f's_lshl_b32 s{sT0}, s{sCh}, 1\ns_add_u32 s{sT0}, s{sT0}, s{sMh}\ns_add_u32 s{sT0}, s{sT0}, 4\ns_mul_i32 s{sT0}, s{sT0}, {TAB}')
    o(f'v_lshlrev_b32 v{vTab}, 3, v0\nv_add_u32 v{vTab}, s{sT0}, v{vTab}')
    o(f'v_mov_b32 v{YA}, 0x3f80\nv_mov_b32 v{YA+1}, 0x3f80')
    o(f'ds_write_b64 v{vTab}, v[{YA}:{YA+1}]')
    rw = RowWriter(o, vTab, OUT)
    rw.write([1], E8, E8 + 2)
    E16 = 200; YC = 204; YD = 208
    RP = 144
    def rp_loads():
        vGu, vDn = 20, 21
        o(f'v_lshrrev_b32 v{vT0}, 3, v0\nv_and_b32 v{vT1}, 7, v0\nv_lshlrev_b32 v{vT1}, 4, v{vT1}')
        o(f'v_mul_u32_u24 v{vGu}, 3584, v{vT0}\nv_add_u32 v{vGu}, v{vGu}, v{vT1}')
        o(f'v_mul_u32_u24 v{vDn}, 896, v{vT0}\nv_add_u32 v{vDn}, v{vDn}, v{vT1}')
        o(f's_mul_i32 s{sT1}, s{sKk}, {16 * 3584}\ns_lshl_b32 s{sT2}, s{sSb}, 7\ns_add_u32 s{sT1}, s{sT1}, s{sT2}')
        o(f's_add_u32 s{sT2}, s{sT1}, {8 * 3584}')
        for mat, sr in enumerate([SRD_WG, SRD_WU]):
            for i in range(2):
                d = RP + 8 * mat + 4 * i
                o(f'buffer_load_dwordx4 v[{d}:{d+3}], v{vGu}, s[{sr}:{sr+3}], s{sT1 if i == 0 else sT2} offen'); vm.issue('rp')
        o(f's_mul_i32 s{sT1}, s{sKt}, {16 * 896}\ns_lshl_b32 s{sT2}, s{sDb}, 7\ns_add_u32 s{sT1}, s{sT1}, s{sT2}')
        o(f's_add_u32 s{sT2}, s{sT1}, {8 * 896}')
        for i in range(2):
            d = RP + 16 + 4 * i
            o(f'buffer_load_dwordx4 v[{d}:{d+3}], v{vDn}, s[{SRD_WD}:{SRD_WD+3}], s{sT1 if i == 0 else sT2} offen'); vm.issue('rp')

    RC = 64; vRa = 27
    o(f'v_lshlrev_b32 v{vRa}, 4, v{vTp}')
    o(f's_mov_b32 s{sT3}, {WS_REC}')
    o(f's_mov_b32 s{sT4}, {WS_T}\ns_mov_b32 s{sT5}, {WS_T2}')
    def rec_loads(pol):
        for j in range(4):
            if j: o(f's_add_u32 s{sT3}, s{sT3}, 4096')
            o(f'buffer_load_dwordx4 v[{RC+4*j}:{RC+4*j+3}], v{vRa}, s[{SRD_WS}:{SRD_WS+3}], s{sT3} offen {pol}')
        o(f's_mov_b32 s{sT3}, {WS_REC}')
        o(f'buffer_load_dwordx4 v[{G}:{G+3}], v{vG0}, s[{SRD_WS}:{SRD_WS+3}], s{sT4} offen {pol}')
        o(f'buffer_load_dwordx4 v[{G+4}:{G+7}], v25, s[{SRD_WS}:{SRD_WS+3}], s{sT4} offen {pol}')
        o(f'buffer_load_dwordx4 v[{G+8}:{G+11}], v{vG0}, s[{SRD_WS}:{SRD_WS+3}], s{sT5} offen {pol}')
        o(f'buffer_load_dwordx4 v[{G+12}:{G+15}], v25, s[{SRD_WS}:{SRD_WS+3}], s{sT5} offen {pol}')
    cmul2(o, E16, E8, E8, E16 + 2, E8 + 2, E8 + 2)
    rw.write([2], E16, E16 + 2)
    ev, od = [E16, YA, YB], [E8, YC, YD]
    pe, po = E16, E8
    step = 0
    for j in range(3, 32, 2):
        do = YC if step % 2 == 0 else YD
        de = YA if step % 2 == 0 else YB
        step += 1
        last = (j + 1 > 31)
        prods = [(do, po), (do + 2, po + 2)] + ([] if last else [(de, pe), (de + 2, pe + 2)])
        for d, p in prods:
            q = E16 + (2 if (d - (do if d in (do, do + 2) else de)) else 0)
            o(f'v_pk_mul_f32 v[{d}:{d+1}], v[{p}:{p+1}], v[{q}:{q+1}] op_sel_hi:[0,1]')
        for d, p in prods:
            q = E16 + (2 if (d - (do if d in (do, do + 2) else de)) else 0)
            o(f'v_pk_fma_f32 v[{d}:{d+1}], v[{p}:{p+1}], v[{q}:{q+1}], v[{d}:{d+1}] op_sel:[1,1,0] op_sel_hi:[1,0,1] neg_lo:[1,0,0]')
        rw.write([j], do, do + 2)
        if not last: rw.write([j + 1], de, de + 2)
        po = do; pe = de
        if j == RP_AT and RP_AT < REC_AT: rp_loads()
        if j == REC_AT: rec_loads(POL0)
        if j == RP_AT and RP_AT >= REC_AT: rp_loads()
    if REC_AT == 99: rec_loads(POL0)
    if RP_AT == 99: rp_loads()
    o('s_waitcnt lgkmcnt(0)')
    stamp(o, stamps, 2)
    o('s_barrier')
    if REC_AT == 199: rec_loads(POL0)
    if RP_AT == 199: rp_loads()
    o(f'v_lshrrev_b32 v{vT0}, 5, v0\nv_mul_u32_u24 v{vT0}, 4608, v{vT0}')
    o(f'v_and_b32 v{vT1}, 31, v0\nv_lshlrev_b32 v{vT1}, 4, v{vT1}\nv_add_u32 v{vT0}, v{vT0}, v{vT1}')
    o(f'v_add_u32 v{vT0}, {LDS_US}, v{vT0}')
    for j in range(4): o(f'v_mov_b32 v{OUT+j}, 0')
    o(f'ds_write_b128 v{vT0}, v[{OUT}:{OUT+3}]')
    o(f's_mov_b32 s{sT1}, 0')
    o(f's_waitcnt vmcnt({6 if RP_AT >= REC_AT else 0})')
    o.label('LN_chk')
    C0 = RC + 16
    for k in range(8): o(f'v_xor_b32 v{C0+k}, v{RC+2*k+1}, v{RC+2*k}')
    for k in range(8): o(f'v_xor_b32 v{C0+8+k}, v{G+k}, v{G+8+k}')
    for k in range(16): o(f'v_xor_b32 v{C0+k}, v{C0+k}, v{vTag}')
    for k in range(0, 15, 3): o(f'v_or3_b32 v{C0+k}, v{C0+k}, v{C0+k+1}, v{C0+k+2}')
    o(f'v_or3_b32 v{C0}, v{C0}, v{C0+3}, v{C0+6}')
    o(f'v_or3_b32 v{C0+9}, v{C0+9}, v{C0+12}, v{C0+15}')
    o(f'v_or_b32 v{C0}, v{C0}, v{C0+9}')
    o(f'v_cmp_ne_u32 vcc, 0, v{C0}')
    o('s_cbranch_vccz LN_got')
    o(f's_add_u32 s{sT1}, s{sT1}, 1')
    o(f's_cmp_lt_u32 s{sT1}, 0x40000')
    o('s_cbranch_scc0 LN_got')
    rec_loads('sc1')
    o('s_waitcnt vmcnt(0)')
    o('s_branch LN_chk')
    o.label('LN_got')
    vm.q = []
    if stamps: o(f'v_writelane_b32 v255, s{sT1}, 13')
    stamp(o, stamps, 3)
    o(f'v_lshlrev_b32 v{vT0}, 4, v{vTp}\nv_add_u32 v{vT0}, {LDS_XS}, v{vT0}')
    for j in range(4):
        a_ = RC + 4 * j
        o(f'v_and_b32 v{a_+1}, 0xffff0000, v{a_}\nv_and_b32 v{a_+3}, 0xffff0000, v{a_+2}')
        o(f'v_lshlrev_b32 v{a_}, 16, v{a_}\nv_lshlrev_b32 v{a_+2}, 16, v{a_+2}')
        o(f'v_rcp_f32 v{a_+1}, v{a_+1}\nv_rcp_f32 v{a_+3}, v{a_+3}')
    for j in range(4):
        a_ = RC + 4 * j
        o(f'v_mul_f32_e64 v{a_}, -v{a_}, v{a_+1}\nv_mul_f32_e64 v{a_+2}, -v{a_+2}, v{a_+3}')
        o(f'ds_write_b128 v{vT0}, v[{a_}:{a_+3}] offset:{4096*j}')
    XF = 96
    for i in range(2):
        for j in range(4): unpack(o, XF + 8*i + 2*j, XF + 8*i + 2*j + 1, G + 4*i + j)
    vL0, vCh = 22, 23
    o(f'v_lshrrev_b32 v{vL0}, 4, v{vTp}\nv_lshlrev_b32 v{vL0}, 6, v{vL0}')
    o(f'v_and_b32 v{vT0}, 7, v{vTp}\nv_lshlrev_b32 v{vT0}, 3, v{vT0}\nv_add_u32 v{vL0}, v{vL0}, v{vT0}')
    o(f'v_bfe_u32 v{vCh}, v{vTp}, 3, 1')
    o(f'v_lshlrev_b32 v21, 3, v{vL0}\nv_add_u32 v21, {LDS_XS}, v21')
    o('s_waitcnt lgkmcnt(0)')
    o('s_barrier')
    TB = 64
    for i in range(2):
        for q in range(4): o(f'ds_read_b128 v[{TB+16*i+4*q}:{TB+16*i+4*q+3}], v21 offset:{8192*i+16*q}')
    o(f'v_mul_u32_u24 v{vT1}, 4608, v{vCh}\nv_lshlrev_b32 v{vT3}, 1, v{vL0}\nv_add_u32 v{vT1}, v{vT1}, v{vT3}')
    o(f'v_add_u32 v{vT1}, {LDS_US + 512}, v{vT1}')
    Pk = 120
    for i in range(2):
        o(f's_waitcnt lgkmcnt({4 - 4*i})' if i == 0 else 's_waitcnt lgkmcnt(1)')
        for k in range(8): o(f'v_fma_f32 v{XF+8*i+k}, v{XF+8*i+k}, v{TB+16*i+2*k+1}, v{TB+16*i+2*k}')
        for j in range(4): o(f'v_cvt_pk_bf16_f32 v{Pk+4*i+j}, v{XF+8*i+2*j}, v{XF+8*i+2*j+1}')
        o(f'ds_write_b128 v{vT1}, v[{Pk+4*i}:{Pk+4*i+3}] offset:{2048*i}')
    o('s_waitcnt lgkmcnt(0)')
    stamp(o, stamps, 4)
    o('s_barrier')
    o(f'v_lshlrev_b32 v{vT1}, 12, v{vCh}\nv_lshlrev_b32 v{vT3}, 1, v{vL0}\nv_add_u32 v{vT1}, v{vT1}, v{vT3}')
    o(f'v_add_u32 v{vT1}, {LDS_XS}, v{vT1}')
    for i in range(2): o(f'ds_write_b128 v{vT1}, v[{G+4*i}:{G+4*i+3}] offset:{2048*i}')
    o(f's_cmp_ge_u32 s{sNw}, 784')
    o('s_cbranch_scc1 LN_norep2')
    o(f'v_lshlrev_b32 v{vT0}, 4, v0\nv_add_u32 v{vT1}, s{sL}, v{vT0}')
    o('s_waitcnt vmcnt(0)')
    for j in range(6): o(f'ds_write_b128 v{vT1}, v[{RP+4*j}:{RP+4*j+3}] offset:{1024*j}')
    g_, rho, c_ = 20, 21, 22
    o(f'v_lshrrev_b32 v{g_}, 4, v0\nv_bfe_u32 v{rho}, v0, 2, 2\nv_and_b32 v{c_}, 3, v0')
    vA1, vA2 = 18, 19
    o(f'v_and_b32 v{vT3}, 1, v{g_}\nv_lshlrev_b32 v{vT3}, 11, v{vT3}')
    o(f'v_lshrrev_b32 v{vT1}, 1, v{g_}\nv_lshlrev_b32 v{vT1}, 10, v{vT1}\nv_add_u32 v{vT3}, v{vT3}, v{vT1}')
    o(f'v_lshlrev_b32 v{vT1}, 7, v{rho}\nv_add_u32 v{vT3}, v{vT3}, v{vT1}')
    o(f'v_lshlrev_b32 v{vT1}, 3, v{c_}\nv_add3_u32 v{vA1}, v{vT3}, v{vT1}, s{sL}')
    o(f'v_lshrrev_b32 v{vT3}, 1, v{g_}\nv_lshlrev_b32 v{vT3}, 9, v{vT3}')
    o(f'v_lshlrev_b32 v{vT1}, 7, v{rho}\nv_add_u32 v{vT3}, v{vT3}, v{vT1}')
    o(f'v_and_b32 v{vT1}, 1, v{g_}\nv_lshlrev_b32 v{vT1}, 5, v{vT1}\nv_add_u32 v{vT3}, v{vT3}, v{vT1}')
    o(f'v_lshlrev_b32 v{vT1}, 3, v{c_}\nv_add3_u32 v{vA2}, v{vT3}, v{vT1}, s{sL}')
    o('s_waitcnt lgkmcnt(0)')
    F = 32
    for tt in range(4):
        o(f'ds_read_b64_tr_b16 v[{F+4*tt}:{F+4*tt+1}], v{vA1} offset:{tt*32}')
        o(f'ds_read_b64_tr_b16 v[{F+4*tt+2}:{F+4*tt+3}], v{vA1} offset:{tt*32 + 512}')
    for mt in range(2):
        o(f'ds_read_b64_tr_b16 v[{F+16+4*mt}:{F+16+4*mt+1}], v{vA2} offset:{4096 + mt*64}')
        o(f'ds_read_b64_tr_b16 v[{F+16+4*mt+2}:{F+16+4*mt+3}], v{vA2} offset:{4096 + mt*64 + 1024}')
    o(f's_mul_i32 s{sT1}, s{sSb}, {4 * 29}\ns_add_u32 s{sT1}, s{sT1}, s{sKk}\ns_lshl_b32 s{sT1}, s{sT1}, 10\ns_add_u32 s{sT1}, s{sT1}, {WS_WP}')
    o('s_waitcnt lgkmcnt(0)')
    for tt in range(4):
        o(f'buffer_store_dwordx4 v[{F+4*tt}:{F+4*tt+3}], v{vT0}, s[{SRD_WS}:{SRD_WS+3}], s{sT1} offen {ST}')
        if tt < 3: o(f's_add_u32 s{sT1}, s{sT1}, {29 * 1024}')
    o(f's_mul_i32 s{sT1}, s{sDb}, 224\ns_add_u32 s{sT1}, s{sT1}, s{sKt}\ns_lshl_b32 s{sT1}, s{sT1}, 10\ns_add_u32 s{sT1}, s{sT1}, {WS_WD}')
    o(f'buffer_store_dwordx4 v[{F+16}:{F+19}], v{vT0}, s[{SRD_WS}:{SRD_WS+3}], s{sT1} offen {ST}')
    o(f's_add_u32 s{sT1}, s{sT1}, {112 * 1024}')
    o(f'buffer_store_dwordx4 v[{F+20}:{F+23}], v{vT0}, s[{SRD_WS}:{SRD_WS+3}], s{sT1} offen {ST}')
    o.label('LN_norep2')
    o('s_waitcnt lgkmcnt(0)')
    stamp(o, stamps, 5)
    o('s_barrier')
    stamp(o, stamps, 6)
    finish(o, stamps)

vAt, vAt2 = 250, 251
def epoch_atomic(o):
    srd(o, SRD_DBG, sDbg, 256)
    o(f's_and_b32 s{sT1}, s2, 3\ns_lshl_b32 s{sT1}, s{sT1}, 6')
    o(f'v_mov_b32 v{vAt}, 1\nv_mov_b32 v{vAt2}, 0')
    o('s_mov_b64 exec, 1')
    o(f'buffer_atomic_add v{vAt}, v{vAt2}, s[{SRD_DBG}:{SRD_DBG+3}], s{sT1} offen sc1')
    o('s_mov_b64 exec, -1')
def epoch_finish(o, pfx):
    srd(o, SRD_DBG, sDbg, 256)
    o(f'v_and_b32 v{vAt}, 3, v0\nv_lshlrev_b32 v{vAt}, 6, v{vAt}')
    o(f's_mov_b32 s{sT1}, 0')
    o.label(f'L{pfx}_epoll')
    o(f'buffer_load_dword v252, v{vAt}, s[{SRD_DBG}:{SRD_DBG+3}], 0 offen sc1')
    o('s_waitcnt vmcnt(0)')
    o('v_cmp_ne_u32 vcc, 64, v252')
    o(f's_cbranch_vccz L{pfx}_eok')
    o(f's_add_u32 s{sT1}, s{sT1}, 1\ns_cmp_lt_u32 s{sT1}, 0x40000')
    o(f's_cbranch_scc1 L{pfx}_epoll')
    o(f'L{pfx}_eok:')
    o('s_mov_b64 exec, 1')
    o(f'buffer_store_dword v{vTag}, v{vAt2}, s[{SRD_WS}:{SRD_WS+3}], 0 offen sc1')
    o('s_mov_b64 exec, -1')

def gen_spare(o, q0, stamps):
    vm = VM(o); vm.q = q0
    e_load(o, vm)
    if PRETOUCH & 1:
        o(f's_cmp_eq_u32 s{sWave}, 5')
        o('s_cbranch_scc0 LS_notouch')
        o('v_and_b32 v30, 15, v0\nv_lshlrev_b32 v30, 21, v30')
        o(f'buffer_load_dword v31, v30, s[{SRD_WS}:{SRD_WS+3}], 0 offen')
        o(f's_load_dwordx2 s[48:49], s[0:1], 104')
        o('s_waitcnt lgkmcnt(0)')
        o(f's_mov_b32 s50, 1835008\ns_mov_b32 s51, 0x00020000')
        o('v_and_b32 v30, 1, v0\nv_mul_u32_u24 v30, 0x1bfffc, v30')
        o('s_mov_b64 exec, 3')
        o(f'buffer_load_dword v32, v30, s[48:51], 0 offen')
        o('s_mov_b64 exec, -1')
        o.label('LS_notouch')
    o(f's_cmp_ge_u32 s{sWave}, 4')
    o('s_cbranch_scc1 LS_prodd')
    row_loads(o, vm)
    row_stats(o, vm)
    o.label('LS_prodd')
    o('s_waitcnt vmcnt(0)')
    make_tag(o)
    o('s_barrier')
    stamp(o, stamps, 0)
    o(f's_cmp_eq_u32 s{sWave}, 7')
    o('s_cbranch_scc0 LS_noat')
    epoch_atomic(o)
    o.label('LS_noat')
    if SPARE_WAIT:
        o(f's_cmp_eq_u32 s{sWave}, 0')
        o('s_cbranch_scc0 LS_go')
        o(f's_mov_b32 s{sT3}, {WS_T + 223 * 8192 + 8176}\ns_mov_b32 s{sT2}, {WS_T2 + 223 * 8192 + 8176}\ns_mov_b32 s{sT1}, 0')
        o.label('LS_poll')
        o(f'buffer_load_dword v64, v251, s[{SRD_WS}:{SRD_WS+3}], s{sT3} offen sc1')
        o(f'buffer_load_dword v65, v251, s[{SRD_WS}:{SRD_WS+3}], s{sT2} offen sc1')
        o('s_waitcnt vmcnt(0)')
        o(f'v_xor_b32 v64, v64, v65\nv_cmp_ne_u32 vcc, v64, v{vTag}')
        o('s_cbranch_vccz LS_go')
        o('s_sleep 8')
        o(f's_add_u32 s{sT1}, s{sT1}, 1\ns_cmp_lt_u32 s{sT1}, 0x20000\ns_cbranch_scc1 LS_poll')
        o.label('LS_go')
        o('s_barrier')
    sMat, sFs = 44, 45
    o(f's_lshr_b32 s{sMat}, s{sSp}, 4\ns_and_b32 s{sFs}, s{sSp}, 15')
    o(f's_cmp_eq_u32 s{sMat}, 0')
    o(f's_cselect_b32 s48, s{sWg}, s{sWu}\ns_cselect_b32 s49, s{sWg+1}, s{sWu+1}')
    o('s_mov_b32 s50, 1605632\ns_mov_b32 s51, 0x00020000')
    vTid, vG, vC, vOf = 16, 17, 18, 19
    o(f's_lshl_b32 s{sT0}, s{sWave}, 6\nv_add_u32 v{vTid}, s{sT0}, v0')
    o(f'v_mul_u32_u24 v{vG}, 4682, v{vTid}\nv_lshrrev_b32 v{vG}, 16, v{vG}')
    o(f'v_mul_u32_u24 v{vC}, 14, v{vG}\nv_sub_u32 v{vC}, v{vTid}, v{vC}')
    o(f'v_mul_u32_u24 v{vOf}, 3584, v{vG}\nv_lshlrev_b32 v{vT0}, 4, v{vC}\nv_add_u32 v{vOf}, v{vOf}, v{vT0}')
    o(f's_mul_i32 s{sT1}, s{sFs}, 224')
    L = 32
    o(f's_cmp_ge_u32 s{sWave}, 7')
    o('s_cbranch_scc1 LS_skip')
    for i in range(14):
        o(f'buffer_load_dwordx4 v[{L+4*i}:{L+4*i+3}], v{vOf}, s[48:51], s{sT1} offen')
        if i < 13: o(f's_add_u32 s{sT1}, s{sT1}, {32 * 3584}')
    A = 96
    for j in range(8): o(f'v_mov_b32 v{A+j}, 0')
    for i in range(14):
        o(f's_waitcnt vmcnt({13 - i})')
        for r in range(4):
            unpack(o, 104, 105, L + 4*i + r)
            o(f'v_add_f32 v{A+2*r}, v{A+2*r}, v104\nv_add_f32 v{A+2*r+1}, v{A+2*r+1}, v105')
    o(f'v_mul_u32_u24 v{vT0}, 448, v{vG}\nv_lshlrev_b32 v{vT1}, 5, v{vC}\nv_add_u32 v{vT0}, v{vT0}, v{vT1}')
    o(f'ds_write_b128 v{vT0}, v[{A}:{A+3}]\nds_write_b128 v{vT0}, v[{A+4}:{A+7}] offset:16')
    o.label('LS_skip')
    o('s_waitcnt lgkmcnt(0)')
    o('s_barrier')
    o(f's_cmp_ge_u32 s{sWave}, 2')
    o('s_cbranch_scc1 LS_done')
    o(f'v_lshlrev_b32 v{vT0}, 2, v{vTid}')
    for g in range(32): o(f'ds_read_b32 v{L+g}, v{vT0} offset:{448*g}')
    o('s_waitcnt lgkmcnt(0)')
    for g in range(1, 32): o(f'v_add_f32 v{L}, v{L}, v{L+g}')
    o(f'v_cvt_pk_bf16_f32 v{L+1}, v{L}, v{L}\nv_and_b32 v{L+1}, 0xffff0000, v{L+1}\nv_sub_f32 v{L+1}, v{L}, v{L+1}')
    Z = 68
    o(f'v_cvt_pk_bf16_f32 v{Z}, v{L}, v{L+1}')
    for j in range(1, 8): o(f'v_mov_b32 v{Z+j}, 0')
    o(f'v_lshrrev_b32 v{vT0}, 4, v{vTid}\ns_mul_i32 s{sT1}, s{sFs}, 7\nv_add_u32 v{vT0}, s{sT1}, v{vT0}')
    o(f'v_mul_u32_u24 v{vT0}, 29, v{vT0}\nv_add_u32 v{vT0}, 28, v{vT0}\nv_lshlrev_b32 v{vT0}, 10, v{vT0}')
    o(f'v_and_b32 v{vT1}, 15, v{vTid}\ns_lshl_b32 s{sT1}, s{sMat}, 4\nv_add_u32 v{vT1}, s{sT1}, v{vT1}\nv_lshlrev_b32 v{vT1}, 4, v{vT1}')
    o(f'v_add_u32 v{vT0}, v{vT0}, v{vT1}')
    o(f's_mov_b32 s{sT1}, {WS_WP}')
    o(f'v_cmp_gt_u32 vcc, 112, v{vTid}')
    o(f's_and_saveexec_b64 s[52:53], vcc')
    o('s_cbranch_execz LS_rest')
    o(f'buffer_store_dwordx4 v[{Z}:{Z+3}], v{vT0}, s[{SRD_WS}:{SRD_WS+3}], s{sT1} offen {ST}')
    o(f'buffer_store_dwordx4 v[{Z+4}:{Z+7}], v{vT0}, s[{SRD_WS}:{SRD_WS+3}], s{sT1} offen offset:512')
    o.label('LS_rest')
    o('s_mov_b64 exec, s[52:53]')
    o.label('LS_done')
    o(f's_cmp_eq_u32 s{sWave}, 7')
    o('s_cbranch_scc0 LS_noe')
    o(f's_cmp_eq_u32 s{sSp}, 0')
    o('s_cbranch_scc0 LS_noe')
    epoch_finish(o, 'S')
    o.label('LS_noe')
    finish(o, stamps)
def desc_ab(): return kernel_desc(NAME, 256, 100, accum=256)
def launch_ab(): return f'; @launch kernel={NAME} grid=(256,1,1) block=(512,1,1) lds={LDS_BYTES}'
```

```python
from asmlib import *
from layout import *
from vm import VM
NAME = 'ffn1_kernel'
FNAME = 'ffn_kernel'
PREFETCH = True
USE_PK = False
ST = ''
PF_WD = False
PF_T = 2
PF_N = 4
MST = 'sc1'
WPER = 1
WSPREAD = 8
X_NOEPI = False; X_NOBAR = False; X_NODMA = False; X_NOREAD = False; X_NOSTAT = False
LDS_S4 = 4 * 28672
LDS_CORR = LDS_S4 + 28672
LDS_BYTES = LDS_CORR + 7 * 1024
ACC = [16, 32]
WB = 48; NWB = 8
HF = 80
T = 192
PK = 200
vS, vQ, vC1, vSB, vT0, vT1 = 204, 205, 206, 208, 210, 211
BC = 212
SA = 216
SD = 220
vLane16, vLB0, vLB1, vLB2, vTR, vHoff, vHN = 1, 2, 3, 4, 5, 6, 8
def w_lds_addr(t, kk):
    if kk == 28: return LDS_CORR + t * 1024
    if t in (0, 5): return LDS_S4 + kk * 1024
    tt = 1 if t == 6 else t
    return (kk // 7) * 28672 + (7 * (tt - 1) + kk % 7) * 1024
def w_read(o, dst, t, kk):
    a_ = w_lds_addr(t, kk)
    base = [vLB0, vLB1, vLB2][a_ >> 16]
    o(f'ds_read_b128 v[{dst}:{dst+3}], v{base} offset:{a_ & 0xffff}')
def epilogue_ops(acc):
    ops = []
    if USE_PK:
        for j in range(0, 8, 2): ops.append((4, f'v_pk_mul_f32 v[{T+j}:{T+j+1}], v[{acc+j}:{acc+j+1}], v[{vC1}:{vC1+1}] op_sel_hi:[1,0]'))
    else:
        for j in range(8): ops.append((4, f'v_mul_f32 v{T+j}, v{acc+j}, v{vC1}'))
    for j in range(8): ops.append((8, f'v_exp_f32 v{T+j}, v{T+j}'))
    if USE_PK:
        for j in range(0, 8, 2): ops.append((4, f'v_pk_fma_f32 v[{T+j}:{T+j+1}], v[{T+j}:{T+j+1}], v[{vSB}:{vSB+1}], v[{vSB}:{vSB+1}] op_sel_hi:[1,0,0]'))
    else:
        for j in range(8): ops.append((4, f'v_fma_f32 v{T+j}, v{T+j}, v{vSB}, v{vSB}'))
    for j in range(8): ops.append((8, f'v_rcp_f32 v{T+j}, v{T+j}'))
    if USE_PK:
        for j in range(0, 8, 2): ops.append((4, f'v_pk_mul_f32 v[{T+j}:{T+j+1}], v[{acc+8+j}:{acc+8+j+1}], v[{T+j}:{T+j+1}]'))
    else:
        for j in range(8): ops.append((4, f'v_mul_f32 v{T+j}, v{acc+8+j}, v{T+j}'))
    for j in range(4): ops.append((4, f'v_cvt_pk_bf16_f32 v{PK+j}, v{T+2*j}, v{T+2*j+1}'))
    return ops
def epilogue_gaps(acc):
    mul = [f'v_mul_f32 v{T+j}, v{acc+j}, v{vC1}' for j in range(8)]
    ex = [f'v_exp_f32 v{T+j}, v{T+j}' for j in range(8)]
    fma = [f'v_fma_f32 v{T+j}, v{T+j}, v{vSB}, v{vSB}' for j in range(8)]
    rcp = [f'v_rcp_f32 v{T+j}, v{T+j}' for j in range(8)]
    mu = [f'v_mul_f32 v{T+j}, v{acc+8+j}, v{T+j}' for j in range(8)]
    cv = [f'v_cvt_pk_bf16_f32 v{PK+j}, v{T+2*j}, v{T+2*j+1}' for j in range(4)]
    g = [[mul[0], mul[1], mul[2]]]
    for j in range(5): g.append([ex[j], mul[3+j]])
    for j in range(5, 8): g.append([ex[j], fma[j-5]])
    for j in range(5): g.append([rcp[j], fma[3+j]])
    for j in range(5, 8): g.append([rcp[j], mu[j-5]])
    g += [[mu[3], mu[4], mu[5]], [mu[6], mu[7], cv[0]], [cv[1], cv[2], cv[3]]]
    return g
def take_fill(fill, budget, force):
    out = []
    while fill and (fill[0][0] <= budget or force > 0):
        c, op = fill.pop(0); out.append(op); budget -= c; force -= 1
    return out
def gen_c(o, stamps=False, merged=False):
    vm = VM(o)
    global ST
    if merged: ST = MST
    kernel_begin(o, FNAME if merged else NAME)
    o('s_cmp_ge_u32 s2, 256')
    o('s_cbranch_scc1 LC_end')
    o(f's_load_dwordx2 s[4:5], s[0:1], {KA["ws"]}')
    if merged: o(f's_load_dwordx2 s[6:7], s[0:1], {KA["out"]}')
    if stamps: o('s_memtime s[74:75]')
    o('v_lshrrev_b32 v9, 6, v0')
    o('v_and_b32 v0, 63, v0')
    o('v_readfirstlane_b32 s24, v9')
    o('s_and_b32 s25, s2, 7')
    o('s_lshr_b32 s26, s2, 3')
    if PREFETCH: code_prefetch(o, FNAME if merged else NAME, 'code_end', 26, 24, 4, 240, 244, 44, 'c')
    o('s_lshr_b32 s27, s25, 1')
    o('s_lshl_b32 s27, s27, 2')
    o('s_and_b32 s28, s26, 3')
    o('s_add_u32 s27, s27, s28')
    o('s_and_b32 s28, s25, 1')
    o('s_lshl_b32 s28, s28, 3')
    o('s_lshr_b32 s29, s26, 2')
    o('s_add_u32 s28, s28, s29')
    o('s_lshl_b32 s29, s27, 2')
    o('s_add_u32 s29, s29, s24')
    o(f'v_lshlrev_b32 v{vLane16}, 4, v0')
    o('s_mul_i32 s30, s24, 28672')
    o('s_mul_i32 s33, s28, 7')
    o('s_mul_i32 s32, s33, 29696')
    o('s_lshl_b32 s34, s29, 5')
    o('s_mul_i32 s35, s29, 28672')
    o('s_mul_i32 s36, s24, 7168')
    o('s_add_u32 s46, s36, s32')
    o('s_waitcnt lgkmcnt(0)')
    if WS_SHIFT: o(f's_add_u32 s4, s4, {WS_SHIFT}\ns_addc_u32 s5, s5, 0')
    srd(o, 12, 4, WP_BYTES, WS_WP)
    srd(o, 8, 4, HT_BYTES, WS_HT)
    def w_dma_ops(t, tag):
        ops = [f's_add_u32 s37, s46, {t * 29696}']
        if t in (0, 5): ops.append(f's_add_u32 s38, s36, {LDS_S4}')
        else:
            tt = 1 if t == 6 else t
            ops.append(f's_add_u32 s38, s30, {7 * (tt - 1) * 1024}')
        groups = []
        cur = ops
        for j in range(7):
            if j == 0: cur += ['s_mov_b32 m0, s38', 's_nop 0']
            if j == 4: cur += ['s_add_u32 s38, s38, 4096', 's_mov_b32 m0, s38', 's_add_u32 s37, s37, 4096']
            cur.append(('dma', f'buffer_load_dwordx4 v{vLane16}, s[12:15], s37 offen offset:{(j % 4) * 1024} lds', tag))
            groups.append(cur); cur = []
        return groups
    def emit_group(g):
        for op in g:
            if isinstance(op, tuple): o(op[1]); vm.issue(op[2])
            else: o(op)
    for g in w_dma_ops(0, 'w0'): emit_group(g)
    for which in range(2):
        if which == 0: o('s_mov_b32 s39, s24')
        else:
            o('s_add_u32 s39, s24, 4'); o('s_min_u32 s39, s39, 6')
        o('s_mul_i32 s37, s39, 29696')
        o('s_add_u32 s37, s37, s32')
        o(f's_add_u32 s37, s37, {28 * 1024}')
        o('s_lshl_b32 s38, s39, 10')
        o(f's_add_u32 s38, s38, {LDS_CORR}')
        o('s_mov_b32 m0, s38')
        o('s_nop 0')
        o(f'buffer_load_dwordx4 v{vLane16}, s[12:15], s37 offen lds'); vm.issue('w0')
    o('s_mov_b32 s47, s30')
    o('s_mov_b32 s48, s35')
    def h_dma(kk):
        if kk % 4 == 0:
            o('s_mov_b32 m0, s47')
            o('s_add_u32 s47, s47, 4096')
            if kk: o('s_add_u32 s48, s48, 4096')
            else: o('s_nop 0')
        o(f'buffer_load_dwordx4 v{vLane16}, s[8:11], s48 offen offset:{(kk % 4) * 1024} lds'); vm.issue(f'h{kk}')
    AH = 10; AH0 = 4
    for kk in range(AH0): h_dma(kk)
    srd(o, 16, 4, H_BYTES, WS_H)
    srd(o, 20, 4, HN_BYTES, WS_HN)
    o(f'v_mov_b32 v{vLB0}, v{vLane16}')
    o(f'v_add_u32 v{vLB1}, 0x10000, v{vLane16}')
    o(f'v_add_u32 v{vLB2}, 0x20000, v{vLane16}')
    o('v_lshrrev_b32 v9, 5, v0')
    o('v_lshlrev_b32 v9, 9, v9')
    o('v_bfe_u32 v10, v0, 2, 2')
    o('v_lshlrev_b32 v10, 6, v10')
    o('v_add_u32 v9, v9, v10')
    o('v_bfe_u32 v10, v0, 4, 1')
    o('v_lshlrev_b32 v10, 5, v10')
    o('v_add_u32 v9, v9, v10')
    o('v_and_b32 v10, 3, v0')
    o('v_lshlrev_b32 v10, 3, v10')
    o('v_add_u32 v9, v9, v10')
    o(f'v_add_u32 v{vTR}, s30, v9')
    o('s_mul_i32 s31, s29, 112')
    o('s_add_u32 s31, s31, s33')
    o('s_lshl_b32 s31, s31, 10')
    o('v_and_b32 v9, 31, v0')
    o('v_add_u32 v9, s34, v9')
    o('v_mul_u32_u24 v9, 896, v9')
    o('v_lshrrev_b32 v10, 5, v0')
    o('v_lshlrev_b32 v10, 4, v10')
    o(f'v_add_u32 v{vHN}, v9, v10')
    o('s_mov_b32 s50, 0x00020001\ns_mov_b32 s51, 0x00020001')
    o(f'v_mov_b32 v{SA}, 0\nv_mov_b32 v9, 0x3f803f80')
    o(f'v_cndmask_b32 v{SA}, v{SA}, v9, s[50:51]')
    for j in range(1, 4): o(f'v_mov_b32 v{SA+j}, v{SA}')
    masks = [0xAAAAAAAA, 0xCCCCCCCC, 0xFF00FF00, 0xFFFF0000, 0xF0F0F0F0]
    for r, m in zip([52, 54, 56, 58, 72], masks): o(f's_mov_b32 s{r}, {hex(m)}\ns_mov_b32 s{r+1}, {hex(m)}')
    if merged:
        import kdm
        kdm.wsetup(o)
    vm.wait('w0')
    o('s_barrier')
    if stamps: o('s_memtime s[62:63]')
    later = []
    for t in (1, 2): later += w_dma_ops(t, f'w{t}')
    def reads(k):
        vm.wait(f'h{k}')
        hb = HF + 4 * k
        o(f'ds_read_b64_tr_b16 v[{hb}:{hb+1}], v{vTR} offset:{k * 1024}')
        o(f'ds_read_b64_tr_b16 v[{hb+2}:{hb+3}], v{vTR} offset:{k * 1024 + 256}')
    QA = ACC[1]
    cb0 = WB + 4 * (28 % NWB)
    nissued = AH0
    reads(0); w_read(o, WB, 0, 0)
    h_dma(nissued); nissued += 1
    reads(1); w_read(o, WB + 4, 0, 1)
    h_dma(nissued); nissued += 1
    for k in range(28):
        hb = HF + 4 * k; wb = WB + 4 * (k % NWB)
        z = lambda r, n: '0' if k == 0 else f'v[{r}:{r+n-1}]'
        o(f's_waitcnt lgkmcnt({3 if k < 27 else 0})')
        o(f'v_mfma_f32_32x32x16_bf16 v[{ACC[0]}:{ACC[0]+15}], v[{wb}:{wb+3}], v[{hb}:{hb+3}], {z(ACC[0], 16)}')
        if k + 2 < 28: reads(k + 2)
        if not X_NOSTAT: o(f'v_mfma_f32_32x32x16_bf16 v[{QA}:{QA+15}], v[{hb}:{hb+3}], v[{hb}:{hb+3}], {z(QA, 16)}')
        if k + 2 < 28: w_read(o, WB + 4 * ((k + 2) % NWB), 0, k + 2)
        elif k == 26: w_read(o, cb0, 0, 28)
        ndma = 0
        while nissued < 28 and (nissued <= k + AH) and ndma < 2:
            h_dma(nissued); nissued += 1; ndma += 1
        if not X_NOSTAT: o(f'v_mfma_f32_16x16x32_bf16 v[{SD}:{SD+3}], v[{SA}:{SA+3}], v[{hb}:{hb+3}], {z(SD, 4)}')
        if nissued >= 28 and ndma == 0 and later:
            emit_group(later.pop(0))
    if stamps: o('s_memtime s[64:65]')
    while later: emit_group(later.pop(0))
    o('s_min_u32 s41, s28, 13')
    def tree(lo, hi, path):
        if hi - lo == 1:
            for q in range(2):
                kk = 2 * lo + q; hb = HF + 4 * kk
                o(f'buffer_store_dwordx4 v[{hb}:{hb+3}], v{vHN}, s[20:23], 0 offen offset:{kk * 32} {ST}')
            o('s_branch LC_hn_done')
            return
        mid = (lo + hi) // 2
        o(f's_cmp_ge_u32 s41, {mid}')
        o(f's_cbranch_scc1 LC_hn_{path}1')
        tree(lo, mid, path + '0')
        o.label(f'LC_hn_{path}1')
        tree(mid, hi, path + '1')
    tree(0, 14, 'p')
    o.label('LC_hn_done')
    vm.issue('hn'); vm.issue('hn')
    o('s_nop 7')
    for j in range(8): o(f'v_cndmask_b32 v{T+j}, v{QA+2*j}, v{QA+2*j+1}, s[52:53]')
    for j in range(4): o(f'v_cndmask_b32 v{T+j}, v{T+2*j}, v{T+2*j+1}, s[54:55]')
    for j in range(2): o(f'v_cndmask_b32 v{T+j}, v{T+2*j}, v{T+2*j+1}, s[56:57]')
    o(f'v_cndmask_b32 v{vQ}, v{T}, v{T+1}, s[58:59]')
    o(f'v_mov_b32 v{vT0}, v{vQ}')
    o(f'v_mov_b32 v{vT1}, v{SD}')
    o(f'v_mov_b32 v{vS}, v{SD+1}')
    o('s_nop 0')
    o(f'v_permlane32_swap_b32 v{vQ}, v{vT0}')
    o(f'v_permlane16_swap_b32 v{vT1}, v{vS}')
    o('s_nop 1')
    o(f'v_cndmask_b32 v{vQ}, v{vQ}, v{vT0}, s[72:73]')
    o(f'v_mov_b32 v{vS}, v{vT1}')
    o('s_nop 1')
    o(f'v_permlane32_swap_b32 v{vS}, v{vT1}')
    o('s_nop 1')
    o(f's_mov_b32 s40, {hex(0x3b124925)}')
    o(f'v_mul_f32 v{vS}, s40, v{vS}')
    o(f'v_mul_f32 v{vQ}, s40, v{vQ}')
    o(f'v_fma_f32 v{vQ}, -v{vS}, v{vS}, v{vQ}')
    o(f'v_max_f32 v{vQ}, 0, v{vQ}')
    o(f'v_cvt_pk_bf16_f32 v{vT0}, v{vS}, v{vQ}')
    o(f'v_and_b32 v{vT1}, 0xffff0000, v{vT0}')
    o(f'v_add_f32 v{vT1}, {hex(0x3727c5ac)}, v{vT1}')
    o(f'v_cvt_pk_bf16_f32 v{vT1}, v{vT1}, v{vT1}')
    o(f'v_and_b32 v{vT1}, 0xffff0000, v{vT1}')
    o(f'v_sqrt_f32 v{vT1}, v{vT1}')
    o('s_nop 0')
    o(f'v_cvt_pk_bf16_f32 v{vT1}, v{vT1}, v{vT1}')
    o(f'v_and_b32 v{vSB}, 0xffff0000, v{vT1}')
    o(f'v_rcp_f32 v{vC1}, v{vSB}')
    o(f'v_and_b32 v{vT0}, 0xffff, v{vT0}')
    o(f'v_xor_b32 v{vT0}, 0x8000, v{vT0}')
    o(f'v_mul_f32 v{vC1}, {hex(0xbfb8aa3b)}, v{vC1}')
    o(f'v_lshl_or_b32 v{BC}, v{vT0}, 16, v{vT0}')
    o(f'v_mov_b32 v{BC+1}, 0')
    o(f'v_mov_b32 v{BC+2}, 0')
    o(f'v_mov_b32 v{BC+3}, 0')
    o('s_waitcnt lgkmcnt(0)')
    o(f'v_mfma_f32_32x32x16_bf16 v[{ACC[0]}:{ACC[0]+15}], v[{cb0}:{cb0+3}], v[{BC}:{BC+3}], v[{ACC[0]}:{ACC[0]+15}]')
    vm.wait('w1')
    o('s_barrier')
    if stamps: o('s_memtime s[66:67]')
    PF = 7; WE = 4
    bi = 29 % NWB
    seq = [(t, kk) for t in range(1, 7) for kk in range(29)]
    bufof = {}
    for i, (t, kk) in enumerate(seq): bufof[(t, kk)] = WB + 4 * ((bi + i) % NWB)
    for i in range(PF):
        t, kk = seq[i]; w_read(o, bufof[(t, kk)], t, kk)
    fill = []; dmaq = []
    wq = []
    if merged:
        import kdm
        wq = [kdm.wload_ops(k) for k in range(kdm.NPRE)]
    waited_upto = -1
    for i, (t, kk) in enumerate(seq):
        acc = ACC[t & 1]
        if kk == 0:
            assert not fill, fill
            fill = epilogue_gaps(ACC[(t - 1) & 1]) + [('store', t - 1)]
        if kk == 0 and t + 2 <= 6: dmaq += w_dma_ops(t + 2, f'w{t+2}')
        if PF_WD and not merged and t == 5 and kk == 8:
            srd(o, 76, 4, WD_BYTES, WS_WD)
            o('s_lshl_b32 s43, s26, 2\ns_add_u32 s43, s43, s24\ns_mul_i32 s43, s43, 12544')
            o('v_lshlrev_b32 v240, 7, v0')
            o('buffer_load_dword v244, v240, s[76:79], s43 offen'); vm.issue('pf')
            o('s_add_u32 s43, s43, 8192')
            o('s_mov_b32 exec_hi, 3')
            o('buffer_load_dword v245, v240, s[76:79], s43 offen'); vm.issue('pf')
            o('s_mov_b32 exec_hi, -1')
        if PF_WD and merged and kk == 8 and t <= PF_N:
            per = -(-98 // PF_N)
            if t == 1:
                o('s_lshl_b32 s43, s26, 2\ns_add_u32 s43, s43, s24\ns_mul_i32 s43, s43, 12544')
                o('v_lshlrev_b32 v240, 7, v0')
            n = min(per, 98 - per * (t - 1))
            o(f's_mov_b64 exec, {hex((1 << n) - 1)}')
            o(f'buffer_load_dword v{244 + (t & 1)}, v240, s[76:79], s43 offen'); vm.issue('pf')
            o('s_mov_b64 exec, -1')
            o(f's_add_u32 s43, s43, {per * 128}')
        if kk == 29 - PF - 1 and t + 1 <= 6:
            if not X_NOBAR:
                vm.wait(f'w{t+1}')
                o('s_barrier')
        nxt = i + PF
        if nxt < len(seq) and not X_NOREAD:
            t2, k2 = seq[nxt]; w_read(o, bufof[(t2, k2)], t2, k2)
        if i > waited_upto and not X_NOREAD:
            last_issued = min(nxt, len(seq) - 1)
            upto = min(i + WE - 1, len(seq) - 1)
            o(f's_waitcnt lgkmcnt({last_issued - upto})')
            waited_upto = upto
        wb = bufof[(t, kk)]
        bop = f'v[{HF+4*kk}:{HF+4*kk+3}]' if kk < 28 else f'v[{BC}:{BC+3}]'
        c = '0' if kk == 0 else f'v[{acc}:{acc+15}]'
        o(f'v_mfma_f32_32x32x16_bf16 v[{acc}:{acc+15}], v[{wb}:{wb+3}], {bop}, {c}')
        if merged and WSPREAD and wq and i % WSPREAD == WSPREAD - 1:
            for op in wq.pop(0): o(op)
            vm.issue('wp'); vm.issue('wp')
        if merged and not WSPREAD and t >= 5 and (kk < 4 or not fill) and wq:
            for _ in range(WPER):
                if wq:
                    for op in wq.pop(0): o(op)
                    vm.issue('wp'); vm.issue('wp')
        elif dmaq:
            g = dmaq.pop(0)
            if not X_NODMA: emit_group(g)
        elif 4 <= kk and fill:
            g = fill.pop(0)
            if isinstance(g, tuple):
                o(f's_add_u32 s42, s31, {g[1] * 1024}')
                o(f'buffer_store_dwordx4 v[{PK}:{PK+3}], v{vLane16}, s[16:19], s42 offen {ST}'); vm.issue('hs')
            elif not X_NOEPI:
                for op in g: o(op)
    assert not fill and not dmaq and not wq, (fill, dmaq, wq)
    if stamps: o('s_memtime s[68:69]')
    o('s_nop 7'); o('s_nop 7')
    for cst, op in epilogue_ops(ACC[6 & 1]): o(op)
    o(f's_add_u32 s42, s31, {6 * 1024}')
    o(f'buffer_store_dwordx4 v[{PK}:{PK+3}], v{vLane16}, s[16:19], s42 offen {ST}'); vm.issue('hs')
    if merged:
        import kdm
        kdm.gen_dphase(o, vm, stamps)
        return
    if stamps:
        o('s_waitcnt vmcnt(0)')
        o('s_memtime s[70:71]')
        o('s_waitcnt lgkmcnt(0)')
        o('s_sub_u32 s70, s70, s74\ns_sub_u32 s68, s68, s74\ns_sub_u32 s66, s66, s74\ns_sub_u32 s64, s64, s74\ns_sub_u32 s62, s62, s74')
        o('v_mov_b32 v16, s62\nv_mov_b32 v17, s64\nv_mov_b32 v18, s66\nv_mov_b32 v19, s68\nv_mov_b32 v20, s70\nv_mov_b32 v21, 0\nv_mov_b32 v22, 0\nv_mov_b32 v23, 0')
        srd(o, 8, 4, 0x10000, 0x1800000)
        o('s_lshl_b32 s43, s2, 2\ns_add_u32 s43, s43, s24\ns_lshl_b32 s43, s43, 5')
        o('v_mov_b32 v24, s43')
        o('s_mov_b64 exec, 1')
        o('buffer_store_dwordx4 v[16:19], v24, s[8:11], 0 offen')
        o('buffer_store_dwordx4 v[20:23], v24, s[8:11], 0 offen offset:16')
    o.label('LC_end')
    o('s_endpgm')
def desc_c(): return kernel_desc(NAME, 248, 84)
def launch_c(): return f'; @launch kernel={NAME} grid=(256,1,1) block=(256,1,1) lds={LDS_BYTES}'

def desc_f(): return kernel_desc(FNAME, 256 + 224, 96, accum=256)
def launch_f(): return f'; @launch kernel={FNAME} grid=(256,1,1) block=(256,1,1) lds={LDS_BYTES}'
```

```python
from asmlib import *
from layout import *
ACC = 16
HB = 80
DEPTH = 8
RES = 208
N1 = 8
ROT = 1
HPOL = ''
vLane16, vRes, vL, vA0, vA1, vB0, vB1, vF = 1, 2, 4, 224, 225, 226, 227, 9
NPRE = 20
def wsetup(o):
    srd(o, 76, 4, WD_BYTES, WS_WD)
    o('s_min_u32 s45, s26, 27')
    o('s_and_b32 s44, s45, 3\ns_lshl_b32 s94, s25, 2\ns_add_u32 s44, s44, s94')
    o('s_lshr_b32 s45, s45, 2')
    o('s_mul_i32 s94, s24, 28')
    o('s_mul_i32 s92, s45, 224\ns_add_u32 s92, s92, s94\ns_lshl_b32 s92, s92, 10')
    o(f'v_add_u32 v{vA0}, s92, v{vLane16}\ns_add_u32 s92, s92, {112 * 1024}\nv_add_u32 v{vA1}, s92, v{vLane16}')
    o('s_mul_i32 s92, s44, 224\ns_add_u32 s92, s92, s94\ns_lshl_b32 s92, s92, 10')
    o(f'v_add_u32 v{vB0}, s92, v{vLane16}\ns_add_u32 s92, s92, {112 * 1024}\nv_add_u32 v{vB1}, s92, v{vLane16}')
    o(f's_mul_i32 s93, s45, {ROT * 1024}')
    o('s_mov_b32 s94, s93')
def wload_ops(k):
    return [f'buffer_load_dwordx4 a[{8*k}:{8*k+3}], v{vA0}, s[76:79], s93 offen',
            f'buffer_load_dwordx4 a[{8*k+4}:{8*k+7}], v{vA1}, s[76:79], s93 offen',
            's_add_u32 s93, s93, 1024', 's_cmp_eq_u32 s93, 28672', 's_cselect_b32 s93, 0, s93']
def gen_dphase(o, vm, stamps):
    if stamps: o('s_memtime s[68:69]')
    srd(o, 84, 4, 0x10000)
    o('buffer_load_dword v10, off, s[84:87], 0 sc1'); vm.issue('tag')
    o('s_cmp_ge_u32 s26, 28')
    o('s_cbranch_scc0 LF_work')
    o('s_waitcnt vmcnt(0)')
    o('s_barrier')
    flag_store(o, 'a')
    o('s_branch LF_end')
    o.label('LF_work')
    srd(o, 80, 6, 1835008)
    def step(r): o(f's_add_u32 s{r}, s{r}, 1024\ns_cmp_eq_u32 s{r}, 28672\ns_cselect_b32 s{r}, 0, s{r}')
    def wload(k):
        for op in wload_ops(k): o(op)
        vm.issue('w'); vm.issue('w2')
    n1 = min(28, NPRE + N1 // 2)
    for k in range(NPRE, n1): wload(k)
    vm.wait('tag')
    o('s_barrier')
    flag_store(o, 'b')
    vm.issue('flag')
    for k in range(n1, 28): wload(k)
    o('s_and_b32 s50, s24, 1\ns_lshl_b32 s50, s50, 5\ns_lshl_b32 s51, s44, 6\ns_add_u32 s50, s50, s51')
    o('v_and_b32 v11, 31, v0\nv_add_u32 v11, s50, v11\nv_mul_u32_u24 v11, 896, v11')
    o('s_lshr_b32 s51, s24, 1\ns_lshl_b32 s51, s51, 5\ns_lshl_b32 s52, s45, 6\ns_add_u32 s51, s51, s52\ns_lshl_b32 s51, s51, 1')
    o('v_lshrrev_b32 v12, 5, v0\nv_lshlrev_b32 v12, 3, v12\nv_add_u32 v11, v11, v12')
    o(f'v_add_u32 v{vRes}, s51, v11')
    o('s_waitcnt vmcnt(0)')
    vm.q = []
    if stamps: o('s_memtime s[70:71]')
    o('s_cmp_eq_u32 s24, 0')
    o('s_cbranch_scc0 LF_nopoll')
    o('s_lshr_b32 s50, s44, 1\ns_lshl_b32 s50, s50, 10')
    o(f's_add_u32 s50, s50, {WS_FLAG}')
    o(f'v_and_b32 v{vF}, 15, v0\nv_lshlrev_b32 v{vF}, 6, v{vF}')
    o('s_mov_b32 s51, 0')
    o.label('LF_poll')
    o(f'buffer_load_dword v11, v{vF}, s[84:87], s50 offen sc1')
    o('s_waitcnt vmcnt(0)')
    o('v_cmp_ne_u32 vcc, v11, v10')
    o('s_cbranch_vccz LF_nopoll')
    o('s_add_u32 s51, s51, 1\ns_cmp_lt_u32 s51, 0x80000')
    o('s_cbranch_scc1 LF_poll')
    o.label('LF_nopoll')
    o('s_barrier')
    if stamps: o('s_memtime s[72:73]')
    def hload(k):
        b = HB + 8 * (k % DEPTH)
        o(f'buffer_load_dwordx4 v[{b}:{b+3}], v{vB0}, s[16:19], s94 offen {HPOL}'); vm.issue(f'k{k}')
        o(f'buffer_load_dwordx4 v[{b+4}:{b+7}], v{vB1}, s[16:19], s94 offen {HPOL}'); vm.issue(f'k{k}')
        step(94)
    for k in range(DEPTH): hload(k)
    for q in range(4):
        o(f'buffer_load_dwordx2 v[{RES+2*q}:{RES+2*q+1}], v{vRes}, s[20:23], 0 offen offset:{q * 16} sc1'); vm.issue('res')
    for k in range(28):
        vm.wait(f'k{k}')
        b = HB + 8 * (k % DEPTH)
        for mt in range(2):
            for nt in range(2):
                ac = ACC + 16 * (mt * 2 + nt)
                c = '0' if k == 0 else f'v[{ac}:{ac+15}]'
                o(f'v_mfma_f32_32x32x16_bf16 v[{ac}:{ac+15}], a[{8*k+4*mt}:{8*k+4*mt+3}], v[{b+4*nt}:{b+4*nt+3}], {c}')
        if k + DEPTH < 28: hload(k + DEPTH)
    if stamps: o('s_memtime s[88:89]')
    o(f'v_add_u32 v{vL}, 0, v{vLane16}')
    o('s_nop 7'); o('s_nop 3')
    R = HB
    def send(v):
        for q in range(4):
            if q == v: continue
            si = (v - q - 1) % 4
            for g in range(4):
                ac = ACC + 16 * q + 4 * g
                o(f'ds_write_b128 v{vL}, v[{ac}:{ac+3}] offset:{(q * 3 + si) * 4096 + g * 1024}')
        if v:
            for j in range(0, 16, 2): o(f'v_pk_mul_f32 v[{ACC+j}:{ACC+j+1}], v[{ACC+16*v+j}:{ACC+16*v+j+1}], 1.0 op_sel_hi:[1,0]')
    o('s_cmp_lt_u32 s24, 2\ns_cbranch_scc0 LF_w23')
    o('s_cmp_eq_u32 s24, 0\ns_cbranch_scc0 LF_w1')
    send(0); o('s_branch LF_sent')
    o.label('LF_w1'); send(1); o('s_branch LF_sent')
    o.label('LF_w23')
    o('s_cmp_eq_u32 s24, 2\ns_cbranch_scc0 LF_w3')
    send(2); o('s_branch LF_sent')
    o.label('LF_w3'); send(3)
    o.label('LF_sent')
    vm.wait('res')
    U = R + 48
    for q in range(4):
        r0, r1 = RES + 2 * q, RES + 2 * q + 1
        o(f'v_lshlrev_b32 v{U+4*q}, 16, v{r0}')
        o(f'v_and_b32 v{U+4*q+1}, 0xffff0000, v{r0}')
        o(f'v_lshlrev_b32 v{U+4*q+2}, 16, v{r1}')
        o(f'v_and_b32 v{U+4*q+3}, 0xffff0000, v{r1}')
    for j in range(0, 16, 2): o(f'v_pk_add_f32 v[{ACC+j}:{ACC+j+1}], v[{ACC+j}:{ACC+j+1}], v[{U+j}:{U+j+1}]')
    o(f'v_lshrrev_b32 v12, 5, v0\nv_lshlrev_b32 v12, 3, v12\nv_add_u32 v{vF}, v{vRes}, v12')
    o('s_mul_i32 s37, s24, 12288')
    o(f'v_add_u32 v{vL}, s37, v{vLane16}')
    o('s_waitcnt lgkmcnt(0)')
    o('s_barrier')
    for src in range(3):
        for g in range(4):
            d = R + 16 * src + 4 * g
            o(f'ds_read_b128 v[{d}:{d+3}], v{vL} offset:{src * 4096 + g * 1024}')
    o('s_waitcnt lgkmcnt(4)')
    for j in range(0, 16, 2): o(f'v_pk_add_f32 v[{R+j}:{R+j+1}], v[{R+j}:{R+j+1}], v[{R+16+j}:{R+16+j+1}]')
    for j in range(0, 16, 2): o(f'v_pk_add_f32 v[{ACC+j}:{ACC+j+1}], v[{ACC+j}:{ACC+j+1}], v[{R+j}:{R+j+1}]')
    P = R + 48
    for half in range(2):
        o(f's_waitcnt lgkmcnt({2 - 2 * half})')
        for j in range(8 * half, 8 * half + 8, 2): o(f'v_pk_add_f32 v[{ACC+j}:{ACC+j+1}], v[{ACC+j}:{ACC+j+1}], v[{R+32+j}:{R+32+j+1}]')
        for q in (2 * half, 2 * half + 1):
            o(f'v_cvt_pk_bf16_f32 v{P+2*q}, v{ACC+4*q}, v{ACC+4*q+1}')
            o(f'v_cvt_pk_bf16_f32 v{P+2*q+1}, v{ACC+4*q+2}, v{ACC+4*q+3}')
        k = 2 * half
        o('s_nop 1')
        o(f'v_permlane32_swap_b32 v{P+2*k}, v{P+2*k+2}')
        o(f'v_permlane32_swap_b32 v{P+2*k+1}, v{P+2*k+3}')
        o(f'buffer_store_dwordx4 v[{P+2*k}:{P+2*k+3}], v{vF}, s[80:83], 0 offen offset:{32 * half}')
    if stamps:
        o('s_waitcnt vmcnt(0)')
        o('s_memtime s[90:91]')
        o('s_waitcnt lgkmcnt(0)')
        for r in (62, 64, 66, 68, 70, 72, 88, 90): o(f's_sub_u32 s{r}, s{r}, s74')
        o('v_mov_b32 v16, s62\nv_mov_b32 v17, s64\nv_mov_b32 v18, s66\nv_mov_b32 v19, s68\nv_mov_b32 v20, s70\nv_mov_b32 v21, s72\nv_mov_b32 v22, s88\nv_mov_b32 v23, s90')
        srd(o, 8, 4, 0x10000, 0x1800000)
        o('s_lshl_b32 s43, s2, 2\ns_add_u32 s43, s43, s24\ns_lshl_b32 s43, s43, 5')
        o('v_mov_b32 v24, s43')
        o('s_mov_b64 exec, 1')
        o('buffer_store_dwordx4 v[16:19], v24, s[8:11], 0 offen')
        o('buffer_store_dwordx4 v[20:23], v24, s[8:11], 0 offen offset:16')
    o.label('LF_end')
    o.label('LC_end')
    o('s_endpgm')
def flag_store(o, tagname):
    o('s_cmp_eq_u32 s24, 0')
    o(f's_cbranch_scc0 LF_nf{tagname}')
    o(f's_lshl_b32 s53, s27, 4\ns_add_u32 s53, s53, s28\ns_lshl_b32 s53, s53, 6\ns_add_u32 s53, s53, {WS_FLAG}')
    o('v_mov_b32 v12, 0')
    o('s_mov_b64 exec, 1')
    o('buffer_store_dword v10, v12, s[84:87], s53 offen sc1')
    o('s_mov_b64 exec, -1')
    o.label(f'LF_nf{tagname}')
```

```python
from asmlib import *
from layout import *
from vm import VM
NAME = 'ssm_kernel'
PREFETCH = True
SPARE_WAIT = False
POL0 = 'sc1'
REC_AT = 99
X_TACK = 0
PRETOUCH = 0
SWAP_ROLES = 1
HST = ''
X_NOA = 0
X_NOB = 0
X_NOM = 0
LA = 3
RP_AT = 99
ST = ''
TAB = 16896
LDS_US = 8 * TAB
LDS_XS = LDS_US + 2 * 4608
LDS_EX = LDS_XS + 2 * 4096
LDS_BYTES = LDS_EX + 8192
KR_COPY = 4160; KR_CH = 2 * KR_COPY
LDS_CX = 17408
LDS_RP = LDS_CX + 16384
LOG2E = 0x3fb8aa3b; INV2PI = 0x3e22f983; INV448 = 0x3b124925; EPS = 0x3727c5ac
sX, sAre, sAim, sBre, sBim, sCre, sCim, sLdt = 8, 10, 12, 14, 16, 18, 20, 22
sDsk, sWd, sWg, sWu, sDbg, sWs = 24, 26, 28, 30, 32, 34
SRD_X, SRD_WS = 36, 40
SRD_P = [44, 48, 52, 56, 60, 64]
SRD_WG, SRD_WU, SRD_WD, SRD_DBG = 68, 72, 76, 80
sWave, sPair, sCh, sMh, sLdtV, sDskV = 3, 84, 85, 86, 87, 88
sT0, sT1, sT2, sT3, sT4, sT5 = 89, 90, 91, 92, 93, 94
sSp = 95
vLane, vTag, vE, vT0, vT1, vT2, vT3 = 0, 1, 2, 3, 4, 6, 7
vXR = 8
vS, vQ = 12, 13
def cmul(o, d, p, q):
    o(f'v_pk_mul_f32 v[{d}:{d+1}], v[{p}:{p+1}], v[{q}:{q+1}] op_sel_hi:[0,1]')
    o(f'v_pk_fma_f32 v[{d}:{d+1}], v[{p}:{p+1}], v[{q}:{q+1}], v[{d}:{d+1}] op_sel:[1,1,0] op_sel_hi:[1,0,1] neg_lo:[1,0,0]')
def cmul2(o, dA, pA, qA, dB, pB, qB):
    o(f'v_pk_mul_f32 v[{dA}:{dA+1}], v[{pA}:{pA+1}], v[{qA}:{qA+1}] op_sel_hi:[0,1]')
    o(f'v_pk_mul_f32 v[{dB}:{dB+1}], v[{pB}:{pB+1}], v[{qB}:{qB+1}] op_sel_hi:[0,1]')
    o(f'v_pk_fma_f32 v[{dA}:{dA+1}], v[{pA}:{pA+1}], v[{qA}:{qA+1}], v[{dA}:{dA+1}] op_sel:[1,1,0] op_sel_hi:[1,0,1] neg_lo:[1,0,0]')
    o(f'v_pk_fma_f32 v[{dB}:{dB+1}], v[{pB}:{pB+1}], v[{qB}:{qB+1}], v[{dB}:{dB+1}] op_sel:[1,1,0] op_sel_hi:[1,0,1] neg_lo:[1,0,0]')
vXB = 168
vTL = 172
IMG_A = LDS_US
IMG_B = LDS_XS
def e_load(o, vm):
    o(f'buffer_load_dword v{vE}, off, s[{SRD_WS}:{SRD_WS+3}], 0 sc1'); vm.issue('E')
def make_tag(o):
    o(f's_mov_b32 s{sT0}, 0x9E3779B1')
    o(f'v_mul_lo_u32 v{vTag}, v{vE}, s{sT0}')
    o(f'v_add_u32 v{vTag}, 0x7F4A7C15, v{vTag}')
def row_loads(o, vm, woff=0):
    for j in range(4): o(f'v_mov_b32 v{vXR+j}, 0\nv_mov_b32 v{vXB+j}, 0')
    o(f's_lshl_b32 s{sT2}, s2, 3\ns_sub_u32 s{sT4}, s{sWave}, {woff}\ns_lshl_b32 s{sT4}, s{sT4}, 1\ns_add_u32 s{sT2}, s{sT2}, s{sT4}')
    o(f's_mul_i32 s{sT2}, s{sT2}, 896')
    o(f'v_lshlrev_b32 v{vT1}, 4, v0')
    o('s_mov_b32 exec_hi, 0x00ffffff')
    o(f'buffer_load_dwordx4 v[{vXR}:{vXR+3}], v{vT1}, s[{SRD_X}:{SRD_X+3}], s{sT2} offen'); vm.issue('xrow')
    o(f'buffer_load_dwordx4 v[{vXB}:{vXB+3}], v{vT1}, s[{SRD_X}:{SRD_X+3}], s{sT2} offen offset:896'); vm.issue('xrow')
    o('s_mov_b32 exec_hi, -1')
def row_stats(o, vm, woff=0):
    SA, QA, SB, QB = 12, 13, 180, 181
    vm.wait('xrow')
    make_tag(o)
    for r in (SA, QA, SB, QB): o(f'v_mov_b32 v{r}, 0')
    o(f'v_mov_b32 v{vT1}, 0x3f803f80')
    for j in range(4):
        o(f'v_dot2c_f32_bf16 v{SA}, v{vXR+j}, v{vT1}')
        o(f'v_dot2c_f32_bf16 v{QA}, v{vXR+j}, v{vXR+j}')
        o(f'v_dot2c_f32_bf16 v{SB}, v{vXB+j}, v{vT1}')
        o(f'v_dot2c_f32_bf16 v{QB}, v{vXB+j}, v{vXB+j}')
    o('s_nop 2')
    for ctl in ['row_shr:1', 'row_shr:2', 'row_shr:4', 'row_shr:8']:
        for r in (SA, QA, SB, QB): o(f'v_add_f32_dpp v{r}, v{r}, v{r} {ctl} row_mask:0xf bank_mask:0xf bound_ctrl:0')
    for ctl, rm in [('row_bcast:15', '0xa'), ('row_bcast:31', '0xc')]:
        for r in (SA, QA, SB, QB): o(f'v_add_f32_dpp v{r}, v{r}, v{r} {ctl} row_mask:{rm} bank_mask:0xf')
    RR = 192
    for S_, Q_, dst in ((SA, QA, RR), (SB, QB, RR + 2)):
        o(f'v_mul_f32 v{S_}, {hex(INV448)}, v{S_}\nv_mul_f32 v{Q_}, {hex(INV448)}, v{Q_}')
    for S_, Q_, dst in ((SA, QA, RR), (SB, QB, RR + 2)):
        o(f'v_fma_f32 v{Q_}, -v{S_}, v{S_}, v{Q_}\nv_max_f32 v{Q_}, 0, v{Q_}')
    for op in ('v_cvt_pk_bf16_f32 v{q}, v{q}, v{q}', 'v_and_b32 v{q}, 0xffff0000, v{q}', 'v_add_f32 v{q}, ' + hex(EPS) + ', v{q}',
               'v_cvt_pk_bf16_f32 v{q}, v{q}, v{q}', 'v_and_b32 v{q}, 0xffff0000, v{q}', 'v_sqrt_f32 v{q}, v{q}'):
        for Q_ in (QA, QB): o(op.format(q=Q_))
    o(f'v_cvt_pk_bf16_f32 v{RR}, v{SA}, v{QA}\nv_cvt_pk_bf16_f32 v{RR+2}, v{SB}, v{QB}')
    o(f'v_xor_b32 v{RR+1}, v{RR}, v{vTag}\nv_xor_b32 v{RR+3}, v{RR+2}, v{vTag}')
    o(f's_lshl_b32 s{sT0}, s2, 3\ns_sub_u32 s{sT1}, s{sWave}, {woff}\ns_lshl_b32 s{sT1}, s{sT1}, 1\ns_add_u32 s{sT0}, s{sT0}, s{sT1}')
    o(f's_lshl_b32 s{sT0}, s{sT0}, 3\ns_add_u32 s{sT0}, s{sT0}, {WS_REC}')
    o('s_mov_b32 exec_lo, 0\ns_mov_b32 exec_hi, 0x80000000')
    o(f'buffer_store_dwordx4 v[{RR}:{RR+3}], v251, s[{SRD_WS}:{SRD_WS+3}], s{sT0} offen sc1'); vm.issue('rec')
    o('s_mov_b64 exec, -1')
def tile_loads(o, vm):
    o(f'buffer_load_dwordx4 v[{vTL}:{vTL+3}], v21, s[{SRD_X}:{SRD_X+3}], s96 offen'); vm.issue('tile')
    o(f'buffer_load_dwordx4 v[{vTL+4}:{vTL+7}], v21, s[{SRD_X}:{SRD_X+3}], s97 offen'); vm.issue('tile')
def tile_image(o, vm):
    vm.wait('tile')
    o(f's_sub_u32 s{sT4}, s{sWave}, 4\ns_lshl_b32 s{sT4}, s{sT4}, 3')
    o(f'v_lshrrev_b32 v{vT0}, 3, v0\nv_add_u32 v{vT0}, s{sT4}, v{vT0}\nv_mul_u32_u24 v{vT0}, 144, v{vT0}')
    o(f'v_and_b32 v{vT1}, 7, v0\nv_lshlrev_b32 v{vT1}, 4, v{vT1}\nv_add_u32 v{vT0}, v{vT0}, v{vT1}')
    o(f'v_add_u32 v{vT0}, {IMG_A}, v{vT0}')
    o(f'ds_write_b128 v{vT0}, v[{vTL}:{vTL+3}]')
    o(f'ds_write_b128 v{vT0}, v[{vTL+4}:{vTL+7}] offset:{32 * 144}')
def tile_transpose(o, vm, woff=4):
    o(f'v_lshrrev_b32 v{vT0}, 4, v0\nv_lshlrev_b32 v{vT0}, 2, v{vT0}\nv_bfe_u32 v{vT1}, v0, 2, 2\nv_add_u32 v{vT0}, v{vT0}, v{vT1}')
    o(f'v_mul_u32_u24 v{vT0}, 144, v{vT0}')
    o(f'v_and_b32 v{vT1}, 3, v0\nv_lshlrev_b32 v{vT1}, 3, v{vT1}\nv_add_u32 v{vT0}, v{vT0}, v{vT1}')
    o(f's_sub_u32 s{sT4}, s{sWave}, {woff}\ns_lshl_b32 s{sT0}, s{sT4}, 5\ns_add_u32 s{sT0}, s{sT0}, {IMG_A}')
    o(f'v_add_u32 v{vT0}, s{sT0}, v{vT0}')
    for i in range(4): o(f'ds_read_b64_tr_b16 v[{vTL+2*i}:{vTL+2*i+1}], v{vT0} offset:{16 * 144 * i}')
    o(f'v_and_b32 v{vT1}, 15, v0\nv_mul_u32_u24 v{vT1}, 144, v{vT1}')
    o(f'v_lshrrev_b32 v{vT2}, 4, v0\nv_lshlrev_b32 v{vT2}, 3, v{vT2}\nv_add_u32 v{vT1}, v{vT1}, v{vT2}')
    o(f's_mul_i32 s{sT0}, s{sT4}, {16 * 144}\ns_add_u32 s{sT0}, s{sT0}, {IMG_B}')
    o(f'v_add_u32 v{vT1}, s{sT0}, v{vT1}')
    o(f'v_lshrrev_b32 v{vT2}, 3, v0\nv_mul_u32_u24 v{vT2}, 144, v{vT2}')
    o(f'v_and_b32 v{vT3}, 7, v0\nv_lshlrev_b32 v{vT3}, 4, v{vT3}\nv_add_u32 v{vT2}, v{vT2}, v{vT3}')
    o(f'v_add_u32 v{vT2}, s{sT0}, v{vT2}')
    for i in range(4):
        o(f's_waitcnt lgkmcnt({3 - i})' if i == 0 else f's_waitcnt lgkmcnt(3)')
        o(f'ds_write_b64 v{vT1}, v[{vTL+2*i}:{vTL+2*i+1}] offset:{32 * i}')
    o(f's_mul_i32 s{sT0}, s{sPair}, 9363\ns_lshr_b32 s{sT0}, s{sT0}, 16')
    o(f's_mul_i32 s{sT1}, s{sT0}, 7\ns_sub_u32 s{sT1}, s{sPair}, s{sT1}')
    o(f's_lshl_b32 s{sT1}, s{sT1}, 5\ns_add_u32 s{sT0}, s{sT0}, s{sT1}\ns_lshl_b32 s{sT0}, s{sT0}, 13')
    o(f's_lshl_b32 s{sT1}, s{sT4}, 11\ns_add_u32 s{sT0}, s{sT0}, s{sT1}')
    o(f's_add_u32 s{sT1}, s{sT0}, {WS_T2}\ns_add_u32 s{sT0}, s{sT0}, {WS_T}')
    o(f'v_lshlrev_b32 v{vT0}, 4, v0')
    o('s_waitcnt lgkmcnt(0)')
    o(f'ds_read_b128 v[{vTL}:{vTL+3}], v{vT2}')
    o(f'ds_read_b128 v[{vTL+4}:{vTL+7}], v{vT2} offset:{8 * 144}')
    X2 = 184
    for h in range(2):
        o(f's_waitcnt lgkmcnt({1 - h})')
        o(f'buffer_store_dwordx4 v[{vTL+4*h}:{vTL+4*h+3}], v{vT0}, s[{SRD_WS}:{SRD_WS+3}], s{sT0} offen offset:{1024*h} sc1'); vm.issue('ts')
        for j in range(4): o(f'v_xor_b32 v{X2+4*h+j}, v{vTL+4*h+j}, v{vTag}')
        o(f'buffer_store_dwordx4 v[{X2+4*h}:{X2+4*h+3}], v{vT0}, s[{SRD_WS}:{SRD_WS+3}], s{sT1} offen offset:{1024*h} sc1'); vm.issue('ts')
def seed(o, dst, ar2, ai2, t, tmp, conj=False):
    o(f'v_mul_f32 v{tmp}, {float(t)}, v{ar2}' if t in (1, 2, 4) else f'v_mul_f32 v{tmp}, {hex(f32(t))}, v{ar2}')
    o(f'v_mul_f32 v{tmp+1}, {float(t)}, v{ai2}' if t in (1, 2, 4) else f'v_mul_f32 v{tmp+1}, {hex(f32(t))}, v{ai2}')
    o(f'v_exp_f32 v{tmp}, v{tmp}')
    o(f'v_fract_f32 v{tmp+1}, v{tmp+1}')
    o('s_nop 0')
    o(f'v_cos_f32 v{dst}, v{tmp+1}')
    o(f'v_sin_f32 v{dst+1}, v{tmp+1}')
    o('s_nop 0')
    o(f'v_mul_f32 v{dst}, v{tmp}, v{dst}')
    if conj: o(f'v_mul_f32 v{dst+1}, -v{dst+1}, v{tmp}'.replace('v_mul_f32', 'v_mul_f32_e64'))
    else: o(f'v_mul_f32 v{dst+1}, v{tmp}, v{dst+1}')
import struct
def f32(x): return struct.unpack('<I', struct.pack('<f', float(x)))[0]
def compute_dt(o, vdt):
    o(f's_lshl_b32 s{sT0}, s{sLdtV}, 16')
    o(f's_and_b32 s{sT1}, s{sLdtV}, 0xffff0000')
    o(f's_cmp_eq_u32 s{sCh}, 0')
    o(f's_cselect_b32 s{sT0}, s{sT0}, s{sT1}')
    o(f'v_mov_b32 v{vdt}, s{sT0}')
    o(f'v_mul_f32 v{vdt}, {hex(LOG2E)}, v{vdt}')
    o(f'v_exp_f32 v{vdt}, v{vdt}')
    o('s_nop 0')
    o(f'v_cvt_pk_bf16_f32 v{vdt}, v{vdt}, v{vdt}')
    o(f'v_and_b32 v{vdt}, 0xffff0000, v{vdt}')
def unpack(o, dlo, dhi, src):
    o(f'v_lshlrev_b32 v{dlo}, 16, v{src}')
    o(f'v_and_b32 v{dhi}, 0xffff0000, v{src}')
class RowWriter:
    def __init__(self, o, vaddr, out0): self.o, self.va, self.out0, self.n = o, vaddr, out0, 0
    def write(self, rows, cA, cB):
        r = self.out0 + 2 * (self.n % 4); self.n += 1
        self.o(f'v_cvt_pk_bf16_f32 v{r}, v{cA}, v{cA+1}')
        self.o(f'v_cvt_pk_bf16_f32 v{r+1}, v{cB}, v{cB+1}')
        for m in rows: self.o(f'ds_write_b64 v{self.va}, v[{r}:{r+1}] offset:{m * 528}')
def stamp(o, on, idx):
    if on: o(f's_memtime s[{96 + 0}:{97}]'); o('s_waitcnt lgkmcnt(0)'); o(f'v_writelane_b32 v255, s96, {idx}')

def gen_ab(o, stamps=False):
    kernel_begin(o, NAME)
    o('s_cmp_ge_u32 s2, 256')
    o('s_cbranch_scc1 LA_end')
    o('s_load_dwordx16 s[8:23], s[0:1], 0')
    o(f's_load_dwordx2 s[{sDsk}:{sDsk+1}], s[0:1], 64')
    o(f's_load_dwordx4 s[{sWg}:{sWg+3}], s[0:1], 80')
    o(f's_load_dwordx2 s[{sWd}:{sWd+1}], s[0:1], 96')
    o(f's_load_dwordx4 s[{sDbg}:{sDbg+3}], s[0:1], 112')
    if stamps: o('v_mov_b32 v255, 0'); o('s_memtime s[98:99]')
    o(f'v_lshrrev_b32 v{vT0}, 6, v0')
    o('v_and_b32 v0, 63, v0')
    o(f'v_readfirstlane_b32 s{sWave}, v{vT0}')
    o(f's_and_b32 s{sT0}, s2, 7')
    o(f's_lshr_b32 s{sT1}, s2, 3')
    if PREFETCH: code_prefetch(o, NAME, 'code_end', sT1, sWave, 8, 240, 244, 96, 'ab')
    o(f's_mul_i32 s{sPair}, s{sT0}, 28')
    o(f's_add_u32 s{sPair}, s{sPair}, s{sT1}')
    o(f's_lshl_b32 s{sSp}, s{sT0}, 2')
    o(f's_add_u32 s{sSp}, s{sSp}, s{sT1}')
    o(f's_sub_u32 s{sSp}, s{sSp}, 28')
    o(f's_lshr_b32 s{sCh}, s{sWave}, 1')
    o(f's_and_b32 s{sCh}, s{sCh}, 1')
    o(f's_and_b32 s{sMh}, s{sWave}, 1')
    o('v_mov_b32 v250, 0\nv_mov_b32 v251, 0')
    if SWAP_ROLES:
        o(f's_xor_b32 s{sT2}, s{sWave}, 4\ns_cmp_lt_u32 s{sT1}, 28\ns_cselect_b32 s{sWave}, s{sT2}, s{sWave}')
    o(f's_lshl_b32 s{sT2}, s{sPair}, 1\ns_add_u32 s{sT2}, s{sT2}, s{sCh}\ns_lshl_b32 s{sT3}, s{sT2}, 9')
    o(f's_lshl_b32 s{sT4}, s{sMh}, 8\ns_add_u32 s{sT3}, s{sT3}, s{sT4}')
    o(f'v_lshlrev_b32 v{vT2}, 2, v0')
    o(f's_mul_i32 s96, s{sPair}, 9363\ns_lshr_b32 s96, s96, 16')
    o(f's_mul_i32 s97, s96, 7\ns_sub_u32 s97, s{sPair}, s97')
    o(f's_mul_i32 s96, s96, {64 * 896}\ns_lshl_b32 s97, s97, 7\ns_add_u32 s96, s96, s97')
    o(f's_and_b32 s97, s{sWave}, 3\ns_lshl_b32 s97, s97, 3')
    o(f'v_lshrrev_b32 v21, 3, v0\nv_add_u32 v21, s97, v21\nv_mul_u32_u24 v21, 896, v21')
    o(f'v_and_b32 v{vT1}, 7, v0\nv_lshlrev_b32 v{vT1}, 4, v{vT1}\nv_add_u32 v21, v21, v{vT1}')
    o(f's_add_u32 s97, s96, {32 * 896}')
    o(f's_lshl_b32 s{sT5}, s{sPair}, 2')
    o('s_waitcnt lgkmcnt(0)')
    if WS_SHIFT: o(f's_add_u32 s{sWs}, s{sWs}, {WS_SHIFT}\ns_addc_u32 s{sWs+1}, s{sWs+1}, 0')
    srd(o, SRD_X, sX, 1835008)
    srd(o, SRD_WS, sWs, WS_END)
    vm = VM(o)
    o(f's_cmp_ge_u32 s{sT1}, 28')
    o('s_cbranch_scc0 LA_conv')
    vms = VM(o)
    e_load(o, vms)
    o(f's_cmp_ge_u32 s{sWave}, 4')
    o('s_cbranch_scc1 LA_spare')
    row_loads(o, vms)
    o('s_branch LA_spare')
    o.label('LA_conv')
    o(f's_load_dword s{sLdtV}, s[{sLdt}:{sLdt+1}], s{sT5}')
    o(f's_load_dword s{sDskV}, s[{sDsk}:{sDsk+1}], s{sT5}')
    o(f's_cmp_ge_u32 s{sWave}, 4')
    o('s_cbranch_scc0 LA_mloads')
    vmn = VM(o)
    n_first_loads(o, vmn)
    o('s_branch LA_nwave')
    o.label('LA_mloads')
    vmm = VM(o)
    m_first_loads(o, vmm)
    gen_mwave(o, vmm.q[:], stamps)
    o.label('LA_nwave')
    gen_nwave(o, vmn.q[:], stamps)
    o.label('LA_spare')
    gen_spare(o, vms.q[:], stamps)
    o.label('LA_end')
    o('s_endpgm')

def finish(o, stamps):
    if stamps:
        o('s_waitcnt vmcnt(0) lgkmcnt(0)')
        stamp(o, True, 15)
        o('v_writelane_b32 v255, s98, 14')
        srd(o, 44, sWs, 0x40000, 0x1820000)
        o(f's_lshl_b32 s{sT0}, s2, 3\ns_add_u32 s{sT0}, s{sT0}, s{sWave}\ns_lshl_b32 s{sT0}, s{sT0}, 6')
        o(f'v_lshlrev_b32 v254, 2, v0')
        o('s_mov_b64 exec, 0xffff')
        o(f'buffer_store_dword v255, v254, s[44:47], s{sT0} offen')
    o('s_endpgm')

def m_first_loads(o, vm):
    P = 16
    e_load(o, vm)
    for i, p in enumerate([sAre, sAim, sBre, sBim, sCre, sCim]):
        srd(o, SRD_P[i], p, 229376)
        o(f'buffer_load_dword v{P+i}, v{vT2}, s[{SRD_P[i]}:{SRD_P[i]+3}], s{sT3} offen'); vm.issue('par')
def n_first_loads(o, vm):
    P = 16
    tile_loads(o, vm)
    e_load(o, vm)
    o(f'v_mov_b32 v20, v{vT2}')
    row_loads(o, vm, 4)
    for i, p in enumerate([sAre, sAim]): srd(o, SRD_P[i], p, 229376)
    for i in range(2):
        o(f'buffer_load_dword v{P+i}, v20, s[{SRD_P[i]}:{SRD_P[i]+3}], s{sT3} offen'); vm.issue('par')
def gen_mwave(o, q0, stamps):
    vm = VM(o); vm.q = q0
    P = 16
    if PRETOUCH & 4:
        o(f's_mul_i32 s{sT0}, s{sPair}, 9363\ns_lshr_b32 s{sT0}, s{sT0}, 16')
        o(f's_mul_i32 s{sT1}, s{sT0}, 7\ns_sub_u32 s{sT1}, s{sPair}, s{sT1}')
        o(f's_lshl_b32 s{sT1}, s{sT1}, 5\ns_add_u32 s{sT0}, s{sT0}, s{sT1}\ns_lshl_b32 s{sT0}, s{sT0}, 13')
        o(f's_lshl_b32 s{sT1}, s{sWave}, 11\ns_add_u32 s{sT0}, s{sT0}, s{sT1}\ns_add_u32 s{sT0}, s{sT0}, {WS_T}')
        o(f'v_and_b32 v30, 15, v0\nv_lshlrev_b32 v30, 7, v30\nv_bfe_u32 v31, v0, 4, 1\nv_mul_u32_u24 v31, {(WS_T2 - WS_T) >> 4}, v31\nv_lshlrev_b32 v31, 4, v31\nv_add_u32 v30, v30, v31')
        o('s_mov_b64 exec, 0xffffffff')
        o(f'buffer_load_dword v248, v30, s[{SRD_WS}:{SRD_WS+3}], s{sT0} offen sc1'); vm.issue('pt')
        o('s_mov_b64 exec, -1')
    if PRETOUCH & 2:
        o('v_and_b32 v30, 15, v0\nv_lshlrev_b32 v30, 21, v30')
        o('s_mov_b64 exec, 0xffff')
        o(f'buffer_load_dword v249, v30, s[{SRD_WS}:{SRD_WS+3}], 0 offen'); vm.issue('pt')
        o('s_mov_b64 exec, -1')
    vm.wait('E')
    make_tag(o)
    o('s_waitcnt lgkmcnt(0)')
    o('s_barrier')
    tile_transpose(o, vm, 0)
    stamp(o, stamps, 0)
    if stamps and X_TACK:
        o('s_waitcnt vmcnt(0)')
        stamp(o, stamps, 7)
    vm.wait('par')
    o('s_waitcnt lgkmcnt(0)')
    o(f's_cmp_eq_u32 s{sWave}, 3')
    o('s_cbranch_scc0 LM_noat')
    epoch_atomic(o)
    o.label('LM_noat')
    vdt = 22
    compute_dt(o, vdt)
    U = 24
    for i in range(6): unpack(o, U + 2*i, U + 2*i + 1, P + i)
    for i in range(4): o(f'v_mul_f32 v{U+i}, v{vdt}, v{U+i}')
    for i in range(4, 8): o(f'v_mul_f32 v{U+i}, v{vdt}, v{U+i}')
    o(f'v_mul_f32 v{U}, {hex(LOG2E)}, v{U}\nv_mul_f32 v{U+1}, {hex(LOG2E)}, v{U+1}')
    o(f'v_mul_f32 v{U+2}, {hex(INV2PI)}, v{U+2}\nv_mul_f32 v{U+3}, {hex(INV2PI)}, v{U+3}')
    X0 = 36; X2 = 40; X4 = 44; X6 = 48; X8 = 52; E1 = 56; CUR = 60; CU2 = 64
    Pw = {k: 68 + 4 * (k - 1) for k in range(1, 8)}
    TMP = 96; OUT = 100
    for mu in range(2):
        bre, bim, cre, cim = U + 4 + mu, U + 6 + mu, U + 8 + mu, U + 10 + mu
        w = X0 + 2 * mu
        o(f'v_mul_f32 v{w}, v{cre}, v{bre}')
        o(f'v_mul_f32 v{w+1}, v{cre}, v{bim}')
        o(f'v_fma_f32 v{w}, -v{cim}, v{bim}, v{w}')
        o(f'v_fma_f32 v{w+1}, v{cim}, v{bre}, v{w+1}')
    for mu in range(2):
        seed(o, E1 + 2*mu, U + mu, U + 2 + mu, 1, TMP + 2*mu)
        seed(o, Pw[1] + 2*mu, U + mu, U + 2 + mu, 256, TMP + 2*mu)
    stamp(o, stamps, 1)
    vTab = 108
    o(f's_lshl_b32 s{sT0}, s{sCh}, 1\ns_add_u32 s{sT0}, s{sT0}, s{sMh}\ns_mul_i32 s{sT0}, s{sT0}, {TAB}')
    o(f'v_lshlrev_b32 v{vTab}, 3, v0\nv_add_u32 v{vTab}, s{sT0}, v{vTab}')
    rw = RowWriter(o, vTab, OUT)
    def c2(d, p, q): cmul2(o, d, p, q, d + 2, p + 2, q + 2)
    rw.write([0], X0, X0 + 2)
    keep = {0: X0, 2: X2, 4: X4, 6: X6, 8: X8}
    prev = X0
    for t in range(1, 9):
        d = keep.get(t, CUR)
        c2(d, prev, E1)
        rows = [t] if t < 8 else [12]
        if t == 4: rows = [4, 8]
        rw.write(rows, d, d + 2)
        prev = d
    c2(Pw[2], Pw[1], Pw[1]); c2(Pw[3], Pw[2], Pw[1]); c2(Pw[4], Pw[2], Pw[2])
    c2(Pw[5], Pw[4], Pw[1]); c2(Pw[6], Pw[4], Pw[2]); c2(Pw[7], Pw[4], Pw[3])
    alt = [CUR, CU2]; n = 0
    def prod(rows, xs, pk):
        nonlocal n
        d = alt[n % 2]; n += 1
        c2(d, keep[xs], Pw[pk]); rw.write(rows, d, d + 2)
    prod([9], 0, 1); prod([10], 2, 1); prod([11, 13], 4, 1); prod([14], 6, 1); prod([15], 8, 1)
    prod([16], 0, 2); prod([17], 4, 2); prod([18], 8, 2)
    prod([20], 0, 3); prod([21], 4, 3); prod([22], 8, 3)
    prod([19], 0, 4); prod([24], 8, 4)
    prod([25], 0, 5); prod([26], 8, 5)
    prod([23], 0, 6); prod([28], 8, 6)
    prod([29], 0, 7); prod([30], 8, 7)
    vA, vB = 109, 110
    o(f'v_and_b32 v{vT0}, 31, v0\nv_mul_u32_u24 v{vT0}, 528, v{vT0}')
    o(f'v_lshrrev_b32 v{vT1}, 5, v0\nv_lshlrev_b32 v{vT1}, 4, v{vT1}')
    o(f'v_add3_u32 v{vA}, v{vT0}, v{vT1}, s{sT0}')
    o(f'v_add_u32 v{vB}, {4 * TAB}, v{vA}')
    AF = 64; ACC = 32; BB = 192; vKA = [208, 209, 210, 211]; vBa = 212
    vR, vHh = 213, 214
    o(f'v_and_b32 v{vR}, 15, v0\nv_lshrrev_b32 v{vHh}, 4, v0')
    o(f'v_and_b32 v{vT0}, 1, v{vR}')
    o(f'v_add_u32 v{vT1}, v{vR}, v{vT0}')
    o(f'v_mul_u32_u24 v{vT0}, {KR_COPY}, v{vT0}')
    o(f'v_lshlrev_b32 v{vT1}, 1, v{vT1}')
    o(f'v_sub_u32 v{vT0}, v{vT0}, v{vT1}')
    o(f'v_lshlrev_b32 v{vT1}, 4, v{vHh}')
    o(f'v_add_u32 v{vT0}, v{vT0}, v{vT1}')
    o(f's_mul_i32 s{sT1}, s{sCh}, {KR_CH}')
    o(f's_lshl_b32 s{sT2}, s{sMh}, 6')
    o(f's_sub_u32 s{sT1}, s{sT1}, s{sT2}')
    o(f's_add_u32 s{sT1}, s{sT1}, {2 * 2032}')
    for g in range(4):
        o(f's_sub_u32 s{sT3}, s{sT1}, {128 * (8 * g + 7)}')
        o(f'v_add_u32 v{vKA[g]}, s{sT3}, v{vT0}')
    o(f'v_lshlrev_b32 v{vT0}, 5, v{vR}\nv_lshlrev_b32 v{vT1}, 4, v{vHh}\nv_add_u32 v{vT0}, v{vT0}, v{vT1}')
    o(f's_mul_i32 s{sT1}, s{sCh}, 4608')
    o(f's_sub_u32 s{sT1}, s{sT1}, s{sT2}')
    o(f's_add_u32 s{sT1}, s{sT1}, {LDS_US + 480 + 64 * 56 - 128 * 31}')
    o(f'v_add_u32 v{vBa}, s{sT1}, v{vT0}')
    vCx = 215
    o(f's_lshl_b32 s{sT1}, s{sWave}, 12')
    o(f's_add_u32 s{sT1}, s{sT1}, {LDS_CX}')
    o(f'v_lshlrev_b32 v{vCx}, 4, v0\nv_add_u32 v{vCx}, s{sT1}, v{vCx}')
    vCp = 220
    o(f's_xor_b32 s{sT1}, s{sWave}, 1\ns_lshl_b32 s{sT1}, s{sT1}, 12\ns_add_u32 s{sT1}, s{sT1}, {LDS_CX}')
    o(f'v_lshlrev_b32 v{vCp}, 4, v0\nv_add_u32 v{vCp}, s{sT1}, v{vCp}')
    vU, vXs, vO = 216, 217, 218
    o(f'v_lshlrev_b32 v{vT0}, 5, v{vR}\nv_lshlrev_b32 v{vT1}, 3, v{vHh}\nv_add_u32 v{vT0}, v{vT0}, v{vT1}')
    o(f's_lshl_b32 s{sT2}, s{sMh}, 11')
    o(f's_mul_i32 s{sT1}, s{sCh}, 4608\ns_add_u32 s{sT1}, s{sT1}, s{sT2}\ns_add_u32 s{sT1}, s{sT1}, {LDS_US + 512}')
    o(f'v_add_u32 v{vU}, s{sT1}, v{vT0}')
    o(f's_lshl_b32 s{sT1}, s{sCh}, 12\ns_add_u32 s{sT1}, s{sT1}, s{sT2}\ns_add_u32 s{sT1}, s{sT1}, {LDS_XS}')
    o(f'v_add_u32 v{vXs}, s{sT1}, v{vT0}')
    o(f's_lshl_b32 s{sT1}, s{sPair}, 1\ns_add_u32 s{sT1}, s{sT1}, s{sCh}\ns_lshl_b32 s{sT1}, s{sT1}, 6')
    o(f's_mul_i32 s{sT2}, s{sMh}, {32 * 28672}')
    o(f's_add_u32 s{sT1}, s{sT1}, s{sT2}\ns_add_u32 s{sT4}, s{sT1}, {WS_HT}')
    vHo = 219
    o(f'v_lshrrev_b32 v{vHo}, 1, v{vR}\nv_mul_u32_u24 v{vHo}, 28672, v{vHo}')
    o(f'v_and_b32 v{vT1}, 1, v{vR}\nv_lshlrev_b32 v{vT1}, 5, v{vT1}\nv_add_u32 v{vHo}, v{vHo}, v{vT1}')
    o(f'v_lshlrev_b32 v{vT1}, 3, v{vHh}\nv_add_u32 v{vHo}, v{vHo}, v{vT1}')
    o(f's_lshl_b32 s{sT1}, s{sDskV}, 16\ns_and_b32 s{sT2}, s{sDskV}, 0xffff0000')
    o(f's_cmp_eq_u32 s{sCh}, 0\ns_cselect_b32 s{sT5}, s{sT1}, s{sT2}')
    o('s_waitcnt lgkmcnt(0)')
    stamp(o, stamps, 2)
    o('s_barrier')
    FR = 112; KD = 16
    def rd(kk):
        b = FR + 8 * (kk % 4)
        o(f'ds_read_b128 v[{b}:{b+3}], v{vA} offset:{kk * 32}')
        o(f'ds_read_b128 v[{b+4}:{b+7}], v{vB} offset:{kk * 32}')
    for kk in range(3): rd(kk)
    for kk in range(16):
        if kk + 3 < 16: rd(kk + 3)
        o(f's_waitcnt lgkmcnt({2 * min(3, 15 - kk)})')
        b = FR + 8 * (kk % 4)
        c = '0' if kk == 0 else f'v[{KD}:{KD+15}]'
        o(f'v_mfma_f32_32x32x16_bf16 v[{KD}:{KD+15}], v[{b}:{b+3}], v[{b+4}:{b+7}], {c}')
    vEx = 111
    o(f's_add_u32 s{sT1}, s{sWave}, 4\ns_mul_i32 s{sT1}, s{sT1}, {TAB}')
    o(f'v_lshlrev_b32 v{vEx}, 4, v0\nv_add_u32 v{vEx}, s{sT1}, v{vEx}')
    o(f's_xor_b32 s{sT2}, s{sWave}, 1\ns_add_u32 s{sT2}, s{sT2}, 4\ns_mul_i32 s{sT2}, s{sT2}, {TAB}')
    o(f'v_lshlrev_b32 v106, 4, v0\nv_add_u32 v106, s{sT2}, v106')
    o('s_nop 7\ns_nop 3')
    o(f's_cmp_eq_u32 s{sMh}, 0')
    o('s_cbranch_scc0 LM_send1')
    o(f'ds_write_b128 v{vEx}, v[{KD+8}:{KD+11}]\nds_write_b128 v{vEx}, v[{KD+12}:{KD+15}] offset:1024')
    o('s_branch LM_sent')
    o.label('LM_send1')
    o(f'ds_write_b128 v{vEx}, v[{KD}:{KD+3}]\nds_write_b128 v{vEx}, v[{KD+4}:{KD+7}] offset:1024')
    o.label('LM_sent')
    o(f'v_mov_b32 v{vEx}, v106')
    o('s_waitcnt lgkmcnt(0)')
    stamp(o, stamps, 3)
    o('s_barrier')
    R = 32
    o(f'ds_read_b128 v[{R}:{R+3}], v{vEx}\nds_read_b128 v[{R+4}:{R+7}], v{vEx} offset:1024')
    vK = 40; vJ = 41; vH = 42; O = 44
    o(f'v_and_b32 v{vJ}, 31, v0\nv_lshrrev_b32 v{vH}, 5, v0')
    o(f's_mul_i32 s{sT1}, s{sCh}, {KR_CH}')
    o(f's_cmp_eq_u32 s{sMh}, 0')
    o('s_cbranch_scc0 LM_exp1')
    o(f'v_lshlrev_b32 v{vK}, 4, v{vJ}\nv_lshlrev_b32 v{vT0}, 3, v{vH}\nv_add_u32 v{vK}, v{vK}, v{vT0}')
    o(f'v_sub_u32 v{vK}, 4088, v{vK}\nv_add_u32 v{vK}, s{sT1}, v{vK}')
    o('s_waitcnt lgkmcnt(0)')
    for j in range(8): o(f'v_add_f32 v{KD+j}, v{KD+j}, v{R+j}')
    a0, a1, a2, a3, a4, sa, sb, sc = [KD + j for j in range(8)]
    cv = lambda d, lo, hi: o(f'v_cvt_pk_bf16_f32 v{d}, v{lo}, v{hi}')
    cv(O, a3, a2); cv(O+1, a1, a0); cv(O+2, a4, a3); cv(O+3, a2, a1)
    o(f'ds_write_b64 v{vK}, v[{O}:{O+1}] offset:{KR_COPY}')
    o(f'ds_write_b64 v{vK}, v[{O+2}:{O+3}]')
    cv(O+4, sc, sb); cv(O+5, sa, sa); cv(O+6, sc, sc); cv(O+7, sb, sa)
    o(f'v_subrev_u32 v{vK}, 512, v{vK}')
    o(f'ds_write_b64 v{vK}, v[{O+4}:{O+5}] offset:{KR_COPY}')
    o(f'ds_write_b64 v{vK}, v[{O+6}:{O+7}]')
    o(f'v_mov_b32 v{O+8}, 0')
    cv(O+9, a0, O+8)
    o(f'v_cmp_eq_u32 vcc, 0, v0')
    o(f'v_lshlrev_b32 v{vT0}, 2, v0')
    o(f'v_add_u32 v{vT0}, s{sT1}, v{vT0}')
    o(f'v_cndmask_b32 v{O+9}, v{O+8}, v{O+9}, vcc')
    o('s_mov_b64 exec, 0xff')
    o(f'ds_write_b32 v{vT0}, v{O+9} offset:4096')
    o(f'ds_write_b32 v{vT0}, v{O+8} offset:{4096 + KR_COPY}')
    o('s_mov_b64 exec, -1')
    o('s_branch LM_expd')
    o.label('LM_exp1')
    o(f'v_lshlrev_b32 v{vK}, 4, v{vJ}\nv_lshlrev_b32 v{vT0}, 9, v{vH}\nv_add_u32 v{vK}, v{vK}, v{vT0}')
    o(f'v_sub_u32 v{vK}, {4080 - 1024}, v{vK}\nv_add_u32 v{vK}, s{sT1}, v{vK}')
    vK3 = 43
    o(f'v_lshlrev_b32 v{vK3}, 4, v{vJ}\nv_lshlrev_b32 v{vT0}, 10, v{vH}\nv_add_u32 v{vK3}, v{vK3}, v{vT0}')
    o(f'v_sub_u32 v{vK3}, {4080 - 2048 - 512}, v{vK3}\nv_add_u32 v{vK3}, s{sT1}, v{vK3}')
    o(f'v_and_b32 v{vT0}, 1, v{vJ}')
    o(f'v_cmp_eq_u32 vcc, 0, v{vT0}')
    o('s_waitcnt lgkmcnt(0)')
    for j in range(8): o(f'v_add_f32 v{KD+8+j}, v{KD+8+j}, v{R+j}')
    T0, T1, T2 = KD + 8, KD + 9, KD + 10
    cv(O, T2, T2); cv(O+1, T1, T1); cv(O+2, T1, T0); cv(O+3, T0, T0)
    o(f'ds_write_b128 v{vK}, v[{O}:{O+3}] offset:{KR_COPY}')
    cv(O+4, T2, T2); cv(O+5, T2, T1); cv(O+6, T1, T1); cv(O+7, T0, T0)
    o(f'ds_write_b128 v{vK}, v[{O+4}:{O+7}]')
    for ii in range(2):
        t0, t1 = KD + 11 + 2*ii, KD + 12 + 2*ii
        sel = O + 16
        q = O + 8 * (ii + 1) if ii == 0 else O
        o(f'v_cndmask_b32 v{sel}, v{t1}, v{t0}, vcc')
        off = 512 if ii == 0 else 0
        cv(q, t1, t1); cv(q+1, t1, sel); cv(q+2, t0, t0); cv(q+3, t0, t0)
        o(f'ds_write_b128 v{vK3}, v[{q}:{q+3}] offset:{KR_COPY + off}')
        cv(q+4, t1, t1); cv(q+5, t1, t1); cv(q+6, sel, t0); cv(q+7, t0, t0)
        o(f'ds_write_b128 v{vK3}, v[{q+4}:{q+7}] offset:{off}')
    o.label('LM_expd')
    o('s_waitcnt lgkmcnt(0)')
    stamp(o, stamps, 4)
    o('s_barrier')
    def rdA(sg):
        d = AF + 4 * sg; g = sg // 8; off = 32 * (7 - (sg - 8 * g))
        o(f'ds_read2_b32 v[{d}:{d+1}], v{vKA[g]} offset0:{off} offset1:{off+1}')
        o(f'ds_read2_b32 v[{d+2}:{d+3}], v{vKA[g]} offset0:{off+2} offset1:{off+3}')
    def rdB(t):
        d = BB + 4 * (t % 4)
        o(f'ds_read_b128 v[{d}:{d+3}], v{vBa} offset:{128 * (31 - t)}')
    NBB = LA + 1 if LA > 3 else 4
    def rdA_ops(sg):
        d = AF + 4 * sg; g = sg // 8; off = 32 * (7 - (sg - 8 * g))
        if X_NOA: return ['s_nop 0', 's_nop 0']
        return [f'ds_read2_b32 v[{d}:{d+1}], v{vKA[g]} offset0:{off} offset1:{off+1}',
                f'ds_read2_b32 v[{d+2}:{d+3}], v{vKA[g]} offset0:{off+2} offset1:{off+3}']
    def rdB_op(t):
        d = BB + 4 * (t % NBB)
        if X_NOB: return 's_nop 0'
        return f'ds_read_b128 v[{d}:{d+3}], v{vBa} offset:{128 * (31 - t)}'
    for t in range(LA):
        for op in rdA_ops(t): o(op)
        o(rdB_op(t))
    started = set()
    for t in range(32):
        o(f's_waitcnt lgkmcnt({(3 - 2 * X_NOA - X_NOB) * min(LA - 1, 31 - t)})')
        pend = (rdA_ops(t + LA) + [rdB_op(t + LA)]) if t + LA < 32 else []
        cmin = max(0, -(-(28 - t) // 4))
        for c in range(7, cmin - 1, -1):
            sg = 4 * c - 28 + t
            ac = ACC + 4 * c
            cc = f'v[{ac}:{ac+3}]' if c in started else '0'
            started.add(c)
            if not X_NOM: o(f'v_mfma_f32_16x16x32_bf16 v[{ac}:{ac+3}], v[{AF+4*sg}:{AF+4*sg+3}], v[{BB+4*(t%NBB)}:{BB+4*(t%NBB)+3}], {cc}')
            if pend: o(pend.pop(0))
        for op in pend: o(op)
    stamp(o, stamps, 5)
    UB = 64; XB = 72; PB = 80; W = 96
    vDk = 222
    o(f'v_mov_b32 v{vDk}, s{sT5}')
    for j in range(4): o(f'ds_read_b64 v[{UB+2*j}:{UB+2*j+1}], v{vU} offset:{512*j}')
    o('s_nop 3')
    o(f's_cmp_eq_u32 s{sMh}, 0')
    o('s_cbranch_scc0 LM_cx1')
    for par in range(2):
        keep = ACC + 16 * par; send = ACC + 16 * (1 - par)
        if par: o.label('LM_cx1')
        for j in range(4): o(f'ds_write_b128 v{vCx}, v[{send+4*j}:{send+4*j+3}] offset:{1024*j}')
        o('s_waitcnt lgkmcnt(0)')
        o('s_barrier')
        for j in range(4): o(f'ds_read_b64 v[{XB+2*j}:{XB+2*j+1}], v{vXs} offset:{512*j}')
        for j in range(4): o(f'ds_read_b128 v[{PB+4*j}:{PB+4*j+3}], v{vCp} offset:{1024*j}')
        for j in range(4):
            unpack(o, W, W+1, UB+2*j); unpack(o, W+2, W+3, UB+2*j+1)
            for e in (0, 2): o(f'v_pk_fma_f32 v[{keep+4*j+e}:{keep+4*j+e+1}], v[{W+e}:{W+e+1}], v[{vDk}:{vDk+1}], v[{keep+4*j+e}:{keep+4*j+e+1}] op_sel_hi:[1,0,1]')
        so = sT4
        for j in range(4):
            o(f's_waitcnt lgkmcnt({3-j})')
            unpack(o, W+4, W+5, XB+2*j); unpack(o, W+6, W+7, XB+2*j+1)
            for e in (0, 2): o(f'v_pk_add_f32 v[{keep+4*j+e}:{keep+4*j+e+1}], v[{keep+4*j+e}:{keep+4*j+e+1}], v[{PB+4*j+e}:{PB+4*j+e+1}]')
            for e in (0, 2): o(f'v_pk_add_f32 v[{keep+4*j+e}:{keep+4*j+e+1}], v[{keep+4*j+e}:{keep+4*j+e+1}], v[{W+4+e}:{W+4+e+1}]')
            d = W + 8 + 2 * j
            cv(d, keep+4*j, keep+4*j+1); cv(d+1, keep+4*j+2, keep+4*j+3)
            o(f'buffer_store_dwordx2 v[{d}:{d+1}], v{vHo}, s[{SRD_WS}:{SRD_WS+3}], s{so} offen {HST}')
            if j < 3: o(f's_add_u32 s{so}, s{so}, {8 * 28672}')
        if par == 0:
            stamp(o, stamps, 6)
            finish(o, stamps)
    stamp(o, stamps, 6)
    finish(o, stamps)

def gen_nwave(o, q0, stamps):
    vm = VM(o); vm.q = q0
    P = 16
    sNw, sSb, sKk, sKt, sDb, sL = 52, 53, 54, 55, 56, 57
    o(f's_lshl_b32 s{sNw}, s{sPair}, 2\ns_add_u32 s{sNw}, s{sNw}, s{sWave}\ns_sub_u32 s{sNw}, s{sNw}, 4')
    o(f's_min_u32 s{sT0}, s{sNw}, 783')
    o(f's_mul_i32 s{sSb}, s{sT0}, 2341\ns_lshr_b32 s{sSb}, s{sSb}, 16')
    o(f's_mul_i32 s{sKk}, s{sSb}, 28\ns_sub_u32 s{sKk}, s{sT0}, s{sKk}')
    o(f's_mul_i32 s{sKt}, s{sT0}, 9363\ns_lshr_b32 s{sKt}, s{sKt}, 16')
    o(f's_mul_i32 s{sDb}, s{sKt}, 7\ns_sub_u32 s{sDb}, s{sT0}, s{sDb}')
    o(f's_sub_u32 s{sL}, s{sWave}, 4\ns_mul_i32 s{sL}, s{sL}, 6144\ns_add_u32 s{sL}, s{sL}, {LDS_RP}')
    srd(o, SRD_WG, sWg, 1605632); srd(o, SRD_WU, sWu, 1605632); srd(o, SRD_WD, sWd, 1605632)
    tile_image(o, vm)
    o('s_waitcnt lgkmcnt(0)')
    o('s_barrier')
    stamp(o, stamps, 0)
    row_stats(o, vm, 4)
    vm.wait('par')
    G = 128; vG0, vTp = 24, 26
    o(f's_sub_u32 s{sT0}, s{sWave}, 4\ns_lshl_b32 s{sT0}, s{sT0}, 6')
    o(f'v_add_u32 v{vTp}, s{sT0}, v0')
    o(f'v_lshrrev_b32 v{vG0}, 4, v{vTp}\nv_lshlrev_b32 v{vG0}, 13, v{vG0}')
    o(f'v_and_b32 v{vT0}, 15, v{vTp}\nv_lshlrev_b32 v{vT0}, 4, v{vT0}\nv_add_u32 v{vG0}, v{vG0}, v{vT0}')
    o(f's_lshr_b32 s{sT1}, s{sPair}, 5\ns_lshl_b32 s{sT1}, s{sT1}, 18')
    o(f's_and_b32 s{sT2}, s{sPair}, 31\ns_lshl_b32 s{sT2}, s{sT2}, 8\ns_add_u32 s{sT1}, s{sT1}, s{sT2}')
    o(f'v_add_u32 v{vG0}, s{sT1}, v{vG0}')
    o(f'v_add_u32 v25, {16 * 8192}, v{vG0}')
    vdt = 22
    compute_dt(o, vdt)
    U = 28
    for i in range(2): unpack(o, U + 2*i, U + 2*i + 1, P + i)
    for i in range(4): o(f'v_mul_f32 v{U+i}, v{vdt}, v{U+i}')
    o(f'v_mul_f32 v{U}, {hex(LOG2E)}, v{U}\nv_mul_f32 v{U+1}, {hex(LOG2E)}, v{U+1}')
    o(f'v_mul_f32 v{U+2}, {hex(INV2PI)}, v{U+2}\nv_mul_f32 v{U+3}, {hex(INV2PI)}, v{U+3}')
    E8 = 36; YA = 40; YB = 44; TMP = 48; OUT = 52; vTab = 60
    for mu in range(2): seed(o, E8 + 2*mu, U + mu, U + 2 + mu, 8, TMP + 2*mu, conj=True)
    stamp(o, stamps, 1)
    o(f's_lshl_b32 s{sT0}, s{sCh}, 1\ns_add_u32 s{sT0}, s{sT0}, s{sMh}\ns_add_u32 s{sT0}, s{sT0}, 4\ns_mul_i32 s{sT0}, s{sT0}, {TAB}')
    o(f'v_lshlrev_b32 v{vTab}, 3, v0\nv_add_u32 v{vTab}, s{sT0}, v{vTab}')
    o(f'v_mov_b32 v{YA}, 0x3f80\nv_mov_b32 v{YA+1}, 0x3f80')
    o(f'ds_write_b64 v{vTab}, v[{YA}:{YA+1}]')
    rw = RowWriter(o, vTab, OUT)
    rw.write([1], E8, E8 + 2)
    E16 = 200; YC = 204; YD = 208
    RP = 144
    def rp_loads():
        vGu, vDn = 20, 21
        o(f'v_lshrrev_b32 v{vT0}, 3, v0\nv_and_b32 v{vT1}, 7, v0\nv_lshlrev_b32 v{vT1}, 4, v{vT1}')
        o(f'v_mul_u32_u24 v{vGu}, 3584, v{vT0}\nv_add_u32 v{vGu}, v{vGu}, v{vT1}')
        o(f'v_mul_u32_u24 v{vDn}, 896, v{vT0}\nv_add_u32 v{vDn}, v{vDn}, v{vT1}')
        o(f's_mul_i32 s{sT1}, s{sKk}, {16 * 3584}\ns_lshl_b32 s{sT2}, s{sSb}, 7\ns_add_u32 s{sT1}, s{sT1}, s{sT2}')
        o(f's_add_u32 s{sT2}, s{sT1}, {8 * 3584}')
        for mat, sr in enumerate([SRD_WG, SRD_WU]):
            for i in range(2):
                d = RP + 8 * mat + 4 * i
                o(f'buffer_load_dwordx4 v[{d}:{d+3}], v{vGu}, s[{sr}:{sr+3}], s{sT1 if i == 0 else sT2} offen'); vm.issue('rp')
        o(f's_mul_i32 s{sT1}, s{sKt}, {16 * 896}\ns_lshl_b32 s{sT2}, s{sDb}, 7\ns_add_u32 s{sT1}, s{sT1}, s{sT2}')
        o(f's_add_u32 s{sT2}, s{sT1}, {8 * 896}')
        for i in range(2):
            d = RP + 16 + 4 * i
            o(f'buffer_load_dwordx4 v[{d}:{d+3}], v{vDn}, s[{SRD_WD}:{SRD_WD+3}], s{sT1 if i == 0 else sT2} offen'); vm.issue('rp')

    RC = 64; vRa = 27
    o(f'v_lshlrev_b32 v{vRa}, 4, v{vTp}')
    o(f's_mov_b32 s{sT3}, {WS_REC}')
    o(f's_mov_b32 s{sT4}, {WS_T}\ns_mov_b32 s{sT5}, {WS_T2}')
    def rec_loads(pol):
        for j in range(4):
            if j: o(f's_add_u32 s{sT3}, s{sT3}, 4096')
            o(f'buffer_load_dwordx4 v[{RC+4*j}:{RC+4*j+3}], v{vRa}, s[{SRD_WS}:{SRD_WS+3}], s{sT3} offen {pol}')
        o(f's_mov_b32 s{sT3}, {WS_REC}')
        o(f'buffer_load_dwordx4 v[{G}:{G+3}], v{vG0}, s[{SRD_WS}:{SRD_WS+3}], s{sT4} offen {pol}')
        o(f'buffer_load_dwordx4 v[{G+4}:{G+7}], v25, s[{SRD_WS}:{SRD_WS+3}], s{sT4} offen {pol}')
        o(f'buffer_load_dwordx4 v[{G+8}:{G+11}], v{vG0}, s[{SRD_WS}:{SRD_WS+3}], s{sT5} offen {pol}')
        o(f'buffer_load_dwordx4 v[{G+12}:{G+15}], v25, s[{SRD_WS}:{SRD_WS+3}], s{sT5} offen {pol}')
    cmul2(o, E16, E8, E8, E16 + 2, E8 + 2, E8 + 2)
    rw.write([2], E16, E16 + 2)
    ev, od = [E16, YA, YB], [E8, YC, YD]
    pe, po = E16, E8
    step = 0
    for j in range(3, 32, 2):
        do = YC if step % 2 == 0 else YD
        de = YA if step % 2 == 0 else YB
        step += 1
        last = (j + 1 > 31)
        prods = [(do, po), (do + 2, po + 2)] + ([] if last else [(de, pe), (de + 2, pe + 2)])
        for d, p in prods:
            q = E16 + (2 if (d - (do if d in (do, do + 2) else de)) else 0)
            o(f'v_pk_mul_f32 v[{d}:{d+1}], v[{p}:{p+1}], v[{q}:{q+1}] op_sel_hi:[0,1]')
        for d, p in prods:
            q = E16 + (2 if (d - (do if d in (do, do + 2) else de)) else 0)
            o(f'v_pk_fma_f32 v[{d}:{d+1}], v[{p}:{p+1}], v[{q}:{q+1}], v[{d}:{d+1}] op_sel:[1,1,0] op_sel_hi:[1,0,1] neg_lo:[1,0,0]')
        rw.write([j], do, do + 2)
        if not last: rw.write([j + 1], de, de + 2)
        po = do; pe = de
        if j == RP_AT and RP_AT < REC_AT: rp_loads()
        if j == REC_AT: rec_loads(POL0)
        if j == RP_AT and RP_AT >= REC_AT: rp_loads()
    if REC_AT == 99: rec_loads(POL0)
    if RP_AT == 99: rp_loads()
    o('s_waitcnt lgkmcnt(0)')
    stamp(o, stamps, 2)
    o('s_barrier')
    if REC_AT == 199: rec_loads(POL0)
    if RP_AT == 199: rp_loads()
    o(f'v_lshrrev_b32 v{vT0}, 5, v0\nv_mul_u32_u24 v{vT0}, 4608, v{vT0}')
    o(f'v_and_b32 v{vT1}, 31, v0\nv_lshlrev_b32 v{vT1}, 4, v{vT1}\nv_add_u32 v{vT0}, v{vT0}, v{vT1}')
    o(f'v_add_u32 v{vT0}, {LDS_US}, v{vT0}')
    for j in range(4): o(f'v_mov_b32 v{OUT+j}, 0')
    o(f'ds_write_b128 v{vT0}, v[{OUT}:{OUT+3}]')
    o(f's_mov_b32 s{sT1}, 0')
    o(f's_waitcnt vmcnt({6 if RP_AT >= REC_AT else 0})')
    o.label('LN_chk')
    C0 = RC + 16
    for k in range(8): o(f'v_xor_b32 v{C0+k}, v{RC+2*k+1}, v{RC+2*k}')
    for k in range(8): o(f'v_xor_b32 v{C0+8+k}, v{G+k}, v{G+8+k}')
    for k in range(16): o(f'v_xor_b32 v{C0+k}, v{C0+k}, v{vTag}')
    for k in range(0, 15, 3): o(f'v_or3_b32 v{C0+k}, v{C0+k}, v{C0+k+1}, v{C0+k+2}')
    o(f'v_or3_b32 v{C0}, v{C0}, v{C0+3}, v{C0+6}')
    o(f'v_or3_b32 v{C0+9}, v{C0+9}, v{C0+12}, v{C0+15}')
    o(f'v_or_b32 v{C0}, v{C0}, v{C0+9}')
    o(f'v_cmp_ne_u32 vcc, 0, v{C0}')
    o('s_cbranch_vccz LN_got')
    o(f's_add_u32 s{sT1}, s{sT1}, 1')
    o(f's_cmp_lt_u32 s{sT1}, 0x40000')
    o('s_cbranch_scc0 LN_got')
    rec_loads('sc1')
    o('s_waitcnt vmcnt(0)')
    o('s_branch LN_chk')
    o.label('LN_got')
    vm.q = []
    if stamps: o(f'v_writelane_b32 v255, s{sT1}, 13')
    stamp(o, stamps, 3)
    o(f'v_lshlrev_b32 v{vT0}, 4, v{vTp}\nv_add_u32 v{vT0}, {LDS_XS}, v{vT0}')
    for j in range(4):
        a_ = RC + 4 * j
        o(f'v_and_b32 v{a_+1}, 0xffff0000, v{a_}\nv_and_b32 v{a_+3}, 0xffff0000, v{a_+2}')
        o(f'v_lshlrev_b32 v{a_}, 16, v{a_}\nv_lshlrev_b32 v{a_+2}, 16, v{a_+2}')
        o(f'v_rcp_f32 v{a_+1}, v{a_+1}\nv_rcp_f32 v{a_+3}, v{a_+3}')
    for j in range(4):
        a_ = RC + 4 * j
        o(f'v_mul_f32_e64 v{a_}, -v{a_}, v{a_+1}\nv_mul_f32_e64 v{a_+2}, -v{a_+2}, v{a_+3}')
        o(f'ds_write_b128 v{vT0}, v[{a_}:{a_+3}] offset:{4096*j}')
    XF = 96
    for i in range(2):
        for j in range(4): unpack(o, XF + 8*i + 2*j, XF + 8*i + 2*j + 1, G + 4*i + j)
    vL0, vCh = 22, 23
    o(f'v_lshrrev_b32 v{vL0}, 4, v{vTp}\nv_lshlrev_b32 v{vL0}, 6, v{vL0}')
    o(f'v_and_b32 v{vT0}, 7, v{vTp}\nv_lshlrev_b32 v{vT0}, 3, v{vT0}\nv_add_u32 v{vL0}, v{vL0}, v{vT0}')
    o(f'v_bfe_u32 v{vCh}, v{vTp}, 3, 1')
    o(f'v_lshlrev_b32 v21, 3, v{vL0}\nv_add_u32 v21, {LDS_XS}, v21')
    o('s_waitcnt lgkmcnt(0)')
    o('s_barrier')
    TB = 64
    for i in range(2):
        for q in range(4): o(f'ds_read_b128 v[{TB+16*i+4*q}:{TB+16*i+4*q+3}], v21 offset:{8192*i+16*q}')
    o(f'v_mul_u32_u24 v{vT1}, 4608, v{vCh}\nv_lshlrev_b32 v{vT3}, 1, v{vL0}\nv_add_u32 v{vT1}, v{vT1}, v{vT3}')
    o(f'v_add_u32 v{vT1}, {LDS_US + 512}, v{vT1}')
    Pk = 120
    for i in range(2):
        o(f's_waitcnt lgkmcnt({4 - 4*i})' if i == 0 else 's_waitcnt lgkmcnt(1)')
        for k in range(8): o(f'v_fma_f32 v{XF+8*i+k}, v{XF+8*i+k}, v{TB+16*i+2*k+1}, v{TB+16*i+2*k}')
        for j in range(4): o(f'v_cvt_pk_bf16_f32 v{Pk+4*i+j}, v{XF+8*i+2*j}, v{XF+8*i+2*j+1}')
        o(f'ds_write_b128 v{vT1}, v[{Pk+4*i}:{Pk+4*i+3}] offset:{2048*i}')
    o('s_waitcnt lgkmcnt(0)')
    stamp(o, stamps, 4)
    o('s_barrier')
    o(f'v_lshlrev_b32 v{vT1}, 12, v{vCh}\nv_lshlrev_b32 v{vT3}, 1, v{vL0}\nv_add_u32 v{vT1}, v{vT1}, v{vT3}')
    o(f'v_add_u32 v{vT1}, {LDS_XS}, v{vT1}')
    for i in range(2): o(f'ds_write_b128 v{vT1}, v[{G+4*i}:{G+4*i+3}] offset:{2048*i}')
    o(f's_cmp_ge_u32 s{sNw}, 784')
    o('s_cbranch_scc1 LN_norep2')
    o(f'v_lshlrev_b32 v{vT0}, 4, v0\nv_add_u32 v{vT1}, s{sL}, v{vT0}')
    o('s_waitcnt vmcnt(0)')
    for j in range(6): o(f'ds_write_b128 v{vT1}, v[{RP+4*j}:{RP+4*j+3}] offset:{1024*j}')
    g_, rho, c_ = 20, 21, 22
    o(f'v_lshrrev_b32 v{g_}, 4, v0\nv_bfe_u32 v{rho}, v0, 2, 2\nv_and_b32 v{c_}, 3, v0')
    vA1, vA2 = 18, 19
    o(f'v_and_b32 v{vT3}, 1, v{g_}\nv_lshlrev_b32 v{vT3}, 11, v{vT3}')
    o(f'v_lshrrev_b32 v{vT1}, 1, v{g_}\nv_lshlrev_b32 v{vT1}, 10, v{vT1}\nv_add_u32 v{vT3}, v{vT3}, v{vT1}')
    o(f'v_lshlrev_b32 v{vT1}, 7, v{rho}\nv_add_u32 v{vT3}, v{vT3}, v{vT1}')
    o(f'v_lshlrev_b32 v{vT1}, 3, v{c_}\nv_add3_u32 v{vA1}, v{vT3}, v{vT1}, s{sL}')
    o(f'v_lshrrev_b32 v{vT3}, 1, v{g_}\nv_lshlrev_b32 v{vT3}, 9, v{vT3}')
    o(f'v_lshlrev_b32 v{vT1}, 7, v{rho}\nv_add_u32 v{vT3}, v{vT3}, v{vT1}')
    o(f'v_and_b32 v{vT1}, 1, v{g_}\nv_lshlrev_b32 v{vT1}, 5, v{vT1}\nv_add_u32 v{vT3}, v{vT3}, v{vT1}')
    o(f'v_lshlrev_b32 v{vT1}, 3, v{c_}\nv_add3_u32 v{vA2}, v{vT3}, v{vT1}, s{sL}')
    o('s_waitcnt lgkmcnt(0)')
    F = 32
    for tt in range(4):
        o(f'ds_read_b64_tr_b16 v[{F+4*tt}:{F+4*tt+1}], v{vA1} offset:{tt*32}')
        o(f'ds_read_b64_tr_b16 v[{F+4*tt+2}:{F+4*tt+3}], v{vA1} offset:{tt*32 + 512}')
    for mt in range(2):
        o(f'ds_read_b64_tr_b16 v[{F+16+4*mt}:{F+16+4*mt+1}], v{vA2} offset:{4096 + mt*64}')
        o(f'ds_read_b64_tr_b16 v[{F+16+4*mt+2}:{F+16+4*mt+3}], v{vA2} offset:{4096 + mt*64 + 1024}')
    o(f's_mul_i32 s{sT1}, s{sSb}, {4 * 29}\ns_add_u32 s{sT1}, s{sT1}, s{sKk}\ns_lshl_b32 s{sT1}, s{sT1}, 10\ns_add_u32 s{sT1}, s{sT1}, {WS_WP}')
    o('s_waitcnt lgkmcnt(0)')
    for tt in range(4):
        o(f'buffer_store_dwordx4 v[{F+4*tt}:{F+4*tt+3}], v{vT0}, s[{SRD_WS}:{SRD_WS+3}], s{sT1} offen {ST}')
        if tt < 3: o(f's_add_u32 s{sT1}, s{sT1}, {29 * 1024}')
    o(f's_mul_i32 s{sT1}, s{sDb}, 224\ns_add_u32 s{sT1}, s{sT1}, s{sKt}\ns_lshl_b32 s{sT1}, s{sT1}, 10\ns_add_u32 s{sT1}, s{sT1}, {WS_WD}')
    o(f'buffer_store_dwordx4 v[{F+16}:{F+19}], v{vT0}, s[{SRD_WS}:{SRD_WS+3}], s{sT1} offen {ST}')
    o(f's_add_u32 s{sT1}, s{sT1}, {112 * 1024}')
    o(f'buffer_store_dwordx4 v[{F+20}:{F+23}], v{vT0}, s[{SRD_WS}:{SRD_WS+3}], s{sT1} offen {ST}')
    o.label('LN_norep2')
    o('s_waitcnt lgkmcnt(0)')
    stamp(o, stamps, 5)
    o('s_barrier')
    stamp(o, stamps, 6)
    finish(o, stamps)

vAt, vAt2 = 250, 251
def epoch_atomic(o):
    srd(o, SRD_DBG, sDbg, 256)
    o(f's_and_b32 s{sT1}, s2, 3\ns_lshl_b32 s{sT1}, s{sT1}, 6')
    o(f'v_mov_b32 v{vAt}, 1\nv_mov_b32 v{vAt2}, 0')
    o('s_mov_b64 exec, 1')
    o(f'buffer_atomic_add v{vAt}, v{vAt2}, s[{SRD_DBG}:{SRD_DBG+3}], s{sT1} offen sc1')
    o('s_mov_b64 exec, -1')
def epoch_finish(o, pfx):
    srd(o, SRD_DBG, sDbg, 256)
    o(f'v_and_b32 v{vAt}, 3, v0\nv_lshlrev_b32 v{vAt}, 6, v{vAt}')
    o(f's_mov_b32 s{sT1}, 0')
    o.label(f'L{pfx}_epoll')
    o(f'buffer_load_dword v252, v{vAt}, s[{SRD_DBG}:{SRD_DBG+3}], 0 offen sc1')
    o('s_waitcnt vmcnt(0)')
    o('v_cmp_ne_u32 vcc, 64, v252')
    o(f's_cbranch_vccz L{pfx}_eok')
    o(f's_add_u32 s{sT1}, s{sT1}, 1\ns_cmp_lt_u32 s{sT1}, 0x40000')
    o(f's_cbranch_scc1 L{pfx}_epoll')
    o(f'L{pfx}_eok:')
    o('s_mov_b64 exec, 1')
    o(f'buffer_store_dword v{vTag}, v{vAt2}, s[{SRD_WS}:{SRD_WS+3}], 0 offen sc1')
    o('s_mov_b64 exec, -1')

def gen_spare(o, q0, stamps):
    vm = VM(o); vm.q = q0
    if PRETOUCH & 1:
        o(f's_cmp_eq_u32 s{sWave}, 5')
        o('s_cbranch_scc0 LS_notouch')
        o('v_and_b32 v30, 15, v0\nv_lshlrev_b32 v30, 21, v30')
        o(f'buffer_load_dword v31, v30, s[{SRD_WS}:{SRD_WS+3}], 0 offen')
        o(f's_load_dwordx2 s[48:49], s[0:1], 104')
        o('s_waitcnt lgkmcnt(0)')
        o(f's_mov_b32 s50, 1835008\ns_mov_b32 s51, 0x00020000')
        o('v_and_b32 v30, 1, v0\nv_mul_u32_u24 v30, 0x1bfffc, v30')
        o('s_mov_b64 exec, 3')
        o(f'buffer_load_dword v32, v30, s[48:51], 0 offen')
        o('s_mov_b64 exec, -1')
        o.label('LS_notouch')
    o(f's_cmp_ge_u32 s{sWave}, 4')
    o('s_cbranch_scc1 LS_prodd')
    row_stats(o, vm)
    o.label('LS_prodd')
    o('s_waitcnt vmcnt(0)')
    make_tag(o)
    o('s_barrier')
    stamp(o, stamps, 0)
    o(f's_cmp_eq_u32 s{sWave}, 7')
    o('s_cbranch_scc0 LS_noat')
    epoch_atomic(o)
    o.label('LS_noat')
    if SPARE_WAIT:
        o(f's_cmp_eq_u32 s{sWave}, 0')
        o('s_cbranch_scc0 LS_go')
        o(f's_mov_b32 s{sT3}, {WS_T + 223 * 8192 + 8176}\ns_mov_b32 s{sT2}, {WS_T2 + 223 * 8192 + 8176}\ns_mov_b32 s{sT1}, 0')
        o.label('LS_poll')
        o(f'buffer_load_dword v64, v251, s[{SRD_WS}:{SRD_WS+3}], s{sT3} offen sc1')
        o(f'buffer_load_dword v65, v251, s[{SRD_WS}:{SRD_WS+3}], s{sT2} offen sc1')
        o('s_waitcnt vmcnt(0)')
        o(f'v_xor_b32 v64, v64, v65\nv_cmp_ne_u32 vcc, v64, v{vTag}')
        o('s_cbranch_vccz LS_go')
        o('s_sleep 8')
        o(f's_add_u32 s{sT1}, s{sT1}, 1\ns_cmp_lt_u32 s{sT1}, 0x20000\ns_cbranch_scc1 LS_poll')
        o.label('LS_go')
        o('s_barrier')
    sMat, sFs = 44, 45
    o(f's_lshr_b32 s{sMat}, s{sSp}, 4\ns_and_b32 s{sFs}, s{sSp}, 15')
    o(f's_cmp_eq_u32 s{sMat}, 0')
    o(f's_cselect_b32 s48, s{sWg}, s{sWu}\ns_cselect_b32 s49, s{sWg+1}, s{sWu+1}')
    o('s_mov_b32 s50, 1605632\ns_mov_b32 s51, 0x00020000')
    vTid, vG, vC, vOf = 16, 17, 18, 19
    o(f's_lshl_b32 s{sT0}, s{sWave}, 6\nv_add_u32 v{vTid}, s{sT0}, v0')
    o(f'v_mul_u32_u24 v{vG}, 4682, v{vTid}\nv_lshrrev_b32 v{vG}, 16, v{vG}')
    o(f'v_mul_u32_u24 v{vC}, 14, v{vG}\nv_sub_u32 v{vC}, v{vTid}, v{vC}')
    o(f'v_mul_u32_u24 v{vOf}, 3584, v{vG}\nv_lshlrev_b32 v{vT0}, 4, v{vC}\nv_add_u32 v{vOf}, v{vOf}, v{vT0}')
    o(f's_mul_i32 s{sT1}, s{sFs}, 224')
    L = 32
    o(f's_cmp_ge_u32 s{sWave}, 7')
    o('s_cbranch_scc1 LS_skip')
    for i in range(14):
        o(f'buffer_load_dwordx4 v[{L+4*i}:{L+4*i+3}], v{vOf}, s[48:51], s{sT1} offen')
        if i < 13: o(f's_add_u32 s{sT1}, s{sT1}, {32 * 3584}')
    A = 96
    for j in range(8): o(f'v_mov_b32 v{A+j}, 0')
    for i in range(14):
        o(f's_waitcnt vmcnt({13 - i})')
        for r in range(4):
            unpack(o, 104, 105, L + 4*i + r)
            o(f'v_add_f32 v{A+2*r}, v{A+2*r}, v104\nv_add_f32 v{A+2*r+1}, v{A+2*r+1}, v105')
    o(f'v_mul_u32_u24 v{vT0}, 448, v{vG}\nv_lshlrev_b32 v{vT1}, 5, v{vC}\nv_add_u32 v{vT0}, v{vT0}, v{vT1}')
    o(f'ds_write_b128 v{vT0}, v[{A}:{A+3}]\nds_write_b128 v{vT0}, v[{A+4}:{A+7}] offset:16')
    o.label('LS_skip')
    o('s_waitcnt lgkmcnt(0)')
    o('s_barrier')
    o(f's_cmp_ge_u32 s{sWave}, 2')
    o('s_cbranch_scc1 LS_done')
    o(f'v_lshlrev_b32 v{vT0}, 2, v{vTid}')
    for g in range(32): o(f'ds_read_b32 v{L+g}, v{vT0} offset:{448*g}')
    o('s_waitcnt lgkmcnt(0)')
    for g in range(1, 32): o(f'v_add_f32 v{L}, v{L}, v{L+g}')
    o(f'v_cvt_pk_bf16_f32 v{L+1}, v{L}, v{L}\nv_and_b32 v{L+1}, 0xffff0000, v{L+1}\nv_sub_f32 v{L+1}, v{L}, v{L+1}')
    Z = 68
    o(f'v_cvt_pk_bf16_f32 v{Z}, v{L}, v{L+1}')
    for j in range(1, 8): o(f'v_mov_b32 v{Z+j}, 0')
    o(f'v_lshrrev_b32 v{vT0}, 4, v{vTid}\ns_mul_i32 s{sT1}, s{sFs}, 7\nv_add_u32 v{vT0}, s{sT1}, v{vT0}')
    o(f'v_mul_u32_u24 v{vT0}, 29, v{vT0}\nv_add_u32 v{vT0}, 28, v{vT0}\nv_lshlrev_b32 v{vT0}, 10, v{vT0}')
    o(f'v_and_b32 v{vT1}, 15, v{vTid}\ns_lshl_b32 s{sT1}, s{sMat}, 4\nv_add_u32 v{vT1}, s{sT1}, v{vT1}\nv_lshlrev_b32 v{vT1}, 4, v{vT1}')
    o(f'v_add_u32 v{vT0}, v{vT0}, v{vT1}')
    o(f's_mov_b32 s{sT1}, {WS_WP}')
    o(f'v_cmp_gt_u32 vcc, 112, v{vTid}')
    o(f's_and_saveexec_b64 s[52:53], vcc')
    o('s_cbranch_execz LS_rest')
    o(f'buffer_store_dwordx4 v[{Z}:{Z+3}], v{vT0}, s[{SRD_WS}:{SRD_WS+3}], s{sT1} offen {ST}')
    o(f'buffer_store_dwordx4 v[{Z+4}:{Z+7}], v{vT0}, s[{SRD_WS}:{SRD_WS+3}], s{sT1} offen offset:512')
    o.label('LS_rest')
    o('s_mov_b64 exec, s[52:53]')
    o.label('LS_done')
    o(f's_cmp_eq_u32 s{sWave}, 7')
    o('s_cbranch_scc0 LS_noe')
    o(f's_cmp_eq_u32 s{sSp}, 0')
    o('s_cbranch_scc0 LS_noe')
    epoch_finish(o, 'S')
    o.label('LS_noe')
    finish(o, stamps)
def desc_ab(): return kernel_desc(NAME, 256, 100, accum=256)
def launch_ab(): return f'; @launch kernel={NAME} grid=(256,1,1) block=(512,1,1) lds={LDS_BYTES}'
```

```python
from asmlib import *
from layout import *
from vm import VM
NAME = 'ssm_kernel'
PREFETCH = True
SPARE_WAIT = False
POL0 = 'sc1'
REC_AT = 99
MASKED_RETRY = 1
X_TACK = 0
X_WHO = 0
PRETOUCH = 8
SWAP_ROLES = 1
HST = ''
X_NOA = 0
X_NOB = 0
X_NOM = 0
LA = 3
RP_AT = 99
ST = ''
TAB = 16896
LDS_US = 8 * TAB
LDS_XS = LDS_US + 2 * 4608
LDS_EX = LDS_XS + 2 * 4096
LDS_BYTES = LDS_EX + 8192
KR_COPY = 4160; KR_CH = 2 * KR_COPY
LDS_CX = 17408
LDS_RP = LDS_CX + 16384
LOG2E = 0x3fb8aa3b; INV2PI = 0x3e22f983; INV448 = 0x3b124925; EPS = 0x3727c5ac
sX, sAre, sAim, sBre, sBim, sCre, sCim, sLdt = 8, 10, 12, 14, 16, 18, 20, 22
sDsk, sWd, sWg, sWu, sDbg, sWs = 24, 26, 28, 30, 32, 34
SRD_X, SRD_WS = 36, 40
SRD_P = [44, 48, 52, 56, 60, 64]
SRD_WG, SRD_WU, SRD_WD, SRD_DBG = 68, 72, 76, 80
sWave, sPair, sCh, sMh, sLdtV, sDskV = 3, 84, 85, 86, 87, 88
sT0, sT1, sT2, sT3, sT4, sT5 = 89, 90, 91, 92, 93, 94
sSp = 95
vLane, vTag, vE, vT0, vT1, vT2, vT3 = 0, 1, 2, 3, 4, 6, 7
vXR = 8
vS, vQ = 12, 13
def cmul(o, d, p, q):
    o(f'v_pk_mul_f32 v[{d}:{d+1}], v[{p}:{p+1}], v[{q}:{q+1}] op_sel_hi:[0,1]')
    o(f'v_pk_fma_f32 v[{d}:{d+1}], v[{p}:{p+1}], v[{q}:{q+1}], v[{d}:{d+1}] op_sel:[1,1,0] op_sel_hi:[1,0,1] neg_lo:[1,0,0]')
def cmul2(o, dA, pA, qA, dB, pB, qB):
    o(f'v_pk_mul_f32 v[{dA}:{dA+1}], v[{pA}:{pA+1}], v[{qA}:{qA+1}] op_sel_hi:[0,1]')
    o(f'v_pk_mul_f32 v[{dB}:{dB+1}], v[{pB}:{pB+1}], v[{qB}:{qB+1}] op_sel_hi:[0,1]')
    o(f'v_pk_fma_f32 v[{dA}:{dA+1}], v[{pA}:{pA+1}], v[{qA}:{qA+1}], v[{dA}:{dA+1}] op_sel:[1,1,0] op_sel_hi:[1,0,1] neg_lo:[1,0,0]')
    o(f'v_pk_fma_f32 v[{dB}:{dB+1}], v[{pB}:{pB+1}], v[{qB}:{qB+1}], v[{dB}:{dB+1}] op_sel:[1,1,0] op_sel_hi:[1,0,1] neg_lo:[1,0,0]')
vXB = 168
vTL = 172
IMG_A = LDS_US
IMG_B = LDS_XS
def e_load(o, vm):
    o(f'buffer_load_dword v{vE}, off, s[{SRD_WS}:{SRD_WS+3}], 0 sc1'); vm.issue('E')
def make_tag(o):
    o(f's_mov_b32 s{sT0}, 0x9E3779B1')
    o(f'v_mul_lo_u32 v{vTag}, v{vE}, s{sT0}')
    o(f'v_add_u32 v{vTag}, 0x7F4A7C15, v{vTag}')
def row_loads(o, vm, woff=0):
    for j in range(4): o(f'v_mov_b32 v{vXR+j}, 0\nv_mov_b32 v{vXB+j}, 0')
    o(f's_lshl_b32 s{sT2}, s2, 3\ns_sub_u32 s{sT4}, s{sWave}, {woff}\ns_lshl_b32 s{sT4}, s{sT4}, 1\ns_add_u32 s{sT2}, s{sT2}, s{sT4}')
    o(f's_mul_i32 s{sT2}, s{sT2}, 896')
    o(f'v_lshlrev_b32 v{vT1}, 4, v0')
    o('s_mov_b32 exec_hi, 0x00ffffff')
    o(f'buffer_load_dwordx4 v[{vXR}:{vXR+3}], v{vT1}, s[{SRD_X}:{SRD_X+3}], s{sT2} offen'); vm.issue('xrow')
    o(f'buffer_load_dwordx4 v[{vXB}:{vXB+3}], v{vT1}, s[{SRD_X}:{SRD_X+3}], s{sT2} offen offset:896'); vm.issue('xrow')
    o('s_mov_b32 exec_hi, -1')
def row_stats(o, vm, woff=0):
    SA, QA, SB, QB = 12, 13, 180, 181
    vm.wait('xrow')
    make_tag(o)
    for r in (SA, QA, SB, QB): o(f'v_mov_b32 v{r}, 0')
    o(f'v_mov_b32 v{vT1}, 0x3f803f80')
    for j in range(4):
        o(f'v_dot2c_f32_bf16 v{SA}, v{vXR+j}, v{vT1}')
        o(f'v_dot2c_f32_bf16 v{QA}, v{vXR+j}, v{vXR+j}')
        o(f'v_dot2c_f32_bf16 v{SB}, v{vXB+j}, v{vT1}')
        o(f'v_dot2c_f32_bf16 v{QB}, v{vXB+j}, v{vXB+j}')
    o('s_nop 2')
    for ctl in ['row_shr:1', 'row_shr:2', 'row_shr:4', 'row_shr:8']:
        for r in (SA, QA, SB, QB): o(f'v_add_f32_dpp v{r}, v{r}, v{r} {ctl} row_mask:0xf bank_mask:0xf bound_ctrl:0')
    for ctl, rm in [('row_bcast:15', '0xa'), ('row_bcast:31', '0xc')]:
        for r in (SA, QA, SB, QB): o(f'v_add_f32_dpp v{r}, v{r}, v{r} {ctl} row_mask:{rm} bank_mask:0xf')
    RR = 192
    for S_, Q_, dst in ((SA, QA, RR), (SB, QB, RR + 2)):
        o(f'v_mul_f32 v{S_}, {hex(INV448)}, v{S_}\nv_mul_f32 v{Q_}, {hex(INV448)}, v{Q_}')
    for S_, Q_, dst in ((SA, QA, RR), (SB, QB, RR + 2)):
        o(f'v_fma_f32 v{Q_}, -v{S_}, v{S_}, v{Q_}\nv_max_f32 v{Q_}, 0, v{Q_}')
    for op in ('v_cvt_pk_bf16_f32 v{q}, v{q}, v{q}', 'v_and_b32 v{q}, 0xffff0000, v{q}', 'v_add_f32 v{q}, ' + hex(EPS) + ', v{q}',
               'v_cvt_pk_bf16_f32 v{q}, v{q}, v{q}', 'v_and_b32 v{q}, 0xffff0000, v{q}', 'v_sqrt_f32 v{q}, v{q}'):
        for Q_ in (QA, QB): o(op.format(q=Q_))
    o(f'v_cvt_pk_bf16_f32 v{RR}, v{SA}, v{QA}\nv_cvt_pk_bf16_f32 v{RR+2}, v{SB}, v{QB}')
    o(f'v_xor_b32 v{RR+1}, v{RR}, v{vTag}\nv_xor_b32 v{RR+3}, v{RR+2}, v{vTag}')
    o(f's_lshl_b32 s{sT0}, s2, 3\ns_sub_u32 s{sT1}, s{sWave}, {woff}\ns_lshl_b32 s{sT1}, s{sT1}, 1\ns_add_u32 s{sT0}, s{sT0}, s{sT1}')
    o(f's_lshl_b32 s{sT0}, s{sT0}, 3\ns_add_u32 s{sT0}, s{sT0}, {WS_REC}')
    o('s_mov_b32 exec_lo, 0\ns_mov_b32 exec_hi, 0x80000000')
    o(f'buffer_store_dwordx4 v[{RR}:{RR+3}], v251, s[{SRD_WS}:{SRD_WS+3}], s{sT0} offen sc1'); vm.issue('rec')
    o('s_mov_b64 exec, -1')
def tile_loads(o, vm):
    o(f'buffer_load_dwordx4 v[{vTL}:{vTL+3}], v21, s[{SRD_X}:{SRD_X+3}], s96 offen'); vm.issue('tile')
    o(f'buffer_load_dwordx4 v[{vTL+4}:{vTL+7}], v21, s[{SRD_X}:{SRD_X+3}], s97 offen'); vm.issue('tile')
def tile_image(o, vm):
    vm.wait('tile')
    o(f's_sub_u32 s{sT4}, s{sWave}, 4\ns_lshl_b32 s{sT4}, s{sT4}, 3')
    o(f'v_lshrrev_b32 v{vT0}, 3, v0\nv_add_u32 v{vT0}, s{sT4}, v{vT0}\nv_mul_u32_u24 v{vT0}, 144, v{vT0}')
    o(f'v_and_b32 v{vT1}, 7, v0\nv_lshlrev_b32 v{vT1}, 4, v{vT1}\nv_add_u32 v{vT0}, v{vT0}, v{vT1}')
    o(f'v_add_u32 v{vT0}, {IMG_A}, v{vT0}')
    o(f'ds_write_b128 v{vT0}, v[{vTL}:{vTL+3}]')
    o(f'ds_write_b128 v{vT0}, v[{vTL+4}:{vTL+7}] offset:{32 * 144}')
def tile_transpose(o, vm, woff=4):
    o(f'v_lshrrev_b32 v{vT0}, 4, v0\nv_lshlrev_b32 v{vT0}, 2, v{vT0}\nv_bfe_u32 v{vT1}, v0, 2, 2\nv_add_u32 v{vT0}, v{vT0}, v{vT1}')
    o(f'v_mul_u32_u24 v{vT0}, 144, v{vT0}')
    o(f'v_and_b32 v{vT1}, 3, v0\nv_lshlrev_b32 v{vT1}, 3, v{vT1}\nv_add_u32 v{vT0}, v{vT0}, v{vT1}')
    o(f's_sub_u32 s{sT4}, s{sWave}, {woff}\ns_lshl_b32 s{sT0}, s{sT4}, 5\ns_add_u32 s{sT0}, s{sT0}, {IMG_A}')
    o(f'v_add_u32 v{vT0}, s{sT0}, v{vT0}')
    for i in range(4): o(f'ds_read_b64_tr_b16 v[{vTL+2*i}:{vTL+2*i+1}], v{vT0} offset:{16 * 144 * i}')
    o(f'v_and_b32 v{vT1}, 15, v0\nv_mul_u32_u24 v{vT1}, 144, v{vT1}')
    o(f'v_lshrrev_b32 v{vT2}, 4, v0\nv_lshlrev_b32 v{vT2}, 3, v{vT2}\nv_add_u32 v{vT1}, v{vT1}, v{vT2}')
    o(f's_mul_i32 s{sT0}, s{sT4}, {16 * 144}\ns_add_u32 s{sT0}, s{sT0}, {IMG_B}')
    o(f'v_add_u32 v{vT1}, s{sT0}, v{vT1}')
    o(f'v_lshrrev_b32 v{vT2}, 3, v0\nv_mul_u32_u24 v{vT2}, 144, v{vT2}')
    o(f'v_and_b32 v{vT3}, 7, v0\nv_lshlrev_b32 v{vT3}, 4, v{vT3}\nv_add_u32 v{vT2}, v{vT2}, v{vT3}')
    o(f'v_add_u32 v{vT2}, s{sT0}, v{vT2}')
    for i in range(4):
        o(f's_waitcnt lgkmcnt({3 - i})' if i == 0 else f's_waitcnt lgkmcnt(3)')
        o(f'ds_write_b64 v{vT1}, v[{vTL+2*i}:{vTL+2*i+1}] offset:{32 * i}')
    o(f's_mul_i32 s{sT0}, s{sPair}, 9363\ns_lshr_b32 s{sT0}, s{sT0}, 16')
    o(f's_mul_i32 s{sT1}, s{sT0}, 7\ns_sub_u32 s{sT1}, s{sPair}, s{sT1}')
    o(f's_lshl_b32 s{sT1}, s{sT1}, 5\ns_add_u32 s{sT0}, s{sT0}, s{sT1}\ns_lshl_b32 s{sT0}, s{sT0}, 13')
    o(f's_lshl_b32 s{sT1}, s{sT4}, 11\ns_add_u32 s{sT0}, s{sT0}, s{sT1}')
    o(f's_add_u32 s{sT1}, s{sT0}, {WS_T2}\ns_add_u32 s{sT0}, s{sT0}, {WS_T}')
    o(f'v_lshlrev_b32 v{vT0}, 4, v0')
    o('s_waitcnt lgkmcnt(0)')
    o(f'ds_read_b128 v[{vTL}:{vTL+3}], v{vT2}')
    o(f'ds_read_b128 v[{vTL+4}:{vTL+7}], v{vT2} offset:{8 * 144}')
    X2 = 184
    for h in range(2):
        o(f's_waitcnt lgkmcnt({1 - h})')
        o(f'buffer_store_dwordx4 v[{vTL+4*h}:{vTL+4*h+3}], v{vT0}, s[{SRD_WS}:{SRD_WS+3}], s{sT0} offen offset:{1024*h} sc1'); vm.issue('ts')
        for j in range(4): o(f'v_xor_b32 v{X2+4*h+j}, v{vTL+4*h+j}, v{vTag}')
        o(f'buffer_store_dwordx4 v[{X2+4*h}:{X2+4*h+3}], v{vT0}, s[{SRD_WS}:{SRD_WS+3}], s{sT1} offen offset:{1024*h} sc1'); vm.issue('ts')
def seed(o, dst, ar2, ai2, t, tmp, conj=False):
    o(f'v_mul_f32 v{tmp}, {float(t)}, v{ar2}' if t in (1, 2, 4) else f'v_mul_f32 v{tmp}, {hex(f32(t))}, v{ar2}')
    o(f'v_mul_f32 v{tmp+1}, {float(t)}, v{ai2}' if t in (1, 2, 4) else f'v_mul_f32 v{tmp+1}, {hex(f32(t))}, v{ai2}')
    o(f'v_exp_f32 v{tmp}, v{tmp}')
    o(f'v_fract_f32 v{tmp+1}, v{tmp+1}')
    o('s_nop 0')
    o(f'v_cos_f32 v{dst}, v{tmp+1}')
    o(f'v_sin_f32 v{dst+1}, v{tmp+1}')
    o('s_nop 0')
    o(f'v_mul_f32 v{dst}, v{tmp}, v{dst}')
    if conj: o(f'v_mul_f32 v{dst+1}, -v{dst+1}, v{tmp}'.replace('v_mul_f32', 'v_mul_f32_e64'))
    else: o(f'v_mul_f32 v{dst+1}, v{tmp}, v{dst+1}')
import struct
def f32(x): return struct.unpack('<I', struct.pack('<f', float(x)))[0]
def compute_dt(o, vdt):
    o(f's_lshl_b32 s{sT0}, s{sLdtV}, 16')
    o(f's_and_b32 s{sT1}, s{sLdtV}, 0xffff0000')
    o(f's_cmp_eq_u32 s{sCh}, 0')
    o(f's_cselect_b32 s{sT0}, s{sT0}, s{sT1}')
    o(f'v_mov_b32 v{vdt}, s{sT0}')
    o(f'v_mul_f32 v{vdt}, {hex(LOG2E)}, v{vdt}')
    o(f'v_exp_f32 v{vdt}, v{vdt}')
    o('s_nop 0')
    o(f'v_cvt_pk_bf16_f32 v{vdt}, v{vdt}, v{vdt}')
    o(f'v_and_b32 v{vdt}, 0xffff0000, v{vdt}')
def unpack(o, dlo, dhi, src):
    o(f'v_lshlrev_b32 v{dlo}, 16, v{src}')
    o(f'v_and_b32 v{dhi}, 0xffff0000, v{src}')
class RowWriter:
    def __init__(self, o, vaddr, out0): self.o, self.va, self.out0, self.n = o, vaddr, out0, 0
    def write(self, rows, cA, cB):
        r = self.out0 + 2 * (self.n % 4); self.n += 1
        self.o(f'v_cvt_pk_bf16_f32 v{r}, v{cA}, v{cA+1}')
        self.o(f'v_cvt_pk_bf16_f32 v{r+1}, v{cB}, v{cB+1}')
        for m in rows: self.o(f'ds_write_b64 v{self.va}, v[{r}:{r+1}] offset:{m * 528}')
def stamp(o, on, idx):
    if on: o(f's_memtime s[{96 + 0}:{97}]'); o('s_waitcnt lgkmcnt(0)'); o(f'v_writelane_b32 v255, s96, {idx}')

def gen_ab(o, stamps=False):
    kernel_begin(o, NAME)
    o('s_cmp_ge_u32 s2, 256')
    o('s_cbranch_scc1 LA_end')
    o('s_load_dwordx16 s[8:23], s[0:1], 0')
    o(f's_load_dwordx2 s[{sDsk}:{sDsk+1}], s[0:1], 64')
    o(f's_load_dwordx4 s[{sWg}:{sWg+3}], s[0:1], 80')
    o(f's_load_dwordx2 s[{sWd}:{sWd+1}], s[0:1], 96')
    o(f's_load_dwordx4 s[{sDbg}:{sDbg+3}], s[0:1], 112')
    if stamps: o('v_mov_b32 v255, 0'); o('s_memtime s[98:99]')
    o(f'v_lshrrev_b32 v{vT0}, 6, v0')
    o('v_and_b32 v0, 63, v0')
    o(f'v_readfirstlane_b32 s{sWave}, v{vT0}')
    o(f's_and_b32 s{sT0}, s2, 7')
    o(f's_lshr_b32 s{sT1}, s2, 3')
    if PREFETCH: code_prefetch(o, NAME, 'code_end', sT1, sWave, 8, 240, 244, 52, 'ab')
    o(f's_mul_i32 s{sPair}, s{sT0}, 28')
    o(f's_add_u32 s{sPair}, s{sPair}, s{sT1}')
    o(f's_lshl_b32 s{sSp}, s{sT0}, 2')
    o(f's_add_u32 s{sSp}, s{sSp}, s{sT1}')
    o(f's_sub_u32 s{sSp}, s{sSp}, 28')
    o(f's_lshr_b32 s{sCh}, s{sWave}, 1')
    o(f's_and_b32 s{sCh}, s{sCh}, 1')
    o(f's_and_b32 s{sMh}, s{sWave}, 1')
    o('v_mov_b32 v250, 0\nv_mov_b32 v251, 0')
    if SWAP_ROLES:
        o(f's_xor_b32 s{sT2}, s{sWave}, 4\ns_cmp_lt_u32 s{sT1}, 28\ns_cselect_b32 s{sWave}, s{sT2}, s{sWave}')
    o(f's_lshl_b32 s{sT2}, s{sPair}, 1\ns_add_u32 s{sT2}, s{sT2}, s{sCh}\ns_lshl_b32 s{sT3}, s{sT2}, 9')
    o(f's_lshl_b32 s{sT4}, s{sMh}, 8\ns_add_u32 s{sT3}, s{sT3}, s{sT4}')
    o(f'v_lshlrev_b32 v{vT2}, 2, v0')
    o(f's_mul_i32 s96, s{sPair}, 9363\ns_lshr_b32 s96, s96, 16')
    o(f's_mul_i32 s97, s96, 7\ns_sub_u32 s97, s{sPair}, s97')
    o(f's_mul_i32 s96, s96, {64 * 896}\ns_lshl_b32 s97, s97, 7\ns_add_u32 s96, s96, s97')
    o(f's_and_b32 s97, s{sWave}, 3\ns_lshl_b32 s97, s97, 3')
    o(f'v_lshrrev_b32 v21, 3, v0\nv_add_u32 v21, s97, v21\nv_mul_u32_u24 v21, 896, v21')
    o(f'v_and_b32 v{vT1}, 7, v0\nv_lshlrev_b32 v{vT1}, 4, v{vT1}\nv_add_u32 v21, v21, v{vT1}')
    o(f's_add_u32 s97, s96, {32 * 896}')
    o(f's_lshl_b32 s{sT5}, s{sPair}, 2')
    o('s_waitcnt lgkmcnt(0)')
    if WS_SHIFT: o(f's_add_u32 s{sWs}, s{sWs}, {WS_SHIFT}\ns_addc_u32 s{sWs+1}, s{sWs+1}, 0')
    srd(o, SRD_X, sX, 1835008)
    srd(o, SRD_WS, sWs, WS_END)
    vm = VM(o)
    o(f's_cmp_ge_u32 s{sT1}, 28')
    o('s_cbranch_scc0 LA_conv')
    vms = VM(o)
    e_load(o, vms)
    o(f's_cmp_ge_u32 s{sWave}, 4')
    o('s_cbranch_scc1 LA_spare')
    row_loads(o, vms)
    if PRETOUCH & 8: rec_touch(o, vms)
    o('s_branch LA_spare')
    o.label('LA_conv')
    o(f's_load_dword s{sLdtV}, s[{sLdt}:{sLdt+1}], s{sT5}')
    o(f's_load_dword s{sDskV}, s[{sDsk}:{sDsk+1}], s{sT5}')
    o(f's_cmp_ge_u32 s{sWave}, 4')
    o('s_cbranch_scc0 LA_mloads')
    vmn = VM(o)
    n_first_loads(o, vmn)
    o('s_branch LA_nwave')
    o.label('LA_mloads')
    vmm = VM(o)
    m_first_loads(o, vmm)
    gen_mwave(o, vmm.q[:], stamps)
    o.label('LA_nwave')
    gen_nwave(o, vmn.q[:], stamps)
    o.label('LA_spare')
    gen_spare(o, vms.q[:], stamps)
    o.label('LA_end')
    o('s_endpgm')

def finish(o, stamps):
    if stamps:
        o('s_waitcnt vmcnt(0) lgkmcnt(0)')
        stamp(o, True, 15)
        o('v_writelane_b32 v255, s98, 14')
        srd(o, 44, sWs, 0x40000, 0x1820000)
        o(f's_lshl_b32 s{sT0}, s2, 3\ns_add_u32 s{sT0}, s{sT0}, s{sWave}\ns_lshl_b32 s{sT0}, s{sT0}, 6')
        o(f'v_lshlrev_b32 v254, 2, v0')
        o('s_mov_b64 exec, 0xffff')
        o(f'buffer_store_dword v255, v254, s[44:47], s{sT0} offen')
    o('s_endpgm')

def m_first_loads(o, vm):
    P = 16
    e_load(o, vm)
    for i, p in enumerate([sAre, sAim, sBre, sBim, sCre, sCim]):
        srd(o, SRD_P[i], p, 229376)
        o(f'buffer_load_dword v{P+i}, v{vT2}, s[{SRD_P[i]}:{SRD_P[i]+3}], s{sT3} offen'); vm.issue('par')
def n_first_loads(o, vm):
    P = 16
    tile_loads(o, vm)
    e_load(o, vm)
    o(f'v_mov_b32 v20, v{vT2}')
    row_loads(o, vm, 4)
    if PRETOUCH & 8: rec_touch(o, vm)
    for i, p in enumerate([sAre, sAim]): srd(o, SRD_P[i], p, 229376)
    for i in range(2):
        o(f'buffer_load_dword v{P+i}, v20, s[{SRD_P[i]}:{SRD_P[i]+3}], s{sT3} offen'); vm.issue('par')
def rec_touch(o, vm):
    o(f's_lshl_b32 s{sT0}, s2, 6\ns_add_u32 s{sT0}, s{sT0}, {WS_REC}')
    o('s_mov_b64 exec, 1')
    o(f'buffer_load_dword v248, v251, s[{SRD_WS}:{SRD_WS+3}], s{sT0} offen sc1'); vm.issue('pt')
    o('s_mov_b64 exec, -1')
def gen_mwave(o, q0, stamps):
    vm = VM(o); vm.q = q0
    P = 16
    if PRETOUCH & 4:
        o(f's_mul_i32 s{sT0}, s{sPair}, 9363\ns_lshr_b32 s{sT0}, s{sT0}, 16')
        o(f's_mul_i32 s{sT1}, s{sT0}, 7\ns_sub_u32 s{sT1}, s{sPair}, s{sT1}')
        o(f's_lshl_b32 s{sT1}, s{sT1}, 5\ns_add_u32 s{sT0}, s{sT0}, s{sT1}\ns_lshl_b32 s{sT0}, s{sT0}, 13')
        o(f's_lshl_b32 s{sT1}, s{sWave}, 11\ns_add_u32 s{sT0}, s{sT0}, s{sT1}\ns_add_u32 s{sT0}, s{sT0}, {WS_T}')
        o(f'v_and_b32 v30, 15, v0\nv_lshlrev_b32 v30, 7, v30\nv_bfe_u32 v31, v0, 4, 1\nv_mul_u32_u24 v31, {(WS_T2 - WS_T) >> 4}, v31\nv_lshlrev_b32 v31, 4, v31\nv_add_u32 v30, v30, v31')
        o('s_mov_b64 exec, 0xffffffff')
        o(f'buffer_load_dword v248, v30, s[{SRD_WS}:{SRD_WS+3}], s{sT0} offen sc1'); vm.issue('pt')
        o('s_mov_b64 exec, -1')
    if PRETOUCH & 2:
        o('v_and_b32 v30, 15, v0\nv_lshlrev_b32 v30, 21, v30')
        o('s_mov_b64 exec, 0xffff')
        o(f'buffer_load_dword v249, v30, s[{SRD_WS}:{SRD_WS+3}], 0 offen'); vm.issue('pt')
        o('s_mov_b64 exec, -1')
    vm.wait('E')
    make_tag(o)
    o('s_waitcnt lgkmcnt(0)')
    o('s_barrier')
    tile_transpose(o, vm, 0)
    stamp(o, stamps, 0)
    if stamps and X_TACK:
        o('s_waitcnt vmcnt(0)')
        stamp(o, stamps, 7)
    vm.wait('par')
    o('s_waitcnt lgkmcnt(0)')
    o(f's_cmp_eq_u32 s{sWave}, 3')
    o('s_cbranch_scc0 LM_noat')
    epoch_atomic(o)
    o.label('LM_noat')
    vdt = 22
    compute_dt(o, vdt)
    U = 24
    for i in range(6): unpack(o, U + 2*i, U + 2*i + 1, P + i)
    for i in range(4): o(f'v_mul_f32 v{U+i}, v{vdt}, v{U+i}')
    for i in range(4, 8): o(f'v_mul_f32 v{U+i}, v{vdt}, v{U+i}')
    o(f'v_mul_f32 v{U}, {hex(LOG2E)}, v{U}\nv_mul_f32 v{U+1}, {hex(LOG2E)}, v{U+1}')
    o(f'v_mul_f32 v{U+2}, {hex(INV2PI)}, v{U+2}\nv_mul_f32 v{U+3}, {hex(INV2PI)}, v{U+3}')
    X0 = 36; X2 = 40; X4 = 44; X6 = 48; X8 = 52; E1 = 56; CUR = 60; CU2 = 64
    Pw = {k: 68 + 4 * (k - 1) for k in range(1, 8)}
    TMP = 96; OUT = 100
    for mu in range(2):
        bre, bim, cre, cim = U + 4 + mu, U + 6 + mu, U + 8 + mu, U + 10 + mu
        w = X0 + 2 * mu
        o(f'v_mul_f32 v{w}, v{cre}, v{bre}')
        o(f'v_mul_f32 v{w+1}, v{cre}, v{bim}')
        o(f'v_fma_f32 v{w}, -v{cim}, v{bim}, v{w}')
        o(f'v_fma_f32 v{w+1}, v{cim}, v{bre}, v{w+1}')
    for mu in range(2):
        seed(o, E1 + 2*mu, U + mu, U + 2 + mu, 1, TMP + 2*mu)
        seed(o, Pw[1] + 2*mu, U + mu, U + 2 + mu, 256, TMP + 2*mu)
    stamp(o, stamps, 1)
    vTab = 108
    o(f's_lshl_b32 s{sT0}, s{sCh}, 1\ns_add_u32 s{sT0}, s{sT0}, s{sMh}\ns_mul_i32 s{sT0}, s{sT0}, {TAB}')
    o(f'v_lshlrev_b32 v{vTab}, 3, v0\nv_add_u32 v{vTab}, s{sT0}, v{vTab}')
    rw = RowWriter(o, vTab, OUT)
    def c2(d, p, q): cmul2(o, d, p, q, d + 2, p + 2, q + 2)
    rw.write([0], X0, X0 + 2)
    keep = {0: X0, 2: X2, 4: X4, 6: X6, 8: X8}
    prev = X0
    for t in range(1, 9):
        d = keep.get(t, CUR)
        c2(d, prev, E1)
        rows = [t] if t < 8 else [12]
        if t == 4: rows = [4, 8]
        rw.write(rows, d, d + 2)
        prev = d
    c2(Pw[2], Pw[1], Pw[1]); c2(Pw[3], Pw[2], Pw[1]); c2(Pw[4], Pw[2], Pw[2])
    c2(Pw[5], Pw[4], Pw[1]); c2(Pw[6], Pw[4], Pw[2]); c2(Pw[7], Pw[4], Pw[3])
    alt = [CUR, CU2]; n = 0
    def prod(rows, xs, pk):
        nonlocal n
        d = alt[n % 2]; n += 1
        c2(d, keep[xs], Pw[pk]); rw.write(rows, d, d + 2)
    prod([9], 0, 1); prod([10], 2, 1); prod([11, 13], 4, 1); prod([14], 6, 1); prod([15], 8, 1)
    prod([16], 0, 2); prod([17], 4, 2); prod([18], 8, 2)
    prod([20], 0, 3); prod([21], 4, 3); prod([22], 8, 3)
    prod([19], 0, 4); prod([24], 8, 4)
    prod([25], 0, 5); prod([26], 8, 5)
    prod([23], 0, 6); prod([28], 8, 6)
    prod([29], 0, 7); prod([30], 8, 7)
    vA, vB = 109, 110
    o(f'v_and_b32 v{vT0}, 31, v0\nv_mul_u32_u24 v{vT0}, 528, v{vT0}')
    o(f'v_lshrrev_b32 v{vT1}, 5, v0\nv_lshlrev_b32 v{vT1}, 4, v{vT1}')
    o(f'v_add3_u32 v{vA}, v{vT0}, v{vT1}, s{sT0}')
    o(f'v_add_u32 v{vB}, {4 * TAB}, v{vA}')
    AF = 64; ACC = 32; BB = 192; vKA = [208, 209, 210, 211]; vBa = 212
    vR, vHh = 213, 214
    o(f'v_and_b32 v{vR}, 15, v0\nv_lshrrev_b32 v{vHh}, 4, v0')
    o(f'v_and_b32 v{vT0}, 1, v{vR}')
    o(f'v_add_u32 v{vT1}, v{vR}, v{vT0}')
    o(f'v_mul_u32_u24 v{vT0}, {KR_COPY}, v{vT0}')
    o(f'v_lshlrev_b32 v{vT1}, 1, v{vT1}')
    o(f'v_sub_u32 v{vT0}, v{vT0}, v{vT1}')
    o(f'v_lshlrev_b32 v{vT1}, 4, v{vHh}')
    o(f'v_add_u32 v{vT0}, v{vT0}, v{vT1}')
    o(f's_mul_i32 s{sT1}, s{sCh}, {KR_CH}')
    o(f's_lshl_b32 s{sT2}, s{sMh}, 6')
    o(f's_sub_u32 s{sT1}, s{sT1}, s{sT2}')
    o(f's_add_u32 s{sT1}, s{sT1}, {2 * 2032}')
    for g in range(4):
        o(f's_sub_u32 s{sT3}, s{sT1}, {128 * (8 * g + 7)}')
        o(f'v_add_u32 v{vKA[g]}, s{sT3}, v{vT0}')
    o(f'v_lshlrev_b32 v{vT0}, 5, v{vR}\nv_lshlrev_b32 v{vT1}, 4, v{vHh}\nv_add_u32 v{vT0}, v{vT0}, v{vT1}')
    o(f's_mul_i32 s{sT1}, s{sCh}, 4608')
    o(f's_sub_u32 s{sT1}, s{sT1}, s{sT2}')
    o(f's_add_u32 s{sT1}, s{sT1}, {LDS_US + 480 + 64 * 56 - 128 * 31}')
    o(f'v_add_u32 v{vBa}, s{sT1}, v{vT0}')
    vCx = 215
    o(f's_lshl_b32 s{sT1}, s{sWave}, 12')
    o(f's_add_u32 s{sT1}, s{sT1}, {LDS_CX}')
    o(f'v_lshlrev_b32 v{vCx}, 4, v0\nv_add_u32 v{vCx}, s{sT1}, v{vCx}')
    vCp = 220
    o(f's_xor_b32 s{sT1}, s{sWave}, 1\ns_lshl_b32 s{sT1}, s{sT1}, 12\ns_add_u32 s{sT1}, s{sT1}, {LDS_CX}')
    o(f'v_lshlrev_b32 v{vCp}, 4, v0\nv_add_u32 v{vCp}, s{sT1}, v{vCp}')
    vU, vXs, vO = 216, 217, 218
    o(f'v_lshlrev_b32 v{vT0}, 5, v{vR}\nv_lshlrev_b32 v{vT1}, 3, v{vHh}\nv_add_u32 v{vT0}, v{vT0}, v{vT1}')
    o(f's_lshl_b32 s{sT2}, s{sMh}, 11')
    o(f's_mul_i32 s{sT1}, s{sCh}, 4608\ns_add_u32 s{sT1}, s{sT1}, s{sT2}\ns_add_u32 s{sT1}, s{sT1}, {LDS_US + 512}')
    o(f'v_add_u32 v{vU}, s{sT1}, v{vT0}')
    o(f's_lshl_b32 s{sT1}, s{sCh}, 12\ns_add_u32 s{sT1}, s{sT1}, s{sT2}\ns_add_u32 s{sT1}, s{sT1}, {LDS_XS}')
    o(f'v_add_u32 v{vXs}, s{sT1}, v{vT0}')
    o(f's_lshl_b32 s{sT1}, s{sPair}, 1\ns_add_u32 s{sT1}, s{sT1}, s{sCh}\ns_lshl_b32 s{sT1}, s{sT1}, 6')
    o(f's_mul_i32 s{sT2}, s{sMh}, {32 * 28672}')
    o(f's_add_u32 s{sT1}, s{sT1}, s{sT2}\ns_add_u32 s{sT4}, s{sT1}, {WS_HT}')
    vHo = 219
    o(f'v_lshrrev_b32 v{vHo}, 1, v{vR}\nv_mul_u32_u24 v{vHo}, 28672, v{vHo}')
    o(f'v_and_b32 v{vT1}, 1, v{vR}\nv_lshlrev_b32 v{vT1}, 5, v{vT1}\nv_add_u32 v{vHo}, v{vHo}, v{vT1}')
    o(f'v_lshlrev_b32 v{vT1}, 3, v{vHh}\nv_add_u32 v{vHo}, v{vHo}, v{vT1}')
    o(f's_lshl_b32 s{sT1}, s{sDskV}, 16\ns_and_b32 s{sT2}, s{sDskV}, 0xffff0000')
    o(f's_cmp_eq_u32 s{sCh}, 0\ns_cselect_b32 s{sT5}, s{sT1}, s{sT2}')
    o('s_waitcnt lgkmcnt(0)')
    stamp(o, stamps, 2)
    o('s_barrier')
    FR = 112; KD = 16
    def rd(kk):
        b = FR + 8 * (kk % 4)
        o(f'ds_read_b128 v[{b}:{b+3}], v{vA} offset:{kk * 32}')
        o(f'ds_read_b128 v[{b+4}:{b+7}], v{vB} offset:{kk * 32}')
    for kk in range(3): rd(kk)
    for kk in range(16):
        if kk + 3 < 16: rd(kk + 3)
        o(f's_waitcnt lgkmcnt({2 * min(3, 15 - kk)})')
        b = FR + 8 * (kk % 4)
        c = '0' if kk == 0 else f'v[{KD}:{KD+15}]'
        o(f'v_mfma_f32_32x32x16_bf16 v[{KD}:{KD+15}], v[{b}:{b+3}], v[{b+4}:{b+7}], {c}')
    vEx = 111
    o(f's_add_u32 s{sT1}, s{sWave}, 4\ns_mul_i32 s{sT1}, s{sT1}, {TAB}')
    o(f'v_lshlrev_b32 v{vEx}, 4, v0\nv_add_u32 v{vEx}, s{sT1}, v{vEx}')
    o(f's_xor_b32 s{sT2}, s{sWave}, 1\ns_add_u32 s{sT2}, s{sT2}, 4\ns_mul_i32 s{sT2}, s{sT2}, {TAB}')
    o(f'v_lshlrev_b32 v106, 4, v0\nv_add_u32 v106, s{sT2}, v106')
    o('s_nop 7\ns_nop 3')
    o(f's_cmp_eq_u32 s{sMh}, 0')
    o('s_cbranch_scc0 LM_send1')
    o(f'ds_write_b128 v{vEx}, v[{KD+8}:{KD+11}]\nds_write_b128 v{vEx}, v[{KD+12}:{KD+15}] offset:1024')
    o('s_branch LM_sent')
    o.label('LM_send1')
    o(f'ds_write_b128 v{vEx}, v[{KD}:{KD+3}]\nds_write_b128 v{vEx}, v[{KD+4}:{KD+7}] offset:1024')
    o.label('LM_sent')
    o(f'v_mov_b32 v{vEx}, v106')
    o('s_waitcnt lgkmcnt(0)')
    stamp(o, stamps, 3)
    o('s_barrier')
    R = 32
    o(f'ds_read_b128 v[{R}:{R+3}], v{vEx}\nds_read_b128 v[{R+4}:{R+7}], v{vEx} offset:1024')
    vK = 40; vJ = 41; vH = 42; O = 44
    o(f'v_and_b32 v{vJ}, 31, v0\nv_lshrrev_b32 v{vH}, 5, v0')
    o(f's_mul_i32 s{sT1}, s{sCh}, {KR_CH}')
    o(f's_cmp_eq_u32 s{sMh}, 0')
    o('s_cbranch_scc0 LM_exp1')
    o(f'v_lshlrev_b32 v{vK}, 4, v{vJ}\nv_lshlrev_b32 v{vT0}, 3, v{vH}\nv_add_u32 v{vK}, v{vK}, v{vT0}')
    o(f'v_sub_u32 v{vK}, 4088, v{vK}\nv_add_u32 v{vK}, s{sT1}, v{vK}')
    o('s_waitcnt lgkmcnt(0)')
    for j in range(8): o(f'v_add_f32 v{KD+j}, v{KD+j}, v{R+j}')
    a0, a1, a2, a3, a4, sa, sb, sc = [KD + j for j in range(8)]
    cv = lambda d, lo, hi: o(f'v_cvt_pk_bf16_f32 v{d}, v{lo}, v{hi}')
    cv(O, a3, a2); cv(O+1, a1, a0); cv(O+2, a4, a3); cv(O+3, a2, a1)
    o(f'ds_write_b64 v{vK}, v[{O}:{O+1}] offset:{KR_COPY}')
    o(f'ds_write_b64 v{vK}, v[{O+2}:{O+3}]')
    cv(O+4, sc, sb); cv(O+5, sa, sa); cv(O+6, sc, sc); cv(O+7, sb, sa)
    o(f'v_subrev_u32 v{vK}, 512, v{vK}')
    o(f'ds_write_b64 v{vK}, v[{O+4}:{O+5}] offset:{KR_COPY}')
    o(f'ds_write_b64 v{vK}, v[{O+6}:{O+7}]')
    o(f'v_mov_b32 v{O+8}, 0')
    cv(O+9, a0, O+8)
    o(f'v_cmp_eq_u32 vcc, 0, v0')
    o(f'v_lshlrev_b32 v{vT0}, 2, v0')
    o(f'v_add_u32 v{vT0}, s{sT1}, v{vT0}')
    o(f'v_cndmask_b32 v{O+9}, v{O+8}, v{O+9}, vcc')
    o('s_mov_b64 exec, 0xff')
    o(f'ds_write_b32 v{vT0}, v{O+9} offset:4096')
    o(f'ds_write_b32 v{vT0}, v{O+8} offset:{4096 + KR_COPY}')
    o('s_mov_b64 exec, -1')
    o('s_branch LM_expd')
    o.label('LM_exp1')
    o(f'v_lshlrev_b32 v{vK}, 4, v{vJ}\nv_lshlrev_b32 v{vT0}, 9, v{vH}\nv_add_u32 v{vK}, v{vK}, v{vT0}')
    o(f'v_sub_u32 v{vK}, {4080 - 1024}, v{vK}\nv_add_u32 v{vK}, s{sT1}, v{vK}')
    vK3 = 43
    o(f'v_lshlrev_b32 v{vK3}, 4, v{vJ}\nv_lshlrev_b32 v{vT0}, 10, v{vH}\nv_add_u32 v{vK3}, v{vK3}, v{vT0}')
    o(f'v_sub_u32 v{vK3}, {4080 - 2048 - 512}, v{vK3}\nv_add_u32 v{vK3}, s{sT1}, v{vK3}')
    o(f'v_and_b32 v{vT0}, 1, v{vJ}')
    o(f'v_cmp_eq_u32 vcc, 0, v{vT0}')
    o('s_waitcnt lgkmcnt(0)')
    for j in range(8): o(f'v_add_f32 v{KD+8+j}, v{KD+8+j}, v{R+j}')
    T0, T1, T2 = KD + 8, KD + 9, KD + 10
    cv(O, T2, T2); cv(O+1, T1, T1); cv(O+2, T1, T0); cv(O+3, T0, T0)
    o(f'ds_write_b128 v{vK}, v[{O}:{O+3}] offset:{KR_COPY}')
    cv(O+4, T2, T2); cv(O+5, T2, T1); cv(O+6, T1, T1); cv(O+7, T0, T0)
    o(f'ds_write_b128 v{vK}, v[{O+4}:{O+7}]')
    for ii in range(2):
        t0, t1 = KD + 11 + 2*ii, KD + 12 + 2*ii
        sel = O + 16
        q = O + 8 * (ii + 1) if ii == 0 else O
        o(f'v_cndmask_b32 v{sel}, v{t1}, v{t0}, vcc')
        off = 512 if ii == 0 else 0
        cv(q, t1, t1); cv(q+1, t1, sel); cv(q+2, t0, t0); cv(q+3, t0, t0)
        o(f'ds_write_b128 v{vK3}, v[{q}:{q+3}] offset:{KR_COPY + off}')
        cv(q+4, t1, t1); cv(q+5, t1, t1); cv(q+6, sel, t0); cv(q+7, t0, t0)
        o(f'ds_write_b128 v{vK3}, v[{q+4}:{q+7}] offset:{off}')
    o.label('LM_expd')
    o('s_waitcnt lgkmcnt(0)')
    stamp(o, stamps, 4)
    o('s_barrier')
    def rdA(sg):
        d = AF + 4 * sg; g = sg // 8; off = 32 * (7 - (sg - 8 * g))
        o(f'ds_read2_b32 v[{d}:{d+1}], v{vKA[g]} offset0:{off} offset1:{off+1}')
        o(f'ds_read2_b32 v[{d+2}:{d+3}], v{vKA[g]} offset0:{off+2} offset1:{off+3}')
    def rdB(t):
        d = BB + 4 * (t % 4)
        o(f'ds_read_b128 v[{d}:{d+3}], v{vBa} offset:{128 * (31 - t)}')
    NBB = LA + 1 if LA > 3 else 4
    def rdA_ops(sg):
        d = AF + 4 * sg; g = sg // 8; off = 32 * (7 - (sg - 8 * g))
        if X_NOA: return ['s_nop 0', 's_nop 0']
        return [f'ds_read2_b32 v[{d}:{d+1}], v{vKA[g]} offset0:{off} offset1:{off+1}',
                f'ds_read2_b32 v[{d+2}:{d+3}], v{vKA[g]} offset0:{off+2} offset1:{off+3}']
    def rdB_op(t):
        d = BB + 4 * (t % NBB)
        if X_NOB: return 's_nop 0'
        return f'ds_read_b128 v[{d}:{d+3}], v{vBa} offset:{128 * (31 - t)}'
    for t in range(LA):
        for op in rdA_ops(t): o(op)
        o(rdB_op(t))
    started = set()
    for t in range(32):
        o(f's_waitcnt lgkmcnt({(3 - 2 * X_NOA - X_NOB) * min(LA - 1, 31 - t)})')
        pend = (rdA_ops(t + LA) + [rdB_op(t + LA)]) if t + LA < 32 else []
        cmin = max(0, -(-(28 - t) // 4))
        for c in range(7, cmin - 1, -1):
            sg = 4 * c - 28 + t
            ac = ACC + 4 * c
            cc = f'v[{ac}:{ac+3}]' if c in started else '0'
            started.add(c)
            if not X_NOM: o(f'v_mfma_f32_16x16x32_bf16 v[{ac}:{ac+3}], v[{AF+4*sg}:{AF+4*sg+3}], v[{BB+4*(t%NBB)}:{BB+4*(t%NBB)+3}], {cc}')
            if pend: o(pend.pop(0))
        for op in pend: o(op)
    stamp(o, stamps, 5)
    UB = 64; XB = 72; PB = 80; W = 96
    vDk = 222
    o(f'v_mov_b32 v{vDk}, s{sT5}')
    for j in range(4): o(f'ds_read_b64 v[{UB+2*j}:{UB+2*j+1}], v{vU} offset:{512*j}')
    o('s_nop 3')
    o(f's_cmp_eq_u32 s{sMh}, 0')
    o('s_cbranch_scc0 LM_cx1')
    for par in range(2):
        keep = ACC + 16 * par; send = ACC + 16 * (1 - par)
        if par: o.label('LM_cx1')
        for j in range(4): o(f'ds_write_b128 v{vCx}, v[{send+4*j}:{send+4*j+3}] offset:{1024*j}')
        o('s_waitcnt lgkmcnt(0)')
        o('s_barrier')
        for j in range(4): o(f'ds_read_b64 v[{XB+2*j}:{XB+2*j+1}], v{vXs} offset:{512*j}')
        for j in range(4): o(f'ds_read_b128 v[{PB+4*j}:{PB+4*j+3}], v{vCp} offset:{1024*j}')
        for j in range(4):
            unpack(o, W, W+1, UB+2*j); unpack(o, W+2, W+3, UB+2*j+1)
            for e in (0, 2): o(f'v_pk_fma_f32 v[{keep+4*j+e}:{keep+4*j+e+1}], v[{W+e}:{W+e+1}], v[{vDk}:{vDk+1}], v[{keep+4*j+e}:{keep+4*j+e+1}] op_sel_hi:[1,0,1]')
        so = sT4
        for j in range(4):
            o(f's_waitcnt lgkmcnt({3-j})')
            unpack(o, W+4, W+5, XB+2*j); unpack(o, W+6, W+7, XB+2*j+1)
            for e in (0, 2): o(f'v_pk_add_f32 v[{keep+4*j+e}:{keep+4*j+e+1}], v[{keep+4*j+e}:{keep+4*j+e+1}], v[{PB+4*j+e}:{PB+4*j+e+1}]')
            for e in (0, 2): o(f'v_pk_add_f32 v[{keep+4*j+e}:{keep+4*j+e+1}], v[{keep+4*j+e}:{keep+4*j+e+1}], v[{W+4+e}:{W+4+e+1}]')
            d = W + 8 + 2 * j
            cv(d, keep+4*j, keep+4*j+1); cv(d+1, keep+4*j+2, keep+4*j+3)
            o(f'buffer_store_dwordx2 v[{d}:{d+1}], v{vHo}, s[{SRD_WS}:{SRD_WS+3}], s{so} offen {HST}')
            if j < 3: o(f's_add_u32 s{so}, s{so}, {8 * 28672}')
        if par == 0:
            stamp(o, stamps, 6)
            finish(o, stamps)
    stamp(o, stamps, 6)
    finish(o, stamps)

def gen_nwave(o, q0, stamps):
    vm = VM(o); vm.q = q0
    P = 16
    sNw, sSb, sKk, sKt, sDb, sL = 52, 53, 54, 55, 56, 57
    o(f's_lshl_b32 s{sNw}, s{sPair}, 2\ns_add_u32 s{sNw}, s{sNw}, s{sWave}\ns_sub_u32 s{sNw}, s{sNw}, 4')
    o(f's_min_u32 s{sT0}, s{sNw}, 783')
    o(f's_mul_i32 s{sSb}, s{sT0}, 2341\ns_lshr_b32 s{sSb}, s{sSb}, 16')
    o(f's_mul_i32 s{sKk}, s{sSb}, 28\ns_sub_u32 s{sKk}, s{sT0}, s{sKk}')
    o(f's_mul_i32 s{sKt}, s{sT0}, 9363\ns_lshr_b32 s{sKt}, s{sKt}, 16')
    o(f's_mul_i32 s{sDb}, s{sKt}, 7\ns_sub_u32 s{sDb}, s{sT0}, s{sDb}')
    o(f's_sub_u32 s{sL}, s{sWave}, 4\ns_mul_i32 s{sL}, s{sL}, 6144\ns_add_u32 s{sL}, s{sL}, {LDS_RP}')
    srd(o, SRD_WG, sWg, 1605632); srd(o, SRD_WU, sWu, 1605632); srd(o, SRD_WD, sWd, 1605632)
    tile_image(o, vm)
    o('s_waitcnt lgkmcnt(0)')
    o('s_barrier')
    stamp(o, stamps, 0)
    row_stats(o, vm, 4)
    vm.wait('par')
    G = 128; vG0, vTp = 24, 26
    o(f's_sub_u32 s{sT0}, s{sWave}, 4\ns_lshl_b32 s{sT0}, s{sT0}, 6')
    o(f'v_add_u32 v{vTp}, s{sT0}, v0')
    o(f'v_lshrrev_b32 v{vG0}, 4, v{vTp}\nv_lshlrev_b32 v{vG0}, 13, v{vG0}')
    o(f'v_and_b32 v{vT0}, 15, v{vTp}\nv_lshlrev_b32 v{vT0}, 4, v{vT0}\nv_add_u32 v{vG0}, v{vG0}, v{vT0}')
    o(f's_lshr_b32 s{sT1}, s{sPair}, 5\ns_lshl_b32 s{sT1}, s{sT1}, 18')
    o(f's_and_b32 s{sT2}, s{sPair}, 31\ns_lshl_b32 s{sT2}, s{sT2}, 8\ns_add_u32 s{sT1}, s{sT1}, s{sT2}')
    o(f'v_add_u32 v{vG0}, s{sT1}, v{vG0}')
    o(f'v_add_u32 v25, {16 * 8192}, v{vG0}')
    vdt = 22
    compute_dt(o, vdt)
    U = 28
    for i in range(2): unpack(o, U + 2*i, U + 2*i + 1, P + i)
    for i in range(4): o(f'v_mul_f32 v{U+i}, v{vdt}, v{U+i}')
    o(f'v_mul_f32 v{U}, {hex(LOG2E)}, v{U}\nv_mul_f32 v{U+1}, {hex(LOG2E)}, v{U+1}')
    o(f'v_mul_f32 v{U+2}, {hex(INV2PI)}, v{U+2}\nv_mul_f32 v{U+3}, {hex(INV2PI)}, v{U+3}')
    E8 = 36; YA = 40; YB = 44; TMP = 48; OUT = 52; vTab = 60
    for mu in range(2): seed(o, E8 + 2*mu, U + mu, U + 2 + mu, 8, TMP + 2*mu, conj=True)
    stamp(o, stamps, 1)
    o(f's_lshl_b32 s{sT0}, s{sCh}, 1\ns_add_u32 s{sT0}, s{sT0}, s{sMh}\ns_add_u32 s{sT0}, s{sT0}, 4\ns_mul_i32 s{sT0}, s{sT0}, {TAB}')
    o(f'v_lshlrev_b32 v{vTab}, 3, v0\nv_add_u32 v{vTab}, s{sT0}, v{vTab}')
    o(f'v_mov_b32 v{YA}, 0x3f80\nv_mov_b32 v{YA+1}, 0x3f80')
    o(f'ds_write_b64 v{vTab}, v[{YA}:{YA+1}]')
    rw = RowWriter(o, vTab, OUT)
    rw.write([1], E8, E8 + 2)
    E16 = 200; YC = 204; YD = 208
    RP = 144
    def rp_loads():
        vGu, vDn = 20, 21
        o(f'v_lshrrev_b32 v{vT0}, 3, v0\nv_and_b32 v{vT1}, 7, v0\nv_lshlrev_b32 v{vT1}, 4, v{vT1}')
        o(f'v_mul_u32_u24 v{vGu}, 3584, v{vT0}\nv_add_u32 v{vGu}, v{vGu}, v{vT1}')
        o(f'v_mul_u32_u24 v{vDn}, 896, v{vT0}\nv_add_u32 v{vDn}, v{vDn}, v{vT1}')
        o(f's_mul_i32 s{sT1}, s{sKk}, {16 * 3584}\ns_lshl_b32 s{sT2}, s{sSb}, 7\ns_add_u32 s{sT1}, s{sT1}, s{sT2}')
        o(f's_add_u32 s{sT2}, s{sT1}, {8 * 3584}')
        for mat, sr in enumerate([SRD_WG, SRD_WU]):
            for i in range(2):
                d = RP + 8 * mat + 4 * i
                o(f'buffer_load_dwordx4 v[{d}:{d+3}], v{vGu}, s[{sr}:{sr+3}], s{sT1 if i == 0 else sT2} offen'); vm.issue('rp')
        o(f's_mul_i32 s{sT1}, s{sKt}, {16 * 896}\ns_lshl_b32 s{sT2}, s{sDb}, 7\ns_add_u32 s{sT1}, s{sT1}, s{sT2}')
        o(f's_add_u32 s{sT2}, s{sT1}, {8 * 896}')
        for i in range(2):
            d = RP + 16 + 4 * i
            o(f'buffer_load_dwordx4 v[{d}:{d+3}], v{vDn}, s[{SRD_WD}:{SRD_WD+3}], s{sT1 if i == 0 else sT2} offen'); vm.issue('rp')

    RC = 64; vRa = 27
    o(f'v_lshlrev_b32 v{vRa}, 4, v{vTp}')
    o(f's_mov_b32 s{sT3}, {WS_REC}')
    o(f's_mov_b32 s{sT4}, {WS_T}\ns_mov_b32 s{sT5}, {WS_T2}')
    def rec_loads(pol):
        for j in range(4):
            if j: o(f's_add_u32 s{sT3}, s{sT3}, 4096')
            o(f'buffer_load_dwordx4 v[{RC+4*j}:{RC+4*j+3}], v{vRa}, s[{SRD_WS}:{SRD_WS+3}], s{sT3} offen {pol}')
        o(f's_mov_b32 s{sT3}, {WS_REC}')
        o(f'buffer_load_dwordx4 v[{G}:{G+3}], v{vG0}, s[{SRD_WS}:{SRD_WS+3}], s{sT4} offen {pol}')
        o(f'buffer_load_dwordx4 v[{G+4}:{G+7}], v25, s[{SRD_WS}:{SRD_WS+3}], s{sT4} offen {pol}')
        o(f'buffer_load_dwordx4 v[{G+8}:{G+11}], v{vG0}, s[{SRD_WS}:{SRD_WS+3}], s{sT5} offen {pol}')
        o(f'buffer_load_dwordx4 v[{G+12}:{G+15}], v25, s[{SRD_WS}:{SRD_WS+3}], s{sT5} offen {pol}')
    cmul2(o, E16, E8, E8, E16 + 2, E8 + 2, E8 + 2)
    rw.write([2], E16, E16 + 2)
    ev, od = [E16, YA, YB], [E8, YC, YD]
    pe, po = E16, E8
    step = 0
    for j in range(3, 32, 2):
        do = YC if step % 2 == 0 else YD
        de = YA if step % 2 == 0 else YB
        step += 1
        last = (j + 1 > 31)
        prods = [(do, po), (do + 2, po + 2)] + ([] if last else [(de, pe), (de + 2, pe + 2)])
        for d, p in prods:
            q = E16 + (2 if (d - (do if d in (do, do + 2) else de)) else 0)
            o(f'v_pk_mul_f32 v[{d}:{d+1}], v[{p}:{p+1}], v[{q}:{q+1}] op_sel_hi:[0,1]')
        for d, p in prods:
            q = E16 + (2 if (d - (do if d in (do, do + 2) else de)) else 0)
            o(f'v_pk_fma_f32 v[{d}:{d+1}], v[{p}:{p+1}], v[{q}:{q+1}], v[{d}:{d+1}] op_sel:[1,1,0] op_sel_hi:[1,0,1] neg_lo:[1,0,0]')
        rw.write([j], do, do + 2)
        if not last: rw.write([j + 1], de, de + 2)
        po = do; pe = de
        if j == RP_AT and RP_AT < REC_AT: rp_loads()
        if j == REC_AT: rec_loads(POL0)
        if j == RP_AT and RP_AT >= REC_AT: rp_loads()
    if REC_AT == 99: rec_loads(POL0)
    if RP_AT == 99: rp_loads()
    o('s_waitcnt lgkmcnt(0)')
    stamp(o, stamps, 2)
    o('s_barrier')
    if REC_AT == 199: rec_loads(POL0)
    if RP_AT == 199: rp_loads()
    o(f'v_lshrrev_b32 v{vT0}, 5, v0\nv_mul_u32_u24 v{vT0}, 4608, v{vT0}')
    o(f'v_and_b32 v{vT1}, 31, v0\nv_lshlrev_b32 v{vT1}, 4, v{vT1}\nv_add_u32 v{vT0}, v{vT0}, v{vT1}')
    o(f'v_add_u32 v{vT0}, {LDS_US}, v{vT0}')
    for j in range(4): o(f'v_mov_b32 v{OUT+j}, 0')
    o(f'ds_write_b128 v{vT0}, v[{OUT}:{OUT+3}]')
    o(f's_mov_b32 s{sT1}, 0')
    if stamps and X_WHO: o('s_mov_b32 s58, 0\ns_mov_b32 s59, 0')
    o(f's_waitcnt vmcnt({6 if RP_AT >= REC_AT else 0})')
    o.label('LN_chk')
    C0 = RC + 16
    for k in range(8): o(f'v_xor_b32 v{C0+k}, v{RC+2*k+1}, v{RC+2*k}')
    for k in range(8): o(f'v_xor_b32 v{C0+8+k}, v{G+k}, v{G+8+k}')
    for k in range(16): o(f'v_xor_b32 v{C0+k}, v{C0+k}, v{vTag}')
    if stamps and X_WHO:
        o(f'v_or3_b32 v200, v{C0}, v{C0+1}, v{C0+2}\nv_or3_b32 v200, v200, v{C0+3}, v{C0+4}\nv_or3_b32 v200, v200, v{C0+5}, v{C0+6}\nv_or_b32 v200, v200, v{C0+7}')
        o(f'v_or3_b32 v201, v{C0+8}, v{C0+9}, v{C0+10}\nv_or3_b32 v201, v201, v{C0+11}, v{C0+12}\nv_or3_b32 v201, v201, v{C0+13}, v{C0+14}\nv_or_b32 v201, v201, v{C0+15}')
        o('v_cmp_ne_u32 vcc, 0, v200\ns_nop 4\ns_cmp_lg_u64 vcc, 0\ns_cselect_b32 s96, 1, 0\ns_add_u32 s58, s58, s96')
        o('v_cmp_ne_u32 vcc, 0, v201\ns_nop 4\ns_cmp_lg_u64 vcc, 0\ns_cselect_b32 s96, 1, 0\ns_add_u32 s59, s59, s96')
    for k in range(0, 15, 3): o(f'v_or3_b32 v{C0+k}, v{C0+k}, v{C0+k+1}, v{C0+k+2}')
    o(f'v_or3_b32 v{C0}, v{C0}, v{C0+3}, v{C0+6}')
    o(f'v_or3_b32 v{C0+9}, v{C0+9}, v{C0+12}, v{C0+15}')
    o(f'v_or_b32 v{C0}, v{C0}, v{C0+9}')
    o(f'v_cmp_ne_u32 vcc, 0, v{C0}')
    o('s_cbranch_vccz LN_got')
    o(f's_add_u32 s{sT1}, s{sT1}, 1')
    o(f's_cmp_lt_u32 s{sT1}, 0x40000')
    o('s_cbranch_scc0 LN_got')
    if MASKED_RETRY: o('s_mov_b64 exec, vcc')
    rec_loads('sc1')
    o('s_waitcnt vmcnt(0)')
    o('s_branch LN_chk')
    o.label('LN_got')
    o('s_mov_b64 exec, -1')
    vm.q = []
    if stamps: o(f'v_writelane_b32 v255, s{sT1}, 13')
    if stamps and X_WHO: o('v_writelane_b32 v255, s58, 12\nv_writelane_b32 v255, s59, 11')
    stamp(o, stamps, 3)
    o(f'v_lshlrev_b32 v{vT0}, 4, v{vTp}\nv_add_u32 v{vT0}, {LDS_XS}, v{vT0}')
    for j in range(4):
        a_ = RC + 4 * j
        o(f'v_and_b32 v{a_+1}, 0xffff0000, v{a_}\nv_and_b32 v{a_+3}, 0xffff0000, v{a_+2}')
        o(f'v_lshlrev_b32 v{a_}, 16, v{a_}\nv_lshlrev_b32 v{a_+2}, 16, v{a_+2}')
        o(f'v_rcp_f32 v{a_+1}, v{a_+1}\nv_rcp_f32 v{a_+3}, v{a_+3}')
    for j in range(4):
        a_ = RC + 4 * j
        o(f'v_mul_f32_e64 v{a_}, -v{a_}, v{a_+1}\nv_mul_f32_e64 v{a_+2}, -v{a_+2}, v{a_+3}')
        o(f'ds_write_b128 v{vT0}, v[{a_}:{a_+3}] offset:{4096*j}')
    XF = 96
    for i in range(2):
        for j in range(4): unpack(o, XF + 8*i + 2*j, XF + 8*i + 2*j + 1, G + 4*i + j)
    vL0, vCh = 22, 23
    o(f'v_lshrrev_b32 v{vL0}, 4, v{vTp}\nv_lshlrev_b32 v{vL0}, 6, v{vL0}')
    o(f'v_and_b32 v{vT0}, 7, v{vTp}\nv_lshlrev_b32 v{vT0}, 3, v{vT0}\nv_add_u32 v{vL0}, v{vL0}, v{vT0}')
    o(f'v_bfe_u32 v{vCh}, v{vTp}, 3, 1')
    o(f'v_lshlrev_b32 v21, 3, v{vL0}\nv_add_u32 v21, {LDS_XS}, v21')
    o('s_waitcnt lgkmcnt(0)')
    o('s_barrier')
    TB = 64
    for i in range(2):
        for q in range(4): o(f'ds_read_b128 v[{TB+16*i+4*q}:{TB+16*i+4*q+3}], v21 offset:{8192*i+16*q}')
    o(f'v_mul_u32_u24 v{vT1}, 4608, v{vCh}\nv_lshlrev_b32 v{vT3}, 1, v{vL0}\nv_add_u32 v{vT1}, v{vT1}, v{vT3}')
    o(f'v_add_u32 v{vT1}, {LDS_US + 512}, v{vT1}')
    Pk = 120
    for i in range(2):
        o(f's_waitcnt lgkmcnt({4 - 4*i})' if i == 0 else 's_waitcnt lgkmcnt(1)')
        for k in range(8): o(f'v_fma_f32 v{XF+8*i+k}, v{XF+8*i+k}, v{TB+16*i+2*k+1}, v{TB+16*i+2*k}')
        for j in range(4): o(f'v_cvt_pk_bf16_f32 v{Pk+4*i+j}, v{XF+8*i+2*j}, v{XF+8*i+2*j+1}')
        o(f'ds_write_b128 v{vT1}, v[{Pk+4*i}:{Pk+4*i+3}] offset:{2048*i}')
    o('s_waitcnt lgkmcnt(0)')
    stamp(o, stamps, 4)
    o('s_barrier')
    o(f'v_lshlrev_b32 v{vT1}, 12, v{vCh}\nv_lshlrev_b32 v{vT3}, 1, v{vL0}\nv_add_u32 v{vT1}, v{vT1}, v{vT3}')
    o(f'v_add_u32 v{vT1}, {LDS_XS}, v{vT1}')
    for i in range(2): o(f'ds_write_b128 v{vT1}, v[{G+4*i}:{G+4*i+3}] offset:{2048*i}')
    o(f's_cmp_ge_u32 s{sNw}, 784')
    o('s_cbranch_scc1 LN_norep2')
    o(f'v_lshlrev_b32 v{vT0}, 4, v0\nv_add_u32 v{vT1}, s{sL}, v{vT0}')
    o('s_waitcnt vmcnt(0)')
    for j in range(6): o(f'ds_write_b128 v{vT1}, v[{RP+4*j}:{RP+4*j+3}] offset:{1024*j}')
    g_, rho, c_ = 20, 21, 22
    o(f'v_lshrrev_b32 v{g_}, 4, v0\nv_bfe_u32 v{rho}, v0, 2, 2\nv_and_b32 v{c_}, 3, v0')
    vA1, vA2 = 18, 19
    o(f'v_and_b32 v{vT3}, 1, v{g_}\nv_lshlrev_b32 v{vT3}, 11, v{vT3}')
    o(f'v_lshrrev_b32 v{vT1}, 1, v{g_}\nv_lshlrev_b32 v{vT1}, 10, v{vT1}\nv_add_u32 v{vT3}, v{vT3}, v{vT1}')
    o(f'v_lshlrev_b32 v{vT1}, 7, v{rho}\nv_add_u32 v{vT3}, v{vT3}, v{vT1}')
    o(f'v_lshlrev_b32 v{vT1}, 3, v{c_}\nv_add3_u32 v{vA1}, v{vT3}, v{vT1}, s{sL}')
    o(f'v_lshrrev_b32 v{vT3}, 1, v{g_}\nv_lshlrev_b32 v{vT3}, 9, v{vT3}')
    o(f'v_lshlrev_b32 v{vT1}, 7, v{rho}\nv_add_u32 v{vT3}, v{vT3}, v{vT1}')
    o(f'v_and_b32 v{vT1}, 1, v{g_}\nv_lshlrev_b32 v{vT1}, 5, v{vT1}\nv_add_u32 v{vT3}, v{vT3}, v{vT1}')
    o(f'v_lshlrev_b32 v{vT1}, 3, v{c_}\nv_add3_u32 v{vA2}, v{vT3}, v{vT1}, s{sL}')
    o('s_waitcnt lgkmcnt(0)')
    F = 32
    for tt in range(4):
        o(f'ds_read_b64_tr_b16 v[{F+4*tt}:{F+4*tt+1}], v{vA1} offset:{tt*32}')
        o(f'ds_read_b64_tr_b16 v[{F+4*tt+2}:{F+4*tt+3}], v{vA1} offset:{tt*32 + 512}')
    for mt in range(2):
        o(f'ds_read_b64_tr_b16 v[{F+16+4*mt}:{F+16+4*mt+1}], v{vA2} offset:{4096 + mt*64}')
        o(f'ds_read_b64_tr_b16 v[{F+16+4*mt+2}:{F+16+4*mt+3}], v{vA2} offset:{4096 + mt*64 + 1024}')
    o(f's_mul_i32 s{sT1}, s{sSb}, {4 * 29}\ns_add_u32 s{sT1}, s{sT1}, s{sKk}\ns_lshl_b32 s{sT1}, s{sT1}, 10\ns_add_u32 s{sT1}, s{sT1}, {WS_WP}')
    o('s_waitcnt lgkmcnt(0)')
    for tt in range(4):
        o(f'buffer_store_dwordx4 v[{F+4*tt}:{F+4*tt+3}], v{vT0}, s[{SRD_WS}:{SRD_WS+3}], s{sT1} offen {ST}')
        if tt < 3: o(f's_add_u32 s{sT1}, s{sT1}, {29 * 1024}')
    o(f's_mul_i32 s{sT1}, s{sDb}, 224\ns_add_u32 s{sT1}, s{sT1}, s{sKt}\ns_lshl_b32 s{sT1}, s{sT1}, 10\ns_add_u32 s{sT1}, s{sT1}, {WS_WD}')
    o(f'buffer_store_dwordx4 v[{F+16}:{F+19}], v{vT0}, s[{SRD_WS}:{SRD_WS+3}], s{sT1} offen {ST}')
    o(f's_add_u32 s{sT1}, s{sT1}, {112 * 1024}')
    o(f'buffer_store_dwordx4 v[{F+20}:{F+23}], v{vT0}, s[{SRD_WS}:{SRD_WS+3}], s{sT1} offen {ST}')
    o.label('LN_norep2')
    o('s_waitcnt lgkmcnt(0)')
    stamp(o, stamps, 5)
    o('s_barrier')
    stamp(o, stamps, 6)
    finish(o, stamps)

vAt, vAt2 = 250, 251
def epoch_atomic(o):
    srd(o, SRD_DBG, sDbg, 256)
    o(f's_and_b32 s{sT1}, s2, 3\ns_lshl_b32 s{sT1}, s{sT1}, 6')
    o(f'v_mov_b32 v{vAt}, 1\nv_mov_b32 v{vAt2}, 0')
    o('s_mov_b64 exec, 1')
    o(f'buffer_atomic_add v{vAt}, v{vAt2}, s[{SRD_DBG}:{SRD_DBG+3}], s{sT1} offen sc1')
    o('s_mov_b64 exec, -1')
def epoch_finish(o, pfx):
    srd(o, SRD_DBG, sDbg, 256)
    o(f'v_and_b32 v{vAt}, 3, v0\nv_lshlrev_b32 v{vAt}, 6, v{vAt}')
    o(f's_mov_b32 s{sT1}, 0')
    o.label(f'L{pfx}_epoll')
    o(f'buffer_load_dword v252, v{vAt}, s[{SRD_DBG}:{SRD_DBG+3}], 0 offen sc1')
    o('s_waitcnt vmcnt(0)')
    o('v_cmp_ne_u32 vcc, 64, v252')
    o(f's_cbranch_vccz L{pfx}_eok')
    o(f's_add_u32 s{sT1}, s{sT1}, 1\ns_cmp_lt_u32 s{sT1}, 0x40000')
    o(f's_cbranch_scc1 L{pfx}_epoll')
    o(f'L{pfx}_eok:')
    o('s_mov_b64 exec, 1')
    o(f'buffer_store_dword v{vTag}, v{vAt2}, s[{SRD_WS}:{SRD_WS+3}], 0 offen sc1')
    o('s_mov_b64 exec, -1')

def gen_spare(o, q0, stamps):
    vm = VM(o); vm.q = q0
    if PRETOUCH & 1:
        o(f's_cmp_eq_u32 s{sWave}, 5')
        o('s_cbranch_scc0 LS_notouch')
        o('v_and_b32 v30, 15, v0\nv_lshlrev_b32 v30, 21, v30')
        o(f'buffer_load_dword v31, v30, s[{SRD_WS}:{SRD_WS+3}], 0 offen')
        o(f's_load_dwordx2 s[48:49], s[0:1], 104')
        o('s_waitcnt lgkmcnt(0)')
        o(f's_mov_b32 s50, 1835008\ns_mov_b32 s51, 0x00020000')
        o('v_and_b32 v30, 1, v0\nv_mul_u32_u24 v30, 0x1bfffc, v30')
        o('s_mov_b64 exec, 3')
        o(f'buffer_load_dword v32, v30, s[48:51], 0 offen')
        o('s_mov_b64 exec, -1')
        o.label('LS_notouch')
    o(f's_cmp_ge_u32 s{sWave}, 4')
    o('s_cbranch_scc1 LS_prodd')
    row_stats(o, vm)
    o.label('LS_prodd')
    o('s_waitcnt vmcnt(0)')
    make_tag(o)
    o('s_barrier')
    stamp(o, stamps, 0)
    o(f's_cmp_eq_u32 s{sWave}, 7')
    o('s_cbranch_scc0 LS_noat')
    epoch_atomic(o)
    o.label('LS_noat')
    if SPARE_WAIT:
        o(f's_cmp_eq_u32 s{sWave}, 0')
        o('s_cbranch_scc0 LS_go')
        o(f's_mov_b32 s{sT3}, {WS_T + 223 * 8192 + 8176}\ns_mov_b32 s{sT2}, {WS_T2 + 223 * 8192 + 8176}\ns_mov_b32 s{sT1}, 0')
        o.label('LS_poll')
        o(f'buffer_load_dword v64, v251, s[{SRD_WS}:{SRD_WS+3}], s{sT3} offen sc1')
        o(f'buffer_load_dword v65, v251, s[{SRD_WS}:{SRD_WS+3}], s{sT2} offen sc1')
        o('s_waitcnt vmcnt(0)')
        o(f'v_xor_b32 v64, v64, v65\nv_cmp_ne_u32 vcc, v64, v{vTag}')
        o('s_cbranch_vccz LS_go')
        o('s_sleep 8')
        o(f's_add_u32 s{sT1}, s{sT1}, 1\ns_cmp_lt_u32 s{sT1}, 0x20000\ns_cbranch_scc1 LS_poll')
        o.label('LS_go')
        o('s_barrier')
    sMat, sFs = 44, 45
    o(f's_lshr_b32 s{sMat}, s{sSp}, 4\ns_and_b32 s{sFs}, s{sSp}, 15')
    o(f's_cmp_eq_u32 s{sMat}, 0')
    o(f's_cselect_b32 s48, s{sWg}, s{sWu}\ns_cselect_b32 s49, s{sWg+1}, s{sWu+1}')
    o('s_mov_b32 s50, 1605632\ns_mov_b32 s51, 0x00020000')
    vTid, vG, vC, vOf = 16, 17, 18, 19
    o(f's_lshl_b32 s{sT0}, s{sWave}, 6\nv_add_u32 v{vTid}, s{sT0}, v0')
    o(f'v_mul_u32_u24 v{vG}, 4682, v{vTid}\nv_lshrrev_b32 v{vG}, 16, v{vG}')
    o(f'v_mul_u32_u24 v{vC}, 14, v{vG}\nv_sub_u32 v{vC}, v{vTid}, v{vC}')
    o(f'v_mul_u32_u24 v{vOf}, 3584, v{vG}\nv_lshlrev_b32 v{vT0}, 4, v{vC}\nv_add_u32 v{vOf}, v{vOf}, v{vT0}')
    o(f's_mul_i32 s{sT1}, s{sFs}, 224')
    L = 32
    o(f's_cmp_ge_u32 s{sWave}, 7')
    o('s_cbranch_scc1 LS_skip')
    for i in range(14):
        o(f'buffer_load_dwordx4 v[{L+4*i}:{L+4*i+3}], v{vOf}, s[48:51], s{sT1} offen')
        if i < 13: o(f's_add_u32 s{sT1}, s{sT1}, {32 * 3584}')
    A = 96
    for j in range(8): o(f'v_mov_b32 v{A+j}, 0')
    for i in range(14):
        o(f's_waitcnt vmcnt({13 - i})')
        for r in range(4):
            unpack(o, 104, 105, L + 4*i + r)
            o(f'v_add_f32 v{A+2*r}, v{A+2*r}, v104\nv_add_f32 v{A+2*r+1}, v{A+2*r+1}, v105')
    o(f'v_mul_u32_u24 v{vT0}, 448, v{vG}\nv_lshlrev_b32 v{vT1}, 5, v{vC}\nv_add_u32 v{vT0}, v{vT0}, v{vT1}')
    o(f'ds_write_b128 v{vT0}, v[{A}:{A+3}]\nds_write_b128 v{vT0}, v[{A+4}:{A+7}] offset:16')
    o.label('LS_skip')
    o('s_waitcnt lgkmcnt(0)')
    o('s_barrier')
    o(f's_cmp_ge_u32 s{sWave}, 2')
    o('s_cbranch_scc1 LS_done')
    o(f'v_lshlrev_b32 v{vT0}, 2, v{vTid}')
    for g in range(32): o(f'ds_read_b32 v{L+g}, v{vT0} offset:{448*g}')
    o('s_waitcnt lgkmcnt(0)')
    for g in range(1, 32): o(f'v_add_f32 v{L}, v{L}, v{L+g}')
    o(f'v_cvt_pk_bf16_f32 v{L+1}, v{L}, v{L}\nv_and_b32 v{L+1}, 0xffff0000, v{L+1}\nv_sub_f32 v{L+1}, v{L}, v{L+1}')
    Z = 68
    o(f'v_cvt_pk_bf16_f32 v{Z}, v{L}, v{L+1}')
    for j in range(1, 8): o(f'v_mov_b32 v{Z+j}, 0')
    o(f'v_lshrrev_b32 v{vT0}, 4, v{vTid}\ns_mul_i32 s{sT1}, s{sFs}, 7\nv_add_u32 v{vT0}, s{sT1}, v{vT0}')
    o(f'v_mul_u32_u24 v{vT0}, 29, v{vT0}\nv_add_u32 v{vT0}, 28, v{vT0}\nv_lshlrev_b32 v{vT0}, 10, v{vT0}')
    o(f'v_and_b32 v{vT1}, 15, v{vTid}\ns_lshl_b32 s{sT1}, s{sMat}, 4\nv_add_u32 v{vT1}, s{sT1}, v{vT1}\nv_lshlrev_b32 v{vT1}, 4, v{vT1}')
    o(f'v_add_u32 v{vT0}, v{vT0}, v{vT1}')
    o(f's_mov_b32 s{sT1}, {WS_WP}')
    o(f'v_cmp_gt_u32 vcc, 112, v{vTid}')
    o(f's_and_saveexec_b64 s[52:53], vcc')
    o('s_cbranch_execz LS_rest')
    o(f'buffer_store_dwordx4 v[{Z}:{Z+3}], v{vT0}, s[{SRD_WS}:{SRD_WS+3}], s{sT1} offen {ST}')
    o(f'buffer_store_dwordx4 v[{Z+4}:{Z+7}], v{vT0}, s[{SRD_WS}:{SRD_WS+3}], s{sT1} offen offset:512')
    o.label('LS_rest')
    o('s_mov_b64 exec, s[52:53]')
    o.label('LS_done')
    o(f's_cmp_eq_u32 s{sWave}, 7')
    o('s_cbranch_scc0 LS_noe')
    o(f's_cmp_eq_u32 s{sSp}, 0')
    o('s_cbranch_scc0 LS_noe')
    epoch_finish(o, 'S')
    o.label('LS_noe')
    finish(o, stamps)
def desc_ab(): return kernel_desc(NAME, 256, 100, accum=256)
def launch_ab(): return f'; @launch kernel={NAME} grid=(256,1,1) block=(512,1,1) lds={LDS_BYTES}'
```

```python
from asmlib import *
from layout import *
from vm import VM
NAME = 'ffn1_kernel'
FNAME = 'ffn_kernel'
PREFETCH = True
USE_PK = False
ST = ''
PF_WD = False
PF_T = 2
PF_N = 4
MST = 'sc1'
WPER = 1
WSPREAD = 8
FLAG_TOUCH = 1
X_NOEPI = False; X_NOBAR = False; X_NODMA = False; X_NOREAD = False; X_NOSTAT = False
LDS_S4 = 4 * 28672
LDS_CORR = LDS_S4 + 28672
LDS_BYTES = LDS_CORR + 7 * 1024
ACC = [16, 32]
WB = 48; NWB = 8
HF = 80
T = 192
PK = 200
vS, vQ, vC1, vSB, vT0, vT1 = 204, 205, 206, 208, 210, 211
BC = 212
SA = 216
SD = 220
vLane16, vLB0, vLB1, vLB2, vTR, vHoff, vHN = 1, 2, 3, 4, 5, 6, 8
def w_lds_addr(t, kk):
    if kk == 28: return LDS_CORR + t * 1024
    if t in (0, 5): return LDS_S4 + kk * 1024
    tt = 1 if t == 6 else t
    return (kk // 7) * 28672 + (7 * (tt - 1) + kk % 7) * 1024
def w_read(o, dst, t, kk):
    a_ = w_lds_addr(t, kk)
    base = [vLB0, vLB1, vLB2][a_ >> 16]
    o(f'ds_read_b128 v[{dst}:{dst+3}], v{base} offset:{a_ & 0xffff}')
def epilogue_ops(acc):
    ops = []
    if USE_PK:
        for j in range(0, 8, 2): ops.append((4, f'v_pk_mul_f32 v[{T+j}:{T+j+1}], v[{acc+j}:{acc+j+1}], v[{vC1}:{vC1+1}] op_sel_hi:[1,0]'))
    else:
        for j in range(8): ops.append((4, f'v_mul_f32 v{T+j}, v{acc+j}, v{vC1}'))
    for j in range(8): ops.append((8, f'v_exp_f32 v{T+j}, v{T+j}'))
    if USE_PK:
        for j in range(0, 8, 2): ops.append((4, f'v_pk_fma_f32 v[{T+j}:{T+j+1}], v[{T+j}:{T+j+1}], v[{vSB}:{vSB+1}], v[{vSB}:{vSB+1}] op_sel_hi:[1,0,0]'))
    else:
        for j in range(8): ops.append((4, f'v_fma_f32 v{T+j}, v{T+j}, v{vSB}, v{vSB}'))
    for j in range(8): ops.append((8, f'v_rcp_f32 v{T+j}, v{T+j}'))
    if USE_PK:
        for j in range(0, 8, 2): ops.append((4, f'v_pk_mul_f32 v[{T+j}:{T+j+1}], v[{acc+8+j}:{acc+8+j+1}], v[{T+j}:{T+j+1}]'))
    else:
        for j in range(8): ops.append((4, f'v_mul_f32 v{T+j}, v{acc+8+j}, v{T+j}'))
    for j in range(4): ops.append((4, f'v_cvt_pk_bf16_f32 v{PK+j}, v{T+2*j}, v{T+2*j+1}'))
    return ops
def epilogue_gaps(acc):
    mul = [f'v_mul_f32 v{T+j}, v{acc+j}, v{vC1}' for j in range(8)]
    ex = [f'v_exp_f32 v{T+j}, v{T+j}' for j in range(8)]
    fma = [f'v_fma_f32 v{T+j}, v{T+j}, v{vSB}, v{vSB}' for j in range(8)]
    rcp = [f'v_rcp_f32 v{T+j}, v{T+j}' for j in range(8)]
    mu = [f'v_mul_f32 v{T+j}, v{acc+8+j}, v{T+j}' for j in range(8)]
    cv = [f'v_cvt_pk_bf16_f32 v{PK+j}, v{T+2*j}, v{T+2*j+1}' for j in range(4)]
    g = [[mul[0], mul[1], mul[2]]]
    for j in range(5): g.append([ex[j], mul[3+j]])
    for j in range(5, 8): g.append([ex[j], fma[j-5]])
    for j in range(5): g.append([rcp[j], fma[3+j]])
    for j in range(5, 8): g.append([rcp[j], mu[j-5]])
    g += [[mu[3], mu[4], mu[5]], [mu[6], mu[7], cv[0]], [cv[1], cv[2], cv[3]]]
    return g
def take_fill(fill, budget, force):
    out = []
    while fill and (fill[0][0] <= budget or force > 0):
        c, op = fill.pop(0); out.append(op); budget -= c; force -= 1
    return out
def gen_c(o, stamps=False, merged=False):
    vm = VM(o)
    global ST
    if merged: ST = MST
    kernel_begin(o, FNAME if merged else NAME)
    o('s_cmp_ge_u32 s2, 256')
    o('s_cbranch_scc1 LC_end')
    o(f's_load_dwordx2 s[4:5], s[0:1], {KA["ws"]}')
    if merged: o(f's_load_dwordx2 s[6:7], s[0:1], {KA["out"]}')
    if stamps: o('s_memtime s[74:75]')
    o('v_lshrrev_b32 v9, 6, v0')
    o('v_and_b32 v0, 63, v0')
    o('v_readfirstlane_b32 s24, v9')
    o('s_and_b32 s25, s2, 7')
    o('s_lshr_b32 s26, s2, 3')
    if PREFETCH: code_prefetch(o, FNAME if merged else NAME, 'code_end', 26, 24, 4, 240, 244, 44, 'c')
    o('s_lshr_b32 s27, s25, 1')
    o('s_lshl_b32 s27, s27, 2')
    o('s_and_b32 s28, s26, 3')
    o('s_add_u32 s27, s27, s28')
    o('s_and_b32 s28, s25, 1')
    o('s_lshl_b32 s28, s28, 3')
    o('s_lshr_b32 s29, s26, 2')
    o('s_add_u32 s28, s28, s29')
    o('s_lshl_b32 s29, s27, 2')
    o('s_add_u32 s29, s29, s24')
    o(f'v_lshlrev_b32 v{vLane16}, 4, v0')
    o('s_mul_i32 s30, s24, 28672')
    o('s_mul_i32 s33, s28, 7')
    o('s_mul_i32 s32, s33, 29696')
    o('s_lshl_b32 s34, s29, 5')
    o('s_mul_i32 s35, s29, 28672')
    o('s_mul_i32 s36, s24, 7168')
    o('s_add_u32 s46, s36, s32')
    o('s_waitcnt lgkmcnt(0)')
    if WS_SHIFT: o(f's_add_u32 s4, s4, {WS_SHIFT}\ns_addc_u32 s5, s5, 0')
    srd(o, 12, 4, WP_BYTES, WS_WP)
    srd(o, 8, 4, HT_BYTES, WS_HT)
    def w_dma_ops(t, tag):
        ops = [f's_add_u32 s37, s46, {t * 29696}']
        if t in (0, 5): ops.append(f's_add_u32 s38, s36, {LDS_S4}')
        else:
            tt = 1 if t == 6 else t
            ops.append(f's_add_u32 s38, s30, {7 * (tt - 1) * 1024}')
        groups = []
        cur = ops
        for j in range(7):
            if j == 0: cur += ['s_mov_b32 m0, s38', 's_nop 0']
            if j == 4: cur += ['s_add_u32 s38, s38, 4096', 's_mov_b32 m0, s38', 's_add_u32 s37, s37, 4096']
            cur.append(('dma', f'buffer_load_dwordx4 v{vLane16}, s[12:15], s37 offen offset:{(j % 4) * 1024} lds', tag))
            groups.append(cur); cur = []
        return groups
    def emit_group(g):
        for op in g:
            if isinstance(op, tuple): o(op[1]); vm.issue(op[2])
            else: o(op)
    for g in w_dma_ops(0, 'w0'): emit_group(g)
    for which in range(2):
        if which == 0: o('s_mov_b32 s39, s24')
        else:
            o('s_add_u32 s39, s24, 4'); o('s_min_u32 s39, s39, 6')
        o('s_mul_i32 s37, s39, 29696')
        o('s_add_u32 s37, s37, s32')
        o(f's_add_u32 s37, s37, {28 * 1024}')
        o('s_lshl_b32 s38, s39, 10')
        o(f's_add_u32 s38, s38, {LDS_CORR}')
        o('s_mov_b32 m0, s38')
        o('s_nop 0')
        o(f'buffer_load_dwordx4 v{vLane16}, s[12:15], s37 offen lds'); vm.issue('w0')
    o('s_mov_b32 s47, s30')
    o('s_mov_b32 s48, s35')
    def h_dma(kk):
        if kk % 4 == 0:
            o('s_mov_b32 m0, s47')
            o('s_add_u32 s47, s47, 4096')
            if kk: o('s_add_u32 s48, s48, 4096')
            else: o('s_nop 0')
        o(f'buffer_load_dwordx4 v{vLane16}, s[8:11], s48 offen offset:{(kk % 4) * 1024} lds'); vm.issue(f'h{kk}')
    AH = 10; AH0 = 4
    for kk in range(AH0): h_dma(kk)
    srd(o, 16, 4, H_BYTES, WS_H)
    srd(o, 20, 4, HN_BYTES, WS_HN)
    o(f'v_mov_b32 v{vLB0}, v{vLane16}')
    o(f'v_add_u32 v{vLB1}, 0x10000, v{vLane16}')
    o(f'v_add_u32 v{vLB2}, 0x20000, v{vLane16}')
    o('v_lshrrev_b32 v9, 5, v0')
    o('v_lshlrev_b32 v9, 9, v9')
    o('v_bfe_u32 v10, v0, 2, 2')
    o('v_lshlrev_b32 v10, 6, v10')
    o('v_add_u32 v9, v9, v10')
    o('v_bfe_u32 v10, v0, 4, 1')
    o('v_lshlrev_b32 v10, 5, v10')
    o('v_add_u32 v9, v9, v10')
    o('v_and_b32 v10, 3, v0')
    o('v_lshlrev_b32 v10, 3, v10')
    o('v_add_u32 v9, v9, v10')
    o(f'v_add_u32 v{vTR}, s30, v9')
    o('s_mul_i32 s31, s29, 112')
    o('s_add_u32 s31, s31, s33')
    o('s_lshl_b32 s31, s31, 10')
    o('v_and_b32 v9, 31, v0')
    o('v_add_u32 v9, s34, v9')
    o('v_mul_u32_u24 v9, 896, v9')
    o('v_lshrrev_b32 v10, 5, v0')
    o('v_lshlrev_b32 v10, 4, v10')
    o(f'v_add_u32 v{vHN}, v9, v10')
    o('s_mov_b32 s50, 0x00020001\ns_mov_b32 s51, 0x00020001')
    o(f'v_mov_b32 v{SA}, 0\nv_mov_b32 v9, 0x3f803f80')
    o(f'v_cndmask_b32 v{SA}, v{SA}, v9, s[50:51]')
    for j in range(1, 4): o(f'v_mov_b32 v{SA+j}, v{SA}')
    masks = [0xAAAAAAAA, 0xCCCCCCCC, 0xFF00FF00, 0xFFFF0000, 0xF0F0F0F0]
    for r, m in zip([52, 54, 56, 58, 72], masks): o(f's_mov_b32 s{r}, {hex(m)}\ns_mov_b32 s{r+1}, {hex(m)}')
    if merged:
        import kdm
        kdm.wsetup(o)
    vm.wait('w0')
    o('s_barrier')
    if stamps: o('s_memtime s[62:63]')
    later = []
    for t in (1, 2): later += w_dma_ops(t, f'w{t}')
    def reads(k):
        vm.wait(f'h{k}')
        hb = HF + 4 * k
        o(f'ds_read_b64_tr_b16 v[{hb}:{hb+1}], v{vTR} offset:{k * 1024}')
        o(f'ds_read_b64_tr_b16 v[{hb+2}:{hb+3}], v{vTR} offset:{k * 1024 + 256}')
    QA = ACC[1]
    cb0 = WB + 4 * (28 % NWB)
    nissued = AH0
    reads(0); w_read(o, WB, 0, 0)
    h_dma(nissued); nissued += 1
    reads(1); w_read(o, WB + 4, 0, 1)
    h_dma(nissued); nissued += 1
    for k in range(28):
        hb = HF + 4 * k; wb = WB + 4 * (k % NWB)
        z = lambda r, n: '0' if k == 0 else f'v[{r}:{r+n-1}]'
        o(f's_waitcnt lgkmcnt({3 if k < 27 else 0})')
        o(f'v_mfma_f32_32x32x16_bf16 v[{ACC[0]}:{ACC[0]+15}], v[{wb}:{wb+3}], v[{hb}:{hb+3}], {z(ACC[0], 16)}')
        if k + 2 < 28: reads(k + 2)
        if not X_NOSTAT: o(f'v_mfma_f32_32x32x16_bf16 v[{QA}:{QA+15}], v[{hb}:{hb+3}], v[{hb}:{hb+3}], {z(QA, 16)}')
        if k + 2 < 28: w_read(o, WB + 4 * ((k + 2) % NWB), 0, k + 2)
        elif k == 26: w_read(o, cb0, 0, 28)
        ndma = 0
        while nissued < 28 and (nissued <= k + AH) and ndma < 2:
            h_dma(nissued); nissued += 1; ndma += 1
        if not X_NOSTAT: o(f'v_mfma_f32_16x16x32_bf16 v[{SD}:{SD+3}], v[{SA}:{SA+3}], v[{hb}:{hb+3}], {z(SD, 4)}')
        if nissued >= 28 and ndma == 0 and later:
            emit_group(later.pop(0))
    if stamps: o('s_memtime s[64:65]')
    while later: emit_group(later.pop(0))
    if merged and FLAG_TOUCH:
        srd(o, 84, 4, 0x10000)
        o(f's_lshl_b32 s43, s27, 4\ns_add_u32 s43, s43, s28\ns_lshl_b32 s43, s43, 6\ns_add_u32 s43, s43, {WS_FLAG}')
        o('v_mov_b32 v246, 0')
        o('s_mov_b64 exec, 1')
        o('buffer_load_dword v247, v246, s[84:87], s43 offen sc1'); vm.issue('ft')
        o('s_mov_b64 exec, -1')
    o('s_min_u32 s41, s28, 13')
    def tree(lo, hi, path):
        if hi - lo == 1:
            for q in range(2):
                kk = 2 * lo + q; hb = HF + 4 * kk
                o(f'buffer_store_dwordx4 v[{hb}:{hb+3}], v{vHN}, s[20:23], 0 offen offset:{kk * 32} {ST}')
            o('s_branch LC_hn_done')
            return
        mid = (lo + hi) // 2
        o(f's_cmp_ge_u32 s41, {mid}')
        o(f's_cbranch_scc1 LC_hn_{path}1')
        tree(lo, mid, path + '0')
        o.label(f'LC_hn_{path}1')
        tree(mid, hi, path + '1')
    tree(0, 14, 'p')
    o.label('LC_hn_done')
    vm.issue('hn'); vm.issue('hn')
    o('s_nop 7')
    for j in range(8): o(f'v_cndmask_b32 v{T+j}, v{QA+2*j}, v{QA+2*j+1}, s[52:53]')
    for j in range(4): o(f'v_cndmask_b32 v{T+j}, v{T+2*j}, v{T+2*j+1}, s[54:55]')
    for j in range(2): o(f'v_cndmask_b32 v{T+j}, v{T+2*j}, v{T+2*j+1}, s[56:57]')
    o(f'v_cndmask_b32 v{vQ}, v{T}, v{T+1}, s[58:59]')
    o(f'v_mov_b32 v{vT0}, v{vQ}')
    o(f'v_mov_b32 v{vT1}, v{SD}')
    o(f'v_mov_b32 v{vS}, v{SD+1}')
    o('s_nop 0')
    o(f'v_permlane32_swap_b32 v{vQ}, v{vT0}')
    o(f'v_permlane16_swap_b32 v{vT1}, v{vS}')
    o('s_nop 1')
    o(f'v_cndmask_b32 v{vQ}, v{vQ}, v{vT0}, s[72:73]')
    o(f'v_mov_b32 v{vS}, v{vT1}')
    o('s_nop 1')
    o(f'v_permlane32_swap_b32 v{vS}, v{vT1}')
    o('s_nop 1')
    o(f's_mov_b32 s40, {hex(0x3b124925)}')
    o(f'v_mul_f32 v{vS}, s40, v{vS}')
    o(f'v_mul_f32 v{vQ}, s40, v{vQ}')
    o(f'v_fma_f32 v{vQ}, -v{vS}, v{vS}, v{vQ}')
    o(f'v_max_f32 v{vQ}, 0, v{vQ}')
    o(f'v_cvt_pk_bf16_f32 v{vT0}, v{vS}, v{vQ}')
    o(f'v_and_b32 v{vT1}, 0xffff0000, v{vT0}')
    o(f'v_add_f32 v{vT1}, {hex(0x3727c5ac)}, v{vT1}')
    o(f'v_cvt_pk_bf16_f32 v{vT1}, v{vT1}, v{vT1}')
    o(f'v_and_b32 v{vT1}, 0xffff0000, v{vT1}')
    o(f'v_sqrt_f32 v{vT1}, v{vT1}')
    o('s_nop 0')
    o(f'v_cvt_pk_bf16_f32 v{vT1}, v{vT1}, v{vT1}')
    o(f'v_and_b32 v{vSB}, 0xffff0000, v{vT1}')
    o(f'v_rcp_f32 v{vC1}, v{vSB}')
    o(f'v_and_b32 v{vT0}, 0xffff, v{vT0}')
    o(f'v_xor_b32 v{vT0}, 0x8000, v{vT0}')
    o(f'v_mul_f32 v{vC1}, {hex(0xbfb8aa3b)}, v{vC1}')
    o(f'v_mov_b32 v{BC+1}, 0')
    o(f'v_mov_b32 v{BC+2}, 0')
    o(f'v_mov_b32 v{BC+3}, 0')
    o(f'v_lshl_or_b32 v{BC}, v{vT0}, 16, v{vT0}')
    o('s_nop 0')
    o('s_waitcnt lgkmcnt(0)')
    o(f'v_mfma_f32_32x32x16_bf16 v[{ACC[0]}:{ACC[0]+15}], v[{cb0}:{cb0+3}], v[{BC}:{BC+3}], v[{ACC[0]}:{ACC[0]+15}]')
    vm.wait('w1')
    o('s_barrier')
    if stamps: o('s_memtime s[66:67]')
    PF = 7; WE = 4
    bi = 29 % NWB
    seq = [(t, kk) for t in range(1, 7) for kk in range(29)]
    bufof = {}
    for i, (t, kk) in enumerate(seq): bufof[(t, kk)] = WB + 4 * ((bi + i) % NWB)
    for i in range(PF):
        t, kk = seq[i]; w_read(o, bufof[(t, kk)], t, kk)
    fill = []; dmaq = []
    wq = []
    if merged:
        import kdm
        wq = [kdm.wload_ops(k) for k in range(kdm.NPRE)]
    waited_upto = -1
    for i, (t, kk) in enumerate(seq):
        acc = ACC[t & 1]
        if kk == 0:
            assert not fill, fill
            fill = epilogue_gaps(ACC[(t - 1) & 1]) + [('store', t - 1)]
        if kk == 0 and t + 2 <= 6: dmaq += w_dma_ops(t + 2, f'w{t+2}')
        if PF_WD and not merged and t == 5 and kk == 8:
            srd(o, 76, 4, WD_BYTES, WS_WD)
            o('s_lshl_b32 s43, s26, 2\ns_add_u32 s43, s43, s24\ns_mul_i32 s43, s43, 12544')
            o('v_lshlrev_b32 v240, 7, v0')
            o('buffer_load_dword v244, v240, s[76:79], s43 offen'); vm.issue('pf')
            o('s_add_u32 s43, s43, 8192')
            o('s_mov_b32 exec_hi, 3')
            o('buffer_load_dword v245, v240, s[76:79], s43 offen'); vm.issue('pf')
            o('s_mov_b32 exec_hi, -1')
        if PF_WD and merged and kk == 8 and t <= PF_N:
            per = -(-98 // PF_N)
            if t == 1:
                o('s_lshl_b32 s43, s26, 2\ns_add_u32 s43, s43, s24\ns_mul_i32 s43, s43, 12544')
                o('v_lshlrev_b32 v240, 7, v0')
            n = min(per, 98 - per * (t - 1))
            o(f's_mov_b64 exec, {hex((1 << n) - 1)}')
            o(f'buffer_load_dword v{244 + (t & 1)}, v240, s[76:79], s43 offen'); vm.issue('pf')
            o('s_mov_b64 exec, -1')
            o(f's_add_u32 s43, s43, {per * 128}')
        if kk == 29 - PF - 1 and t + 1 <= 6:
            if not X_NOBAR:
                vm.wait(f'w{t+1}')
                o('s_barrier')
        nxt = i + PF
        if nxt < len(seq) and not X_NOREAD:
            t2, k2 = seq[nxt]; w_read(o, bufof[(t2, k2)], t2, k2)
        if i > waited_upto and not X_NOREAD:
            last_issued = min(nxt, len(seq) - 1)
            upto = min(i + WE - 1, len(seq) - 1)
            o(f's_waitcnt lgkmcnt({last_issued - upto})')
            waited_upto = upto
        wb = bufof[(t, kk)]
        bop = f'v[{HF+4*kk}:{HF+4*kk+3}]' if kk < 28 else f'v[{BC}:{BC+3}]'
        c = '0' if kk == 0 else f'v[{acc}:{acc+15}]'
        o(f'v_mfma_f32_32x32x16_bf16 v[{acc}:{acc+15}], v[{wb}:{wb+3}], {bop}, {c}')
        if merged and WSPREAD and wq and i % WSPREAD == WSPREAD - 1:
            for op in wq.pop(0): o(op)
            vm.issue('wp'); vm.issue('wp')
        if merged and not WSPREAD and t >= 5 and (kk < 4 or not fill) and wq:
            for _ in range(WPER):
                if wq:
                    for op in wq.pop(0): o(op)
                    vm.issue('wp'); vm.issue('wp')
        elif dmaq:
            g = dmaq.pop(0)
            if not X_NODMA: emit_group(g)
        elif 5 <= kk and fill:
            g = fill.pop(0)
            if isinstance(g, tuple):
                o(f's_add_u32 s42, s31, {g[1] * 1024}')
                o(f'buffer_store_dwordx4 v[{PK}:{PK+3}], v{vLane16}, s[16:19], s42 offen {ST}'); vm.issue('hs')
            elif not X_NOEPI:
                for op in g: o(op)
    assert not fill and not dmaq and not wq, (fill, dmaq, wq)
    if stamps: o('s_memtime s[68:69]')
    o('s_nop 7'); o('s_nop 7')
    for cst, op in epilogue_ops(ACC[6 & 1]): o(op)
    o(f's_add_u32 s42, s31, {6 * 1024}')
    o(f'buffer_store_dwordx4 v[{PK}:{PK+3}], v{vLane16}, s[16:19], s42 offen {ST}'); vm.issue('hs')
    if merged:
        import kdm
        kdm.gen_dphase(o, vm, stamps)
        return
    if stamps:
        o('s_waitcnt vmcnt(0)')
        o('s_memtime s[70:71]')
        o('s_waitcnt lgkmcnt(0)')
        o('s_sub_u32 s70, s70, s74\ns_sub_u32 s68, s68, s74\ns_sub_u32 s66, s66, s74\ns_sub_u32 s64, s64, s74\ns_sub_u32 s62, s62, s74')
        o('v_mov_b32 v16, s62\nv_mov_b32 v17, s64\nv_mov_b32 v18, s66\nv_mov_b32 v19, s68\nv_mov_b32 v20, s70\nv_mov_b32 v21, 0\nv_mov_b32 v22, 0\nv_mov_b32 v23, 0')
        srd(o, 8, 4, 0x10000, 0x1800000)
        o('s_lshl_b32 s43, s2, 2\ns_add_u32 s43, s43, s24\ns_lshl_b32 s43, s43, 5')
        o('v_mov_b32 v24, s43')
        o('s_mov_b64 exec, 1')
        o('buffer_store_dwordx4 v[16:19], v24, s[8:11], 0 offen')
        o('buffer_store_dwordx4 v[20:23], v24, s[8:11], 0 offen offset:16')
    o.label('LC_end')
    o('s_endpgm')
def desc_c(): return kernel_desc(NAME, 248, 84)
def launch_c(): return f'; @launch kernel={NAME} grid=(256,1,1) block=(256,1,1) lds={LDS_BYTES}'

def desc_f(): return kernel_desc(FNAME, 256 + 224, 96, accum=256)
def launch_f(): return f'; @launch kernel={FNAME} grid=(256,1,1) block=(256,1,1) lds={LDS_BYTES}'
```

```python
import sys, build, kab, kc, kd, kdm
kab.ST = 'sc1'
body = build.make(['ab', 'f'])
lines = body.split('\n')
launch = [l for l in lines if l.startswith('; @launch')]
rest = lines[len(launch):]
ref = open('sequential_preLN__ssm_conv_s4__glu_gated_glu__prompt.s.ref').read().split('\n')
layout = [l for l in ref if l.startswith(';   offset') or l.startswith('; Kernarg layout')]
head = layout + '''; ---------------------------------------------------------------------------------------------------------------
; Two launches (text below is produced by my own generator scripts, all scheduling is static):
;
; ssm_kernel (256 workgroups x 512 threads).  224 workgroups own two channels each:
;   * S4 kernel K[d, l] = Re sum_n C dB exp(dt A l') for l' = bf16(l): the 641 distinct positions are written as x + 8 j,
;     the two factor tables (30 rows W exp(a x), 32 rows exp(8 a j)) are generated per mode by complex recurrences in
;     fp32, contracted over the 256 modes with MFMA, and expanded by the bf16 rounding pattern of l into two shifted copies.
;   * LayerNorm 1: row statistics (8 rows per workgroup) and a transposed 64 x 64 tile of x are handed to all other
;     workgroups through d_ws.  Every handed word is validated against a per-run tag (epoch word in d_ws advanced once per
;     run, d_debug counts its readers), so stale words of an earlier run are never taken.
;   * causal convolution as a Toeplitz MFMA product (16x16x32), h = x + y + ln * Dskip written as [l/32][d][32].
;   * side work: w_gate / w_up / w_down repacked into MFMA fragment order; 32 workgroups compute weight column sums.
; ffn_kernel (256 workgroups x 256 threads):
;   * gate/up GEMM on raw h (128 rows x 112 hidden units per workgroup), LayerNorm 2 applied through
;     r * (h W - mean * colsum(W)); row statistics from MFMA (Gram diagonal, row sums); sigmoid gate; H in fragment order.
;   * hand-off of H between workgroups by tagged flags, then the down projection (64 x 64 tile, K split over the waves,
;     w_down fragments prefetched into the accumulator registers), residual add, output.
; ---------------------------------------------------------------------------------------------------------------'''.split('\n') + launch
txt = '\n'.join(head + rest)
open(sys.argv[1], 'w').write(txt)
print(len(txt), 'bytes')
```
